```python
import torch

def _softmax(x, axis=-1):
    return torch.softmax(x, dim=axis)
def _gelu(x):
    return torch.nn.functional.gelu(x, approximate="tanh")
def _silu(x):
    return torch.nn.functional.silu(x)
def _sigmoid(x):
    return torch.sigmoid(x)
def _layernorm(x, axis=-1, eps=1e-5):
    m = x.mean(dim=axis, keepdim=True)
    v = x.var(dim=axis, keepdim=True, unbiased=False)
    return (x - m) / torch.sqrt(v + eps)
def _scatter_add(tgt, idx, src, axis=0):
    return tgt.clone().index_add_(axis, idx, src)
def _segment_sum(src, seg, n):
    out = torch.zeros((n,) + src.shape[1:], dtype=src.dtype)
    return out.index_add_(0, seg, src)
def _pad(x, pw):
    flat = tuple(v for pair in reversed(pw) for v in pair)
    return torch.nn.functional.pad(x, flat)

kernel_name = 'parallel_sum__linear_kernel_hedgehog__mixer_channel_mlp__prompt'

def setup_inputs():

    _w = (lambda a: (lambda t: t.to(torch.bfloat16) if t.is_floating_point() else t)(torch.as_tensor(a)))
    def _A_setup():
        B, S, D, H = 1, 2048, 640, 32
        Dh = D // H
        return {
            "x": _w((lambda *s: torch.randn(*s, dtype=torch.bfloat16) * 0.05)(B, S, D)),
            "wqkv": _w((lambda *s: torch.randn(*s, dtype=torch.bfloat16) * 0.2)(D, 3 * D)),
            "w_phi": _w((lambda *s: torch.randn(*s, dtype=torch.bfloat16) * 0.2)(H, Dh, Dh) * (Dh ** -0.5)),
            "wo": _w((lambda *s: torch.randn(*s, dtype=torch.bfloat16) * 0.05)(D, D)),
        }
    _A_in = _A_setup()

    def _B_setup():
        B, S, D, F = 1, 2048, 640, 1728
        return {
            "x": _w((lambda *s: torch.randn(*s, dtype=torch.bfloat16) * 0.05)(B, S, D)),
            "w1": _w((lambda *s: torch.randn(*s, dtype=torch.bfloat16) * 3.2)(D, F) * (D ** -0.5)),
            "b1": _w((lambda *s: torch.randn(*s, dtype=torch.bfloat16) * 1.6)(F)),
            "w2": _w((lambda *s: torch.randn(*s, dtype=torch.bfloat16) * 0.05)(F, D) * (F ** -0.5)),
            "b2": _w((lambda *s: torch.randn(*s, dtype=torch.bfloat16) * 0.05)(D)),
        }
    _B_in = _B_setup()

    return {
        "A_x": _A_in["x"],
        "A_wqkv": _A_in["wqkv"],
        "A_w_phi": _A_in["w_phi"],
        "A_wo": _A_in["wo"],
        "B_x": _B_in["x"],
        "B_w1": _B_in["w1"],
        "B_b1": _B_in["b1"],
        "B_w2": _B_in["w2"],
        "B_b2": _B_in["b2"],
    }

def reference(A_x, A_wqkv, A_w_phi, A_wo, B_x, B_w1, B_b1, B_w2, B_b2):
    def _A_ref(x, wqkv, w_phi, wo):
        B, S, D = x.shape
        H = 32; Dh = D // H
        qkv = (lambda x, *d: x.permute(*d))((x @ wqkv).reshape(B, S, 3, H, Dh), 2, 0, 3, 1, 4)
        q, k, v = qkv[0], qkv[1], qkv[2]
        pq = torch.einsum("bhsd,hdf->bhsf", q, w_phi)
        pk = torch.einsum("bhsd,hdf->bhsf", k, w_phi)
        phi_q = torch.concatenate([_softmax(pq, axis=-1), _softmax(-pq, axis=-1)], axis=-1)
        phi_k = torch.concatenate([_softmax(pk, axis=-1), _softmax(-pk, axis=-1)], axis=-1)
        kv = torch.einsum("bhsf,bhsd->bhfd", phi_k, v)
        z  = torch.einsum("bhsf->bhf", phi_k)
        num = torch.einsum("bhqf,bhfd->bhqd", phi_q, kv)
        den = torch.einsum("bhqf,bhf->bhq", phi_q, z)[..., None] + 1e-6
        o = num / den
        return (lambda x, *d: x.permute(*d))(o, 0, 2, 1, 3).reshape(B, S, D) @ wo

    def _B_ref(x, w1, b1, w2, b2):
        y = _layernorm(x, axis=-1)
        h = _gelu(torch.einsum("bsd,df->bsf", y, w1) + b1)
        return torch.einsum("bsf,fd->bsd", h, w2) + b2

    x = A_x
    xn = _layernorm(x, axis=-1)
    return x + _A_ref(xn, A_wqkv, A_w_phi, A_wo) + _B_ref(xn, B_w1, B_b1, B_w2, B_b2)
```

```python
from kb import K
import layout as L

def srd(k, s, lo, hi, size):
    k(f"""
  s_mov_b32 s{s}, s{lo}
  s_and_b32 s{s+1}, s{hi}, 0xffff
  s_mov_b32 s{s+2}, {size}
  s_mov_b32 s{s+3}, 0x20000""")

def stats_job(k, gw_s, sx, sws, v0=8):
    v = v0
    k(f"""
  v_lshrrev_b32 v{v}, 5, v1                  ; hh
  v_and_b32 v{v+1}, 31, v1                   ; n
  s_lshl_b32 s60, s{gw_s}, 1
  v_add_u32 v{v+2}, s60, v{v}                ; token
  v_mul_u32_u24 v{v+3}, 1280, v{v+2}
  v_lshl_add_u32 v{v+3}, v{v+1}, 3, v{v+3}   ; voff""")
    for r in range(5):
        k.vmem(f"  buffer_load_dwordx2 v[{v+4+2*r}:{v+5+2*r}], v{v+3}, s[{sx}:{sx+3}], 0 offen offset:{256*r}", "st")
    k.wait_vm("st")
    U = v + 16
    for d in range(10):
        k(f"  v_lshlrev_b32 v{U+2*d}, 16, v{v+4+d}\n  v_and_b32 v{U+2*d+1}, 0xffff0000, v{v+4+d}")
    S = v + 36; T = v + 37
    k(f"  v_add_f32 v{S}, v{U}, v{U+1}")
    for i in range(2, 20):
        k(f"  v_add_f32 v{S}, v{S}, v{U+i}")
    def reduce32():
        for r in (8, 4, 2, 1):
            k(f"  v_add_f32_dpp v{S}, v{S}, v{S} row_ror:{r} row_mask:0xf bank_mask:0xf")
        k(f"  ds_swizzle_b32 v{T}, v{S} offset:0x401F\n  s_waitcnt lgkmcnt(0)\n  v_add_f32 v{S}, v{S}, v{T}")
    reduce32()
    M = v + 38
    k(f"  v_mul_f32 v{M}, {1.0/640.0!r}, v{S}")
    for i in range(20):
        k(f"  v_sub_f32 v{U+i}, v{U+i}, v{M}")
    k(f"  v_mul_f32 v{S}, v{U}, v{U}")
    for i in range(1, 20):
        k(f"  v_fmac_f32 v{S}, v{U+i}, v{U+i}")
    reduce32()
    O = v + 40
    k(f"""
  v_mul_f32 v{S}, {1.0/640.0!r}, v{S}
  v_add_f32 v{T}, 0x3727c5ac, v{S}
  v_rsq_f32 v{O+1}, v{T}
  v_mov_b32 v{O}, v{M}
  v_mul_f32 v{T}, v{O+1}, v{O+1}
  v_mul_f32 v{T}, v{T}, v{S}
  v_add_f32 v{T}, 0x3727c5ac, v{T}
  v_rsq_f32 v{T}, v{T}
  v_mov_b32 v{O+3}, 0
  v_mul_f32 v{O+2}, v{O+1}, v{T}
  v_lshlrev_b32 v{v+3}, 4, v{v+2}            ; token*16
  v_add_u32 v{v+3}, {L.WS_STATS}, v{v+3}
  v_cmp_eq_u32 vcc, 0, v{v+1}
  v_mov_b32 v{T}, 0x7fffffff
  v_cndmask_b32 v{v+3}, v{T}, v{v+3}, vcc""")
    k.vmem(f"  buffer_store_dwordx4 v[{O}:{O+3}], v{v+3}, s[{sws}:{sws+3}], 0 offen", "sto")

def cs_job(k, y_s, swq, sw1, sws, ldsbase_s, v0=8, stmp=40):
    v = v0; t = stmp
    k(f"""
  s_mul_i32 s{t}, s{y_s}, 6554
  s_lshr_b32 s{t}, s{t}, 16                  ; u = y/10
  s_mul_i32 s{t+1}, s{t}, 10
  s_sub_u32 s{t+1}, s{y_s}, s{t+1}           ; kappa
  s_cmp_lt_u32 s{t}, 30
  s_cselect_b32 s{t+4}, s{swq}, s{sw1}
  s_cselect_b32 s{t+5}, s{swq+1}, s{sw1+1}
  s_cselect_b32 s{t+6}, s{swq+2}, s{sw1+2}
  s_mov_b32 s{t+7}, 0x20000
  s_mov_b32 s{t+2}, 3456
  s_cmov_b32 s{t+2}, 3840                    ; stride
  s_cselect_b32 s{t+3}, 0, 30
  s_sub_u32 s{t+3}, s{t}, s{t+3}
  s_lshl_b32 s{t+3}, s{t+3}, 7
  s_mul_i32 s{t+8}, s{t+1}, s{t+2}
  s_lshl_b32 s{t+8}, s{t+8}, 6               ; kappa*64*stride
  s_add_u32 s{t+8}, s{t+8}, s{t+3}           ; soffset
  s_lshl_b32 s{t+9}, s{t+2}, 3               ; 8*stride
  v_lshrrev_b32 v{v}, 3, v1                  ; row
  v_lshrrev_b32 v{v+1}, 1, v{v}
  v_and_b32 v{v+1}, 1, v{v+1}
  v_lshlrev_b32 v{v+1}, 2, v{v+1}
  v_and_b32 v{v+2}, 7, v1
  v_xor_b32 v{v+2}, v{v+2}, v{v+1}
  v_mul_lo_u32 v{v+3}, v{v}, s{t+2}
  v_lshl_add_u32 v{v+3}, v{v+2}, 4, v{v+3}   ; voff
  s_mov_b32 m0, s{ldsbase_s}""")
    for i in range(8):
        k.vmem(f"  buffer_load_dwordx4 v{v+3}, s[{t+4}:{t+7}], s{t+8} offen lds", "cs")
        if i < 7:
            k(f"  s_add_u32 m0, m0, 1024\n  s_add_u32 s{t+8}, s{t+8}, s{t+9}")
    k(f"""
  v_lshrrev_b32 v{v}, 4, v1                  ; G
  v_lshrrev_b32 v{v+1}, 2, v1
  v_and_b32 v{v+1}, 3, v{v+1}                ; r
  v_and_b32 v{v+2}, 3, v1                    ; c
  v_lshrrev_b32 v{v+4}, 1, v{v}
  v_lshl_add_u32 v{v+4}, v{v+4}, 3, v{v+1}   ; row
  v_lshlrev_b32 v{v+4}, 7, v{v+4}
  v_and_b32 v{v+5}, 1, v{v}
  v_lshlrev_b32 v{v+5}, 1, v{v+5}
  v_lshrrev_b32 v{v+6}, 1, v{v+2}
  v_add_u32 v{v+5}, v{v+5}, v{v+6}
  v_lshrrev_b32 v{v+6}, 1, v{v+1}
  v_lshlrev_b32 v{v+6}, 2, v{v+6}            ; 4*(r>>1)
  v_and_b32 v{v+7}, 1, v{v+2}
  v_lshl_add_u32 v{v+4}, v{v+7}, 3, v{v+4}
  v_add_u32 v{v+4}, s{ldsbase_s}, v{v+4}
  v_xor_b32 v{v+7}, v{v+5}, v{v+6}
  v_lshl_add_u32 v{v+8}, v{v+7}, 4, v{v+4}   ; addr b=0
  v_xor_b32 v{v+7}, 4, v{v+7}
  v_lshl_add_u32 v{v+9}, v{v+7}, 4, v{v+4}   ; addr b=1""")
    ONE = v + 12; FR = v + 16; ACC = v + 48
    for i in range(4): k(f"  v_mov_b32 v{ONE+i}, 0x3f803f80")
    for i in range(32): k(f"  v_mov_b32 v{ACC+i}, 0")
    k.wait_vm("cs")
    for ks in range(4):
        for b in range(2):
            for tt in range(2):
                d = FR + (ks*2 + b)*4 + 2*tt
                k(f"  ds_read_b64_tr_b16 v[{d}:{d+1}], v{v+8+b} offset:{ks*2048 + tt*512}")
    k("  s_waitcnt lgkmcnt(0)")
    for ks in range(4):
        for b in range(2):
            d = FR + (ks*2 + b)*4
            k(f"  v_mfma_f32_32x32x16_bf16 v[{ACC+16*b}:{ACC+16*b+15}], v[{ONE}:{ONE+3}], v[{d}:{d+3}], v[{ACC+16*b}:{ACC+16*b+15}]")
    k(f"""
  s_mul_i32 s{t+8}, s{t+1}, {L.NCOL*4}
  s_lshl_b32 s{t+9}, s{t}, 8                 ; u*64*4
  s_add_u32 s{t+8}, s{t+8}, s{t+9}
  s_add_u32 s{t+8}, s{t+8}, {L.WS_CSP}
  v_lshlrev_b32 v{v}, 2, v1
  v_cmp_gt_u32 vcc, 32, v1
  v_mov_b32 v{v+1}, 0x7fffffff
  v_cndmask_b32 v{v}, v{v+1}, v{v}, vcc""")
    for b in range(2):
        k.vmem(f"  buffer_store_dword v{ACC+16*b}, v{v}, s[{sws}:{sws+3}], s{t+8} offen offset:{128*b}", "sto")

def sw_job(k, y_s, sw2, swo, sws, ldsbase_s, v0=8, stmp=40):
    v = v0; t = stmp
    k(f"""
  s_mul_i32 s{t}, s{y_s}, 6554
  s_lshr_b32 s{t}, s{t}, 16                  ; s
  s_mul_i32 s{t+1}, s{t}, 10
  s_sub_u32 s{t+1}, s{y_s}, s{t+1}           ; lambda
  s_cmp_lt_u32 s{t}, 54
  s_cselect_b32 s{t+4}, s{sw2}, s{swo}
  s_cselect_b32 s{t+5}, s{sw2+1}, s{swo+1}
  s_cselect_b32 s{t+6}, s{sw2+2}, s{swo+2}
  s_mov_b32 s{t+7}, 0x20000
  v_lshrrev_b32 v{v}, 3, v1                  ; e
  v_and_b32 v{v+1}, 7, v1                    ; chunk
  s_lshl_b32 s{t+2}, s{t+1}, 7               ; lambda*128
  v_lshl_add_u32 v{v+1}, v{v+1}, 4, s{t+2}
  s_cmp_lt_u32 s{t}, 54
  s_cbranch_scc0 {k.L('sw_wo')}
  ; W2: row = 32 s + 16 (i&1) + 8 (e>>2) + 4 (i>>1) + (e&3)
  v_lshrrev_b32 v{v+2}, 2, v{v}
  v_lshlrev_b32 v{v+2}, 3, v{v+2}
  v_and_b32 v{v+3}, 3, v{v}
  v_add_u32 v{v+2}, v{v+2}, v{v+3}
  s_lshl_b32 s{t+3}, s{t}, 5
  v_add_u32 v{v+2}, s{t+3}, v{v+2}""")
    for i in range(4):
        k(f"  v_add_u32 v{v+4+i}, {16*(i&1) + 4*(i>>1)}, v{v+2}")
    k(f"""
  s_branch {k.L('sw_go')}
{k.L('sw_wo')}:
  s_sub_u32 s{t+3}, s{t}, 54                 ; sigma
  s_mul_i32 s{t+8}, s{t+3}, 52
  s_lshr_b32 s{t+8}, s{t+8}, 8               ; p = sigma/5
  s_mul_i32 s{t+9}, s{t+8}, 5
  s_sub_u32 s{t+9}, s{t+3}, s{t+9}           ; sigma'
  s_lshl_b32 s{t+9}, s{t+9}, 3
  v_add_u32 v{v+2}, s{t+9}, v{v}             ; pos
  v_cmp_le_u32 vcc, 20, v{v+2}
  v_cndmask_b32 v{v+3}, 0, 1, vcc            ; pos>=20
  v_mul_u32_u24 v{v+8}, 20, v{v+3}
  v_sub_u32 v{v+2}, v{v+2}, v{v+8}           ; d
  s_lshl_b32 s{t+8}, s{t+8}, 1
  v_add_u32 v{v+3}, s{t+8}, v{v+3}           ; jj
  v_mul_u32_u24 v{v+3}, 80, v{v+3}
  v_add_u32 v{v+2}, v{v+2}, v{v+3}           ; 80*jj + d""")
    for i in range(4):
        k(f"  v_add_u32 v{v+4+i}, {20*i}, v{v+2}")
    k(f"{k.L('sw_go')}:")
    for i in range(4):
        k(f"  v_mul_u32_u24 v{v+4+i}, 1280, v{v+4+i}\n  v_add_u32 v{v+4+i}, v{v+4+i}, v{v+1}")
    k(f"  s_mov_b32 m0, s{ldsbase_s}")
    for i in range(4):
        k.vmem(f"  buffer_load_dwordx4 v{v+4+i}, s[{t+4}:{t+7}], 0 offen lds", "sw")
        if i < 3: k("  s_add_u32 m0, m0, 1024")
    k(f"""
  v_lshrrev_b32 v{v}, 4, v1                  ; g
  v_lshrrev_b32 v{v+1}, 2, v1
  v_and_b32 v{v+1}, 3, v{v+1}                ; r
  v_lshl_add_u32 v{v}, v{v}, 3, v{v+1}
  v_lshlrev_b32 v{v}, 7, v{v}
  v_and_b32 v{v+1}, 3, v1
  v_lshl_add_u32 v{v}, v{v+1}, 3, v{v}
  v_add_u32 v{v}, s{ldsbase_s}, v{v}
  v_lshlrev_b32 v{v+1}, 4, v1                ; lane*16""")
    k.wait_vm("sw")
    FR = v + 16
    for b in range(4):
        for tt in range(2):
            d = FR + 4*b + 2*tt
            k(f"  ds_read_b64_tr_b16 v[{d}:{d+1}], v{v} offset:{32*b + 512*tt}")
    k("  s_waitcnt lgkmcnt(0)")
    for b in range(4):
        k(f"""
  s_lshl_b32 s{t+8}, s{t+1}, 2
  s_add_u32 s{t+8}, s{t+8}, {b}              ; beta
  s_mul_i32 s{t+9}, s{t+8}, 13
  s_lshr_b32 s{t+9}, s{t+9}, 6               ; j
  s_mul_i32 s{t+10}, s{t+9}, 5
  s_sub_u32 s{t+10}, s{t+8}, s{t+10}         ; cb
  s_mul_i32 s{t+9}, s{t+9}, 74
  s_add_u32 s{t+9}, s{t+9}, s{t}
  s_mul_i32 s{t+9}, s{t+9}, 5
  s_add_u32 s{t+9}, s{t+9}, s{t+10}
  s_lshl_b32 s{t+9}, s{t+9}, 10
  s_add_u32 s{t+9}, s{t+9}, {L.WS_W2}""")
        k.vmem(f"  buffer_store_dwordx4 v[{FR+4*b}:{FR+4*b+3}], v{v+1}, s[{sws}:{sws+3}], s{t+9} offen", "sto")

def build_k0(name):
    k = K(name)
    k(f"""
  s_cmp_ge_u32 s2, 256
  s_cbranch_scc1 {k.L('end')}
  s_load_dwordx4 s[4:7], s[0:1], 0
  s_load_dwordx2 s[8:9], s[0:1], 24
  s_load_dwordx2 s[10:11], s[0:1], 40
  s_load_dwordx2 s[12:13], s[0:1], 56
  s_load_dwordx2 s[14:15], s[0:1], 88
  v_and_b32 v1, 63, v0
  v_lshrrev_b32 v2, 6, v0
  v_readfirstlane_b32 s3, v2
  s_lshl_b32 s36, s2, 2
  s_add_u32 s36, s36, s3                     ; gw
  s_lshl_b32 s37, s3, 13
  s_waitcnt lgkmcnt(0)""")
    srd(k, 16, 4, 5, 2621440)
    srd(k, 20, 6, 7, 2457600)
    srd(k, 24, 10, 11, 2211840)
    srd(k, 28, 12, 13, 2211840)
    srd(k, 32, 8, 9, 819200)
    srd(k, 64, 14, 15, L.WS_END)
    stats_job(k, 36, 16, 64)
    k(f"""
  s_mul_i32 s38, s36, 160
  s_add_u32 s38, s38, {L.WS_KV}
  v_lshlrev_b32 v8, 4, v1
  v_cmp_gt_u32 vcc, 10, v1
  v_mov_b32 v9, 0x7fffffff
  v_cndmask_b32 v8, v9, v8, vcc
  v_mov_b32 v12, 0
  v_mov_b32 v13, 0
  v_mov_b32 v14, 0
  v_mov_b32 v15, 0""")
    k.vmem("  buffer_store_dwordx4 v[12:15], v8, s[64:67], s38 offen", "sto")
    k(f"  s_cmp_lt_u32 s36, 570\n  s_cbranch_scc0 {k.L('nocs')}")
    cs_job(k, 36, 20, 24, 64, 37)
    k.wait_vm_all()
    k(f"{k.L('nocs')}:")
    k.vm = []
    k(f"  s_cmp_ge_u32 s36, 284\n  s_cbranch_scc0 {k.L('end')}\n  s_sub_u32 s39, s36, 284")
    sw_job(k, 39, 28, 32, 64, 37)
    k(f"{k.L('end')}:\n  s_endpgm")
    return dict(name=name, body=k.text(), vgpr=128, sgpr=96, maxwg=256)

if __name__ == "__main__":
    import asmlib
    for y in range(740):
        assert (y*6554) >> 16 == y//10
    for b in range(40): assert (b*13) >> 6 == b//5, b
    for s in range(20): assert (s*52) >> 8 == s//5
    asmlib.build("k0t", [build_k0("k0_kernel")])
    print("ok")
```

```python
from kb import K
import layout as L
from g_k0 import srd

XR = 0; WR = 49152; TT = 147456; ST = 151552; WP = 153600; ZR = 157696; LDS_A = 163840
PHI = 0; PHI_P = 336; VV = 45056; VV_P = 208
LOG2E = 1.4426950408889634
C0 = -2.0*0.7978845608028654*LOG2E
C1 = C0*0.044715
def fl(x):
    import struct
    return "0x%08x" % struct.unpack("<I", struct.pack("<f", x))[0]

VXA = [4, 5, 6, 7]
VWA = [[8, 9, 10, 11], [12, 13, 14, 15]]
FX = [[80, 84], [104, 108]]
FW = [[88, 92, 96, 100], [112, 116, 120, 124]]
ACC = 128
def acc(tb, b): return ACC + tb*64 + b*16

def decode_roles(k):
    k(f"""
  v_lshrrev_b32 v2, 6, v0
  v_and_b32 v1, 63, v0
  v_readfirstlane_b32 s3, v2
  s_lshr_b32 s40, s2, 3            ; loc
  s_lshr_b32 s36, s40, 2           ; i_local
  s_and_b32 s41, s2, 1
  s_lshl_b32 s41, s41, 3
  s_add_u32 s36, s36, s41
  s_and_b32 s41, s40, 3            ; c_local
  s_lshr_b32 s37, s41, 1           ; 0 KV, 1 G
  s_and_b32 s41, s41, 1
  s_and_b32 s38, s2, 7
  s_lshr_b32 s38, s38, 1
  s_lshl_b32 s38, s38, 1
  s_add_u32 s38, s38, s41          ; j / g
  s_and_b32 s39, s3, 3""")

def unit_of_slot(k, sg, sslot, su, sty):
    k(f"""
  s_lshl_b32 s{su}, s{sg}, 2
  s_add_u32 s{su}, s{su}, s{sslot}         ; u_lin
  s_cmp_lt_u32 s{su}, 27
  s_cselect_b32 s{sty}, 0, 1
  s_cmp_lt_u32 s{su}, 29
  s_cselect_b32 s{sty}, s{sty}, 2
  s_cmp_lt_u32 s{su}, 27
  s_cselect_b32 s42, 30, 0
  s_cbranch_scc1 {k.L('uos_a')+str(su)}
  s_sub_u32 s{su}, s{su}, 19
{k.L('uos_a')+str(su)}:
  s_add_u32 s{su}, s{su}, s42              ; W1 unit -> 30+u""")

def loader(k):
    k.label("loader")
    k.vm = []
    k(f"""
  v_lshrrev_b32 v4, 3, v1
  v_lshrrev_b32 v5, 1, v4                  ; row>>1 (0..3)
  v_and_b32 v6, 7, v1
  v_xor_b32 v7, v6, v5
  v_mul_u32_u24 v8, 1280, v4
  v_lshl_add_u32 v10, v7, 4, v8
  v_xor_b32 v7, 4, v7
  v_lshl_add_u32 v11, v7, 4, v8
  v_and_b32 v5, 1, v5
  v_lshlrev_b32 v5, 2, v5
  v_xor_b32 v6, v6, v5
  s_mul_i32 s46, s36, {128*1280}
  s_mul_i32 s47, s39, {32*1280}
  s_add_u32 s46, s46, s47
  s_cmp_eq_u32 s37, 0
  s_cbranch_scc1 {k.L('ld_kv')}""")
    unit_of_slot(k, 38, 39, 48, 49)
    k(f"""
  s_cmp_eq_u32 s49, 0
  s_cselect_b32 s20, s10, s6
  s_cselect_b32 s21, s11, s7
  s_mov_b32 s44, 3840
  s_cmov_b32 s44, 3456
  s_mov_b32 s22, 2457600
  s_cmov_b32 s22, 2211840
  s_cselect_b32 s50, 30, 0
  s_sub_u32 s50, s48, s50
  s_lshl_b32 s45, s50, 7
  s_cmp_eq_u32 s49, 2
  s_cmov_b32 s22, 0
  v_lshlrev_b32 v7, 4, v6                  ; p*16
  s_lshl_b32 s51, s48, 6
  v_add_u32 v20, s51, v1
  s_branch {k.L('ld_go')}
{k.L('ld_kv')}:
  s_mov_b32 s20, s6
  s_mov_b32 s21, s7
  s_mov_b32 s22, 2457600
  s_mov_b32 s44, 3840
  s_mov_b32 s45, 0
  s_mul_i32 s50, s38, 160                  ; 160 j
  v_lshlrev_b32 v7, 4, v6                  ; p*16
  s_cmp_eq_u32 s39, 0
  s_cbranch_scc0 {k.L('ld_v1')}
  s_add_u32 s51, s50, 1280
  v_add_u32 v7, s51, v7
  s_branch {k.L('ld_kvgc')}
{k.L('ld_v1')}:
  s_cmp_eq_u32 s39, 1
  s_cbranch_scc0 {k.L('ld_v2')}
  s_add_u32 s51, s50, {1280 + 128}
  s_add_u32 s52, s50, {2560 - 32}
  v_mov_b32 v8, s51
  v_mov_b32 v9, s52
  v_cmp_gt_u32 vcc, 2, v6
  v_cndmask_b32 v8, v9, v8, vcc
  v_add_u32 v7, v8, v7
  s_branch {k.L('ld_kvgc')}
{k.L('ld_v2')}:
  s_cmp_eq_u32 s39, 2
  s_cbranch_scc0 {k.L('ld_v3')}
  s_add_u32 s51, s50, {2560 + 96}
  v_add_u32 v7, s51, v7
  v_mov_b32 v8, 0x7fff0000
  v_cmp_gt_u32 vcc, 4, v6
  v_cndmask_b32 v7, v8, v7, vcc
  s_branch {k.L('ld_kvgc')}
{k.L('ld_v3')}:
  s_lshl_b32 s51, s38, 7
  v_add_u32 v7, s51, v7
{k.L('ld_kvgc')}:
  v_and_b32 v12, 31, v1                    ; m
  v_lshrrev_b32 v13, 5, v1
  s_and_b32 s51, s39, 1
  s_lshl_b32 s51, s51, 1
  v_add_u32 v13, s51, v13                  ; b
  v_lshrrev_b32 v14, 3, v12                ; j'
  v_lshl_add_u32 v14, v13, 2, v14          ; q = 4b + j'
  v_lshrrev_b32 v15, 2, v12
  v_and_b32 v15, 1, v15                    ; hh
  s_lshr_b32 s52, s39, 1                   ; Fh
  s_lshl_b32 s53, s52, 1
  v_add_u32 v16, s53, v15                  ; hl
  v_and_b32 v17, 3, v12                    ; i
  v_mul_u32_u24 v18, 20, v16
  v_lshl_add_u32 v18, v14, 2, v18          ; 20 hl + 4 q
  v_add_u32 v18, v18, v17
  s_mul_i32 s53, s38, 80
  v_add_u32 v18, s53, v18                  ; 80 j + 20 hl + 4 q + i
  v_add_u32 v19, 640, v18                  ; k col
  v_add_u32 v21, {1280 - 20}, v18          ; v col
  v_cmp_gt_u32 vcc, 5, v14
  v_cndmask_b32 v20, v21, v19, vcc
  s_lshl_b32 s53, s52, 3
  v_lshl_add_u32 v21, v15, 2, s53
  v_add_u32 v21, v21, v14
  v_subrev_u32 v21, 10, v21
  v_lshl_add_u32 v21, v21, 2, v17
  s_lshl_b32 s53, s38, 6
  v_add_u32 v21, s53, v21
  v_cmp_gt_u32 vcc, 10, v14
  v_cndmask_b32 v20, v21, v20, vcc
  v_cmp_gt_u32 vcc, 14, v14
  v_cndmask_b32 v20, 0, v20, vcc
{k.L('ld_go')}:
  s_mov_b32 s23, 0x20000
  v_mul_lo_u32 v8, v4, s44
  v_add_u32 v12, v8, v7                    ; vDw
  s_lshl_b32 s47, s39, 12                  ; lw*4096
  s_add_u32 s54, s47, {WR}
  s_lshl_b32 s55, s44, 3                   ; 8*stride""")
    vDx, vDx2, vDw, vG = 10, 11, 12, 20
    def dW(j):
        for i in range(4):
            k(f"  s_add_u32 m0, s54, {(j % 6)*16384 + i*1024}")
            k.vmem(f"  buffer_load_dwordx4 v{vDw}, s[20:23], s45 offen lds", ("W", j))
            k("  s_add_u32 s45, s45, s55")
    def dX(m):
        for i in range(4):
            k(f"  s_add_u32 m0, s47, {XR + (m % 3)*16384 + i*1024}\n  s_add_u32 s56, s46, {m*128 + i*8*1280}")
            k.vmem(f"  buffer_load_dwordx4 v{vDx if i % 2 == 0 else vDx2}, s[16:19], s56 offen lds", ("X", m))
    dX(0); dW(0); dW(1); dX(1); dW(2); dW(3); dX(2); dW(4); dW(5)
    k(f"""
  v_lshlrev_b32 v21, 2, v{vG}
  v_subrev_u32 v22, 1920, v{vG}
  v_lshlrev_b32 v22, 1, v22
  s_lshl_b32 s56, s36, 7
  s_lshl_b32 s57, s39, 6
  s_add_u32 s56, s56, s57
  v_add_u32 v23, s56, v1
  v_lshlrev_b32 v23, 4, v23
  s_cmp_lt_u32 s39, 2
  s_cselect_b32 s57, 0, 0x7fff0000
  v_add_u32 v23, s57, v23""")
    for p in range(10):
        k.vmem(f"  buffer_load_dword v{24+p}, v21, s[24:27], s{58} offen" if False else
               f"  s_mov_b32 s58, {L.WS_CSP + p*L.NCOL*4}\n  buffer_load_dword v{24+p}, v21, s[24:27], s58 offen", "side")
    k.vmem(f"  buffer_load_ushort v34, v22, s[28:31], 0 offen", "side")
    k.vmem(f"  buffer_load_dwordx4 v[36:39], v23, s[24:27], 0 offen", "side")
    k(f"""
  s_mul_i32 s58, s38, 3200
  s_mul_i32 s59, s39, 800
  s_add_u32 s58, s58, s59
  s_add_u32 s32, s8, s58
  s_addc_u32 s33, s9, 0
  s_and_b32 s33, s33, 0xffff
  s_mov_b32 s34, 800
  s_cmp_eq_u32 s37, 0
  s_cselect_b32 s34, s34, 0
  s_mov_b32 s35, 0x20000
  v_lshlrev_b32 v40, 4, v1
  s_lshl_b32 s58, s39, 10
  s_add_u32 m0, s58, {WP}""")
    k.vmem("  buffer_load_dwordx4 v40, s[32:35], 0 offen lds", "side")
    k.wait_vm(("W", 0))
    k("  s_barrier")
    for j in range(0, 20):
        if j + 1 <= 19:
            k.wait_vm(("W", j + 1))
            if (j + 1) % 2 == 0: k.wait_vm(("X", (j + 1)//2))
        if j == 6:
            assert "side" not in k.vm
            k("  v_add_f32 v24, v24, v25")
            for p in range(2, 10): k(f"  v_add_f32 v24, v24, v{24+p}")
            k(f"""
  v_cvt_pk_bf16_f32 v25, v24, v24
  v_and_b32 v26, 0xffff0000, v25
  v_sub_f32 v26, v24, v26
  v_cvt_pk_bf16_f32 v28, v24, v26
  v_and_b32 v29, 0xffff, v25
  v_lshl_or_b32 v29, v34, 16, v29          ; (ch, b1)
  v_mov_b32 v30, v34                       ; (b1, 0)
  v_mov_b32 v31, 0
  v_lshlrev_b32 v27, 4, v1
  s_lshl_b32 s58, s39, 10
  s_add_u32 s58, s58, {TT}
  v_add_u32 v27, s58, v27
  ds_write_b128 v27, v[28:31]
  v_mov_b32 v44, 0
  v_mov_b32 v45, 0
  v_mov_b32 v46, 0
  v_mov_b32 v47, 0
  v_lshlrev_b32 v27, 4, v1
  s_lshl_b32 s58, s39, 10
  s_add_u32 s58, s58, {ZR}
  v_add_u32 v27, s58, v27
  s_cmp_lt_u32 s39, 2
  s_cbranch_scc0 {k.L('ld_nost')}
  ds_write_b128 v27, v[44:47]
  v_add_u32 v27, {ST - ZR}, v27
  ds_write_b128 v27, v[36:39]
{k.L('ld_nost')}:
  s_waitcnt lgkmcnt(0)""")
        k("  s_barrier")
        if j + 6 <= 19: dW(j + 6)
        if j % 2 == 1 and (j + 1)//2 + 2 <= 9: dX((j + 1)//2 + 2)
    k("  s_endpgm")

def reads(set_, st6, ks2):
    slot = st6 >> 1; ksl = 2*(st6 & 1) + ks2
    r = []
    for tb in range(2):
        r.append(f"  ds_read_b128 v[{FX[set_][tb]}:{FX[set_][tb]+3}], v{VXA[ksl]} offset:{slot*16384 + tb*4096}")
    for b in range(4):
        for t in range(2):
            d = FW[set_][b] + 2*t
            r.append(f"  ds_read_b64_tr_b16 v[{d}:{d+1}], v{VWA[st6//3][b]} offset:{(st6 % 3)*16384 + ks2*2048 + t*512}")
    return r

def mfmas(cur):
    return [f"  v_mfma_f32_32x32x16_bf16 v[{acc(tb,b)}:{acc(tb,b)+15}], v[{FW[cur][b]}:{FW[cur][b]+3}], v[{FX[cur][tb]}:{FX[cur][tb]+3}], v[{acc(tb,b)}:{acc(tb,b)+15}]"
            for b in range(4) for tb in range(2)]

def stage(k, st6, last=False, tail=None):
    mf = mfmas(0); rd = reads(1, st6, 1)
    k("  s_waitcnt lgkmcnt(0)")
    sched = [2, 2, 2, 2, 1, 1, 0, 0]
    for i, m in enumerate(mf):
        k(m)
        for _ in range(sched[i]): k(rd.pop(0))
    mf = mfmas(1)
    k("  s_waitcnt lgkmcnt(0)")
    k(mf[0]); k("  s_barrier")
    rd = reads(0, (st6 + 1) % 6, 0) if not last else list(tail or [])
    sched = [2, 2, 2, 2, 1, 1, 0]
    for i, m in enumerate(mf[1:]):
        for _ in range(sched[i]):
            if rd: k(rd.pop(0))
        k(m)
    while rd: k(rd.pop(0))

def compute(k):
    k.vm = []
    k(f"""
  s_lshr_b32 s43, s39, 1                   ; Th
  s_and_b32 s44, s39, 1                    ; Fh
  v_and_b32 v16, 31, v1                    ; n
  v_lshrrev_b32 v17, 5, v1                 ; hh
  v_lshrrev_b32 v18, 1, v16
  v_and_b32 v18, 7, v18
  v_xor_b32 v18, v17, v18
  v_lshlrev_b32 v18, 4, v18
  v_lshl_add_u32 v18, v16, 7, v18
  s_lshl_b32 s45, s43, 13
  v_add_u32 v{VXA[0]}, s45, v18
  v_xor_b32 v{VXA[1]}, 32, v{VXA[0]}
  v_xor_b32 v{VXA[2]}, 64, v{VXA[0]}
  v_xor_b32 v{VXA[3]}, 96, v{VXA[0]}
  v_lshrrev_b32 v18, 4, v1                 ; G
  v_lshrrev_b32 v19, 2, v1
  v_and_b32 v19, 3, v19                    ; r
  v_and_b32 v20, 3, v1                     ; c
  v_lshrrev_b32 v21, 1, v18
  v_lshl_add_u32 v21, v21, 3, v19
  v_lshlrev_b32 v21, 7, v21                ; row*128
  v_add_u32 v21, {WR}, v21
  v_lshrrev_b32 v22, 1, v19
  v_lshlrev_b32 v22, 2, v22                ; swz = 4*(r>>1)
  v_and_b32 v23, 1, v18
  v_lshlrev_b32 v23, 1, v23
  v_lshrrev_b32 v24, 1, v20
  v_add_u32 v23, v23, v24                  ; j' = 2(G&1) + (c>>1)
  v_and_b32 v24, 1, v20                    ; hh' = c&1
  s_cmp_eq_u32 s37, 0
  s_cbranch_scc1 {k.L('c_kv')}""")
    for b in range(4):
        k(f"""
  v_add_u32 v25, {4*(b&1)}, v23
  v_xor_b32 v25, v25, v22
  v_lshl_add_u32 v25, v25, 4, v21
  v_lshl_add_u32 v25, v24, 3, v25
  s_lshl_b32 s45, s44, 13
  s_add_u32 s45, s45, {(b>>1)*4096}
  v_add_u32 v{VWA[0][b]}, s45, v25""")
    k(f"  s_branch {k.L('c_go')}\n{k.L('c_kv')}:")
    k(f"""
  s_lshl_b32 s45, s44, 1
  v_add_u32 v26, s45, v24                  ; hl
  v_mul_u32_u24 v26, 5, v26                ; 5 hl""")
    for b in range(4):
        k(f"""
  v_add_u32 v27, {4*b}, v23                ; q
  v_add_u32 v28, v26, v27
  v_subrev_u32 v29, 5, v28
  ; v: P = c16 + 10
  v_add_u32 v29, 20, v29
  v_cmp_gt_u32 vcc, 5, v27
  v_cndmask_b32 v28, v29, v28, vcc
  s_lshl_b32 s45, s44, 3
  v_lshl_add_u32 v29, v24, 2, s45
  v_add_u32 v29, v29, v27
  v_add_u32 v29, {48 - 10}, v29
  v_cmp_gt_u32 vcc, 10, v27
  v_cndmask_b32 v28, v29, v28, vcc
  v_cmp_gt_u32 vcc, 14, v27
  v_cndmask_b32 v28, v24, v28, vcc
  v_lshrrev_b32 v29, 4, v28                ; VU
  v_lshrrev_b32 v30, 1, v28
  v_and_b32 v30, 7, v30                    ; p
  v_xor_b32 v30, v30, v22
  v_and_b32 v31, 1, v28                    ; half8
  v_lshl_add_u32 v30, v30, 4, v21
  v_lshl_add_u32 v30, v31, 3, v30
  v_lshl_add_u32 v{VWA[0][b]}, v29, 12, v30""")
    k(f"{k.L('c_go')}:")
    for b in range(4):
        k(f"  v_add_u32 v{VWA[1][b]}, {3*16384}, v{VWA[0][b]}")
    for i in range(128):
        k(f"  v_mov_b32 v{ACC+i}, 0")
    k(f"""
  s_lshl_b32 s45, s43, 10
  s_add_u32 s45, s45, {ST}
  v_lshl_add_u32 v32, v16, 4, s45
  s_lshl_b32 s45, s44, 11
  s_add_u32 s45, s45, {TT}
  v_lshl_add_u32 v33, v16, 4, s45
  v_mov_b32 v34, {ZR}
  v_cmp_eq_u32 vcc, 0, v17
  v_cndmask_b32 v33, v34, v33, vcc
  s_barrier""")
    for l in reads(0, 0, 0): k(l)
    k("  s_mov_b32 s46, 0")
    k(".p2align 3")
    k.label("kloop")
    for st6 in range(6): stage(k, st6)
    k(f"  s_add_u32 s46, s46, 1\n  s_cmp_lt_u32 s46, 3\n  s_cbranch_scc1 {k.L('kloop')}")
    stage(k, 0)
    tail = [f"  ds_read_b128 v[{36+4*tb}:{39+4*tb}], v32 offset:{tb*512}" for tb in range(2)] + \
           [f"  ds_read_b128 v[{FW[0][b]}:{FW[0][b]+3}], v33 offset:{b*512}" for b in range(4)]
    stage(k, 1, last=True, tail=tail)
    k("  s_waitcnt lgkmcnt(0)")
    for tb in range(2):
        s = 36 + 4*tb; d = FX[0][tb]
        k(f"""
  v_rcp_f32 v44, v{s+2}                    ; irr
  v_sub_f32 v45, 0, v{s}                   ; -mu
  v_cvt_pk_bf16_f32 v{d}, v45, v45
  v_and_b32 v46, 0xffff0000, v{d}
  v_sub_f32 v46, v45, v46                  ; -mul
  v_cvt_pk_bf16_f32 v47, v44, v44
  v_and_b32 v48, 0xffff0000, v47
  v_sub_f32 v48, v44, v48                  ; il
  v_cvt_pk_bf16_f32 v{d+1}, v46, v44
  v_cvt_pk_bf16_f32 v{d+2}, v48, 0         ; (il, 0)
  v_mov_b32 v{d+3}, 0
  v_mov_b32 v{s+3}, v44
  v_cmp_eq_u32 vcc, 0, v17
  v_cndmask_b32 v{d}, 0, v{d}, vcc
  v_cndmask_b32 v{d+1}, 0, v{d+1}, vcc
  v_cndmask_b32 v{d+2}, 0, v{d+2}, vcc""")
    for m in mfmas(0): k(m)
    k(f"  s_cmp_eq_u32 s37, 0\n  s_cbranch_scc1 {k.L('epi_kv')}")
    epi_g(k)
    k.label("epi_kv")
    epi_kv(k)

def gelu_block(k, a, s, dst):
    T = 60
    for p in range(0, 16, 4):
        prs = [(a + p, T), (a + p + 2, T + 2)]
        for (x, t) in prs: k(f"  v_pk_mul_f32 v[{t}:{t+1}], v[{x}:{x+1}], v[{x}:{x+1}]")
        for (x, t) in prs: k(f"  v_pk_fma_f32 v[{t}:{t+1}], v[{t}:{t+1}], v[52:53], v[50:51]")
        for (x, t) in prs: k(f"  v_pk_mul_f32 v[{t}:{t+1}], v[{t}:{t+1}], v[{x}:{x+1}]")
        for i in range(4): k(f"  v_exp_f32 v{T+i}, v{T+i}")
        for (x, t) in prs: k(f"  v_pk_fma_f32 v[{t}:{t+1}], v[{t}:{t+1}], v[54:55], v[54:55]")
        for i in range(4): k(f"  v_rcp_f32 v{T+i}, v{T+i}")
        for (x, t) in prs: k(f"  v_pk_mul_f32 v[{t}:{t+1}], v[{t}:{t+1}], v[{x}:{x+1}]")
        for n_, (x, t) in enumerate(prs): k(f"  v_cvt_pk_bf16_f32 v{dst + p//2 + n_}, v{t}, v{t+1}")

def epi_g(k):
    k(f"""
  v_lshrrev_b32 v56, 4, v16                ; n>>4
  v_and_b32 v57, 15, v16                   ; n&15
  v_mul_u32_u24 v58, {74*1024}, v56
  v_lshl_add_u32 v58, v17, 9, v58
  v_lshl_add_u32 v58, v57, 4, v58
  v_mul_u32_u24 v59, {160*128}, v56
  v_lshl_add_u32 v59, v17, 7, v59
  v_lshl_add_u32 v59, v57, 3, v59
  s_lshl_b32 s47, s36, 3
  s_lshl_b32 s48, s43, 2
  s_add_u32 s47, s47, s48""")
    for uu in range(2):
        k(f"  s_lshl_b32 s50, s44, 1\n  s_add_u32 s50, s50, {uu}")
        unit_of_slot(k, 38, 50, 51 + 0, 52) if False else None
        k(f"""
  s_lshl_b32 s51, s38, 2
  s_add_u32 s51, s51, s50                  ; u_lin
  s_cmp_lt_u32 s51, 27
  s_cbranch_scc1 {k.L('g_w1_%d' % uu)}
  s_cmp_lt_u32 s51, 29
  s_cbranch_scc0 {k.L('g_done_%d' % uu)}
  s_sub_u32 s51, s51, 19""")
        for tb in range(2):
            k(f"""
  s_add_u32 s52, s47, {2*tb}
  s_mul_i32 s52, s52, 160
  s_lshl_b32 s53, s51, 4
  s_add_u32 s52, s52, s53
  s_lshl_b32 s52, s52, 7
  s_add_u32 s52, s52, {L.WS_Q}""")
            for bb in range(2):
                a = acc(tb, 2*uu + bb)
                for jp in range(4):
                    k(f"  v_cvt_pk_bf16_f32 v60, v{a+4*jp}, v{a+4*jp+1}\n  v_cvt_pk_bf16_f32 v61, v{a+4*jp+2}, v{a+4*jp+3}")
                    k(f"  buffer_store_dwordx2 v[60:61], v59, s[24:27], s52 offen offset:{bb*1024 + jp*256}")
                    k("  s_nop 0")
        k(f"  s_branch {k.L('g_done_%d' % uu)}\n{k.L('g_w1_%d' % uu)}:")
        for tb in range(2):
            s = 36 + 4*tb
            k(f"""
  v_mul_f32 v50, {fl(C0)}, v{s+2}
  v_mul_f32 v52, v{s+2}, v{s+2}
  v_mul_f32 v52, v52, v{s+2}
  v_mov_b32 v51, v50
  v_mul_f32 v52, {fl(C1)}, v52
  v_mov_b32 v54, v{s+3}
  v_mov_b32 v55, v{s+3}
  v_mov_b32 v53, v52""")
            for bb in range(2):
                a = acc(tb, 2*uu + bb)
                gelu_block(k, a, s, 64 + 8*bb)
                k(f"""
  s_add_u32 s52, s47, {2*tb}
  s_mul_i32 s52, s52, 74
  s_lshl_b32 s53, s51, 1
  s_add_u32 s52, s52, s53
  s_add_u32 s52, s52, {bb}
  s_lshl_b32 s52, s52, 10
  s_add_u32 s52, s52, {L.WS_HO}""")
                k(f"  buffer_store_dwordx4 v[{64+8*bb}:{67+8*bb}], v58, s[24:27], s52 offen")
                k(f"  buffer_store_dwordx4 v[{68+8*bb}:{71+8*bb}], v58, s[24:27], s52 offen offset:256")
        k(f"{k.L('g_done_%d' % uu)}:")
    k("  s_endpgm")

def epi_kv(k):
    k(f"""
  v_lshrrev_b32 v56, 4, v16
  v_and_b32 v57, 15, v16
  v_mul_u32_u24 v59, {160*128}, v56
  v_lshl_add_u32 v59, v17, 9, v59
  v_lshl_add_u32 v59, v57, 3, v59
  s_lshl_b32 s47, s36, 3
  s_lshl_b32 s48, s43, 2
  s_add_u32 s47, s47, s48""")
    for tb in range(2):
        k(f"""
  s_add_u32 s52, s47, {2*tb}
  s_mul_i32 s52, s52, 160
  s_lshl_b32 s53, s38, 4
  s_add_u32 s52, s52, s53
  s_lshl_b32 s53, s44, 3
  s_add_u32 s52, s52, s53
  s_lshl_b32 s52, s52, 7
  s_add_u32 s52, s52, {L.WS_Q}""")
        a = ACC + tb*64 + 40
        for g in range(4):
            k(f"  v_cvt_pk_bf16_f32 v60, v{a+4*g}, v{a+4*g+1}\n  v_cvt_pk_bf16_f32 v61, v{a+4*g+2}, v{a+4*g+3}")
            k(f"  buffer_store_dwordx2 v[60:61], v59, s[24:27], s52 offen offset:{g*128}")
            k("  s_nop 0")
    WA = 80
    k(f"""
  v_lshrrev_b32 v18, 4, v1                 ; G
  v_lshrrev_b32 v19, 2, v1
  v_and_b32 v19, 3, v19                    ; r
  v_and_b32 v20, 3, v1                     ; c
  v_and_b32 v23, 1, v18
  v_lshlrev_b32 v23, 1, v23
  v_lshrrev_b32 v24, 1, v20
  v_add_u32 v23, v23, v24                  ; j'
  v_and_b32 v24, 1, v20                    ; hh_m
  v_lshrrev_b32 v25, 1, v18                ; hh_k
  s_lshl_b32 s45, s44, 1
  v_add_u32 v26, s45, v24
  v_lshlrev_b32 v26, 10, v26
  v_add_u32 v26, {WP}, v26
  v_mul_u32_u24 v27, 40, v19               ; r*40
  v_add_u32 v27, v27, v26
  v_lshl_add_u32 v27, v23, 3, v27          ; + 8 j'
  v_add_u32 v28, 800, v26
  v_cmp_eq_u32 vcc, v24, v25
  v_cndmask_b32 v29, v28, v27, vcc
  v_add_u32 v30, 32, v27
  v_cmp_eq_u32 s[48:49], 0, v23
  s_and_b64 vcc, vcc, s[48:49]
  v_cndmask_b32 v30, v28, v30, vcc""")
    for beta in range(2):
        for st in range(3):
            for t in range(2):
                d0 = 8*st + 4*t
                reg = WA + (beta*3 + st)*4 + 2*t
                if d0 < 20:
                    src = 29 if beta == 0 else 30
                    k(f"""
  v_add_u32 v31, {d0*40}, v{src}
  v_cmp_eq_u32 vcc, v28, v{src}
  v_cndmask_b32 v31, v31, v28, vcc
  ds_read_b64_tr_b16 v[{reg}:{reg+1}], v31""")
                else:
                    k(f"  v_mov_b32 v{reg}, 0\n  v_mov_b32 v{reg+1}, 0")
    k("  s_waitcnt lgkmcnt(0)")
    k(f"""
  s_lshl_b32 s45, s43, 6
  v_add_u32 v32, s45, v16
  s_lshl_b32 s45, s44, 1
  v_add_u32 v33, s45, v17                  ; hl
  v_mul_u32_u24 v34, {PHI_P}, v32
  v_mul_u32_u24 v35, 80, v33
  v_add_u32 v34, v34, v35
  v_mul_u32_u24 v35, {VV_P}, v32
  v_mul_u32_u24 v33, 48, v33
  v_add_u32 v35, v35, v33
  v_add_u32 v35, {VV}, v35                 ; V addr""")
    KB = 104
    PQ = 48
    for tb in range(2):
        a = ACC + tb*64; s = 36 + 4*tb
        for i in range(10):
            k(f"  v_cvt_pk_bf16_f32 v{KB+i}, v{a+2*i}, v{a+2*i+1}")
        k(f"  v_mov_b32 v{KB+10}, 0\n  v_mov_b32 v{KB+11}, 0")
        for beta in range(2):
            for st in range(3):
                c = "0" if st == 0 else f"v[{PQ+16*beta}:{PQ+16*beta+15}]"
                w = WA + (beta*3 + st)*4
                k(f"  v_mfma_f32_32x32x16_bf16 v[{PQ+16*beta}:{PQ+16*beta+15}], v[{w}:{w+3}], v[{KB+4*st}:{KB+4*st+3}], {c}")
        VB = 116
        for i in range(10):
            k(f"  v_mul_f32 v44, v{s+1}, v{a+20+2*i}\n  v_mul_f32 v45, v{s+1}, v{a+21+2*i}\n  v_cvt_pk_bf16_f32 v{VB+i}, v44, v45")
        k(f"  v_mov_b32 v{VB+10}, 0x3f80\n  v_mov_b32 v{VB+11}, 0")
        for c in range(3):
            k(f"  ds_write_b128 v35, v[{VB+4*c}:{VB+4*c+3}] offset:{tb*32*VV_P + 16*c}")
        P = [PQ + i for i in range(16)] + [PQ + 16 + i for i in range(4)]
        k(f"  v_max3_f32 v44, v{P[0]}, v{P[1]}, v{P[2]}\n  v_min3_f32 v45, v{P[0]}, v{P[1]}, v{P[2]}")
        for i in range(3, 19, 2):
            k(f"  v_max3_f32 v44, v44, v{P[i]}, v{P[i+1]}\n  v_min3_f32 v45, v45, v{P[i]}, v{P[i+1]}")
        k(f"  v_max_f32 v44, v44, v{P[19]}\n  v_min_f32 v45, v45, v{P[19]}")
        k(f"""
  v_mul_f32 v46, {fl(LOG2E)}, v{s+1}       ; c = r1*log2e
  v_mul_f32 v44, v44, v46                  ; c*max
  v_mul_f32 v45, v45, v46                  ; c*min""")
        for i in range(20):
            k(f"  v_fma_f32 v{a+i}, v{P[i]}, v46, -v44\n  v_fma_f32 v{a+20+i}, -v{P[i]}, v46, v45")
        for i in range(40):
            k(f"  v_exp_f32 v{a+i}, v{a+i}")
        for h_ in range(2):
            b0 = a + 20*h_
            k(f"  v_add_f32 v47, v{b0}, v{b0+1}")
            for i in range(2, 20): k(f"  v_add_f32 v47, v47, v{b0+i}")
            k(f"  v_rcp_f32 v47, v47")
            for i in range(10):
                k(f"  v_mul_f32 v44, v47, v{b0+2*i}\n  v_mul_f32 v45, v47, v{b0+2*i+1}\n  v_cvt_pk_bf16_f32 v{PQ+10*h_+i}, v44, v45")
        for c in range(5):
            k(f"  ds_write_b128 v34, v[{PQ+4*c}:{PQ+4*c+3}] offset:{tb*32*PHI_P + 16*c}")
        k("  s_waitcnt lgkmcnt(0)")
    k("  s_barrier")
    k(f"""
  v_lshrrev_b32 v21, 1, v18                ; G>>1
  v_lshl_add_u32 v21, v21, 3, v19
  v_and_b32 v22, 1, v18
  v_lshlrev_b32 v22, 2, v22
  v_add_u32 v22, v22, v20
  v_mul_u32_u24 v23, {PHI_P}, v21
  s_mul_i32 s45, s39, 80
  v_add_u32 v23, s45, v23
  v_lshl_add_u32 v24, v22, 3, v23
  v_min_u32 v25, 1, v22
  v_and_b32 v25, 1, v22
  v_lshl_add_u32 v25, v25, 3, v23
  v_add_u32 v25, 64, v25
  v_mul_u32_u24 v26, {VV_P}, v21
  s_mul_i32 s45, s39, 48
  s_add_u32 s45, s45, {VV}
  v_add_u32 v26, s45, v26
  v_min_u32 v27, 5, v22
  v_lshl_add_u32 v26, v27, 3, v26          ; V addr""")
    KA = 48; FA = 80
    for st in range(8):
        base = FA + (st % 2)*12
        for t in range(2):
            tok = 16*st + 4*t
            k(f"  ds_read_b64_tr_b16 v[{base+2*t}:{base+2*t+1}], v24 offset:{tok*PHI_P}")
            k(f"  ds_read_b64_tr_b16 v[{base+4+2*t}:{base+5+2*t}], v25 offset:{tok*PHI_P}")
            k(f"  ds_read_b64_tr_b16 v[{base+8+2*t}:{base+9+2*t}], v26 offset:{tok*VV_P}")
        k("  s_waitcnt lgkmcnt(0)")
        for beta in range(2):
            c = "0" if st == 0 else f"v[{KA+16*beta}:{KA+16*beta+15}]"
            k(f"  v_mfma_f32_32x32x16_bf16 v[{KA+16*beta}:{KA+16*beta+15}], v[{base+4*beta}:{base+4*beta+3}], v[{base+8}:{base+11}], {c}")
    k(f"""
  v_lshlrev_b32 v28, 2, v16                ; d*4
  v_lshl_add_u32 v28, v17, 9, v28          ; hh*4*128
  v_mov_b32 v29, 0x7fff0000
  v_cmp_gt_u32 vcc, 21, v16
  v_cndmask_b32 v28, v29, v28, vcc
  s_lshl_b32 s45, s38, 2
  s_add_u32 s45, s45, s39                  ; head
  s_mul_i32 s45, s45, {40*128}
  s_add_u32 s45, s45, {L.WS_KV}
  s_add_u32 s46, s45, {32*128}""")
    for jp in range(4):
        for i in range(4):
            k(f"  buffer_atomic_add_f32 v{KA+4*jp+i}, v28, s[24:27], s45 offen offset:{(8*jp+i)*128}")
    for i in range(4):
        k(f"  buffer_atomic_add_f32 v{KA+16+i}, v28, s[24:27], s46 offen offset:{i*128}")
    k("  s_endpgm")

def build_ka(name):
    k = K(name)
    k(f"""
  s_cmp_ge_u32 s2, 256
  s_cbranch_scc1 {k.L('end')}
  s_load_dwordx4 s[4:7], s[0:1], 0
  s_load_dwordx2 s[8:9], s[0:1], 16
  s_load_dwordx2 s[10:11], s[0:1], 40
  s_load_dwordx2 s[12:13], s[0:1], 48
  s_load_dwordx2 s[14:15], s[0:1], 88""")
    decode_roles(k)
    k("  s_waitcnt lgkmcnt(0)")
    srd(k, 16, 4, 5, 2621440)
    srd(k, 24, 14, 15, L.WS_END)
    srd(k, 28, 12, 13, 3456)
    k(f"  s_and_b32 s7, s7, 0xffff\n  s_and_b32 s11, s11, 0xffff")
    k(f"  s_cmp_ge_u32 s3, 4\n  s_cbranch_scc1 {k.L('loader')}")
    compute(k)
    loader(k)
    k(f"{k.L('end')}:\n  s_endpgm")
    rep = []
    t = k.text(rep)
    return dict(name=name, body=t, vgpr=256, sgpr=96, accum=256, maxwg=512), rep

if __name__ == "__main__":
    import asmlib, g_k0
    ka, rep = build_ka("ka_kernel")
    print("nops inserted:", len(rep))
    asmlib.build("kat", [g_k0.build_k0("k0_kernel"), ka])
    print("ok")
```

```python
from kb import K
import layout as L
from g_k0 import srd
from g_ka import fl, LOG2E

SLOT = 36864
WPB = 147456; KVB = 151552; KVP = 48; ZB = 159232; LDS_B = 163840
NST = 19
VS = [4, 5, 6, 7]; VA = [8, 9, 10, 11]
FR = [64 + 24*s for s in range(4)]
ACCB = 32
XR_ = 160; BR_ = 170

def decode_b(k):
    k(f"""
  v_lshrrev_b32 v2, 6, v0
  v_and_b32 v1, 63, v0
  v_readfirstlane_b32 s3, v2
  s_lshr_b32 s40, s2, 3            ; loc
  s_and_b32 s36, s2, 3
  s_lshl_b32 s36, s36, 3
  s_lshr_b32 s41, s40, 2
  s_add_u32 s36, s36, s41
  s_lshr_b32 s38, s2, 2
  s_and_b32 s38, s38, 1
  s_lshl_b32 s38, s38, 2
  s_and_b32 s41, s40, 3
  s_add_u32 s38, s38, s41
  s_and_b32 s39, s3, 3
  s_lshl_b32 s37, s36, 2
  s_add_u32 s37, s37, s39          ; T16 = 4*I64 + (w&3)""")

def loader_b(k, sc="sc1"):
    k.label("loader")
    k.vm = []
    k(f"""
  v_lshlrev_b32 v4, 4, v1                  ; lane*16
  s_lshl_b32 s58, s38, 2
  s_add_u32 s58, s58, s39
  s_mul_i32 s58, s58, 800
  s_add_u32 s32, s8, s58
  s_addc_u32 s33, s9, 0
  s_and_b32 s33, s33, 0xffff
  s_mov_b32 s34, 800
  s_mov_b32 s35, 0x20000
  s_lshl_b32 s58, s39, 10
  s_add_u32 m0, s58, {WPB}""")
    k.vmem("  buffer_load_dwordx4 v4, s[32:35], 0 offen lds", "pre")
    k(f"""
  s_mov_b32 s34, 0
  s_and_b32 s58, s39, 1
  s_lshl_b32 s58, s58, 10
  s_add_u32 m0, s58, {ZB}""")
    k.vmem("  buffer_load_dwordx4 v4, s[32:35], 0 offen lds", "pre")
    k(f"""
  s_mul_i32 s44, s38, {74*5*1024}
  s_mul_i32 s45, s39, {5*1024}
  s_add_u32 s44, s44, s45
  s_add_u32 s44, s44, {L.WS_W2}
  s_mul_i32 s46, s37, {74*1024}
  s_add_u32 s46, s46, {L.WS_HO}
  s_mul_i32 s47, s39, {5*1024}
  s_lshl_b32 s48, s39, 12
  s_add_u32 s48, s48, 20480""")
    def D(j):
        nks = 4 if j < 18 else 2
        slot = (j % 4)*SLOT
        oth = 4*j + nks - 1 >= 54
        for ks in range(nks):
            fl_ = sc if 4*j + ks >= 54 else ""
            k(f"  s_add_u32 m0, s48, {slot + ks*1024}\n  s_add_u32 s56, s46, {(4*j + ks)*1024}")
            k.vmem(f"  buffer_load_dwordx4 v4, s[24:27], s56 offen {fl_} lds", ("D", j))
        if j == 18:
            k(f"  s_cmp_lt_u32 s39, 2\n  s_cselect_b32 s26, {L.WS_END}, 0")
        for cb in range(5):
            k(f"  s_add_u32 m0, s47, {slot + cb*1024}\n  s_add_u32 s56, s44, {4*j*5*1024 + cb*1024}")
            k.vmem(f"  buffer_load_dwordx4 v4, s[24:27], s56 offen lds", ("D", j))
        if j == 18:
            k(f"  s_mov_b32 s26, {L.WS_END}")
    for j in range(4): D(j)
    k.wait_vm("pre")
    k("  s_barrier")
    k.wait_vm(("D", 0))
    k("  s_barrier")
    for j in range(NST - 1):
        k.wait_vm(("D", j + 1))
        k("  s_barrier")
        if j + 4 < NST:
            if j + 4 == 11:
                k(f"  s_lshl_b32 s58, s36, 3\n  v_mov_b32 v6, s58")
                k.vmem("  global_load_dwordx2 v[8:9], v6, s[16:17] sc1", "poll")
            if j + 4 == 13:
                k.wait_vm("poll")
                saved = list(k.vm)
                k(f"""
  v_and_b32 v8, v8, v9
  v_readfirstlane_b32 s58, v8
  s_cmp_eq_u32 s58, 0x01010101
  s_cbranch_scc1 {k.L('polled')}
{k.L('poll')}:
  global_load_dwordx2 v[8:9], v6, s[16:17] sc1
  s_waitcnt vmcnt(0)
  v_and_b32 v8, v8, v9
  v_readfirstlane_b32 s58, v8
  s_cmp_eq_u32 s58, 0x01010101
  s_cbranch_scc1 {k.L('polled')}
  s_sleep 2
  s_branch {k.L('poll')}
{k.L('polled')}:""")
                k.vm = saved
            D(j + 4)
    k("  s_endpgm")

def oprod(k):
    Q = 180
    k(f"""
  v_and_b32 v16, 15, v1                    ; n'
  v_lshrrev_b32 v17, 4, v1                 ; g
  v_mul_u32_u24 v18, 640, v17
  v_lshl_add_u32 v18, v16, 3, v18
  s_mul_i32 s44, s37, 160
  s_mul_i32 s45, s38, 20
  s_add_u32 s44, s44, s45
  s_lshl_b32 s44, s44, 7
  s_add_u32 s44, s44, {L.WS_Q}""")
    for g in range(5):
        k.vmem(f"  buffer_load_dwordx2 v[{Q+2*g}:{Q+2*g+1}], v18, s[24:27], s44 offen offset:{128*g}", "q")
    k(f"""
  s_lshl_b32 s45, s37, 4
  v_add_u32 v19, s45, v16                  ; token
  v_lshlrev_b32 v20, 4, v19""")
    k.vmem(f"  buffer_load_dword v21, v20, s[24:27], 0 offen offset:{L.WS_STATS + 4}", "q")
    k(f"""
  s_lshl_b32 s45, s39, 6
  v_add_u32 v22, s45, v1                   ; t
  v_lshlrev_b32 v23, 4, v22
  s_mul_i32 s45, s38, {4*40*128}
  s_add_u32 s45, s45, {L.WS_KV}""")
    KVR = 192
    for r in range(5):
        k(f"  s_add_u32 s46, s45, {r*4096}")
        k.vmem(f"  buffer_load_dwordx4 v[{KVR+4*r}:{KVR+4*r+3}], v23, s[24:27], s46 offen sc1", "kv")
    k(f"""
  v_mul_u32_u24 v24, 1280, v19
  s_mul_i32 s45, s38, 160
  v_lshl_add_u32 v25, v17, 3, s45          ; (80j + 4g)*2
  v_add_u32 v24, v24, v25""")
    for cb in range(5):
        k.vmem(f"  buffer_load_dwordx2 v[{XR_+2*cb}:{XR_+2*cb+1}], v24, s[20:23], 0 offen offset:{32*cb}", "res")
        k.vmem(f"  buffer_load_dwordx2 v[{BR_+2*cb}:{BR_+2*cb+1}], v25, s[28:31], 0 offen offset:{32*cb}", "res")
    k(f"""
  v_and_b32 v26, 7, v22                    ; d4
  v_lshrrev_b32 v27, 3, v22
  v_mul_u32_u24 v27, {KVP}, v27
  v_lshl_add_u32 v27, v26, 3, v27
  v_add_u32 v27, {KVB}, v27
  v_cmp_gt_u32 vcc, 6, v26
  s_and_saveexec_b64 s[48:49], vcc""")
    k.wait_vm("kv")
    for r in range(5):
        k(f"  v_cvt_pk_bf16_f32 v28, v{KVR+4*r}, v{KVR+4*r+1}\n  v_cvt_pk_bf16_f32 v29, v{KVR+4*r+2}, v{KVR+4*r+3}")
        k(f"  ds_write_b64 v27, v[28:29] offset:{r*32*KVP}")
    k("  s_mov_b64 exec, s[48:49]\n  s_waitcnt lgkmcnt(0)\n  s_barrier")
    WA = 64
    k(f"""
  v_lshrrev_b32 v26, 2, v1
  v_and_b32 v26, 3, v26                    ; r
  v_and_b32 v27, 3, v1                     ; c
  v_lshlrev_b32 v28, 10, v17
  v_mul_u32_u24 v29, 40, v26
  v_add_u32 v28, v28, v29
  v_add_u32 v28, {WPB}, v28
  v_mov_b32 v29, {ZB}
  v_cmp_eq_u32 vcc, v27, v17
  v_cndmask_b32 v28, v29, v28, vcc
  v_mul_u32_u24 v30, {40*KVP}, v17
  v_mul_u32_u24 v31, {KVP}, v26
  v_add_u32 v30, v30, v31
  v_add_u32 v30, {KVB}, v30
  v_cndmask_b32 v30, v29, v30, vcc""")
    for b in range(5):
        for s in range(3):
            for t in range(2):
                reg = WA + (b*3 + s)*4 + 2*t; d0 = 8*s + 4*t
                if d0 < 20: k(f"  ds_read_b64_tr_b16 v[{reg}:{reg+1}], v28 offset:{d0*40 + 8*b}")
                else: k(f"  v_mov_b32 v{reg}, 0\n  v_mov_b32 v{reg+1}, 0")
        if b % 2 == 1: k("  s_waitcnt lgkmcnt(0)")
    k(f"  v_mov_b32 v{Q+10}, 0\n  v_mov_b32 v{Q+11}, 0")
    k.wait_vm("q", " lgkmcnt(0)")
    P = 128
    for b in range(5):
        for s in range(3):
            c = "0" if s == 0 else f"v[{P+4*b}:{P+4*b+3}]"
            w = WA + (b*3 + s)*4
            k(f"  v_mfma_f32_16x16x32_bf16 v[{P+4*b}:{P+4*b+3}], v[{w}:{w+3}], v[{Q+4*s}:{Q+4*s+3}], {c}")
    def kvreads(betas):
        n = 0
        for bi, beta in enumerate(betas):
            for s in range(5):
                for t in range(2):
                    reg = WA + (bi*5 + s)*4 + 2*t
                    k(f"  ds_read_b64_tr_b16 v[{reg}:{reg+1}], v30 offset:{(8*s + 4*t)*KVP + 8*beta}")
                    n += 1
                    if n % 14 == 0: k("  s_waitcnt lgkmcnt(0)")
    k("  s_nop 7")
    kvreads([0, 1, 2])
    E = 188
    k(f"  v_max3_f32 v44+0, v{P}, v{P+1}, v{P+2}".replace("v44+0", "v52"))
    k(f"  v_min3_f32 v53, v{P}, v{P+1}, v{P+2}")
    for i in range(3, 19, 2):
        k(f"  v_max3_f32 v52, v52, v{P+i}, v{P+i+1}\n  v_min3_f32 v53, v53, v{P+i}, v{P+i+1}")
    k(f"  v_max_f32 v52, v52, v{P+19}\n  v_min_f32 v53, v53, v{P+19}")
    k(f"  v_mul_f32 v54, {fl(LOG2E)}, v21\n  v_mul_f32 v52, v52, v54\n  v_mul_f32 v53, v53, v54")
    for i in range(20):
        k(f"  v_fma_f32 v{E+i}, v{P+i}, v54, -v52\n  v_fma_f32 v{E+20+i}, -v{P+i}, v54, v53")
    for i in range(40): k(f"  v_exp_f32 v{E+i}, v{E+i}")
    PH = 228
    for h_ in range(2):
        b0 = E + 20*h_
        k(f"  v_add_f32 v55, v{b0}, v{b0+1}")
        for i in range(2, 20): k(f"  v_add_f32 v55, v55, v{b0+i}")
        k("  v_rcp_f32 v55, v55")
        for i in range(10):
            k(f"  v_mul_f32 v52, v55, v{b0+2*i}\n  v_mul_f32 v53, v55, v{b0+2*i+1}\n  v_cvt_pk_bf16_f32 v{PH+10*h_+i}, v52, v53")
    O = 128
    k("  s_waitcnt lgkmcnt(0)")
    for rnd, betas in enumerate(([0, 1, 2], [3, 4, 5])):
        if rnd == 1:
            k("  s_nop 7")
            kvreads(betas)
            k("  s_waitcnt lgkmcnt(0)")
        for bi, beta in enumerate(betas):
            for s in range(5):
                c = "0" if s == 0 else f"v[{O+4*beta}:{O+4*beta+3}]"
                w = WA + (bi*5 + s)*4
                k(f"  v_mfma_f32_16x16x32_bf16 v[{O+4*beta}:{O+4*beta+3}], v[{w}:{w+3}], v[{PH+4*s}:{PH+4*s+3}], {c}")
    k(f"  v_add_f32 v55, {fl(1e-6)}, v{O+20}\n  v_rcp_f32 v55, v55")
    OB = 188
    for i in range(10):
        k(f"  v_mul_f32 v52, v55, v{O+2*i}\n  v_mul_f32 v53, v55, v{O+2*i+1}\n  v_cvt_pk_bf16_f32 v{OB+i}, v52, v53")
    k(f"""
  v_lshlrev_b32 v22, 4, v1                 ; lane*16
  s_mul_i32 s44, s37, 74
  s_lshr_b32 s45, s38, 1
  s_mul_i32 s45, s45, 5
  s_add_u32 s44, s44, s45
  s_add_u32 s44, s44, 54
  s_lshl_b32 s44, s44, 10
  s_add_u32 s44, s44, {L.WS_HO}
  s_bitcmp1_b32 s38, 0
  s_cbranch_scc1 {k.L('o_odd')}
  buffer_store_dwordx4 v[{OB}:{OB+3}], v22, s[24:27], s44 offen sc1
  buffer_store_dwordx4 v[{OB+4}:{OB+7}], v22, s[24:27], s44 offen offset:1024 sc1
  buffer_store_dwordx2 v[{OB+8}:{OB+9}], v22, s[24:27], s44 offen offset:2048 sc1
  s_branch {k.L('o_done')}
{k.L('o_odd')}:
  buffer_store_dwordx2 v[{OB}:{OB+1}], v22, s[24:27], s44 offen offset:2056 sc1
  buffer_store_dwordx4 v[{OB+2}:{OB+5}], v22, s[24:27], s44 offen offset:3072 sc1
  s_add_u32 s44, s44, 4096
  buffer_store_dwordx4 v[{OB+6}:{OB+9}], v22, s[24:27], s44 offen sc1
{k.L('o_done')}:
  s_waitcnt vmcnt(0)""")
    k.vm = []

def breads(st4, ks):
    base = FR[ks]
    r = [f"  ds_read_b128 v[{base}:{base+3}], v{VA[st4]} offset:{ks*1024}"]
    for cb in range(5):
        r.append(f"  ds_read_b128 v[{base+4+4*cb}:{base+7+4*cb}], v{VS[st4]} offset:{(ks*5+cb)*1024}")
    return r
def bmfma(ks):
    base = FR[ks]
    return [f"  v_mfma_f32_16x16x32_bf16 v[{ACCB+4*cb}:{ACCB+4*cb+3}], v[{base+4+4*cb}:{base+7+4*cb}], v[{base}:{base+3}], v[{ACCB+4*cb}:{ACCB+4*cb+3}]" for cb in range(5)]

def bstage(k, st4, nks=4, next_exists=True, next_nks=4):
    for ks in range(nks):
        mf = bmfma(ks)
        if ks == 2 or (nks == 2 and False):
            pass
        if ks < 2:
            rd = breads(st4, ks + 2) if ks + 2 < nks else []
            k(f"  s_waitcnt lgkmcnt({6 if (ks == 0 or rd is not None) and True else 0})" if ks == 0 else f"  s_waitcnt lgkmcnt({6 if nks == 4 else 0})")
            for i, m in enumerate(mf):
                k(m)
                if rd: k(rd.pop(0))
            while rd: k(rd.pop(0))
        else:
            if ks == 2:
                k("  s_waitcnt lgkmcnt(0)\n  s_barrier")
            else:
                k("  s_waitcnt lgkmcnt(6)") if next_exists else None
            rd = breads((st4 + 1) % 4, ks - 2) if (next_exists and ks - 2 < next_nks) else []
            for i, m in enumerate(mf):
                k(m)
                if rd: k(rd.pop(0))
            while rd: k(rd.pop(0))

def compute_b(k):
    k.vm = []
    oprod(k)
    k("  s_barrier")
    k(f"""
  s_cmp_eq_u32 s39, 0
  s_cbranch_scc0 {k.L('noflag')}
  s_lshl_b32 s44, s36, 3
  s_add_u32 s44, s44, s38
  v_mov_b32 v22, s44
  v_mov_b32 v23, 1
  v_cmp_eq_u32 vcc, 0, v1
  s_and_saveexec_b64 s[48:49], vcc
  global_store_byte v22, v23, s[16:17] sc1
  s_mov_b64 exec, s[48:49]
{k.L('noflag')}:""")
    k(f"  v_lshlrev_b32 v22, 4, v1\n  s_lshl_b32 s44, s39, 12\n  s_add_u32 s44, s44, 20480")
    for s in range(4):
        k(f"  v_add_u32 v{VS[s]}, {s*SLOT}, v22\n  v_add_u32 v{VA[s]}, s44, v{VS[s]}")
    for i in range(20): k(f"  v_mov_b32 v{ACCB+i}, 0")
    for ks in range(2):
        for l in breads(0, ks): k(l)
    k("  s_mov_b32 s46, 0\n.p2align 3")
    k.label("bloop")
    for st4 in range(4): bstage(k, st4)
    k(f"  s_add_u32 s46, s46, 1\n  s_cmp_lt_u32 s46, 4\n  s_cbranch_scc1 {k.L('bloop')}")
    bstage(k, 0)
    bstage(k, 1, next_nks=2)
    k("  s_waitcnt lgkmcnt(0)")
    for ks in range(2):
        for m in bmfma(ks): k(m)
    k.wait_vm_all()
    k("  s_nop 7")
    for cb in range(5):
        a = ACCB + 4*cb; x = XR_ + 2*cb; b = BR_ + 2*cb
        k(f"""
  v_lshlrev_b32 v52, 16, v{x}
  v_and_b32 v53, 0xffff0000, v{x}
  v_lshlrev_b32 v54, 16, v{x+1}
  v_and_b32 v55, 0xffff0000, v{x+1}
  v_add_f32 v{a}, v{a}, v52
  v_add_f32 v{a+1}, v{a+1}, v53
  v_add_f32 v{a+2}, v{a+2}, v54
  v_add_f32 v{a+3}, v{a+3}, v55
  v_lshlrev_b32 v52, 16, v{b}
  v_and_b32 v53, 0xffff0000, v{b}
  v_lshlrev_b32 v54, 16, v{b+1}
  v_and_b32 v55, 0xffff0000, v{b+1}
  v_add_f32 v{a}, v{a}, v52
  v_add_f32 v{a+1}, v{a+1}, v53
  v_add_f32 v{a+2}, v{a+2}, v54
  v_add_f32 v{a+3}, v{a+3}, v55
  v_cvt_pk_bf16_f32 v56, v{a}, v{a+1}
  v_cvt_pk_bf16_f32 v57, v{a+2}, v{a+3}
  buffer_store_dwordx2 v[56:57], v24, s[60:63], 0 offen offset:{32*cb}
  s_nop 0""")
    k("  s_endpgm")

def build_kb(name):
    k = K(name)
    k(f"""
  s_cmp_ge_u32 s2, 256
  s_cbranch_scc1 {k.L('end')}
  s_load_dwordx2 s[4:5], s[0:1], 0
  s_load_dwordx2 s[8:9], s[0:1], 16
  s_load_dwordx2 s[12:13], s[0:1], 64
  s_load_dwordx2 s[14:15], s[0:1], 88
  s_load_dwordx4 s[64:67], s[0:1], 72""")
    decode_b(k)
    k("  s_waitcnt lgkmcnt(0)")
    srd(k, 20, 4, 5, 2621440)
    srd(k, 24, 14, 15, L.WS_END)
    srd(k, 28, 12, 13, 1280)
    srd(k, 60, 64, 65, 2621440)
    k("  s_mov_b32 s16, s66\n  s_mov_b32 s17, s67")
    k(f"  s_cmp_ge_u32 s3, 4\n  s_cbranch_scc1 {k.L('loader')}")
    compute_b(k)
    loader_b(k)
    k(f"{k.L('end')}:\n  s_endpgm")
    rep = []
    t = k.text(rep)
    return dict(name=name, body=t, vgpr=256, sgpr=96, accum=256, maxwg=512), rep

if __name__ == "__main__":
    import asmlib, g_k0, g_ka
    ka, _ = g_ka.build_ka("ka_kernel")
    kb_, rep = build_kb("kb_kernel")
    print("nops inserted:", len(rep))
    asmlib.build("kbt", [g_k0.build_k0("k0_kernel"), ka, kb_])
    print("ok")
```

```python
import re

TRANS = ("v_exp_f32", "v_log_f32", "v_rcp_f32", "v_rsq_f32", "v_sqrt_f32", "v_sin_f32", "v_cos_f32")

def regs_of(tok):
    tok = tok.strip()
    neg = tok.lstrip("-")
    if neg.startswith("abs(") or neg.startswith("|"):
        neg = neg.replace("abs(", "").replace(")", "").replace("|", "")
    tok = neg
    m = re.fullmatch(r"([vas])\[(\d+):(\d+)\]", tok)
    if m:
        return [(m.group(1), i) for i in range(int(m.group(2)), int(m.group(3)) + 1)]
    m = re.fullmatch(r"([vas])(\d+)", tok)
    if m:
        return [(m.group(1), int(m.group(2)))]
    if tok == "vcc":
        return [("s", "vcc")]
    if tok in ("vcc_lo", "vcc_hi"):
        return [("s", "vcc")]
    if tok == "exec":
        return [("s", "exec")]
    if tok == "m0":
        return [("s", "m0")]
    return []

class Ins:
    __slots__ = ("text", "op", "defs", "uses", "cls", "srcC", "passes", "ab", "stdata", "dpp")
    def __init__(self, text):
        self.text = text
        t = text.split(";")[0].strip()
        self.op = None; self.defs = []; self.uses = []; self.cls = "other"; self.srcC = []; self.passes = 0; self.ab = []
        self.stdata = []; self.dpp = False
        if not t or t.endswith(":") or t.startswith("."):
            self.cls = "meta"; return
        parts = t.split(None, 1)
        op = parts[0]; self.op = op
        rest = parts[1] if len(parts) > 1 else ""
        ops = []; cur = ""; depth = 0
        for ch in rest:
            if ch == "[": depth += 1
            if ch == "]": depth -= 1
            if ch == "," and depth == 0:
                ops.append(cur); cur = ""
            else:
                cur += ch
        if cur.strip(): ops.append(cur)
        mods = ""
        if ops:
            l = ops[-1].strip().split(None, 1)
            ops[-1] = l[0]
            if len(l) > 1: mods = l[1]
        ops = [o.strip() for o in ops]
        R = [regs_of(o) for o in ops]
        if op.startswith("v_mfma"):
            self.cls = "mfma"
            self.defs = R[0]; self.ab = R[1] + R[2]; self.srcC = R[3]; self.uses = self.ab + self.srcC
            self.passes = 8 if "32x32" in op else 4
        elif op.startswith("v_"):
            self.cls = "trans" if op.replace("_e32", "").replace("_e64", "") in TRANS else "valu"
            self.dpp = ("_dpp" in op) or ("row_" in mods) or ("quad_perm" in mods)
            if op.startswith("v_cmp"):
                self.defs = R[0]; self.uses = sum(R[1:], [])
            elif op.startswith("v_readfirstlane") or op.startswith("v_readlane"):
                self.cls = "valu"; self.defs = R[0]; self.uses = sum(R[1:], [])
            elif op.startswith("v_permlane"):
                self.defs = R[0] + R[1]; self.uses = R[0] + R[1]
            elif "_co_" in op or op.startswith("v_div_scale") or op.startswith("v_mad_u64"):
                self.defs = R[0] + R[1]; self.uses = sum(R[2:], [])
            else:
                self.defs = R[0]; self.uses = sum(R[1:], [])
                if op.startswith("v_fmac") or op.startswith("v_writelane") or op.startswith("v_dot2c") or op.startswith("v_pk_fmac"):
                    self.uses = self.uses + R[0]
                if op.startswith("v_cndmask") and len(ops) == 3:
                    self.uses = self.uses + [("s", "vcc")]
        elif op.startswith("ds_"):
            self.cls = "ds"
            if op.startswith("ds_read") or op.startswith("ds_swizzle") or op.startswith("ds_bpermute") or op.startswith("ds_permute"):
                self.defs = R[0]; self.uses = sum(R[1:], [])
            else:
                self.uses = sum(R, [])
        elif op.startswith("buffer_") or op.startswith("global_") or op.startswith("flat_"):
            self.cls = "vmem"
            islds = " lds" in (" " + mods) or "_lds_" in op
            if op in ("buffer_wbl2", "buffer_inv"):
                pass
            elif "load" in op and not islds:
                self.defs = R[0]; self.uses = sum(R[1:], [])
            elif "load" in op:
                self.uses = sum(R, []) + [("s", "m0")]
            elif op.startswith("buffer_store") or op.startswith("buffer_atomic"):
                self.uses = sum(R, [])
                if "x4" in op or "x3" in op: self.stdata = R[0]
            else:
                self.uses = sum(R, [])
                if "x4" in op or "x3" in op: self.stdata = R[1]
        elif op.startswith("s_"):
            self.cls = "salu"
            if op in ("s_nop", "s_waitcnt", "s_barrier", "s_endpgm", "s_sleep", "s_setprio", "s_branch") or op.startswith("s_cbranch"):
                self.cls = "sctl"
            elif op.startswith("s_cmp") or op.startswith("s_bitcmp"):
                self.uses = sum(R, [])
            elif op.startswith("s_load") or op.startswith("s_memtime") or op.startswith("s_memrealtime"):
                self.cls = "smem"; self.defs = R[0]; self.uses = sum(R[1:], [])
            else:
                self.defs = R[0]; self.uses = sum(R[1:], [])
                if "saveexec" in op:
                    self.defs = self.defs + [("s", "exec")]
    def states(self):
        if self.cls == "meta": return 0
        if self.op == "s_nop":
            return int(self.text.split(";")[0].split()[1], 0) + 1
        return 1

def isv(r): return r[0] in ("v", "a")

def need(prev, cur):
    n = 0
    pd = set(prev.defs); cu = set(cur.uses); cd = set(cur.defs)
    pv = {r for r in pd if isv(r)}; ps = {r for r in pd if r[0] == "s"}
    if prev.cls in ("valu", "trans"):
        if cur.cls == "mfma" and pv & cu: n = max(n, 2)
        if prev.cls == "trans" and cur.cls in ("valu", "mfma") and pv & cu: n = max(n, 1)
        if prev.cls == "trans" and cur.cls in ("ds", "vmem") and pv & cu: n = max(n, 1)
        if cur.cls in ("valu", "trans"):
            if cur.op.startswith("v_readlane") or cur.op.startswith("v_readfirstlane"):
                if pv & cu: n = max(n, 1)
            if cur.op.startswith("v_permlane") and pv & cu: n = max(n, 2)
            if cur.dpp and pv & cu: n = max(n, 2)
            if ps & cu:
                n = max(n, 4 if (cur.op.startswith("v_readlane") or cur.op.startswith("v_writelane")) else 2)
        if cur.cls == "vmem" and ps & cu: n = max(n, 5)
        if cur.cls in ("salu", "smem", "sctl") and ps & cu: n = max(n, 1)
    if prev.cls == "mfma":
        big = prev.passes == 8
        if cur.cls == "mfma":
            if pv & set(cur.ab): n = max(n, 12 if big else 8)
            if pv & set(cur.srcC):
                if not (set(prev.defs) == set(cur.srcC) and prev.passes == cur.passes):
                    n = max(n, 10 if big else 6)
            if (pv & cd) and not (pv & set(cur.srcC)): n = max(n, 10 if big else 6)
        elif cur.cls in ("valu", "trans", "ds", "vmem"):
            if pv & (cu | cd): n = max(n, 12 if big else 8)
        if cur.cls in ("valu", "trans") and set(prev.srcC) & cd: n = max(n, 7 if big else 3)
    if prev.cls == "vmem" and prev.stdata and cur.cls in ("valu", "trans", "mfma") and set(prev.stdata) & cd:
        n = max(n, 2)
    if prev.cls == "salu" and ("s", "m0") in pd and cur.cls == "vmem" and ("s", "m0") in cu: n = max(n, 1)
    return n

def fix_hazards(lines, window=24, report=None):
    out = []
    added = 0
    for l in lines:
        for sub in l.split("\n"):
            cur = Ins(sub)
            if cur.cls != "meta":
                reqd = 0
                dist = 0
                for p in reversed(out):
                    if p.cls == "meta": continue
                    nd = need(p, cur)
                    if nd > dist: reqd = max(reqd, nd - dist)
                    dist += p.states()
                    if dist >= window: break
                while reqd > 0:
                    k = min(reqd, 16)
                    out.append(Ins(f"  s_nop {k-1}")); added += 1
                    if report is not None: report.append((k, sub))
                    reqd -= k
            out.append(cur)
    return [i.text for i in out], added

class K:
    def __init__(self, name):
        self.name = name
        self.lines = []
        self.vm = []
    def __call__(self, s):
        for l in s.strip("\n").split("\n"):
            self.lines.append(l)
    def L(self, n): return f"L_{self.name}_{n}"
    def label(self, n): self.lines.append(self.L(n) + ":")
    def vmem(self, s, tag=None):
        self(s); self.vm.append(tag)
    def wait_vm(self, tag, extra=""):
        idx = [i for i, t in enumerate(self.vm) if t == tag]
        if not idx: return
        n = len(self.vm) - 1 - idx[-1]
        assert n <= 63, n
        self(f"  s_waitcnt vmcnt({n}){extra}")
        self.vm = self.vm[idx[-1] + 1:]
    def wait_vm_all(self):
        self("  s_waitcnt vmcnt(0)"); self.vm = []
    def text(self, report=None):
        ls, added = fix_hazards(self.lines, report=report)
        return "\n".join(ls) + "\n"
```

```python
import numpy as np
S, D, H, DH, F = 2048, 640, 32, 20, 1728
NCOL = 3648
WS_STATS = 0
WS_CSP   = 0x10000
WS_KV    = 0x40000
WS_Q     = 0x80000
WS_W2    = 0x400000
WS_HO    = 0x800000
WS_END   = 0x800000 + 128*74*1024
SZ_STATS = 2048*16
SZ_CSP = 10*NCOL*4
SZ_KV = 32*40*32*4
SZ_Q = 128*160*128
SZ_W2 = 8*74*5*1024
SZ_HO = 128*74*1024

def f_of(g, e):
    return 16*(g & 1) + 8*(e >> 2) + 4*(g >> 1) + (e & 3)

def wo_row(sigma, g, e):
    p, sp = divmod(sigma, 5)
    pos = 8*sp + e
    jj = 2*p + (1 if pos >= 20 else 0)
    d = pos % 20
    return (4*jj + g)*20 + d
```

```python
import sys
NAME = "parallel_sum__linear_kernel_hedgehog__mixer_channel_mlp__prompt"
REF = open(f"cdna_kernels/{NAME}.s.ref").read()
HDR = "".join(l + "\n" for l in REF.split("\n") if l.startswith(";") and "@launch" not in l and "Override launch" not in l and "grid=ceil" not in l)

def write(path, kernels, launches):
    t = HDR
    if len(launches) == 1 and launches[0][0] == NAME + "_kernel":
        n, g, b, l = launches[0]
        t += f"; @launch grid=({g},1,1) block=({b},1,1) lds={l}\n"
    else:
        for (n, g, b, l) in launches:
            t += f"; @launch kernel={n} grid=({g},1,1) block=({b},1,1) lds={l}\n"
    t += '.amdgcn_target "amdgcn-amd-amdhsa--gfx950"\n.text\n'
    for k in kernels:
        n = k["name"]
        t += f".globl {n}\n.p2align 8\n.type {n},@function\n{n}:\n{k['body']}"
    t += '.section .rodata,"a"\n'
    for k in kernels:
        n = k["name"]; v = k.get("vgpr", 256)
        t += f""".p2align 6
.amdhsa_kernel {n}
  .amdhsa_next_free_vgpr {v}
  .amdhsa_next_free_sgpr {k.get('sgpr', 102)}
  .amdhsa_accum_offset {k.get('accum') or min(256, (v+3)//4*4)}
  .amdhsa_group_segment_fixed_size 0
  .amdhsa_kernarg_size 96
  .amdhsa_user_sgpr_count 2
  .amdhsa_user_sgpr_kernarg_segment_ptr 1
  .amdhsa_system_sgpr_workgroup_id_x 1
.end_amdhsa_kernel
"""
    open(path, "w").write(t)
    print("wrote", path, len(t), "bytes")

if __name__ == "__main__":
    import g_k0, g_ka, g_kb
    ka, _ = g_ka.build_ka("hh_a_kernel")
    kb, _ = g_kb.build_kb(NAME + "_kernel")
    k0 = g_k0.build_k0("hh_pre_kernel")
    write(f"cdna_kernels/{NAME}.s", [k0, ka, kb],
          [("hh_pre_kernel", 256, 256, 32768), ("hh_a_kernel", 256, 512, 163840), (NAME + "_kernel", 256, 512, 163840)])
```

```python
from kb import K
import kb
import layout as L

LOG2E = 1.4426950408889634
C0 = -2.0*0.7978845608028654*LOG2E
C1 = C0*0.044715
def fl(x):
    import struct
    return "0x%08x" % struct.unpack("<I", struct.pack("<f", x))[0]

XR = 0; WR = 49152; SCR = 114688; TT = 147456; ST = 151552; WP = 153600; ZR = 157696
PHI = 73728; PHI_P = 336; VV = PHI + 43008; VV_P = 208
SLOT = 36864; WPB = 147456; KVB = 151552; KVP = 48; ZB = 159232
LDS_BYTES = 163840
NSTB = 19
FL = L.WS_FLAGS
FL_F2 = FL; FL_H1 = FL + 16*128; FL_H2 = FL + 32*128; FL_Q = FL + 48*128; FL_KV = FL + 64*128; FL_O = FL + 72*128; FL_F3 = FL + 104*128
NFL = 120

S_X, S_WQ, S_WPHI, S_W1, S_B1, S_WS = 4, 6, 8, 10, 12, 14
S_WO, S_W2, S_B2, S_OUT, S_DBG = 76, 78, 80, 82, 84
R_X, R_W, R_WS, R_B, R_T, R_OUT, R_WQ, R_W1, R_W2, R_WO = 16, 20, 24, 28, 32, 60, 64, 88, 92, 96
S_I64, S_JB, S_T16 = 68, 69, 86

def srd(k, s, lo, size):
    k(f"""
  s_mov_b32 s{s}, s{lo}
  s_and_b32 s{s+1}, s{lo+1}, 0xffff
  s_mov_b32 s{s+2}, {size}
  s_mov_b32 s{s+3}, 0x20000""")
def R(s): return f"s[{s}:{s+3}]"

def job_ids(k):
    k(f"""
  s_lshl_b32 s40, s2, 2
  s_add_u32 s40, s40, s39                    ; gw
  s_mul_i32 s41, s40, 570
  s_add_u32 s42, s41, 570
  s_lshr_b32 s41, s41, 10
  s_lshr_b32 s42, s42, 10
  s_cmp_lg_u32 s41, s42
  s_cselect_b32 s50, s41, -1
  s_mul_i32 s41, s40, 740
  s_add_u32 s42, s41, 740
  s_lshr_b32 s41, s41, 10
  s_lshr_b32 s42, s42, 10
  s_cmp_lg_u32 s41, s42
  s_cselect_b32 s51, s41, -1
  s_lshl_b32 s52, s39, 13
  s_add_u32 s52, s52, {SCR}""")

V_ST = 64
def stats_issue(k):
    v = V_ST
    k(f"""
  v_lshrrev_b32 v{v}, 5, v1                  ; hh
  v_and_b32 v{v+1}, 31, v1                   ; n
  s_lshl_b32 s41, s40, 1
  v_add_u32 v{v+2}, s41, v{v}                ; token
  v_mul_u32_u24 v{v+3}, 1280, v{v+2}
  v_lshl_add_u32 v{v+3}, v{v+1}, 3, v{v+3}""")
    for r in range(5):
        k.vmem(f"  buffer_load_dwordx2 v[{v+4+2*r}:{v+5+2*r}], v{v+3}, {R(R_X)}, 0 offen offset:{256*r}", "st")
def stats_a1(k):
    v = V_ST; U = v + 16
    k.wait_vm("st")
    for d in range(10):
        k(f"  v_lshlrev_b32 v{U+2*d}, 16, v{v+4+d}\n  v_and_b32 v{U+2*d+1}, 0xffff0000, v{v+4+d}")
def stats_a2(k):
    v = V_ST; U = v + 16; S = v + 36; T = v + 37
    k(f"  v_add_f32 v{S}, v{U}, v{U+1}\n  v_add_f32 v{T}, v{U+2}, v{U+3}")
    for i in range(4, 20, 2):
        k(f"  v_add_f32 v{S}, v{S}, v{U+i}\n  v_add_f32 v{T}, v{T}, v{U+i+1}")
    k(f"  v_add_f32 v{S}, v{S}, v{T}")
def red32(k, S, T):
    for r in (8, 4, 2, 1):
        k(f"  v_add_f32_dpp v{S}, v{S}, v{S} row_ror:{r} row_mask:0xf bank_mask:0xf")
    k(f"  ds_swizzle_b32 v{T}, v{S} offset:0x401F\n  s_waitcnt lgkmcnt(0)\n  v_add_f32 v{S}, v{S}, v{T}")
def stats_b(k):
    v = V_ST; U = v + 16; S = v + 36; T = v + 37; M = v + 38
    red32(k, S, T)
    k(f"  v_mul_f32 v{M}, {1.0/640.0!r}, v{S}")
    for i in range(20): k(f"  v_sub_f32 v{U+i}, v{U+i}, v{M}")
def stats_c(k):
    v = V_ST; U = v + 16; S = v + 36; T = v + 37
    k(f"  v_mul_f32 v{S}, v{U}, v{U}\n  v_mul_f32 v{T}, v{U+1}, v{U+1}")
    for i in range(2, 20, 2):
        k(f"  v_fmac_f32 v{S}, v{U+i}, v{U+i}\n  v_fmac_f32 v{T}, v{U+i+1}, v{U+i+1}")
    k(f"  v_add_f32 v{S}, v{S}, v{T}")
def stats_d(k):
    v = V_ST; U = v + 16; S = v + 36; T = v + 37; M = v + 38; O = v + 40
    red32(k, S, T)
    k(f"""
  v_mul_f32 v{S}, {1.0/640.0!r}, v{S}
  v_add_f32 v{T}, 0x3727c5ac, v{S}
  v_rsq_f32 v{O+1}, v{T}
  v_mov_b32 v{O}, v{M}
  v_mul_f32 v{T}, v{O+1}, v{O+1}
  v_mul_f32 v{T}, v{T}, v{S}
  v_add_f32 v{T}, 0x3727c5ac, v{T}
  v_rsq_f32 v{T}, v{T}
  v_mov_b32 v{O+3}, 0
  v_mul_f32 v{O+2}, v{O+1}, v{T}
  v_lshlrev_b32 v{v+3}, 4, v{v+2}
  v_add_u32 v{v+3}, {L.WS_STATS}, v{v+3}
  v_cmp_eq_u32 vcc, 0, v{v+1}
  v_mov_b32 v{T}, 0x7fff0000
  v_cndmask_b32 v{v+3}, v{T}, v{v+3}, vcc""")
    if 'nost' not in EXP: k.vmem(f"  buffer_store_dwordx4 v[{O}:{O+3}], v{v+3}, {R(R_WS)}, 0 offen sc1", "jst")

V_CS = 112
def cs_issue(k):
    v = V_CS; t = 41
    k(f"""
  s_cmp_eq_u32 s50, -1
  s_cselect_b32 s53, 0, s50
  s_mul_i32 s{t}, s53, 6554
  s_lshr_b32 s{t}, s{t}, 16                  ; u
  s_mul_i32 s{t+1}, s{t}, 10
  s_sub_u32 s{t+1}, s53, s{t+1}              ; kappa
  s_mov_b32 s54, s{t}
  s_mov_b32 s55, s{t+1}
  s_cmp_lt_u32 s{t}, 30
  s_cselect_b32 s{R_T}, s{R_WQ}, s{R_W1}
  s_cselect_b32 s{R_T+1}, s{R_WQ+1}, s{R_W1+1}
  s_cselect_b32 s{R_T+2}, s{R_WQ+2}, s{R_W1+2}
  s_mov_b32 s{R_T+3}, 0x20000
  s_mov_b32 s{t+2}, 3456
  s_cmov_b32 s{t+2}, 3840
  s_cselect_b32 s{t+3}, 0, 30
  s_sub_u32 s{t+3}, s{t}, s{t+3}
  s_lshl_b32 s{t+3}, s{t+3}, 7
  s_mul_i32 s{t+4}, s{t+1}, s{t+2}
  s_lshl_b32 s{t+4}, s{t+4}, 6
  s_add_u32 s{t+4}, s{t+4}, s{t+3}           ; soffset
  s_lshl_b32 s{t+5}, s{t+2}, 3
  s_cmp_eq_u32 s50, -1
  s_cselect_b32 s{R_T+2}, 0, s{R_T+2}
  v_lshrrev_b32 v{v}, 3, v1
  v_lshrrev_b32 v{v+1}, 1, v{v}
  v_and_b32 v{v+1}, 1, v{v+1}
  v_lshlrev_b32 v{v+1}, 2, v{v+1}
  v_and_b32 v{v+2}, 7, v1
  v_xor_b32 v{v+2}, v{v+2}, v{v+1}
  v_mul_lo_u32 v{v+3}, v{v}, s{t+2}
  v_lshl_add_u32 v{v+3}, v{v+2}, 4, v{v+3}""")
    for i in range(8):
        k.begin()
        k(f"  s_add_u32 m0, s52, {i*1024}")
        k.vmem(f"  buffer_load_dwordx4 v{v+3}, {R(R_T)}, s{t+4} offen lds", "cs")
        k.end()
        if i < 7: k(f"  s_add_u32 s{t+4}, s{t+4}, s{t+5}")
def cs_a(k):
    v = V_CS
    k(f"""
  v_lshrrev_b32 v{v}, 4, v1
  v_lshrrev_b32 v{v+1}, 2, v1
  v_and_b32 v{v+1}, 3, v{v+1}
  v_and_b32 v{v+2}, 3, v1
  v_lshrrev_b32 v{v+4}, 1, v{v}
  v_lshl_add_u32 v{v+4}, v{v+4}, 3, v{v+1}
  v_lshlrev_b32 v{v+4}, 7, v{v+4}
  v_and_b32 v{v+5}, 1, v{v}
  v_lshlrev_b32 v{v+5}, 1, v{v+5}
  v_lshrrev_b32 v{v+6}, 1, v{v+2}
  v_add_u32 v{v+5}, v{v+5}, v{v+6}
  v_lshrrev_b32 v{v+6}, 1, v{v+1}
  v_lshlrev_b32 v{v+6}, 2, v{v+6}
  v_and_b32 v{v+7}, 1, v{v+2}
  v_lshl_add_u32 v{v+4}, v{v+7}, 3, v{v+4}
  v_add_u32 v{v+4}, s52, v{v+4}
  v_xor_b32 v{v+7}, v{v+5}, v{v+6}
  v_lshl_add_u32 v{v+8}, v{v+7}, 4, v{v+4}
  v_xor_b32 v{v+7}, 4, v{v+7}
  v_lshl_add_u32 v{v+9}, v{v+7}, 4, v{v+4}""")
    ONE = v + 12; FRG = v + 16; ACC_ = v + 48
    for i in range(4): k(f"  v_mov_b32 v{ONE+i}, 0x3f803f80")
    k.wait_vm("cs")
    for ks in range(4):
        for b in range(2):
            for tt in range(2):
                d = FRG + (ks*2 + b)*4 + 2*tt
                k(f"  ds_read_b64_tr_b16 v[{d}:{d+1}], v{v+8+b} offset:{ks*2048 + tt*512}")
        if ks == 2: k("  s_waitcnt lgkmcnt(4)")
    k("  s_waitcnt lgkmcnt(0)")
def cs_b(k):
    v = V_CS; ONE = v + 12; FRG = v + 16; ACC_ = v + 48
    for ks in range(4):
        for b in range(2):
            d = FRG + (ks*2 + b)*4
            c = "0" if ks == 0 else f"v[{ACC_+16*b}:{ACC_+16*b+15}]"
            k(f"  v_mfma_f32_32x32x16_bf16 v[{ACC_+16*b}:{ACC_+16*b+15}], v[{ONE}:{ONE+3}], v[{d}:{d+3}], {c}")
    k(f"""
  s_mul_i32 s41, s55, {L.NCOL*4}
  s_lshl_b32 s42, s54, 8
  s_add_u32 s41, s41, s42
  s_add_u32 s41, s41, {L.WS_CSP}
  v_lshlrev_b32 v{v}, 2, v1
  v_cmp_gt_u32 vcc, 32, v1
  v_mov_b32 v{v+1}, 0x7fff0000
  v_cndmask_b32 v{v}, v{v+1}, v{v}, vcc
  s_cmp_eq_u32 s50, -1
  s_cselect_b32 s42, 0x7fff0000, 0
  v_add_u32 v{v}, s42, v{v}""")
    k(f"  v_mov_b32 v{v+1}, 0x7fff0000\n  v_min_u32 v{v}, v{v}, v{v+1}")
    for b in range(2):
        if 'nocs' not in EXP: k.vmem(f"  buffer_store_dword v{ACC_+16*b}, v{v}, {R(R_WS)}, s41 offen offset:{128*b} sc1", "jst")

V_SW = 200
def sw_addr(k):
    v = V_SW; t = 41
    k.begin()
    k(f"""
  s_cmp_eq_u32 s51, -1
  s_cselect_b32 s53, 0, s51
  s_mul_i32 s{t}, s53, 6554
  s_lshr_b32 s{t}, s{t}, 16
  s_mul_i32 s{t+1}, s{t}, 10
  s_sub_u32 s{t+1}, s53, s{t+1}              ; lambda
  s_mov_b32 s56, s{t}
  s_mov_b32 s57, s{t+1}
  s_cmp_lt_u32 s{t}, 54
  s_cselect_b32 s{R_T}, s{R_W2}, s{R_WO}
  s_cselect_b32 s{R_T+1}, s{R_W2+1}, s{R_WO+1}
  s_cselect_b32 s{R_T+2}, s{R_W2+2}, s{R_WO+2}
  s_mov_b32 s{R_T+3}, 0x20000
  s_cmp_eq_u32 s51, -1
  s_cselect_b32 s{R_T+2}, 0, s{R_T+2}
  v_lshrrev_b32 v{v}, 3, v1                  ; e
  v_and_b32 v{v+1}, 7, v1
  s_lshl_b32 s{t+2}, s{t+1}, 7
  v_lshl_add_u32 v{v+1}, v{v+1}, 4, s{t+2}
  s_cmp_lt_u32 s{t}, 54
  s_cbranch_scc0 {k.L('sw_wo')}
  s_cmp_lt_u32 s{t}, 28
  s_cselect_b32 s{t+3}, 0, 28
  s_cselect_b32 s{t+4}, 0, 2
  s_sub_u32 s{t+3}, s{t}, s{t+3}
  s_lshr_b32 s{t+5}, s{t+3}, 1
  s_lshl_b32 s{t+5}, s{t+5}, 2
  s_and_b32 s{t+3}, s{t+3}, 1
  s_add_u32 s{t+5}, s{t+5}, s{t+3}
  s_add_u32 s{t+5}, s{t+5}, s{t+4}           ; F block
  v_lshrrev_b32 v{v+2}, 2, v{v}
  v_lshlrev_b32 v{v+2}, 3, v{v+2}
  v_and_b32 v{v+3}, 3, v{v}
  v_add_u32 v{v+2}, v{v+2}, v{v+3}
  s_lshl_b32 s{t+5}, s{t+5}, 5
  v_add_u32 v{v+2}, s{t+5}, v{v+2}""")
    for i in range(4): k(f"  v_add_u32 v{v+4+i}, {16*(i&1) + 4*(i>>1)}, v{v+2}")
    k(f"""
  s_branch {k.L('sw_go')}
{k.L('sw_wo')}:
  s_sub_u32 s{t+3}, s{t}, 54
  s_mul_i32 s{t+4}, s{t+3}, 52
  s_lshr_b32 s{t+4}, s{t+4}, 8
  s_mul_i32 s{t+5}, s{t+4}, 5
  s_sub_u32 s{t+5}, s{t+3}, s{t+5}
  s_lshl_b32 s{t+5}, s{t+5}, 3
  v_add_u32 v{v+2}, s{t+5}, v{v}
  v_cmp_le_u32 vcc, 20, v{v+2}
  v_cndmask_b32 v{v+3}, 0, 1, vcc
  v_mul_u32_u24 v{v+8}, 20, v{v+3}
  v_sub_u32 v{v+2}, v{v+2}, v{v+8}
  s_lshl_b32 s{t+4}, s{t+4}, 1
  v_add_u32 v{v+3}, s{t+4}, v{v+3}
  v_mul_u32_u24 v{v+3}, 80, v{v+3}
  v_add_u32 v{v+2}, v{v+2}, v{v+3}""")
    for i in range(4): k(f"  v_add_u32 v{v+4+i}, {20*i}, v{v+2}")
    k(f"{k.L('sw_go')}:")
    for i in range(4): k(f"  v_mul_u32_u24 v{v+4+i}, 1280, v{v+4+i}\n  v_add_u32 v{v+4+i}, v{v+4+i}, v{v+1}")
    k.end()
def sw_dma(k):
    v = V_SW
    for i in range(4):
        k.begin()
        k(f"  s_add_u32 m0, s52, {i*1024}")
        k.vmem(f"  buffer_load_dwordx4 v{v+4+i}, {R(R_T)}, 0 offen lds", "sw")
        k.end()
def sw_proc1(k):
    v = V_SW; t = 41; FRG = v + 16
    k(f"""
  v_lshrrev_b32 v{v}, 4, v1
  v_lshrrev_b32 v{v+1}, 2, v1
  v_and_b32 v{v+1}, 3, v{v+1}
  v_lshl_add_u32 v{v}, v{v}, 3, v{v+1}
  v_lshlrev_b32 v{v}, 7, v{v}
  v_and_b32 v{v+1}, 3, v1
  v_lshl_add_u32 v{v}, v{v+1}, 3, v{v}
  v_add_u32 v{v}, s52, v{v}
  v_lshlrev_b32 v{v+1}, 4, v1
  s_cmp_eq_u32 s51, -1
  s_cselect_b32 s{t}, 0x7fff0000, 0
  v_add_u32 v{v+1}, s{t}, v{v+1}""")
    k.wait_vm("sw")
    for b in range(4):
        for tt in range(2):
            d = FRG + 4*b + 2*tt
            k(f"  ds_read_b64_tr_b16 v[{d}:{d+1}], v{v} offset:{32*b + 512*tt}")
    k("  s_waitcnt lgkmcnt(0)")
def sw_proc2(k):
    v = V_SW; t = 41; FRG = v + 16
    for b in range(4):
        k.begin()
        k(f"""
  s_lshl_b32 s{t}, s57, 2
  s_add_u32 s{t}, s{t}, {b}
  s_mul_i32 s{t+1}, s{t}, 13
  s_lshr_b32 s{t+1}, s{t+1}, 6
  s_mul_i32 s{t+2}, s{t+1}, 5
  s_sub_u32 s{t+2}, s{t}, s{t+2}
  s_mul_i32 s{t+1}, s{t+1}, 74
  s_add_u32 s{t+1}, s{t+1}, s56
  s_mul_i32 s{t+1}, s{t+1}, 5
  s_add_u32 s{t+1}, s{t+1}, s{t+2}
  s_lshl_b32 s{t+1}, s{t+1}, 10
  s_add_u32 s{t+1}, s{t+1}, {L.WS_W2}""")
        if 'nosw' not in EXP: k.vmem(f"  buffer_store_dwordx4 v[{FRG+4*b}:{FRG+4*b+3}], v{v+1}, {R(R_WS)}, s{t+1} offen sc1", "jst2")
        k.end()
def zero_job(k):
    k(f"""
  s_mul_i32 s41, s40, 160
  s_add_u32 s41, s41, {L.WS_KV}
  v_lshlrev_b32 v56, 4, v1
  v_cmp_gt_u32 vcc, 10, v1
  v_mov_b32 v57, 0x7fff0000
  v_cndmask_b32 v58, v57, v56, vcc
  v_mov_b32 v60, 0
  v_mov_b32 v61, 0
  v_mov_b32 v62, 0
  v_mov_b32 v63, 0""")
    if 'nozero' not in EXP: k.vmem(f"  buffer_store_dwordx4 v[60:63], v58, {R(R_WS)}, s41 offen sc1", "jst")

def store_flag(k, cond_s, cond_val, addr_code, lbl):
    k.begin()
    k(f"  s_cmp_eq_u32 s{cond_s}, {cond_val}\n  s_cbranch_scc0 {k.L(lbl)}")
    k(addr_code)
    k(f"""
  v_mov_b32 v2, s41
  v_mov_b32 v0, 1
  s_mov_b64 exec, 1
  buffer_store_byte v0, v2, {R(R_WS)}, 0 offen sc1
  s_mov_b64 exec, -1
{k.L(lbl)}:""")
    k.end()

def poll_issue(k, vdst, addr_code, tag, only0=True):
    k.begin()
    k(addr_code)
    if only0:
        k(f"  s_cmp_eq_u32 s39, 0\n  s_cselect_b32 s41, 0, 0x7fff0000\n  v_or_b32 v{vdst+1}, s41, v{vdst+1}")
    k.vmem(f"  buffer_load_dword v{vdst}, v{vdst+1}, {R(R_WS)}, 0 offen sc1", tag)
    k.end()
def poll_check(k, vdst, tag, lbl, only0=True, slp=6):
    k.wait_vm(tag)
    saved = list(k.vm)
    if only0: k(f"  s_cmp_eq_u32 s39, 0\n  s_cbranch_scc0 {k.L(lbl+'_ok')}")
    k(f"""
  v_cmp_ne_u32 vcc, 0x01010101, v{vdst}
  s_cmp_eq_u64 vcc, 0
  s_cbranch_scc1 {k.L(lbl+'_ok')}
{k.L(lbl+'_sp')}:
  s_sleep {slp}
  buffer_load_dword v{vdst}, v{vdst+1}, {R(R_WS)}, 0 offen sc1
  s_waitcnt vmcnt(0)
  v_cmp_ne_u32 vcc, 0x01010101, v{vdst}
  s_cmp_eq_u64 vcc, 0
  s_cbranch_scc0 {k.L(lbl+'_sp')}
{k.L(lbl+'_ok')}:""")
    k.vm = saved
def words(vdst, scode, n):
    return scode + f"\n  v_lshlrev_b32 v{vdst+1}, 2, v1\n  v_min_u32 v{vdst+1}, {4*(n-1)}, v{vdst+1}\n  v_add_u32 v{vdst+1}, s41, v{vdst+1}"

def unit_of_slot(k, sg, sslot, su, sty, lbl):
    k(f"""
  s_lshl_b32 s{su}, s{sg}, 2
  s_add_u32 s{su}, s{su}, s{sslot}
  s_cmp_lt_u32 s{su}, 27
  s_cbranch_scc0 {k.L(lbl+'a')}
  s_mov_b32 s{sty}, 0
  s_add_u32 s{su}, s{su}, 30
  s_branch {k.L(lbl+'b')}
{k.L(lbl+'a')}:
  s_mov_b32 s{sty}, 2
  s_cmp_eq_u32 s{su}, 28
  s_cmov_b32 s{sty}, 1
  s_cmp_eq_u32 s{su}, 30
  s_cmov_b32 s{sty}, 1
  s_lshr_b32 s{su}, s{su}, 1
  s_sub_u32 s{su}, s{su}, 6
{k.L(lbl+'b')}:""")

vDx, vDx2, vDw, vG = 10, 11, 12, 20
NWS = 4

def loader_a_setup(k):
    k(f"""
  v_lshrrev_b32 v4, 3, v1
  v_lshrrev_b32 v5, 1, v4
  v_and_b32 v6, 7, v1
  v_xor_b32 v7, v6, v5
  v_mul_u32_u24 v8, 1280, v4
  v_lshl_add_u32 v{vDx}, v7, 4, v8
  v_xor_b32 v7, 4, v7
  v_lshl_add_u32 v{vDx2}, v7, 4, v8
  s_mul_i32 s101, s36, {128*1280}
  s_mul_i32 s47, s39, {32*1280}
  s_add_u32 s101, s101, s47
  s_lshl_b32 s47, s39, 12                  ; lw*4096""")
def loader_a_setup_w(k):
    k(f"""
  v_and_b32 v5, 1, v5
  v_lshlrev_b32 v5, 2, v5
  v_xor_b32 v6, v6, v5
  s_cmp_eq_u32 s37, 0
  s_cbranch_scc1 {k.L('ld_kv')}""")
    unit_of_slot(k, 38, 39, 48, 49, "uos")
    k(f"""
  s_cmp_eq_u32 s49, 0
  s_cselect_b32 s20, s{R_W1}, s{R_WQ}
  s_cselect_b32 s21, s{R_W1+1}, s{R_WQ+1}
  s_mov_b32 s44, 3840
  s_cmov_b32 s44, 3456
  s_cselect_b32 s22, s{R_W1+2}, s{R_WQ+2}
  s_cselect_b32 s58, 30, 0
  s_sub_u32 s58, s48, s58
  s_lshl_b32 s100, s58, 7
  s_cmp_eq_u32 s49, 2
  s_cmov_b32 s22, 0
  v_lshlrev_b32 v7, 4, v6
  s_lshl_b32 s58, s48, 6
  v_add_u32 v{vG}, s58, v1
  s_branch {k.L('ld_go')}
{k.L('ld_kv')}:
  s_mov_b32 s20, s{R_WQ}
  s_mov_b32 s21, s{R_WQ+1}
  s_mov_b32 s22, s{R_WQ+2}
  s_mov_b32 s44, 3840
  s_mov_b32 s100, 0
  s_mul_i32 s58, s38, 160
  v_lshlrev_b32 v7, 4, v6
  s_cmp_eq_u32 s39, 0
  s_cbranch_scc0 {k.L('ld_v1')}
  s_add_u32 s59, s58, 1280
  v_add_u32 v7, s59, v7
  s_branch {k.L('ld_kvgc')}
{k.L('ld_v1')}:
  s_cmp_eq_u32 s39, 1
  s_cbranch_scc0 {k.L('ld_v2')}
  s_add_u32 s59, s58, {1280 + 128}
  s_add_u32 s58, s58, {2560 - 32}
  v_mov_b32 v8, s59
  v_mov_b32 v9, s58
  v_cmp_gt_u32 vcc, 2, v6
  v_cndmask_b32 v8, v9, v8, vcc
  v_add_u32 v7, v8, v7
  s_branch {k.L('ld_kvgc')}
{k.L('ld_v2')}:
  s_cmp_eq_u32 s39, 2
  s_cbranch_scc0 {k.L('ld_v3')}
  s_add_u32 s59, s58, {2560 + 96}
  v_add_u32 v7, s59, v7
  v_mov_b32 v8, 0x7fff0000
  v_cmp_gt_u32 vcc, 4, v6
  v_cndmask_b32 v7, v8, v7, vcc
  s_branch {k.L('ld_kvgc')}
{k.L('ld_v3')}:
  s_lshl_b32 s59, s38, 7
  v_add_u32 v7, s59, v7
{k.L('ld_kvgc')}:
  v_and_b32 v12, 31, v1
  v_lshrrev_b32 v13, 5, v1
  s_and_b32 s58, s39, 1
  s_lshl_b32 s58, s58, 1
  v_add_u32 v13, s58, v13
  v_lshrrev_b32 v14, 3, v12
  v_lshl_add_u32 v14, v13, 2, v14
  v_lshrrev_b32 v15, 2, v12
  v_and_b32 v15, 1, v15
  s_lshr_b32 s59, s39, 1
  s_lshl_b32 s58, s59, 1
  v_add_u32 v16, s58, v15
  v_and_b32 v17, 3, v12
  v_mul_u32_u24 v18, 20, v16
  v_lshl_add_u32 v18, v14, 2, v18
  v_add_u32 v18, v18, v17
  s_mul_i32 s58, s38, 80
  v_add_u32 v18, s58, v18
  v_add_u32 v19, 640, v18
  v_add_u32 v21, {1280 - 20}, v18
  v_cmp_gt_u32 vcc, 5, v14
  v_cndmask_b32 v{vG}, v21, v19, vcc
  s_lshl_b32 s58, s59, 3
  v_lshl_add_u32 v21, v15, 2, s58
  v_add_u32 v21, v21, v14
  v_subrev_u32 v21, 10, v21
  v_lshl_add_u32 v21, v21, 2, v17
  s_lshl_b32 s58, s38, 6
  v_add_u32 v21, s58, v21
  v_cmp_gt_u32 vcc, 10, v14
  v_cndmask_b32 v{vG}, v21, v{vG}, vcc
  v_cmp_gt_u32 vcc, 14, v14
  v_cndmask_b32 v{vG}, 0, v{vG}, vcc
{k.L('ld_go')}:
  s_mov_b32 s23, 0x20000
  v_mul_lo_u32 v8, v4, s44
  v_add_u32 v{vDw}, v8, v7
  s_add_u32 s48, s47, {WR}
  s_lshl_b32 s49, s44, 3                   ; 8*stride""")

def gW(j):
    def mk(i):
        def f(k):
            k(f"  s_add_u32 m0, s48, {(j % NWS)*16384 + i*1024}")
            k.vmem(f"  buffer_load_dwordx4 v{vDw}, {R(R_W)}, s100 offen lds", ("W", j))
            k("  s_add_u32 s100, s100, s49")
        return f
    return [mk(i) for i in range(4)]
def gX(m):
    def mk(i):
        def f(k):
            k(f"  s_add_u32 m0, s47, {XR + (m % 3)*16384 + i*1024}\n  s_add_u32 s87, s101, {m*128 + i*8*1280}")
            k.vmem(f"  buffer_load_dwordx4 v{vDx if i % 2 == 0 else vDx2}, {R(R_X)}, s87 offen lds", ("X", m))
        return f
    return [mk(i) for i in range(4)]
def dW(k, j):
    for f in gW(j): f(k)
def dX(k, m):
    for f in gX(m): f(k)
def rec(k, fns):
    r = kb.Rec(k)
    for f in fns: f(r)
    return r.items

def t_issue(k):
    k(f"""
  v_lshlrev_b32 v21, 2, v{vG}
  v_subrev_u32 v22, 1920, v{vG}
  v_lshlrev_b32 v22, 1, v22
  s_lshl_b32 s58, s36, 7
  s_lshl_b32 s59, s39, 6
  s_add_u32 s58, s58, s59
  v_add_u32 v23, s58, v1
  v_lshlrev_b32 v23, 4, v23
  s_cmp_lt_u32 s39, 2
  s_cselect_b32 s59, 0, 0x7fff0000
  v_add_u32 v23, s59, v23""")
    for p in range(10):
        k.begin()
        k(f"  s_mov_b32 s58, {L.WS_CSP + p*L.NCOL*4}")
        k.vmem(f"  buffer_load_dword v{24+p}, v21, {R(R_WS)}, s58 offen sc1", "side")
        k.end()
    k.vmem(f"  buffer_load_ushort v34, v22, {R(R_B)}, 0 offen", "side")
    k.vmem(f"  buffer_load_dwordx4 v[36:39], v23, {R(R_WS)}, 0 offen sc1", "side")
def wphi_dma(k, head_code, dst, enable_kv_only):
    k.begin()
    k(head_code)
    k(f"""
  s_mul_i32 s58, s58, 800
  s_add_u32 s{R_T}, s{S_WPHI}, s58
  s_addc_u32 s{R_T+1}, s{S_WPHI+1}, 0
  s_and_b32 s{R_T+1}, s{R_T+1}, 0xffff
  s_mov_b32 s{R_T+2}, 800
  s_mov_b32 s{R_T+3}, 0x20000""")
    if enable_kv_only:
        k(f"  s_cmp_eq_u32 s37, 0\n  s_cselect_b32 s{R_T+2}, s{R_T+2}, 0")
    k(f"""
  v_lshlrev_b32 v40, 4, v1
  s_lshl_b32 s58, s39, 10
  s_add_u32 m0, s58, {dst}""")
    k.vmem(f"  buffer_load_dwordx4 v40, {R(R_T)}, 0 offen lds", "side")
    k.end()
def t_build(k):
    k.wait_vm("side")
    k("  v_add_f32 v24, v24, v25")
    for p in range(2, 10): k(f"  v_add_f32 v24, v24, v{24+p}")
    k(f"""
  v_cvt_pk_bf16_f32 v25, v24, v24
  v_and_b32 v26, 0xffff0000, v25
  v_sub_f32 v26, v24, v26
  v_cvt_pk_bf16_f32 v28, v24, v26
  v_and_b32 v29, 0xffff, v25
  v_lshl_or_b32 v29, v34, 16, v29
  v_mov_b32 v30, v34
  v_mov_b32 v31, 0
  v_lshlrev_b32 v27, 4, v1
  s_lshl_b32 s58, s39, 10
  s_add_u32 s58, s58, {TT}
  v_add_u32 v27, s58, v27
  ds_write_b128 v27, v[28:31]
  v_mov_b32 v44, 0
  v_mov_b32 v45, 0
  v_mov_b32 v46, 0
  v_mov_b32 v47, 0
  v_add_u32 v27, {ZR - TT}, v27
  s_cmp_lt_u32 s39, 2
  s_cbranch_scc0 {k.L('ld_nost')}
  ds_write_b128 v27, v[44:47]
  v_add_u32 v27, {ST - ZR + 2**32 if ST < ZR else ST - ZR}, v27
  ds_write_b128 v27, v[36:39]
{k.L('ld_nost')}:
  s_waitcnt lgkmcnt(0)""")

def loader_a(k):
    if 'prioA' in EXP: k("  s_setprio 2")
    job_ids(k)
    stats_issue(k); cs_issue(k)
    loader_a_setup(k)
    dX(k, 0)
    loader_a_setup_w(k)
    dW(k, 0); dW(k, 1)
    if CODE_PF:
        k(f"""
  s_cmp_eq_u32 s39, 3
  s_cbranch_scc0 {k.L('nopf')}
  s_getpc_b64 s[58:59]
{k.L('pc')}:
  s_sub_u32 s58, s58, {k.L('pc')}-{k.name}
  s_subb_u32 s59, s59, 0
  s_lshr_b32 s41, s2, 3
  s_and_b32 s41, s41, 7
  s_lshl_b32 s41, s41, 13
  v_lshl_add_u32 v50, v1, 7, s41
  v_min_u32 v50, {k.L('codeend')}-{k.name}-4, v50
  global_load_dword v51, v50, s[58:59]
{k.L('nopf')}:""")
    kb.stamp(k, 2)
    k.wait_vm(("W", 0))
    k("  s_barrier")
    kb.stamp(k, 3)
    dX(k, 1); dW(k, 2); dW(k, 3); dX(k, 2)
    slices = {0: [stats_a1], 1: [stats_a2], 2: [stats_b], 3: [stats_c], 4: [stats_d, zero_job], 5: [cs_a], 6: [cs_b], 7: [sw_addr], 8: [sw_dma], 10: [sw_proc1], 11: [sw_proc2]}
    for j in range(20):
        if j + 1 <= 19:
            k.wait_vm(("W", j + 1))
            if (j + 1) % 2 == 0: k.wait_vm(("X", (j + 1)//2))
        if j == 9:
            k.wait_vm("jst")
            k.wait_vm("g0"); saved = list(k.vm)
            k(f"""
  s_cmp_eq_u32 s39, 0
  s_cbranch_scc0 {k.L('g0ok')}
  v_cmp_ne_u32 vcc, 1, v52
  s_cmp_eq_u64 vcc, 0
  s_cbranch_scc1 {k.L('g0ok')}
{k.L('g0sp')}:
  s_sleep 6
  global_load_dword v52, v53, s[{S_DBG}:{S_DBG+1}] sc1
  s_waitcnt vmcnt(0)
  v_cmp_ne_u32 vcc, 1, v52
  s_cmp_eq_u64 vcc, 0
  s_cbranch_scc0 {k.L('g0sp')}
{k.L('g0ok')}:""")
            k.vm = saved
        if j == 14:
            poll_check(k, 52, "f2", "f2")
            k.wait_vm("jst2")
        k("  s_barrier")
        groups = []
        if j + NWS <= 19: groups += gW(j + NWS)
        if j % 2 == 1 and (j + 1)//2 + 2 <= 9: groups += gX((j + 1)//2 + 2)
        fns = list(slices.get(j, []))
        if j == 6:
            def g0rd(k):
                k("  v_mov_b32 v53, 0")
                k.vmem(f"  global_load_dword v52, v53, s[{S_DBG}:{S_DBG+1}] sc1", "g0")
            fns.append(g0rd)
        if j == 9:
            fns.append(lambda k: store_flag(k, 39, 0, f"  s_lshr_b32 s41, s2, 4\n  s_lshl_b32 s41, s41, 7\n  s_and_b32 s42, s2, 15\n  s_add_u32 s41, s41, s42\n  s_add_u32 s41, s41, {FL_F2}", "ff2"))
        if j == 13: fns.append(lambda k: wphi_dma(k, "  s_lshl_b32 s58, s38, 2\n  s_add_u32 s58, s58, s39", WP, True))
        if j == 12:
            fns.append(lambda k: poll_issue(k, 52, f"  v_lshrrev_b32 v53, 2, v1\n  v_lshlrev_b32 v53, 7, v53\n  v_and_b32 v54, 3, v1\n  v_lshl_add_u32 v53, v54, 2, v53\n  v_add_u32 v53, {FL_F2}, v53", "f2"))
        if j == 14:
            fns.append(t_issue)
            fns.append(lambda k: store_flag(k, 39, 0, f"  s_lshr_b32 s41, s2, 4\n  s_lshl_b32 s41, s41, 7\n  s_and_b32 s42, s2, 15\n  s_add_u32 s41, s41, s42\n  s_add_u32 s41, s41, {FL_F3}", "ff3"))
        if j == 17: fns.append(t_build)
        if j == 19:
            fns.append(lambda k: poll_issue(k, 52, f"  v_lshrrev_b32 v53, 2, v1\n  v_lshlrev_b32 v53, 7, v53\n  v_and_b32 v54, 3, v1\n  v_lshl_add_u32 v53, v54, 2, v53\n  v_add_u32 v53, {FL_F3}, v53", "f3", only0=False))
        kb.interleave(k, groups, rec(k, fns))
        kb.stamp(k, 16 + j)
CODE_PF = True
import os
EXP = os.environ.get('EXP', '')

VXA = [4, 5, 6, 7]; VXB = [8, 9, 10, 11]; VWA = [12, 13, 14, 15]
FX = [[80, 84], [104, 108]]
FW = [[88, 92, 96, 100], [112, 116, 120, 124]]
ACC = 128
WA_KV = 56
def acc(tb, b): return ACC + tb*64 + b*16

def a_reads(set_, st4, ks2):
    ksl = 2*(st4 & 1) + ks2
    r = []
    for tb in range(2):
        r.append(f"  ds_read_b128 v[{FX[set_][tb]}:{FX[set_][tb]+3}], v{VXA[ksl]} offset:{tb*4096}")
    for b in range(4):
        for t in range(2):
            d = FW[set_][b] + 2*t
            r.append(f"  ds_read_b64_tr_b16 v[{d}:{d+1}], v{VWA[b]} offset:{st4*16384 + ks2*2048 + t*512}")
    return r
def a_mfmas(cur):
    return [f"  v_mfma_f32_32x32x16_bf16 v[{acc(tb,b)}:{acc(tb,b)+15}], v[{FW[cur][b]}:{FW[cur][b]+3}], v[{FX[cur][tb]}:{FX[cur][tb]+3}], v[{acc(tb,b)}:{acc(tb,b)+15}]"
            for b in range(4) for tb in range(2)]

def a_stage(k, st4, tail=None, pre_barrier=None, post_barrier=None):
    odd = st4 & 1
    mf = a_mfmas(0); rd = a_reads(1, st4, 1)
    k("  s_waitcnt lgkmcnt(0)")
    sched = [2, 2, 2, 2, 1, 1, 0, 0]
    extra = []
    if odd:
        extra = [f"  v_add_u32 v{VXA[i]}, s47, v{VXB[i]}" for i in range(3)]
    for i, m in enumerate(mf):
        k(m)
        for _ in range(sched[i]): k(rd.pop(0))
        if i >= 5 and extra: k(extra.pop(0))
    mf = a_mfmas(1)
    k("  s_waitcnt lgkmcnt(0)")
    k(mf[0])
    if pre_barrier: k(pre_barrier)
    k("  s_barrier")
    rd = a_reads(0, (st4 + 1) % 4, 0) if tail is None else list(tail)
    sched = [2, 2, 2, 2, 1, 1, 0]
    for i, m in enumerate(mf[1:]):
        for _ in range(sched[i]):
            if rd: k(rd.pop(0))
        k(m)
    while rd: k(rd.pop(0))
    if odd:
        k(f"  v_add_u32 v{VXA[3]}, s47, v{VXB[3]}")
        k("  s_add_u32 s47, s47, 16384\n  s_cmp_eq_u32 s47, 49152\n  s_cselect_b32 s47, 0, s47")

def compute_a(k):
    kb.stamp(k, 0, rt=True)
    k(f"""
  s_or_b32 s41, s2, s3
  s_cmp_eq_u32 s41, 0
  s_cbranch_scc0 {k.L('nog0')}
  v_lshlrev_b32 v4, 7, v1
  v_add_u32 v4, {FL}, v4
  v_add_u32 v5, {64*128}, v4
  v_mov_b32 v6, 0x7fff0000
  v_cmp_gt_u32 vcc, {NFL - 64}, v1
  v_cndmask_b32 v5, v6, v5, vcc
  v_mov_b32 v8, 0
  v_mov_b32 v9, 0
  v_mov_b32 v10, 0
  v_mov_b32 v11, 0
  buffer_store_dwordx4 v[8:11], v4, {R(R_WS)}, 0 offen sc1
  buffer_store_dwordx4 v[8:11], v5, {R(R_WS)}, 0 offen sc1
  s_waitcnt vmcnt(0)
  v_mov_b32 v4, 0
  v_mov_b32 v5, 1
  s_mov_b64 exec, 1
  global_store_dword v4, v5, s[{S_DBG}:{S_DBG+1}] sc1
  s_mov_b64 exec, -1
{k.L('nog0')}:""")
    k(f"""
  s_lshr_b32 s43, s39, 1                   ; Th
  s_and_b32 s44, s39, 1                    ; Fh
  v_and_b32 v16, 31, v1                    ; n
  v_lshrrev_b32 v17, 5, v1                 ; hh
  v_lshrrev_b32 v18, 1, v16
  v_and_b32 v18, 7, v18
  v_xor_b32 v18, v17, v18
  v_lshlrev_b32 v18, 4, v18
  v_lshl_add_u32 v18, v16, 7, v18
  s_lshl_b32 s45, s43, 13
  v_add_u32 v{VXB[0]}, s45, v18
  v_xor_b32 v{VXB[1]}, 32, v{VXB[0]}
  v_xor_b32 v{VXB[2]}, 64, v{VXB[0]}
  v_xor_b32 v{VXB[3]}, 96, v{VXB[0]}
  v_mov_b32 v{VXA[0]}, v{VXB[0]}
  v_mov_b32 v{VXA[1]}, v{VXB[1]}
  v_mov_b32 v{VXA[2]}, v{VXB[2]}
  v_mov_b32 v{VXA[3]}, v{VXB[3]}
  s_mov_b32 s47, 16384
  v_lshrrev_b32 v18, 4, v1                 ; G
  v_lshrrev_b32 v19, 2, v1
  v_and_b32 v19, 3, v19                    ; r
  v_and_b32 v20, 3, v1                     ; c
  v_lshrrev_b32 v21, 1, v18
  v_lshl_add_u32 v21, v21, 3, v19
  v_lshlrev_b32 v21, 7, v21
  v_add_u32 v21, {WR}, v21
  v_lshrrev_b32 v22, 1, v19
  v_lshlrev_b32 v22, 2, v22
  v_and_b32 v23, 1, v18
  v_lshlrev_b32 v23, 1, v23
  v_lshrrev_b32 v24, 1, v20
  v_add_u32 v23, v23, v24                  ; j'
  v_and_b32 v24, 1, v20                    ; hh'
  s_cmp_eq_u32 s37, 0
  s_cbranch_scc1 {k.L('c_kv')}""")
    for b in range(4):
        k(f"""
  v_add_u32 v25, {4*(b&1)}, v23
  v_xor_b32 v25, v25, v22
  v_lshl_add_u32 v25, v25, 4, v21
  v_lshl_add_u32 v25, v24, 3, v25
  s_lshl_b32 s45, s44, 13
  s_add_u32 s45, s45, {(b>>1)*4096}
  v_add_u32 v{VWA[b]}, s45, v25""")
    k(f"  s_branch {k.L('c_go')}\n{k.L('c_kv')}:")
    k(f"  s_lshl_b32 s45, s44, 1\n  v_add_u32 v26, s45, v24\n  v_mul_u32_u24 v26, 5, v26")
    for b in range(4):
        k(f"""
  v_add_u32 v27, {4*b}, v23
  v_add_u32 v28, v26, v27
  v_add_u32 v29, 15, v28
  v_cmp_gt_u32 vcc, 5, v27
  v_cndmask_b32 v28, v29, v28, vcc
  s_lshl_b32 s45, s44, 3
  v_lshl_add_u32 v29, v24, 2, s45
  v_add_u32 v29, v29, v27
  v_add_u32 v29, {48 - 10}, v29
  v_cmp_gt_u32 vcc, 10, v27
  v_cndmask_b32 v28, v29, v28, vcc
  v_cmp_gt_u32 vcc, 14, v27
  v_cndmask_b32 v28, v24, v28, vcc
  v_lshrrev_b32 v29, 4, v28
  v_lshrrev_b32 v30, 1, v28
  v_and_b32 v30, 7, v30
  v_xor_b32 v30, v30, v22
  v_and_b32 v31, 1, v28
  v_lshl_add_u32 v30, v30, 4, v21
  v_lshl_add_u32 v30, v31, 3, v30
  v_lshl_add_u32 v{VWA[b]}, v29, 12, v30""")
    k(f"{k.L('c_go')}:")
    for i in range(128): k(f"  v_mov_b32 v{ACC+i}, 0")
    k(f"""
  s_lshl_b32 s45, s43, 10
  s_add_u32 s45, s45, {ST}
  v_lshl_add_u32 v32, v16, 4, s45
  s_lshl_b32 s45, s44, 11
  s_add_u32 s45, s45, {TT}
  v_lshl_add_u32 v33, v16, 4, s45
  v_mov_b32 v34, {ZR}
  v_cmp_eq_u32 vcc, 0, v17
  v_cndmask_b32 v33, v34, v33, vcc
  v_lshrrev_b32 v25, 1, v18                ; hh_k
  s_lshl_b32 s45, s44, 1
  v_add_u32 v26, s45, v24
  v_lshlrev_b32 v26, 10, v26
  v_add_u32 v26, {WP}, v26
  v_mul_u32_u24 v27, 40, v19
  v_add_u32 v27, v27, v26
  v_lshl_add_u32 v27, v23, 3, v27
  v_mov_b32 v28, {ZR}
  v_cmp_eq_u32 vcc, v24, v25
  v_cndmask_b32 v35, v28, v27, vcc
  v_add_u32 v30, 32, v27
  v_cmp_eq_u32 s[50:51], 0, v23
  s_and_b64 vcc, vcc, s[50:51]
  v_cndmask_b32 v31, v28, v30, vcc""")
    kb.stamp(k, 2)
    k("  s_barrier")
    kb.stamp(k, 3)
    for l in a_reads(0, 0, 0): k(l)
    k("  s_mov_b32 s46, 0\n.p2align 3")
    k.label("kloop")
    for st4 in range(4): a_stage(k, st4)
    k(f"  s_add_u32 s46, s46, 1\n  s_cmp_lt_u32 s46, 4\n  s_cbranch_scc1 {k.L('kloop')}")
    for st4 in range(3): a_stage(k, st4)
    tail = [f"  ds_read_b128 v[{36+4*tb}:{39+4*tb}], v32 offset:{tb*512}" for tb in range(2)] + \
           [f"  ds_read_b128 v[{FW[0][b]}:{FW[0][b]+3}], v33 offset:{b*512}" for b in range(4)]
    a_stage(k, 3, tail=tail)
    for beta in range(2):
        for st in range(3):
            for t in range(2):
                d0 = 8*st + 4*t; reg = WA_KV + (beta*3 + st)*4 + 2*t
                if d0 < 20: k(f"  ds_read_b64_tr_b16 v[{reg}:{reg+1}], v{35 if beta == 0 else 31} offset:{d0*40}")
                else: k(f"  v_mov_b32 v{reg}, 0\n  v_mov_b32 v{reg+1}, 0")
    k("  s_waitcnt lgkmcnt(10)")
    kb.stamp(k, 4)
    for tb in range(2):
        s = 36 + 4*tb; d = FX[0][tb]
        k(f"""
  v_rcp_f32 v44, v{s+2}
  v_sub_f32 v45, 0, v{s}
  v_cvt_pk_bf16_f32 v{d}, v45, v45
  v_and_b32 v46, 0xffff0000, v{d}
  v_sub_f32 v46, v45, v46
  v_cvt_pk_bf16_f32 v47, v44, v44
  v_and_b32 v48, 0xffff0000, v47
  v_sub_f32 v48, v44, v48
  v_cvt_pk_bf16_f32 v{d+1}, v46, v44
  v_cvt_pk_bf16_f32 v{d+2}, v48, 0
  v_mov_b32 v{d+3}, 0
  v_mov_b32 v{s+3}, v44
  v_cmp_eq_u32 vcc, 0, v17
  v_cndmask_b32 v{d}, 0, v{d}, vcc
  v_cndmask_b32 v{d+1}, 0, v{d+1}, vcc
  v_cndmask_b32 v{d+2}, 0, v{d+2}, vcc""")
    for m in a_mfmas(0): k(m)
    k(f"  s_cmp_eq_u32 s37, 0\n  s_cbranch_scc1 {k.L('epi_kv')}")
    epi_g(k)
    k(f"  s_branch {k.L('phase_b')}")
    k.label("epi_kv")
    epi_kv(k)
    k.label("phase_b")

def gelu_block(k, a, dst):
    T = 60
    for p in range(0, 16, 8):
        prs = [(a + p + 2*i, T + 2*i) for i in range(4)]
        for (x, t) in prs: k(f"  v_pk_mul_f32 v[{t}:{t+1}], v[{x}:{x+1}], v[{x}:{x+1}]")
        for (x, t) in prs: k(f"  v_pk_fma_f32 v[{t}:{t+1}], v[{t}:{t+1}], v[52:53], v[50:51]")
        for (x, t) in prs: k(f"  v_pk_mul_f32 v[{t}:{t+1}], v[{t}:{t+1}], v[{x}:{x+1}]")
        for i in range(8): k(f"  v_exp_f32 v{T+i}, v{T+i}")
        for (x, t) in prs: k(f"  v_pk_fma_f32 v[{t}:{t+1}], v[{t}:{t+1}], v[54:55], v[54:55]")
        for i in range(8): k(f"  v_rcp_f32 v{T+i}, v{T+i}")
        for (x, t) in prs: k(f"  v_pk_mul_f32 v[{t}:{t+1}], v[{t}:{t+1}], v[{x}:{x+1}]")
        for n_, (x, t) in enumerate(prs): k(f"  v_cvt_pk_bf16_f32 v{dst + p//2 + n_}, v{t}, v{t+1}")

def epi_g_unit(k, uu):
    k(f"""
  s_lshl_b32 s50, s44, 1
  s_add_u32 s50, s50, {uu}
  s_lshl_b32 s51, s38, 2
  s_add_u32 s51, s51, s50                  ; u_lin
  s_cmp_lt_u32 s51, 27
  s_cbranch_scc1 {k.L('g_w1_%d' % uu)}
  s_bitcmp1_b32 s51, 0
  s_cbranch_scc1 {k.L('g_done_%d' % uu)}
  s_cmp_lt_u32 s51, 28
  s_cbranch_scc1 {k.L('g_done_%d' % uu)}
  s_lshr_b32 s51, s51, 1
  s_sub_u32 s51, s51, 6""")
    for tb in range(2):
        k(f"""
  s_add_u32 s52, s48, {2*tb}
  s_mul_i32 s52, s52, 160
  s_lshl_b32 s53, s51, 4
  s_add_u32 s52, s52, s53
  s_lshl_b32 s52, s52, 7
  s_add_u32 s52, s52, {L.WS_Q}""")
        for bb in range(2):
            a = acc(tb, 2*uu + bb)
            for jp in range(4):
                r = 60 + 2*(jp % 4)
                k(f"  v_cvt_pk_bf16_f32 v{r}, v{a+4*jp}, v{a+4*jp+1}\n  v_cvt_pk_bf16_f32 v{r+1}, v{a+4*jp+2}, v{a+4*jp+3}")
                k(f"  buffer_store_dwordx2 v[{r}:{r+1}], v59, {R(R_WS)}, s52 offen offset:{bb*1024 + jp*256} sc1")
    k(f"  s_branch {k.L('g_done_%d' % uu)}\n{k.L('g_w1_%d' % uu)}:")
    k(f"""
  s_and_b32 s53, s51, 1
  s_mul_i32 s53, s53, 27
  s_add_u32 s51, s51, s53""")
    for tb in range(2):
        s = 36 + 4*tb
        k(f"""
  v_mul_f32 v50, {fl(C0)}, v{s+2}
  v_mul_f32 v52, v{s+2}, v{s+2}
  v_mul_f32 v52, v52, v{s+2}
  v_mov_b32 v51, v50
  v_mul_f32 v52, {fl(C1)}, v52
  v_mov_b32 v54, v{s+3}
  v_mov_b32 v55, v{s+3}
  v_mov_b32 v53, v52
  s_add_u32 s52, s48, {2*tb}
  s_mul_i32 s52, s52, 74
  s_add_u32 s52, s52, s51
  s_lshl_b32 s52, s52, 10
  s_add_u32 s52, s52, {L.WS_HO}""")
        for bb in range(2):
            a = acc(tb, 2*uu + bb)
            d = 68 + 8*((2*tb + bb) % 1) if False else (68 if bb == 0 else 20)
            gelu_block(k, a, d)
            k(f"  buffer_store_dwordx4 v[{d}:{d+3}], v58, {R(R_WS)}, s52 offen offset:{bb*1024} sc1")
            k(f"  buffer_store_dwordx4 v[{d+4}:{d+7}], v58, {R(R_WS)}, s52 offen offset:{bb*1024 + 256} sc1")
    k(f"{k.L('g_done_%d' % uu)}:")

def epi_g(k):
    k(f"""
  s_waitcnt lgkmcnt(0)
  v_lshrrev_b32 v56, 4, v16
  v_and_b32 v57, 15, v16
  v_mul_u32_u24 v58, {74*1024}, v56
  v_lshl_add_u32 v58, v17, 9, v58
  v_lshl_add_u32 v58, v57, 4, v58
  v_mul_u32_u24 v59, {160*128}, v56
  v_lshl_add_u32 v59, v17, 7, v59
  v_lshl_add_u32 v59, v57, 3, v59
  s_lshl_b32 s48, s36, 3
  s_lshl_b32 s49, s43, 2
  s_add_u32 s48, s48, s49""")
    epi_g_unit(k, 0)
    k("  s_waitcnt vmcnt(0)\n  s_barrier")
    kb.stamp(k, 5)
    store_flag(k, 39, 0, f"  s_lshl_b32 s41, s36, 7\n  s_add_u32 s41, s41, s38\n  s_add_u32 s41, s41, {FL_H1}", "fh1")
    epi_g_unit(k, 1)
    kb.stamp(k, 8)
    k("  s_barrier")

def epi_kv(k):
    WA = WA_KV; KB_ = 80
    k(f"""
  s_lshl_b32 s45, s43, 6
  v_add_u32 v32, s45, v16
  s_lshl_b32 s45, s44, 1
  v_add_u32 v33, s45, v17
  v_mul_u32_u24 v34, {PHI_P}, v32
  v_mul_u32_u24 v35, 80, v33
  v_add_u32 v34, v34, v35
  v_add_u32 v34, {PHI}, v34
  v_mul_u32_u24 v35, {VV_P}, v32
  v_mul_u32_u24 v33, 48, v33
  v_add_u32 v35, v35, v33
  v_add_u32 v35, {VV}, v35""")
    for tb in range(2):
        a = ACC + tb*64
        for i in range(10): k(f"  v_cvt_pk_bf16_f32 v{KB_+12*tb+i}, v{a+2*i}, v{a+2*i+1}")
        k(f"  v_mov_b32 v{KB_+12*tb+10}, 0\n  v_mov_b32 v{KB_+12*tb+11}, 0")
    k(f"""
  v_lshrrev_b32 v2, 4, v16
  v_and_b32 v0, 15, v16
  v_mul_u32_u24 v18, {160*128}, v2
  v_lshl_add_u32 v18, v17, 9, v18
  v_lshl_add_u32 v18, v0, 3, v18
  s_lshl_b32 s48, s36, 3
  s_lshl_b32 s49, s43, 2
  s_add_u32 s48, s48, s49""")
    for tb in range(2):
        k(f"""
  s_add_u32 s52, s48, {2*tb}
  s_mul_i32 s52, s52, 160
  s_lshl_b32 s53, s38, 4
  s_add_u32 s52, s52, s53
  s_lshl_b32 s53, s44, 3
  s_add_u32 s52, s52, s53
  s_lshl_b32 s52, s52, 7
  s_add_u32 s52, s52, {L.WS_Q}""")
        a = ACC + tb*64 + 40
        for g in range(4):
            r = 104 + 8*tb + 2*g
            k(f"  v_cvt_pk_bf16_f32 v{r}, v{a+4*g}, v{a+4*g+1}\n  v_cvt_pk_bf16_f32 v{r+1}, v{a+4*g+2}, v{a+4*g+3}")
            k(f"  buffer_store_dwordx2 v[{r}:{r+1}], v18, {R(R_WS)}, s52 offen offset:{g*128} sc1")
    k("  s_waitcnt lgkmcnt(0)")
    B1 = [112, 18]
    for st in range(3):
        for tb in range(2):
            for beta in range(2):
                d = (ACC + tb*64 + 40) if beta == 0 else B1[tb]
                c = "0" if st == 0 else f"v[{d}:{d+15}]"
                w = WA + (beta*3 + st)*4
                k(f"  v_mfma_f32_32x32x16_bf16 v[{d}:{d+15}], v[{w}:{w+3}], v[{KB_+12*tb+4*st}:{KB_+12*tb+4*st+3}], {c}")
    VB = 44
    for tb in range(2):
        a = ACC + tb*64; s_ = 36 + 4*tb
        k(f"  v_mov_b32 v4, v{s_+1}\n  v_mov_b32 v5, v{s_+1}")
        for i in range(10): k(f"  v_pk_mul_f32 v[{a+20+2*i}:{a+21+2*i}], v[{a+20+2*i}:{a+21+2*i}], v[4:5]")
        for i in range(10): k(f"  v_cvt_pk_bf16_f32 v{VB+i}, v{a+20+2*i}, v{a+21+2*i}")
        k(f"  v_mov_b32 v{VB+10}, 0x3f80\n  v_mov_b32 v{VB+11}, 0")
        for c in range(3): k(f"  ds_write_b128 v35, v[{VB+4*c}:{VB+4*c+3}] offset:{tb*32*VV_P + 16*c}")
    for tb in range(2):
        a = ACC + tb*64; s_ = 36 + 4*tb
        for i in range(4): k(f"  v_mov_b32 v{a+56+i}, v{B1[tb]+i}")
        PH = 80 + 0
        softmax_pair(k, [a + 40 + i for i in range(20)], s_ + 1, a, PH, T=44)
        for c in range(5): k(f"  ds_write_b128 v34, v[{PH+4*c}:{PH+4*c+3}] offset:{tb*32*PHI_P + 16*c}")
        if tb == 0: k("  s_nop 1")
    k("  s_waitcnt vmcnt(0) lgkmcnt(0)\n  s_barrier")
    kb.stamp(k, 5)
    store_flag(k, 39, 0, f"  s_lshl_b32 s41, s36, 7\n  s_add_u32 s41, s41, s38\n  s_add_u32 s41, s41, {FL_Q}", "fq")
    k(f"""
  v_lshrrev_b32 v18, 4, v1
  v_lshrrev_b32 v19, 2, v1
  v_and_b32 v19, 3, v19
  v_and_b32 v20, 3, v1
  v_lshrrev_b32 v21, 1, v18
  v_lshl_add_u32 v21, v21, 3, v19
  v_and_b32 v22, 1, v18
  v_lshlrev_b32 v22, 2, v22
  v_add_u32 v22, v22, v20
  v_mul_u32_u24 v23, {PHI_P}, v21
  s_mul_i32 s45, s39, 80
  s_add_u32 s45, s45, {PHI}
  v_add_u32 v23, s45, v23
  v_lshl_add_u32 v24, v22, 3, v23
  v_and_b32 v25, 1, v22
  v_lshl_add_u32 v25, v25, 3, v23
  v_add_u32 v25, 64, v25
  v_mul_u32_u24 v26, {VV_P}, v21
  s_mul_i32 s45, s39, 48
  s_add_u32 s45, s45, {VV}
  v_add_u32 v26, s45, v26
  v_min_u32 v27, 5, v22
  v_lshl_add_u32 v26, v27, 3, v26""")
    KA = 48; FA = 128
    def rd(st):
        base = FA + st*12
        for t in range(2):
            tok = 16*st + 4*t
            k(f"  ds_read_b64_tr_b16 v[{base+2*t}:{base+2*t+1}], v24 offset:{tok*PHI_P}")
            k(f"  ds_read_b64_tr_b16 v[{base+4+2*t}:{base+5+2*t}], v25 offset:{tok*PHI_P}")
            k(f"  ds_read_b64_tr_b16 v[{base+8+2*t}:{base+9+2*t}], v26 offset:{tok*VV_P}")
    rd(0); rd(1)
    k(f"""
  v_lshlrev_b32 v28, 2, v16
  v_lshl_add_u32 v28, v17, 9, v28
  v_mov_b32 v29, 0x7fff0000
  v_cmp_gt_u32 vcc, 21, v16
  v_cndmask_b32 v28, v29, v28, vcc
  s_lshl_b32 s45, s38, 2
  s_add_u32 s45, s45, s39
  s_mul_i32 s45, s45, {40*128}
  s_add_u32 s45, s45, {L.WS_KV}
  s_add_u32 s46, s45, {32*128}""")
    for st in range(8):
        k(f"  s_waitcnt lgkmcnt({6 if st < 7 else 0})")
        base = FA + st*12
        for beta in range(2):
            c = "0" if st == 0 else f"v[{KA+16*beta}:{KA+16*beta+15}]"
            k(f"  v_mfma_f32_32x32x16_bf16 v[{KA+16*beta}:{KA+16*beta+15}], v[{base+4*beta}:{base+4*beta+3}], v[{base+8}:{base+11}], {c}")
        if st + 2 < 8: rd(st + 2)
    for i in range(4):
        k(f"  buffer_atomic_add_f32 v{KA+16+i}, v28, {R(R_WS)}, s46 offen offset:{i*128}")
    for jp in range(4):
        for i in range(4):
            k(f"  buffer_atomic_add_f32 v{KA+4*jp+i}, v28, {R(R_WS)}, s45 offen offset:{(8*jp+i)*128}")
    kb.stamp(k, 8)
    k("  s_barrier")

def softmax_1(k, P, vr1, E, T=44):
    k(f"  v_max3_f32 v{T+0}, v{P[0]}, v{P[1]}, v{P[2]}\n  v_min3_f32 v{T+1}, v{P[0]}, v{P[1]}, v{P[2]}")
    k(f"  v_max3_f32 v{T+2}, v{P[3]}, v{P[4]}, v{P[5]}\n  v_min3_f32 v{T+3}, v{P[3]}, v{P[4]}, v{P[5]}")
    for i in range(6, 18, 4):
        k(f"  v_max3_f32 v{T+0}, v{T+0}, v{P[i]}, v{P[i+1]}\n  v_min3_f32 v{T+1}, v{T+1}, v{P[i]}, v{P[i+1]}")
        k(f"  v_max3_f32 v{T+2}, v{T+2}, v{P[i+2]}, v{P[i+3]}\n  v_min3_f32 v{T+3}, v{T+3}, v{P[i+2]}, v{P[i+3]}")
    k(f"  v_max3_f32 v{T+0}, v{T+0}, v{P[18]}, v{P[19]}\n  v_min3_f32 v{T+1}, v{T+1}, v{P[18]}, v{P[19]}")
    k(f"  v_max_f32 v{T+0}, v{T+0}, v{T+2}\n  v_min_f32 v{T+1}, v{T+1}, v{T+3}")
    k(f"""
  v_mul_f32 v{T+2}, {fl(LOG2E)}, v{vr1}
  v_mov_b32 v{T+3}, v{T+2}
  v_mul_f32 v2, v{T+0}, v{T+2}
  v_mul_f32 v0, v{T+1}, v{T+2}
  v_sub_f32 v{T+0}, 0, v2
  v_sub_f32 v{T+1}, 0, v2""")
    for i in range(10):
        k(f"  v_pk_fma_f32 v[{E+2*i}:{E+2*i+1}], v[{P[2*i]}:{P[2*i]+1}], v[{T+2}:{T+3}], v[{T}:{T+1}]")
    k(f"  v_mov_b32 v{T+0}, v0\n  v_mov_b32 v{T+1}, v0")
    for i in range(10):
        k(f"  v_pk_fma_f32 v[{E+20+2*i}:{E+21+2*i}], v[{P[2*i]}:{P[2*i]+1}], v[{T+2}:{T+3}], v[{T}:{T+1}] neg_lo:[1,0,0] neg_hi:[1,0,0]")
    for i in range(20): k(f"  v_exp_f32 v{E+i}, v{E+i}")
def softmax_2(k, E, T=44):
    for i in range(20, 40): k(f"  v_exp_f32 v{E+i}, v{E+i}")
    for h_ in range(2):
        b0 = E + 20*h_; d = T + 2*h_
        k(f"  v_pk_add_f32 v[{d}:{d+1}], v[{b0}:{b0+1}], v[{b0+2}:{b0+3}]")
    for i in range(2, 10):
        for h_ in range(2):
            b0 = E + 20*h_; d = T + 2*h_
            k(f"  v_pk_add_f32 v[{d}:{d+1}], v[{d}:{d+1}], v[{b0+2*i}:{b0+2*i+1}]")
    k(f"  v_add_f32 v{T+0}, v{T+0}, v{T+1}\n  v_add_f32 v{T+2}, v{T+2}, v{T+3}\n  v_rcp_f32 v{T+0}, v{T+0}\n  v_rcp_f32 v{T+2}, v{T+2}")
    k(f"  v_mov_b32 v{T+1}, v{T+0}\n  v_mov_b32 v{T+3}, v{T+2}")
def softmax_3(k, E, PH, T=44):
    for i in range(10):
        for h_ in range(2):
            b0 = E + 20*h_; d = T + 2*h_
            k(f"  v_pk_mul_f32 v[{b0+2*i}:{b0+2*i+1}], v[{b0+2*i}:{b0+2*i+1}], v[{d}:{d+1}]")
    for h_ in range(2):
        for i in range(10):
            k(f"  v_cvt_pk_bf16_f32 v{PH+10*h_+i}, v{E+20*h_+2*i}, v{E+20*h_+2*i+1}")
def softmax_pair(k, P, vr1, E, PH, T=44):
    softmax_1(k, P, vr1, E, T); softmax_2(k, E, T); softmax_3(k, E, PH, T)

VS = [4, 5, 6, 7]; VA = [8, 9, 10, 11]
FR = [64 + 24*s for s in range(4)]
ACCB = 32; XR_ = 160; BR_ = 170

def decode_b(k):
    k(f"""
  s_lshr_b32 s40, s2, 3
  s_and_b32 s{S_I64}, s2, 3
  s_lshl_b32 s{S_I64}, s{S_I64}, 3
  s_lshr_b32 s41, s40, 2
  s_add_u32 s{S_I64}, s{S_I64}, s41
  s_lshr_b32 s{S_JB}, s2, 2
  s_and_b32 s{S_JB}, s{S_JB}, 1
  s_lshl_b32 s{S_JB}, s{S_JB}, 2
  s_and_b32 s41, s40, 3
  s_add_u32 s{S_JB}, s{S_JB}, s41
  s_lshl_b32 s{S_T16}, s{S_I64}, 2
  s_add_u32 s{S_T16}, s{S_T16}, s39""")

def breads(st4, ks):
    base = FR[ks]
    r = [f"  ds_read_b128 v[{base}:{base+3}], v{VA[st4]} offset:{ks*1024}"]
    for cb in range(5):
        r.append(f"  ds_read_b128 v[{base+4+4*cb}:{base+7+4*cb}], v{VS[st4]} offset:{(ks*5+cb)*1024}")
    return r
def bmfma(ks):
    base = FR[ks]
    return [f"  v_mfma_f32_16x16x32_bf16 v[{ACCB+4*cb}:{ACCB+4*cb+3}], v[{base+4+4*cb}:{base+7+4*cb}], v[{base}:{base+3}], v[{ACCB+4*cb}:{ACCB+4*cb+3}]" for cb in range(5)]
def bstage(k, st4, next_nks=4, pre_barrier=None, post_barrier=None):
    for ks in range(4):
        mf = bmfma(ks)
        if ks < 2:
            rd = breads(st4, ks + 2)
            k("  s_waitcnt lgkmcnt(6)")
        else:
            if ks == 2:
                k("  s_waitcnt lgkmcnt(0)")
                if pre_barrier: k(pre_barrier)
                k("  s_barrier")
                if post_barrier: post_barrier(k)
            rd = breads((st4 + 1) % 4, ks - 2) if ks - 2 < next_nks else []
        for i, m in enumerate(mf):
            k(m)
            if rd: k(rd.pop(0))
        while rd: k(rd.pop(0))

def compute_b(k):
    decode_b(k)
    k(f"""
  v_and_b32 v16, 15, v1
  v_lshrrev_b32 v17, 4, v1
  s_lshl_b32 s45, s{S_T16}, 4
  v_add_u32 v19, s45, v16
  v_mul_u32_u24 v24, 1280, v19
  s_mul_i32 s45, s{S_JB}, 160
  v_lshl_add_u32 v25, v17, 3, s45
  v_add_u32 v24, v24, v25
  v_lshlrev_b32 v22, 4, v1
  s_lshl_b32 s44, s39, 12
  s_add_u32 s44, s44, 20480""")
    for s in range(4):
        k(f"  v_add_u32 v{VS[s]}, {s*SLOT}, v22\n  v_add_u32 v{VA[s]}, s44, v{VS[s]}")
    for i in range(20): k(f"  v_mov_b32 v{ACCB+i}, 0")
    op_addr(k)
    k("  s_waitcnt vmcnt(0)")
    k("  s_barrier")
    kb.stamp(k, 9)
    for ks in range(2):
        for l in breads(0, ks): k(l)
    def flags0(k):
        k(f"  s_cmp_eq_u32 s37, 0\n  s_cbranch_scc1 {k.L('fkv_a')}")
        store_flag(k, 39, 0, f"  s_lshl_b32 s41, s36, 7\n  s_add_u32 s41, s41, s38\n  s_add_u32 s41, s41, {FL_H2}", "fh2")
        k(f"  s_branch {k.L('fkv_b')}\n{k.L('fkv_a')}:")
        store_flag(k, 39, 0, f"  s_lshl_b32 s41, s38, 7\n  s_add_u32 s41, s41, s36\n  s_add_u32 s41, s41, {FL_KV}", "fkv")
        k(f"{k.L('fkv_b')}:")
    def flagO(k):
        store_flag(k, 39, 0, f"  s_lshl_b32 s41, s{S_I64}, 7\n  s_add_u32 s41, s41, s{S_JB}\n  s_add_u32 s41, s41, {FL_O}", "fo")
    flags0(k)
    def qloads(k):
        op_q_issue(k)
        for cb in range(5):
            k(f"  buffer_load_dwordx2 v[{XR_+2*cb}:{XR_+2*cb+1}], v24, {R(R_X)}, 0 offen offset:{32*cb}")
            k(f"  buffer_load_dwordx2 v[{BR_+2*cb}:{BR_+2*cb+1}], v25, {R(R_T)}, 0 offen offset:{32*cb}")
    bstage(k, 0, post_barrier=qloads)
    bstage(k, 1)
    bstage(k, 2)
    kb.stamp(k, 11)
    pause1(k)
    kb.stamp(k, 12)
    for j in range(3, 7): bstage(k, j % 4)
    kb.stamp(k, 13)
    pause2(k)
    kb.stamp(k, 14)
    bstage(k, 3)
    bstage(k, 0, pre_barrier="  s_waitcnt vmcnt(0)", post_barrier=flagO)
    for st4 in (1, 2, 3): bstage(k, st4)
    for st4 in range(4): bstage(k, st4)
    bstage(k, 0)
    bstage(k, 1, next_nks=2)
    k("  s_waitcnt lgkmcnt(0)")
    for ks in range(2):
        for m in bmfma(ks): k(m)
    kb.stamp(k, 10)
    k("  s_waitcnt vmcnt(0)")
    for cb in range(5):
        a = ACCB + 4*cb; x = XR_ + 2*cb; b = BR_ + 2*cb
        k(f"""
  v_lshlrev_b32 v52, 16, v{x}
  v_and_b32 v53, 0xffff0000, v{x}
  v_lshlrev_b32 v54, 16, v{x+1}
  v_and_b32 v55, 0xffff0000, v{x+1}
  v_lshlrev_b32 v56, 16, v{b}
  v_and_b32 v57, 0xffff0000, v{b}
  v_lshlrev_b32 v58, 16, v{b+1}
  v_and_b32 v59, 0xffff0000, v{b+1}
  v_pk_add_f32 v[52:53], v[52:53], v[56:57]
  v_pk_add_f32 v[54:55], v[54:55], v[58:59]
  v_pk_add_f32 v[{a}:{a+1}], v[{a}:{a+1}], v[52:53]
  v_pk_add_f32 v[{a+2}:{a+3}], v[{a+2}:{a+3}], v[54:55]
  v_cvt_pk_bf16_f32 v{60+2*cb}, v{a}, v{a+1}
  v_cvt_pk_bf16_f32 v{61+2*cb}, v{a+2}, v{a+3}
  buffer_store_dwordx2 v[{60+2*cb}:{61+2*cb}], v24, {R(R_OUT)}, 0 offen offset:{32*cb}""")
    if kb.PROF:
        k("  s_waitcnt vmcnt(0)")
        kb.stamp(k, 6, rt=True); kb.dump(k, S_WS)
    k("  s_endpgm")

def wfrag(i): return 112 + 4*i if i < 12 else 180 + 4*(i - 12)
OQ = 192; OP = 204; OE = 112; OPH = 236; OO = 180; OB = 204
def op_addr(k):
    k(f"""
  v_lshrrev_b32 v26, 2, v1
  v_and_b32 v26, 3, v26
  v_and_b32 v27, 3, v1
  v_lshlrev_b32 v28, 10, v17
  v_mul_u32_u24 v29, 40, v26
  v_add_u32 v28, v28, v29
  v_add_u32 v28, {WPB}, v28
  v_mov_b32 v29, {ZB}
  v_cmp_eq_u32 vcc, v27, v17
  v_cndmask_b32 v28, v29, v28, vcc
  v_mul_u32_u24 v30, {40*KVP}, v17
  v_mul_u32_u24 v31, {KVP}, v26
  v_add_u32 v30, v30, v31
  v_add_u32 v30, {KVB}, v30
  v_cndmask_b32 v30, v29, v30, vcc""")
def op_q_issue(k):
    k(f"""
  v_mul_u32_u24 v18, 640, v17
  v_lshl_add_u32 v18, v16, 3, v18
  s_mul_i32 s58, s{S_T16}, 160
  s_mul_i32 s59, s{S_JB}, 20
  s_add_u32 s58, s58, s59
  s_lshl_b32 s58, s58, 7
  s_add_u32 s58, s58, {L.WS_Q}
  v_lshlrev_b32 v20, 4, v19""")
    for g in range(5):
        k(f"  buffer_load_dwordx2 v[{OQ+2*g}:{OQ+2*g+1}], v18, {R(R_WS)}, s58 offen offset:{128*g} sc1")
    k(f"  buffer_load_dword v21, v20, {R(R_WS)}, 0 offen offset:{L.WS_STATS + 4} sc1")
def pause1(k):
    n = 0
    for b in range(5):
        for s_ in range(3):
            for t in range(2):
                reg = wfrag(b*3 + s_) + 2*t; d0 = 8*s_ + 4*t
                if d0 < 20:
                    k(f"  ds_read_b64_tr_b16 v[{reg}:{reg+1}], v28 offset:{d0*40 + 8*b}"); n += 1
                    if n % 12 == 0: k("  s_waitcnt lgkmcnt(6)")
                else: k(f"  v_mov_b32 v{reg}, 0\n  v_mov_b32 v{reg+1}, 0")
    k(f"  v_mov_b32 v{OQ+10}, 0\n  v_mov_b32 v{OQ+11}, 0\n  s_waitcnt vmcnt(0) lgkmcnt(0)")
    for s_ in range(3):
        for b in range(5):
            c = "0" if s_ == 0 else f"v[{OP+4*b}:{OP+4*b+3}]"
            w = wfrag(b*3 + s_)
            k(f"  v_mfma_f32_16x16x32_bf16 v[{OP+4*b}:{OP+4*b+3}], v[{w}:{w+3}], v[{OQ+4*s_}:{OQ+4*s_+3}], {c}")
    softmax_pair(k, [OP + i for i in range(20)], 21, OE, OPH, T=52)
def pause2(k):
    rounds = ([0, 1], [2, 3], [4, 5])
    def rd(ri):
        for bi, beta in enumerate(rounds[ri]):
            for s_ in range(5):
                for t in range(2):
                    reg = 112 + (ri % 2)*0 + (bi*5 + s_)*4 + 2*t
                    k(f"  ds_read_b64_tr_b16 v[{reg}:{reg+1}], v30 offset:{(8*s_ + 4*t)*KVP + 8*beta}")
                if s_ == 2 or s_ == 4: k("  s_waitcnt lgkmcnt(4)")
    for ri in range(3):
        rd(ri)
        k("  s_waitcnt lgkmcnt(0)")
        for s_ in range(5):
            for bi, beta in enumerate(rounds[ri]):
                c = "0" if s_ == 0 else f"v[{OO+4*beta}:{OO+4*beta+3}]"
                w = 112 + (bi*5 + s_)*4
                k(f"  v_mfma_f32_16x16x32_bf16 v[{OO+4*beta}:{OO+4*beta+3}], v[{w}:{w+3}], v[{OPH+4*s_}:{OPH+4*s_+3}], {c}")
    k(f"  v_add_f32 v52, {fl(1e-6)}, v{OO+20}\n  v_rcp_f32 v52, v52\n  s_nop 0\n  v_mov_b32 v53, v52")
    for i in range(10): k(f"  v_pk_mul_f32 v[{OO+2*i}:{OO+2*i+1}], v[{OO+2*i}:{OO+2*i+1}], v[52:53]")
    for i in range(10): k(f"  v_cvt_pk_bf16_f32 v{OB+i}, v{OO+2*i}, v{OO+2*i+1}")
    k(f"""
  s_mul_i32 s58, s{S_T16}, 74
  s_lshr_b32 s59, s{S_JB}, 1
  s_mul_i32 s59, s59, 5
  s_add_u32 s58, s58, s59
  s_add_u32 s58, s58, 54
  s_lshl_b32 s58, s58, 10
  s_add_u32 s58, s58, {L.WS_HO}
  s_bitcmp1_b32 s{S_JB}, 0
  s_cbranch_scc1 {k.L('o_odd')}
  buffer_store_dwordx4 v[{OB}:{OB+3}], v22, {R(R_WS)}, s58 offen sc1
  buffer_store_dwordx4 v[{OB+4}:{OB+7}], v22, {R(R_WS)}, s58 offen offset:1024 sc1
  buffer_store_dwordx2 v[{OB+8}:{OB+9}], v22, {R(R_WS)}, s58 offen offset:2048 sc1
  s_branch {k.L('o_done')}
{k.L('o_odd')}:
  buffer_store_dwordx2 v[{OB}:{OB+1}], v22, {R(R_WS)}, s58 offen offset:2056 sc1
  buffer_store_dwordx4 v[{OB+2}:{OB+5}], v22, {R(R_WS)}, s58 offen offset:3072 sc1
  s_add_u32 s58, s58, 4096
  buffer_store_dwordx4 v[{OB+6}:{OB+9}], v22, {R(R_WS)}, s58 offen sc1
{k.L('o_done')}:""")
KVR = 148
def op_kv_issue(k):
    k(f"""
  s_lshl_b32 s58, s39, 6
  v_add_u32 v22, s58, v1
  v_lshlrev_b32 v23, 4, v22
  s_mul_i32 s58, s{S_JB}, {4*40*128}
  s_add_u32 s58, s58, {L.WS_KV}""")
    for r in range(5):
        k.begin()
        k(f"  s_add_u32 s59, s58, {r*4096}")
        k.vmem(f"  buffer_load_dwordx4 v[{KVR+4*r}:{KVR+4*r+3}], v23, {R(R_WS)}, s59 offen sc1", "kv")
        k.end()
def op_kv_stage(k):
    k(f"""
  v_and_b32 v23, 7, v22
  v_lshrrev_b32 v18, 3, v22
  v_mul_u32_u24 v18, {KVP}, v18
  v_lshl_add_u32 v18, v23, 3, v18
  v_add_u32 v18, {KVB}, v18""")
    k.wait_vm("kv")
    for r in range(5):
        k(f"  v_cvt_pk_bf16_f32 v{32+2*r}, v{KVR+4*r}, v{KVR+4*r+1}\n  v_cvt_pk_bf16_f32 v{33+2*r}, v{KVR+4*r+2}, v{KVR+4*r+3}")
    k.begin()
    k("  v_cmp_gt_u32 vcc, 6, v23\n  s_and_saveexec_b64 s[58:59], vcc")
    for r in range(5):
        k(f"  ds_write_b64 v18, v[{32+2*r}:{33+2*r}] offset:{r*32*KVP}")
    k("  s_mov_b64 exec, s[58:59]\n  s_waitcnt lgkmcnt(0)")
    k.end()

def loader_b(k):
    if 'noprioB' not in EXP: k("  s_setprio 2")
    decode_b(k)
    k(f"""
  v_lshlrev_b32 v4, 4, v1
  s_mul_i32 s44, s{S_JB}, {74*5*1024}
  s_mul_i32 s45, s39, {5*1024}
  s_add_u32 s44, s44, s45
  s_add_u32 s44, s44, {L.WS_W2}
  s_mul_i32 s46, s{S_T16}, {74*1024}
  s_add_u32 s46, s46, {L.WS_HO}
  s_mul_i32 s47, s39, {5*1024}
  s_lshl_b32 s48, s39, 12
  s_add_u32 s48, s48, 20480""")
    def gDW(j):
        slot = (j % 4)*SLOT
        def mk(cb):
            def f(k):
                if j == 18 and cb == 0: k(f"  s_cmp_lt_u32 s39, 2\n  s_cselect_b32 s26, {L.WS_END}, 0")
                k(f"  s_add_u32 m0, s47, {slot + cb*1024}\n  s_add_u32 s87, s44, {4*j*5*1024 + cb*1024}")
                k.vmem(f"  buffer_load_dwordx4 v4, {R(R_WS)}, s87 offen sc1 lds", ("D", j))
                if j == 18 and cb == 4: k(f"  s_mov_b32 s26, {L.WS_END}")
            return f
        return [mk(cb) for cb in range(5)]
    def gDA(j):
        nks = 4 if j < 18 else 2
        slot = (j % 4)*SLOT
        def mk(ks):
            def f(k):
                k(f"  s_add_u32 m0, s48, {slot + ks*1024}\n  s_add_u32 s87, s46, {(4*j + ks)*1024}")
                k.vmem(f"  buffer_load_dwordx4 v4, {R(R_WS)}, s87 offen sc1 lds", ("D", j))
            return f
        return [mk(ks) for ks in range(nks)]
    def DW(j):
        for f in gDW(j): f(k)
    def DA(j):
        for f in gDA(j): f(k)
    iB = f"  s_lshr_b32 s41, s{S_I64}, 1\n  s_lshl_b32 s41, s41, 7\n"
    k("  s_barrier")
    poll_check(k, 52, "f3", "f3", only0=False, slp=3)
    DW(0); DW(1)
    wphi_dma(k, f"  s_lshl_b32 s58, s{S_JB}, 2\n  s_add_u32 s58, s58, s39", WPB, False)
    k(f"""
  s_mov_b32 s{R_T+2}, 0
  s_and_b32 s58, s39, 1
  s_lshl_b32 s58, s58, 10
  s_add_u32 m0, s58, {ZB}""")
    k.vmem(f"  buffer_load_dwordx4 v40, {R(R_T)}, 0 offen lds", "side")
    poll_issue(k, 50, words(50, iB + f"  s_add_u32 s41, s41, {FL_H1}", 2), "ph1", only0=False)
    poll_check(k, 50, "ph1", "ph1", only0=False, slp=3)
    DA(0); DA(1)
    k.wait_vm("side")
    k("  s_barrier")
    kb.stamp(k, 9)
    k.wait_vm(("D", 0))
    k("  s_barrier")
    kb.stamp(k, 10)
    poll_issue(k, 50, words(50, iB + f"  s_add_u32 s41, s41, {FL_Q}", 2), "pq")
    DA(2); DW(2); DW(3); DA(3)
    for j in range(NSTB - 1):
        k.wait_vm(("D", j + 1))
        if j == 0: poll_check(k, 50, "pq", "pq", slp=2)
        if j == 2: poll_check(k, 50, "ph2", "ph2", slp=2)
        if j == 4: poll_check(k, 50, "pkv", "pkv", slp=2)
        if j == 10: poll_check(k, 50, "po", "po", slp=2)
        k("  s_barrier")
        groups = []
        if j == 9: pass
        elif j == 10: groups = gDW(13) + gDA(13) + gDW(14) + gDA(14)
        elif j + 4 < NSTB: groups = gDW(j + 4) + gDA(j + 4)
        fns = []
        if j == 1: fns = [lambda k: poll_issue(k, 50, words(50, iB + f"  s_add_u32 s41, s41, {FL_H2}", 2), "ph2")]
        if j == 3: fns = [lambda k: poll_issue(k, 50, words(50, f"  s_lshl_b32 s41, s{S_JB}, 7\n  s_add_u32 s41, s41, {FL_KV}", 4), "pkv")]
        if j == 4: fns = [op_kv_issue]
        if j == 5: fns = [op_kv_stage]
        if j == 9:
            fns = [lambda k: poll_issue(k, 50, words(50, f"  s_lshl_b32 s41, s{S_I64}, 7\n  s_add_u32 s41, s41, {FL_O}", 2), "po")]
        kb.interleave(k, groups, rec(k, fns))
        kb.stamp(k, 40 + j)
    kb.stamp(k, 6, rt=True)
    kb.dump(k, S_WS)
    k("  s_endpgm")

def build(name):
    k = K(name)
    k(f"""
  s_cmp_ge_u32 s2, 256
  s_cbranch_scc1 {k.L('end')}
  s_load_dwordx4 s[4:7], s[0:1], 0
  s_load_dwordx2 s[8:9], s[0:1], 16
  s_load_dwordx2 s[10:11], s[0:1], 40
  s_load_dwordx2 s[12:13], s[0:1], 48
  s_load_dwordx2 s[14:15], s[0:1], 88
  s_load_dwordx2 s[{S_WO}:{S_WO+1}], s[0:1], 24
  s_load_dwordx2 s[{S_W2}:{S_W2+1}], s[0:1], 56
  s_load_dwordx2 s[{S_B2}:{S_B2+1}], s[0:1], 64
  s_load_dwordx2 s[{S_OUT}:{S_OUT+1}], s[0:1], 72
  s_load_dwordx2 s[{S_DBG}:{S_DBG+1}], s[0:1], 80
  v_lshrrev_b32 v2, 6, v0
  v_and_b32 v1, 63, v0
  v_readfirstlane_b32 s3, v2
  s_lshr_b32 s40, s2, 3
  s_lshr_b32 s36, s40, 2
  s_and_b32 s41, s2, 1
  s_lshl_b32 s41, s41, 3
  s_add_u32 s36, s36, s41
  s_and_b32 s41, s40, 3
  s_lshr_b32 s37, s41, 1
  s_and_b32 s41, s41, 1
  s_and_b32 s38, s2, 7
  s_lshr_b32 s38, s38, 1
  s_lshl_b32 s38, s38, 1
  s_add_u32 s38, s38, s41
  s_and_b32 s39, s3, 3
  s_waitcnt lgkmcnt(0)""")
    srd(k, R_X, S_X, 2621440)
    srd(k, R_WS, S_WS, L.WS_END)
    srd(k, R_WQ, S_WQ, 2457600)
    srd(k, R_W1, S_W1, 2211840)
    k(f"  s_cmp_ge_u32 s3, 4\n  s_cbranch_scc1 {k.L('loader')}")
    srd(k, R_OUT, S_OUT, 2621440)
    k.vm = []
    compute_a(k)
    srd(k, R_T, S_B2, 1280)
    compute_b(k)
    k.label("loader")
    k.vm = []
    kb.stamp(k, 0, rt=True)
    srd(k, R_B, S_B1, 3456)
    srd(k, R_W2, S_W2, 2211840)
    srd(k, R_WO, S_WO, 819200)
    loader_a(k)
    loader_b(k)
    k(f"{k.L('end')}:\n  s_endpgm")
    k(f"{k.L('codeend')}:")
    rep = []
    t = k.text(rep)
    return dict(name=name, body=t, vgpr=256, sgpr=102, accum=256, maxwg=512), rep

if __name__ == "__main__":
    import asmlib, sys
    if len(sys.argv) > 1 and sys.argv[1] in ("prof", "coarse"): kb.PROF = True
    if len(sys.argv) > 1 and sys.argv[1] == "coarse": kb.FINE = False
    kf, rep = build("kf_kernel")
    print("nops inserted:", len(rep))
    asmlib.build("kfp" if kb.PROF else "kft", [kf])
    print("ok")
```

```python
from kb import K
import kb
import layout as L
from g_k0 import srd

XR = 0; WR = 49152; TT = 147456; ST = 151552; WP = 153600; ZR = 157696; LDS_A = 163840
PHI = 0; PHI_P = 336; VV = 45056; VV_P = 208
LOG2E = 1.4426950408889634
C0 = -2.0*0.7978845608028654*LOG2E
C1 = C0*0.044715
def fl(x):
    import struct
    return "0x%08x" % struct.unpack("<I", struct.pack("<f", x))[0]

VXA = [4, 5, 6, 7]
VWA = [[8, 9, 10, 11], [12, 13, 14, 15]]
FX = [[80, 84], [104, 108]]
FW = [[88, 92, 96, 100], [112, 116, 120, 124]]
ACC = 128
def acc(tb, b): return ACC + tb*64 + b*16

def decode_roles(k):
    k(f"""
  v_lshrrev_b32 v2, 6, v0
  v_and_b32 v1, 63, v0
  v_readfirstlane_b32 s3, v2
  s_lshr_b32 s40, s2, 3            ; loc
  s_lshr_b32 s36, s40, 2           ; i_local
  s_and_b32 s41, s2, 1
  s_lshl_b32 s41, s41, 3
  s_add_u32 s36, s36, s41
  s_and_b32 s41, s40, 3            ; c_local
  s_lshr_b32 s37, s41, 1           ; 0 KV, 1 G
  s_and_b32 s41, s41, 1
  s_and_b32 s38, s2, 7
  s_lshr_b32 s38, s38, 1
  s_lshl_b32 s38, s38, 1
  s_add_u32 s38, s38, s41          ; j / g
  s_and_b32 s39, s3, 3""")

def unit_of_slot(k, sg, sslot, su, sty):
    k(f"""
  s_lshl_b32 s{su}, s{sg}, 2
  s_add_u32 s{su}, s{su}, s{sslot}         ; u_lin
  s_cmp_lt_u32 s{su}, 27
  s_cselect_b32 s{sty}, 0, 1
  s_cmp_lt_u32 s{su}, 29
  s_cselect_b32 s{sty}, s{sty}, 2
  s_cmp_lt_u32 s{su}, 27
  s_cselect_b32 s42, 30, 0
  s_cbranch_scc1 {k.L('uos_a')+str(su)}
  s_sub_u32 s{su}, s{su}, 19
{k.L('uos_a')+str(su)}:
  s_add_u32 s{su}, s{su}, s42              ; W1 unit -> 30+u""")

def loader(k):
    k.label("loader")
    k.vm = []
    kb.stamp(k, 0, rt=True)
    k(f"""
  v_lshrrev_b32 v4, 3, v1
  v_lshrrev_b32 v5, 1, v4                  ; row>>1 (0..3)
  v_and_b32 v6, 7, v1
  v_xor_b32 v7, v6, v5
  v_mul_u32_u24 v8, 1280, v4
  v_lshl_add_u32 v10, v7, 4, v8
  v_xor_b32 v7, 4, v7
  v_lshl_add_u32 v11, v7, 4, v8
  v_and_b32 v5, 1, v5
  v_lshlrev_b32 v5, 2, v5
  v_xor_b32 v6, v6, v5
  s_mul_i32 s46, s36, {128*1280}
  s_mul_i32 s47, s39, {32*1280}
  s_add_u32 s46, s46, s47
  s_cmp_eq_u32 s37, 0
  s_cbranch_scc1 {k.L('ld_kv')}""")
    unit_of_slot(k, 38, 39, 48, 49)
    k(f"""
  s_cmp_eq_u32 s49, 0
  s_cselect_b32 s20, s10, s6
  s_cselect_b32 s21, s11, s7
  s_mov_b32 s44, 3840
  s_cmov_b32 s44, 3456
  s_mov_b32 s22, 2457600
  s_cmov_b32 s22, 2211840
  s_cselect_b32 s50, 30, 0
  s_sub_u32 s50, s48, s50
  s_lshl_b32 s45, s50, 7
  s_cmp_eq_u32 s49, 2
  s_cmov_b32 s22, 0
  v_lshlrev_b32 v7, 4, v6                  ; p*16
  s_lshl_b32 s51, s48, 6
  v_add_u32 v20, s51, v1
  s_branch {k.L('ld_go')}
{k.L('ld_kv')}:
  s_mov_b32 s20, s6
  s_mov_b32 s21, s7
  s_mov_b32 s22, 2457600
  s_mov_b32 s44, 3840
  s_mov_b32 s45, 0
  s_mul_i32 s50, s38, 160                  ; 160 j
  v_lshlrev_b32 v7, 4, v6                  ; p*16
  s_cmp_eq_u32 s39, 0
  s_cbranch_scc0 {k.L('ld_v1')}
  s_add_u32 s51, s50, 1280
  v_add_u32 v7, s51, v7
  s_branch {k.L('ld_kvgc')}
{k.L('ld_v1')}:
  s_cmp_eq_u32 s39, 1
  s_cbranch_scc0 {k.L('ld_v2')}
  s_add_u32 s51, s50, {1280 + 128}
  s_add_u32 s52, s50, {2560 - 32}
  v_mov_b32 v8, s51
  v_mov_b32 v9, s52
  v_cmp_gt_u32 vcc, 2, v6
  v_cndmask_b32 v8, v9, v8, vcc
  v_add_u32 v7, v8, v7
  s_branch {k.L('ld_kvgc')}
{k.L('ld_v2')}:
  s_cmp_eq_u32 s39, 2
  s_cbranch_scc0 {k.L('ld_v3')}
  s_add_u32 s51, s50, {2560 + 96}
  v_add_u32 v7, s51, v7
  v_mov_b32 v8, 0x7fff0000
  v_cmp_gt_u32 vcc, 4, v6
  v_cndmask_b32 v7, v8, v7, vcc
  s_branch {k.L('ld_kvgc')}
{k.L('ld_v3')}:
  s_lshl_b32 s51, s38, 7
  v_add_u32 v7, s51, v7
{k.L('ld_kvgc')}:
  v_and_b32 v12, 31, v1                    ; m
  v_lshrrev_b32 v13, 5, v1
  s_and_b32 s51, s39, 1
  s_lshl_b32 s51, s51, 1
  v_add_u32 v13, s51, v13                  ; b
  v_lshrrev_b32 v14, 3, v12                ; j'
  v_lshl_add_u32 v14, v13, 2, v14          ; q = 4b + j'
  v_lshrrev_b32 v15, 2, v12
  v_and_b32 v15, 1, v15                    ; hh
  s_lshr_b32 s52, s39, 1                   ; Fh
  s_lshl_b32 s53, s52, 1
  v_add_u32 v16, s53, v15                  ; hl
  v_and_b32 v17, 3, v12                    ; i
  v_mul_u32_u24 v18, 20, v16
  v_lshl_add_u32 v18, v14, 2, v18          ; 20 hl + 4 q
  v_add_u32 v18, v18, v17
  s_mul_i32 s53, s38, 80
  v_add_u32 v18, s53, v18                  ; 80 j + 20 hl + 4 q + i
  v_add_u32 v19, 640, v18                  ; k col
  v_add_u32 v21, {1280 - 20}, v18          ; v col
  v_cmp_gt_u32 vcc, 5, v14
  v_cndmask_b32 v20, v21, v19, vcc
  s_lshl_b32 s53, s52, 3
  v_lshl_add_u32 v21, v15, 2, s53
  v_add_u32 v21, v21, v14
  v_subrev_u32 v21, 10, v21
  v_lshl_add_u32 v21, v21, 2, v17
  s_lshl_b32 s53, s38, 6
  v_add_u32 v21, s53, v21
  v_cmp_gt_u32 vcc, 10, v14
  v_cndmask_b32 v20, v21, v20, vcc
  v_cmp_gt_u32 vcc, 14, v14
  v_cndmask_b32 v20, 0, v20, vcc
{k.L('ld_go')}:
  s_mov_b32 s23, 0x20000
  v_mul_lo_u32 v8, v4, s44
  v_add_u32 v12, v8, v7                    ; vDw
  s_lshl_b32 s47, s39, 12                  ; lw*4096
  s_add_u32 s54, s47, {WR}
  s_lshl_b32 s55, s44, 3                   ; 8*stride""")
    vDx, vDx2, vDw, vG = 10, 11, 12, 20
    def dW(j):
        for i in range(4):
            k(f"  s_add_u32 m0, s54, {(j % 6)*16384 + i*1024}")
            k.vmem(f"  buffer_load_dwordx4 v{vDw}, s[20:23], s45 offen lds", ("W", j))
            k("  s_add_u32 s45, s45, s55")
    def dX(m):
        for i in range(4):
            k(f"  s_add_u32 m0, s47, {XR + (m % 3)*16384 + i*1024}\n  s_add_u32 s56, s46, {m*128 + i*8*1280}")
            k.vmem(f"  buffer_load_dwordx4 v{vDx if i % 2 == 0 else vDx2}, s[16:19], s56 offen lds", ("X", m))
    dX(0); dW(0); dW(1); dX(1); dW(2); dW(3); dX(2); dW(4); dW(5)
    k(f"""
  v_lshlrev_b32 v21, 2, v{vG}
  v_subrev_u32 v22, 1920, v{vG}
  v_lshlrev_b32 v22, 1, v22
  s_lshl_b32 s56, s36, 7
  s_lshl_b32 s57, s39, 6
  s_add_u32 s56, s56, s57
  v_add_u32 v23, s56, v1
  v_lshlrev_b32 v23, 4, v23
  s_cmp_lt_u32 s39, 2
  s_cselect_b32 s57, 0, 0x7fff0000
  v_add_u32 v23, s57, v23""")
    for p in range(10):
        k.vmem(f"  buffer_load_dword v{24+p}, v21, s[24:27], s{58} offen" if False else
               f"  s_mov_b32 s58, {L.WS_CSP + p*L.NCOL*4}\n  buffer_load_dword v{24+p}, v21, s[24:27], s58 offen", "side")
    k.vmem(f"  buffer_load_ushort v34, v22, s[28:31], 0 offen", "side")
    k.vmem(f"  buffer_load_dwordx4 v[36:39], v23, s[24:27], 0 offen", "side")
    k(f"""
  s_mul_i32 s58, s38, 3200
  s_mul_i32 s59, s39, 800
  s_add_u32 s58, s58, s59
  s_add_u32 s32, s8, s58
  s_addc_u32 s33, s9, 0
  s_and_b32 s33, s33, 0xffff
  s_mov_b32 s34, 800
  s_cmp_eq_u32 s37, 0
  s_cselect_b32 s34, s34, 0
  s_mov_b32 s35, 0x20000
  v_lshlrev_b32 v40, 4, v1
  s_lshl_b32 s58, s39, 10
  s_add_u32 m0, s58, {WP}""")
    k.vmem("  buffer_load_dwordx4 v40, s[32:35], 0 offen lds", "side")
    kb.stamp(k, 2)
    k.wait_vm(("W", 0))
    kb.stamp(k, 3)
    k("  s_barrier")
    for j in range(0, 20):
        if j + 1 <= 19:
            k.wait_vm(("W", j + 1))
            if (j + 1) % 2 == 0: k.wait_vm(("X", (j + 1)//2))
        if j == 6:
            assert "side" not in k.vm
            k("  v_add_f32 v24, v24, v25")
            for p in range(2, 10): k(f"  v_add_f32 v24, v24, v{24+p}")
            k(f"""
  v_cvt_pk_bf16_f32 v25, v24, v24
  v_and_b32 v26, 0xffff0000, v25
  v_sub_f32 v26, v24, v26
  v_cvt_pk_bf16_f32 v28, v24, v26
  v_and_b32 v29, 0xffff, v25
  v_lshl_or_b32 v29, v34, 16, v29          ; (ch, b1)
  v_mov_b32 v30, v34                       ; (b1, 0)
  v_mov_b32 v31, 0
  v_lshlrev_b32 v27, 4, v1
  s_lshl_b32 s58, s39, 10
  s_add_u32 s58, s58, {TT}
  v_add_u32 v27, s58, v27
  ds_write_b128 v27, v[28:31]
  v_mov_b32 v44, 0
  v_mov_b32 v45, 0
  v_mov_b32 v46, 0
  v_mov_b32 v47, 0
  v_lshlrev_b32 v27, 4, v1
  s_lshl_b32 s58, s39, 10
  s_add_u32 s58, s58, {ZR}
  v_add_u32 v27, s58, v27
  s_cmp_lt_u32 s39, 2
  s_cbranch_scc0 {k.L('ld_nost')}
  ds_write_b128 v27, v[44:47]
  v_add_u32 v27, {ST - ZR}, v27
  ds_write_b128 v27, v[36:39]
{k.L('ld_nost')}:
  s_waitcnt lgkmcnt(0)""")
        k("  s_barrier")
        if j + 6 <= 19: dW(j + 6)
        if j % 2 == 1 and (j + 1)//2 + 2 <= 9: dX((j + 1)//2 + 2)
        if j in (4, 9, 14): kb.stamp(k, {4: 4, 9: 5, 14: 8}[j])
    kb.stamp(k, 6, rt=True)
    kb.dump(k, 14)
    k("  s_endpgm")

def reads(set_, st6, ks2):
    slot = st6 >> 1; ksl = 2*(st6 & 1) + ks2
    r = []
    for tb in range(2):
        r.append(f"  ds_read_b128 v[{FX[set_][tb]}:{FX[set_][tb]+3}], v{VXA[ksl]} offset:{slot*16384 + tb*4096}")
    for b in range(4):
        for t in range(2):
            d = FW[set_][b] + 2*t
            r.append(f"  ds_read_b64_tr_b16 v[{d}:{d+1}], v{VWA[st6//3][b]} offset:{(st6 % 3)*16384 + ks2*2048 + t*512}")
    return r

def mfmas(cur):
    return [f"  v_mfma_f32_32x32x16_bf16 v[{acc(tb,b)}:{acc(tb,b)+15}], v[{FW[cur][b]}:{FW[cur][b]+3}], v[{FX[cur][tb]}:{FX[cur][tb]+3}], v[{acc(tb,b)}:{acc(tb,b)+15}]"
            for b in range(4) for tb in range(2)]

def stage(k, st6, last=False, tail=None):
    mf = mfmas(0); rd = reads(1, st6, 1)
    k("  s_waitcnt lgkmcnt(0)")
    sched = [2, 2, 2, 2, 1, 1, 0, 0]
    for i, m in enumerate(mf):
        k(m)
        for _ in range(sched[i]): k(rd.pop(0))
    mf = mfmas(1)
    k("  s_waitcnt lgkmcnt(0)")
    k(mf[0]); k("  s_barrier")
    rd = reads(0, (st6 + 1) % 6, 0) if not last else list(tail or [])
    sched = [2, 2, 2, 2, 1, 1, 0]
    for i, m in enumerate(mf[1:]):
        for _ in range(sched[i]):
            if rd: k(rd.pop(0))
        k(m)
    while rd: k(rd.pop(0))

def compute(k):
    k.vm = []
    kb.stamp(k, 0, rt=True)
    k(f"""
  s_lshr_b32 s43, s39, 1                   ; Th
  s_and_b32 s44, s39, 1                    ; Fh
  v_and_b32 v16, 31, v1                    ; n
  v_lshrrev_b32 v17, 5, v1                 ; hh
  v_lshrrev_b32 v18, 1, v16
  v_and_b32 v18, 7, v18
  v_xor_b32 v18, v17, v18
  v_lshlrev_b32 v18, 4, v18
  v_lshl_add_u32 v18, v16, 7, v18
  s_lshl_b32 s45, s43, 13
  v_add_u32 v{VXA[0]}, s45, v18
  v_xor_b32 v{VXA[1]}, 32, v{VXA[0]}
  v_xor_b32 v{VXA[2]}, 64, v{VXA[0]}
  v_xor_b32 v{VXA[3]}, 96, v{VXA[0]}
  v_lshrrev_b32 v18, 4, v1                 ; G
  v_lshrrev_b32 v19, 2, v1
  v_and_b32 v19, 3, v19                    ; r
  v_and_b32 v20, 3, v1                     ; c
  v_lshrrev_b32 v21, 1, v18
  v_lshl_add_u32 v21, v21, 3, v19
  v_lshlrev_b32 v21, 7, v21                ; row*128
  v_add_u32 v21, {WR}, v21
  v_lshrrev_b32 v22, 1, v19
  v_lshlrev_b32 v22, 2, v22                ; swz = 4*(r>>1)
  v_and_b32 v23, 1, v18
  v_lshlrev_b32 v23, 1, v23
  v_lshrrev_b32 v24, 1, v20
  v_add_u32 v23, v23, v24                  ; j' = 2(G&1) + (c>>1)
  v_and_b32 v24, 1, v20                    ; hh' = c&1
  s_cmp_eq_u32 s37, 0
  s_cbranch_scc1 {k.L('c_kv')}""")
    for b in range(4):
        k(f"""
  v_add_u32 v25, {4*(b&1)}, v23
  v_xor_b32 v25, v25, v22
  v_lshl_add_u32 v25, v25, 4, v21
  v_lshl_add_u32 v25, v24, 3, v25
  s_lshl_b32 s45, s44, 13
  s_add_u32 s45, s45, {(b>>1)*4096}
  v_add_u32 v{VWA[0][b]}, s45, v25""")
    k(f"  s_branch {k.L('c_go')}\n{k.L('c_kv')}:")
    k(f"""
  s_lshl_b32 s45, s44, 1
  v_add_u32 v26, s45, v24                  ; hl
  v_mul_u32_u24 v26, 5, v26                ; 5 hl""")
    for b in range(4):
        k(f"""
  v_add_u32 v27, {4*b}, v23                ; q
  v_add_u32 v28, v26, v27
  v_subrev_u32 v29, 5, v28
  ; v: P = c16 + 10
  v_add_u32 v29, 20, v29
  v_cmp_gt_u32 vcc, 5, v27
  v_cndmask_b32 v28, v29, v28, vcc
  s_lshl_b32 s45, s44, 3
  v_lshl_add_u32 v29, v24, 2, s45
  v_add_u32 v29, v29, v27
  v_add_u32 v29, {48 - 10}, v29
  v_cmp_gt_u32 vcc, 10, v27
  v_cndmask_b32 v28, v29, v28, vcc
  v_cmp_gt_u32 vcc, 14, v27
  v_cndmask_b32 v28, v24, v28, vcc
  v_lshrrev_b32 v29, 4, v28                ; VU
  v_lshrrev_b32 v30, 1, v28
  v_and_b32 v30, 7, v30                    ; p
  v_xor_b32 v30, v30, v22
  v_and_b32 v31, 1, v28                    ; half8
  v_lshl_add_u32 v30, v30, 4, v21
  v_lshl_add_u32 v30, v31, 3, v30
  v_lshl_add_u32 v{VWA[0][b]}, v29, 12, v30""")
    k(f"{k.L('c_go')}:")
    for b in range(4):
        k(f"  v_add_u32 v{VWA[1][b]}, {3*16384}, v{VWA[0][b]}")
    for i in range(128):
        k(f"  v_mov_b32 v{ACC+i}, 0")
    k(f"""
  s_lshl_b32 s45, s43, 10
  s_add_u32 s45, s45, {ST}
  v_lshl_add_u32 v32, v16, 4, s45
  s_lshl_b32 s45, s44, 11
  s_add_u32 s45, s45, {TT}
  v_lshl_add_u32 v33, v16, 4, s45
  v_mov_b32 v34, {ZR}
  v_cmp_eq_u32 vcc, 0, v17
  v_cndmask_b32 v33, v34, v33, vcc""")
    kb.stamp(k, 2)
    k("  s_barrier")
    kb.stamp(k, 3)
    for l in reads(0, 0, 0): k(l)
    k("  s_mov_b32 s46, 0")
    k(".p2align 3")
    k.label("kloop")
    for st6 in range(6): stage(k, st6)
    k(f"  s_add_u32 s46, s46, 1\n  s_cmp_lt_u32 s46, 3\n  s_cbranch_scc1 {k.L('kloop')}")
    stage(k, 0)
    tail = [f"  ds_read_b128 v[{36+4*tb}:{39+4*tb}], v32 offset:{tb*512}" for tb in range(2)] + \
           [f"  ds_read_b128 v[{FW[0][b]}:{FW[0][b]+3}], v33 offset:{b*512}" for b in range(4)]
    stage(k, 1, last=True, tail=tail)
    k("  s_waitcnt lgkmcnt(0)")
    kb.stamp(k, 4)
    for tb in range(2):
        s = 36 + 4*tb; d = FX[0][tb]
        k(f"""
  v_rcp_f32 v44, v{s+2}                    ; irr
  v_sub_f32 v45, 0, v{s}                   ; -mu
  v_cvt_pk_bf16_f32 v{d}, v45, v45
  v_and_b32 v46, 0xffff0000, v{d}
  v_sub_f32 v46, v45, v46                  ; -mul
  v_cvt_pk_bf16_f32 v47, v44, v44
  v_and_b32 v48, 0xffff0000, v47
  v_sub_f32 v48, v44, v48                  ; il
  v_cvt_pk_bf16_f32 v{d+1}, v46, v44
  v_cvt_pk_bf16_f32 v{d+2}, v48, 0         ; (il, 0)
  v_mov_b32 v{d+3}, 0
  v_mov_b32 v{s+3}, v44
  v_cmp_eq_u32 vcc, 0, v17
  v_cndmask_b32 v{d}, 0, v{d}, vcc
  v_cndmask_b32 v{d+1}, 0, v{d+1}, vcc
  v_cndmask_b32 v{d+2}, 0, v{d+2}, vcc""")
    for m in mfmas(0): k(m)
    k(f"  s_cmp_eq_u32 s37, 0\n  s_cbranch_scc1 {k.L('epi_kv')}")
    epi_g(k)
    k.label("epi_kv")
    epi_kv(k)

def gelu_block(k, a, s, dst):
    T = 60
    for p in range(0, 16, 4):
        prs = [(a + p, T), (a + p + 2, T + 2)]
        for (x, t) in prs: k(f"  v_pk_mul_f32 v[{t}:{t+1}], v[{x}:{x+1}], v[{x}:{x+1}]")
        for (x, t) in prs: k(f"  v_pk_fma_f32 v[{t}:{t+1}], v[{t}:{t+1}], v[52:53], v[50:51]")
        for (x, t) in prs: k(f"  v_pk_mul_f32 v[{t}:{t+1}], v[{t}:{t+1}], v[{x}:{x+1}]")
        for i in range(4): k(f"  v_exp_f32 v{T+i}, v{T+i}")
        for (x, t) in prs: k(f"  v_pk_fma_f32 v[{t}:{t+1}], v[{t}:{t+1}], v[54:55], v[54:55]")
        for i in range(4): k(f"  v_rcp_f32 v{T+i}, v{T+i}")
        for (x, t) in prs: k(f"  v_pk_mul_f32 v[{t}:{t+1}], v[{t}:{t+1}], v[{x}:{x+1}]")
        for n_, (x, t) in enumerate(prs): k(f"  v_cvt_pk_bf16_f32 v{dst + p//2 + n_}, v{t}, v{t+1}")

def epi_g(k):
    k(f"""
  v_lshrrev_b32 v56, 4, v16                ; n>>4
  v_and_b32 v57, 15, v16                   ; n&15
  v_mul_u32_u24 v58, {74*1024}, v56
  v_lshl_add_u32 v58, v17, 9, v58
  v_lshl_add_u32 v58, v57, 4, v58
  v_mul_u32_u24 v59, {160*128}, v56
  v_lshl_add_u32 v59, v17, 7, v59
  v_lshl_add_u32 v59, v57, 3, v59
  s_lshl_b32 s47, s36, 3
  s_lshl_b32 s48, s43, 2
  s_add_u32 s47, s47, s48""")
    for uu in range(2):
        k(f"  s_lshl_b32 s50, s44, 1\n  s_add_u32 s50, s50, {uu}")
        unit_of_slot(k, 38, 50, 51 + 0, 52) if False else None
        k(f"""
  s_lshl_b32 s51, s38, 2
  s_add_u32 s51, s51, s50                  ; u_lin
  s_cmp_lt_u32 s51, 27
  s_cbranch_scc1 {k.L('g_w1_%d' % uu)}
  s_cmp_lt_u32 s51, 29
  s_cbranch_scc0 {k.L('g_done_%d' % uu)}
  s_sub_u32 s51, s51, 19""")
        for tb in range(2):
            k(f"""
  s_add_u32 s52, s47, {2*tb}
  s_mul_i32 s52, s52, 160
  s_lshl_b32 s53, s51, 4
  s_add_u32 s52, s52, s53
  s_lshl_b32 s52, s52, 7
  s_add_u32 s52, s52, {L.WS_Q}""")
            for bb in range(2):
                a = acc(tb, 2*uu + bb)
                for jp in range(4):
                    k(f"  v_cvt_pk_bf16_f32 v60, v{a+4*jp}, v{a+4*jp+1}\n  v_cvt_pk_bf16_f32 v61, v{a+4*jp+2}, v{a+4*jp+3}")
                    k(f"  buffer_store_dwordx2 v[60:61], v59, s[24:27], s52 offen offset:{bb*1024 + jp*256}")
                    k("  s_nop 0")
        k(f"  s_branch {k.L('g_done_%d' % uu)}\n{k.L('g_w1_%d' % uu)}:")
        for tb in range(2):
            s = 36 + 4*tb
            k(f"""
  v_mul_f32 v50, {fl(C0)}, v{s+2}
  v_mul_f32 v52, v{s+2}, v{s+2}
  v_mul_f32 v52, v52, v{s+2}
  v_mov_b32 v51, v50
  v_mul_f32 v52, {fl(C1)}, v52
  v_mov_b32 v54, v{s+3}
  v_mov_b32 v55, v{s+3}
  v_mov_b32 v53, v52""")
            for bb in range(2):
                a = acc(tb, 2*uu + bb)
                gelu_block(k, a, s, 64 + 8*bb)
                k(f"""
  s_add_u32 s52, s47, {2*tb}
  s_mul_i32 s52, s52, 74
  s_lshl_b32 s53, s51, 1
  s_add_u32 s52, s52, s53
  s_add_u32 s52, s52, {bb}
  s_lshl_b32 s52, s52, 10
  s_add_u32 s52, s52, {L.WS_HO}""")
                k(f"  buffer_store_dwordx4 v[{64+8*bb}:{67+8*bb}], v58, s[24:27], s52 offen")
                k(f"  buffer_store_dwordx4 v[{68+8*bb}:{71+8*bb}], v58, s[24:27], s52 offen offset:256")
        k(f"{k.L('g_done_%d' % uu)}:")
    kb.stamp(k, 5)
    if kb.PROF:
        k("  s_waitcnt vmcnt(0)")
        kb.stamp(k, 6, rt=True)
        kb.dump(k, 14)
    k("  s_endpgm")

def epi_kv(k):
    k(f"""
  v_lshrrev_b32 v56, 4, v16
  v_and_b32 v57, 15, v16
  v_mul_u32_u24 v59, {160*128}, v56
  v_lshl_add_u32 v59, v17, 9, v59
  v_lshl_add_u32 v59, v57, 3, v59
  s_lshl_b32 s47, s36, 3
  s_lshl_b32 s48, s43, 2
  s_add_u32 s47, s47, s48""")
    for tb in range(2):
        k(f"""
  s_add_u32 s52, s47, {2*tb}
  s_mul_i32 s52, s52, 160
  s_lshl_b32 s53, s38, 4
  s_add_u32 s52, s52, s53
  s_lshl_b32 s53, s44, 3
  s_add_u32 s52, s52, s53
  s_lshl_b32 s52, s52, 7
  s_add_u32 s52, s52, {L.WS_Q}""")
        a = ACC + tb*64 + 40
        for g in range(4):
            k(f"  v_cvt_pk_bf16_f32 v60, v{a+4*g}, v{a+4*g+1}\n  v_cvt_pk_bf16_f32 v61, v{a+4*g+2}, v{a+4*g+3}")
            k(f"  buffer_store_dwordx2 v[60:61], v59, s[24:27], s52 offen offset:{g*128}")
            k("  s_nop 0")
    WA = 80
    k(f"""
  v_lshrrev_b32 v18, 4, v1                 ; G
  v_lshrrev_b32 v19, 2, v1
  v_and_b32 v19, 3, v19                    ; r
  v_and_b32 v20, 3, v1                     ; c
  v_and_b32 v23, 1, v18
  v_lshlrev_b32 v23, 1, v23
  v_lshrrev_b32 v24, 1, v20
  v_add_u32 v23, v23, v24                  ; j'
  v_and_b32 v24, 1, v20                    ; hh_m
  v_lshrrev_b32 v25, 1, v18                ; hh_k
  s_lshl_b32 s45, s44, 1
  v_add_u32 v26, s45, v24
  v_lshlrev_b32 v26, 10, v26
  v_add_u32 v26, {WP}, v26
  v_mul_u32_u24 v27, 40, v19               ; r*40
  v_add_u32 v27, v27, v26
  v_lshl_add_u32 v27, v23, 3, v27          ; + 8 j'
  v_add_u32 v28, 800, v26
  v_cmp_eq_u32 vcc, v24, v25
  v_cndmask_b32 v29, v28, v27, vcc
  v_add_u32 v30, 32, v27
  v_cmp_eq_u32 s[48:49], 0, v23
  s_and_b64 vcc, vcc, s[48:49]
  v_cndmask_b32 v30, v28, v30, vcc""")
    for beta in range(2):
        for st in range(3):
            for t in range(2):
                d0 = 8*st + 4*t
                reg = WA + (beta*3 + st)*4 + 2*t
                if d0 < 20:
                    src = 29 if beta == 0 else 30
                    k(f"""
  v_add_u32 v31, {d0*40}, v{src}
  v_cmp_eq_u32 vcc, v28, v{src}
  v_cndmask_b32 v31, v31, v28, vcc
  ds_read_b64_tr_b16 v[{reg}:{reg+1}], v31""")
                else:
                    k(f"  v_mov_b32 v{reg}, 0\n  v_mov_b32 v{reg+1}, 0")
    k("  s_waitcnt lgkmcnt(0)")
    k(f"""
  s_lshl_b32 s45, s43, 6
  v_add_u32 v32, s45, v16
  s_lshl_b32 s45, s44, 1
  v_add_u32 v33, s45, v17                  ; hl
  v_mul_u32_u24 v34, {PHI_P}, v32
  v_mul_u32_u24 v35, 80, v33
  v_add_u32 v34, v34, v35
  v_mul_u32_u24 v35, {VV_P}, v32
  v_mul_u32_u24 v33, 48, v33
  v_add_u32 v35, v35, v33
  v_add_u32 v35, {VV}, v35                 ; V addr""")
    KB = 104
    PQ = 48
    for tb in range(2):
        a = ACC + tb*64; s = 36 + 4*tb
        for i in range(10):
            k(f"  v_cvt_pk_bf16_f32 v{KB+i}, v{a+2*i}, v{a+2*i+1}")
        k(f"  v_mov_b32 v{KB+10}, 0\n  v_mov_b32 v{KB+11}, 0")
        for beta in range(2):
            for st in range(3):
                c = "0" if st == 0 else f"v[{PQ+16*beta}:{PQ+16*beta+15}]"
                w = WA + (beta*3 + st)*4
                k(f"  v_mfma_f32_32x32x16_bf16 v[{PQ+16*beta}:{PQ+16*beta+15}], v[{w}:{w+3}], v[{KB+4*st}:{KB+4*st+3}], {c}")
        VB = 116
        for i in range(10):
            k(f"  v_mul_f32 v44, v{s+1}, v{a+20+2*i}\n  v_mul_f32 v45, v{s+1}, v{a+21+2*i}\n  v_cvt_pk_bf16_f32 v{VB+i}, v44, v45")
        k(f"  v_mov_b32 v{VB+10}, 0x3f80\n  v_mov_b32 v{VB+11}, 0")
        for c in range(3):
            k(f"  ds_write_b128 v35, v[{VB+4*c}:{VB+4*c+3}] offset:{tb*32*VV_P + 16*c}")
        P = [PQ + i for i in range(16)] + [PQ + 16 + i for i in range(4)]
        k(f"  v_max3_f32 v44, v{P[0]}, v{P[1]}, v{P[2]}\n  v_min3_f32 v45, v{P[0]}, v{P[1]}, v{P[2]}")
        for i in range(3, 19, 2):
            k(f"  v_max3_f32 v44, v44, v{P[i]}, v{P[i+1]}\n  v_min3_f32 v45, v45, v{P[i]}, v{P[i+1]}")
        k(f"  v_max_f32 v44, v44, v{P[19]}\n  v_min_f32 v45, v45, v{P[19]}")
        k(f"""
  v_mul_f32 v46, {fl(LOG2E)}, v{s+1}       ; c = r1*log2e
  v_mul_f32 v44, v44, v46                  ; c*max
  v_mul_f32 v45, v45, v46                  ; c*min""")
        for i in range(20):
            k(f"  v_fma_f32 v{a+i}, v{P[i]}, v46, -v44\n  v_fma_f32 v{a+20+i}, -v{P[i]}, v46, v45")
        for i in range(40):
            k(f"  v_exp_f32 v{a+i}, v{a+i}")
        for h_ in range(2):
            b0 = a + 20*h_
            k(f"  v_add_f32 v47, v{b0}, v{b0+1}")
            for i in range(2, 20): k(f"  v_add_f32 v47, v47, v{b0+i}")
            k(f"  v_rcp_f32 v47, v47")
            for i in range(10):
                k(f"  v_mul_f32 v44, v47, v{b0+2*i}\n  v_mul_f32 v45, v47, v{b0+2*i+1}\n  v_cvt_pk_bf16_f32 v{PQ+10*h_+i}, v44, v45")
        for c in range(5):
            k(f"  ds_write_b128 v34, v[{PQ+4*c}:{PQ+4*c+3}] offset:{tb*32*PHI_P + 16*c}")
        k("  s_waitcnt lgkmcnt(0)")
    kb.stamp(k, 5)
    k("  s_barrier")
    k(f"""
  v_lshrrev_b32 v21, 1, v18                ; G>>1
  v_lshl_add_u32 v21, v21, 3, v19
  v_and_b32 v22, 1, v18
  v_lshlrev_b32 v22, 2, v22
  v_add_u32 v22, v22, v20
  v_mul_u32_u24 v23, {PHI_P}, v21
  s_mul_i32 s45, s39, 80
  v_add_u32 v23, s45, v23
  v_lshl_add_u32 v24, v22, 3, v23
  v_min_u32 v25, 1, v22
  v_and_b32 v25, 1, v22
  v_lshl_add_u32 v25, v25, 3, v23
  v_add_u32 v25, 64, v25
  v_mul_u32_u24 v26, {VV_P}, v21
  s_mul_i32 s45, s39, 48
  s_add_u32 s45, s45, {VV}
  v_add_u32 v26, s45, v26
  v_min_u32 v27, 5, v22
  v_lshl_add_u32 v26, v27, 3, v26          ; V addr""")
    KA = 48; FA = 80
    for st in range(8):
        base = FA + (st % 2)*12
        for t in range(2):
            tok = 16*st + 4*t
            k(f"  ds_read_b64_tr_b16 v[{base+2*t}:{base+2*t+1}], v24 offset:{tok*PHI_P}")
            k(f"  ds_read_b64_tr_b16 v[{base+4+2*t}:{base+5+2*t}], v25 offset:{tok*PHI_P}")
            k(f"  ds_read_b64_tr_b16 v[{base+8+2*t}:{base+9+2*t}], v26 offset:{tok*VV_P}")
        k("  s_waitcnt lgkmcnt(0)")
        for beta in range(2):
            c = "0" if st == 0 else f"v[{KA+16*beta}:{KA+16*beta+15}]"
            k(f"  v_mfma_f32_32x32x16_bf16 v[{KA+16*beta}:{KA+16*beta+15}], v[{base+4*beta}:{base+4*beta+3}], v[{base+8}:{base+11}], {c}")
    k(f"""
  v_lshlrev_b32 v28, 2, v16                ; d*4
  v_lshl_add_u32 v28, v17, 9, v28          ; hh*4*128
  v_mov_b32 v29, 0x7fff0000
  v_cmp_gt_u32 vcc, 21, v16
  v_cndmask_b32 v28, v29, v28, vcc
  s_lshl_b32 s45, s38, 2
  s_add_u32 s45, s45, s39                  ; head
  s_mul_i32 s45, s45, {40*128}
  s_add_u32 s45, s45, {L.WS_KV}
  s_add_u32 s46, s45, {32*128}""")
    for jp in range(4):
        for i in range(4):
            k(f"  buffer_atomic_add_f32 v{KA+4*jp+i}, v28, s[24:27], s45 offen offset:{(8*jp+i)*128}")
    for i in range(4):
        k(f"  buffer_atomic_add_f32 v{KA+16+i}, v28, s[24:27], s46 offen offset:{i*128}")
    kb.stamp(k, 8)
    if kb.PROF:
        k("  s_waitcnt vmcnt(0)")
        kb.stamp(k, 6, rt=True)
        kb.dump(k, 14)
    k("  s_endpgm")

def build_ka(name):
    k = K(name)
    k(f"""
  s_cmp_ge_u32 s2, 256
  s_cbranch_scc1 {k.L('end')}
  s_load_dwordx4 s[4:7], s[0:1], 0
  s_load_dwordx2 s[8:9], s[0:1], 16
  s_load_dwordx2 s[10:11], s[0:1], 40
  s_load_dwordx2 s[12:13], s[0:1], 48
  s_load_dwordx2 s[14:15], s[0:1], 88""")
    decode_roles(k)
    k("  s_waitcnt lgkmcnt(0)")
    srd(k, 16, 4, 5, 2621440)
    srd(k, 24, 14, 15, L.WS_END)
    srd(k, 28, 12, 13, 3456)
    k(f"  s_and_b32 s7, s7, 0xffff\n  s_and_b32 s11, s11, 0xffff")
    k(f"  s_cmp_ge_u32 s3, 4\n  s_cbranch_scc1 {k.L('loader')}")
    compute(k)
    loader(k)
    k(f"{k.L('end')}:\n  s_endpgm")
    rep = []
    t = k.text(rep)
    return dict(name=name, body=t, vgpr=256, sgpr=96, accum=256, maxwg=512), rep

if __name__ == "__main__":
    import asmlib, g_k0
    ka, rep = build_ka("ka_kernel")
    print("nops inserted:", len(rep))
    asmlib.build("kat", [g_k0.build_k0("k0_kernel"), ka])
    print("ok")
```

```python
from kb import K
import kb
import layout as L
from g_k0 import srd
from g_ka import fl, LOG2E

SLOT = 36864
WPB = 147456; KVB = 151552; KVP = 48; ZB = 159232; LDS_B = 163840
NST = 19
VS = [4, 5, 6, 7]; VA = [8, 9, 10, 11]
FR = [64 + 24*s for s in range(4)]
ACCB = 32
XR_ = 160; BR_ = 170

def decode_b(k):
    k(f"""
  v_lshrrev_b32 v2, 6, v0
  v_and_b32 v1, 63, v0
  v_readfirstlane_b32 s3, v2
  s_lshr_b32 s40, s2, 3            ; loc
  s_and_b32 s36, s2, 3
  s_lshl_b32 s36, s36, 3
  s_lshr_b32 s41, s40, 2
  s_add_u32 s36, s36, s41
  s_lshr_b32 s38, s2, 2
  s_and_b32 s38, s38, 1
  s_lshl_b32 s38, s38, 2
  s_and_b32 s41, s40, 3
  s_add_u32 s38, s38, s41
  s_and_b32 s39, s3, 3
  s_lshl_b32 s37, s36, 2
  s_add_u32 s37, s37, s39          ; T16 = 4*I64 + (w&3)""")

def loader_b(k, sc="sc1"):
    k.label("loader")
    k.vm = []
    kb.stamp(k, 0, rt=True)
    k(f"""
  v_lshlrev_b32 v4, 4, v1                  ; lane*16
  s_lshl_b32 s58, s38, 2
  s_add_u32 s58, s58, s39
  s_mul_i32 s58, s58, 800
  s_add_u32 s32, s8, s58
  s_addc_u32 s33, s9, 0
  s_and_b32 s33, s33, 0xffff
  s_mov_b32 s34, 800
  s_mov_b32 s35, 0x20000
  s_lshl_b32 s58, s39, 10
  s_add_u32 m0, s58, {WPB}""")
    k.vmem("  buffer_load_dwordx4 v4, s[32:35], 0 offen lds", "pre")
    k(f"""
  s_mov_b32 s34, 0
  s_and_b32 s58, s39, 1
  s_lshl_b32 s58, s58, 10
  s_add_u32 m0, s58, {ZB}""")
    k.vmem("  buffer_load_dwordx4 v4, s[32:35], 0 offen lds", "pre")
    k(f"""
  s_mul_i32 s44, s38, {74*5*1024}
  s_mul_i32 s45, s39, {5*1024}
  s_add_u32 s44, s44, s45
  s_add_u32 s44, s44, {L.WS_W2}
  s_mul_i32 s46, s37, {74*1024}
  s_add_u32 s46, s46, {L.WS_HO}
  s_mul_i32 s47, s39, {5*1024}
  s_lshl_b32 s48, s39, 12
  s_add_u32 s48, s48, 20480""")
    def D(j):
        nks = 4 if j < 18 else 2
        slot = (j % 4)*SLOT
        oth = 4*j + nks - 1 >= 54
        for ks in range(nks):
            fl_ = sc if 4*j + ks >= 54 else ""
            k(f"  s_add_u32 m0, s48, {slot + ks*1024}\n  s_add_u32 s56, s46, {(4*j + ks)*1024}")
            k.vmem(f"  buffer_load_dwordx4 v4, s[24:27], s56 offen {fl_} lds", ("D", j))
        if j == 18:
            k(f"  s_cmp_lt_u32 s39, 2\n  s_cselect_b32 s26, {L.WS_END}, 0")
        for cb in range(5):
            k(f"  s_add_u32 m0, s47, {slot + cb*1024}\n  s_add_u32 s56, s44, {4*j*5*1024 + cb*1024}")
            k.vmem(f"  buffer_load_dwordx4 v4, s[24:27], s56 offen lds", ("D", j))
        if j == 18:
            k(f"  s_mov_b32 s26, {L.WS_END}")
    for j in range(4): D(j)
    k.wait_vm("pre")
    kb.stamp(k, 2)
    k("  s_barrier")
    k.wait_vm(("D", 0))
    k("  s_barrier")
    for j in range(NST - 1):
        k.wait_vm(("D", j + 1))
        k("  s_barrier")
        if j + 4 < NST:
            if j + 4 == 11:
                k(f"  s_lshl_b32 s58, s36, 3\n  v_mov_b32 v6, s58")
                k.vmem("  global_load_dwordx2 v[8:9], v6, s[16:17] sc1", "poll")
            if j + 4 == 13:
                k.wait_vm("poll")
                saved = list(k.vm)
                k(f"""
  v_and_b32 v8, v8, v9
  v_readfirstlane_b32 s58, v8
  s_cmp_eq_u32 s58, 0x01010101
  s_cbranch_scc1 {k.L('polled')}
{k.L('poll')}:
  global_load_dwordx2 v[8:9], v6, s[16:17] sc1
  s_waitcnt vmcnt(0)
  v_and_b32 v8, v8, v9
  v_readfirstlane_b32 s58, v8
  s_cmp_eq_u32 s58, 0x01010101
  s_cbranch_scc1 {k.L('polled')}
  s_sleep 2
  s_branch {k.L('poll')}
{k.L('polled')}:""")
                k.vm = saved
            D(j + 4)
        if j in (0, 4, 9, 14): kb.stamp(k, {0: 3, 4: 4, 9: 5, 14: 8}[j])
    kb.stamp(k, 6, rt=True)
    kb.dump(k, 14, 1)
    k("  s_endpgm")

def oprod(k):
    Q = 180
    k(f"""
  v_and_b32 v16, 15, v1                    ; n'
  v_lshrrev_b32 v17, 4, v1                 ; g
  v_mul_u32_u24 v18, 640, v17
  v_lshl_add_u32 v18, v16, 3, v18
  s_mul_i32 s44, s37, 160
  s_mul_i32 s45, s38, 20
  s_add_u32 s44, s44, s45
  s_lshl_b32 s44, s44, 7
  s_add_u32 s44, s44, {L.WS_Q}""")
    for g in range(5):
        k.vmem(f"  buffer_load_dwordx2 v[{Q+2*g}:{Q+2*g+1}], v18, s[24:27], s44 offen offset:{128*g}", "q")
    k(f"""
  s_lshl_b32 s45, s37, 4
  v_add_u32 v19, s45, v16                  ; token
  v_lshlrev_b32 v20, 4, v19""")
    k.vmem(f"  buffer_load_dword v21, v20, s[24:27], 0 offen offset:{L.WS_STATS + 4}", "q")
    k(f"""
  s_lshl_b32 s45, s39, 6
  v_add_u32 v22, s45, v1                   ; t
  v_lshlrev_b32 v23, 4, v22
  s_mul_i32 s45, s38, {4*40*128}
  s_add_u32 s45, s45, {L.WS_KV}""")
    KVR = 192
    for r in range(5):
        k(f"  s_add_u32 s46, s45, {r*4096}")
        k.vmem(f"  buffer_load_dwordx4 v[{KVR+4*r}:{KVR+4*r+3}], v23, s[24:27], s46 offen sc1", "kv")
    k(f"""
  v_mul_u32_u24 v24, 1280, v19
  s_mul_i32 s45, s38, 160
  v_lshl_add_u32 v25, v17, 3, s45          ; (80j + 4g)*2
  v_add_u32 v24, v24, v25""")
    for cb in range(5):
        k.vmem(f"  buffer_load_dwordx2 v[{XR_+2*cb}:{XR_+2*cb+1}], v24, s[20:23], 0 offen offset:{32*cb}", "res")
        k.vmem(f"  buffer_load_dwordx2 v[{BR_+2*cb}:{BR_+2*cb+1}], v25, s[28:31], 0 offen offset:{32*cb}", "res")
    k(f"""
  v_and_b32 v26, 7, v22                    ; d4
  v_lshrrev_b32 v27, 3, v22
  v_mul_u32_u24 v27, {KVP}, v27
  v_lshl_add_u32 v27, v26, 3, v27
  v_add_u32 v27, {KVB}, v27
  v_cmp_gt_u32 vcc, 6, v26
  s_and_saveexec_b64 s[48:49], vcc""")
    k.wait_vm("kv")
    for r in range(5):
        k(f"  v_cvt_pk_bf16_f32 v28, v{KVR+4*r}, v{KVR+4*r+1}\n  v_cvt_pk_bf16_f32 v29, v{KVR+4*r+2}, v{KVR+4*r+3}")
        k(f"  ds_write_b64 v27, v[28:29] offset:{r*32*KVP}")
    k("  s_mov_b64 exec, s[48:49]\n  s_waitcnt lgkmcnt(0)\n  s_barrier")
    WA = 64
    k(f"""
  v_lshrrev_b32 v26, 2, v1
  v_and_b32 v26, 3, v26                    ; r
  v_and_b32 v27, 3, v1                     ; c
  v_lshlrev_b32 v28, 10, v17
  v_mul_u32_u24 v29, 40, v26
  v_add_u32 v28, v28, v29
  v_add_u32 v28, {WPB}, v28
  v_mov_b32 v29, {ZB}
  v_cmp_eq_u32 vcc, v27, v17
  v_cndmask_b32 v28, v29, v28, vcc
  v_mul_u32_u24 v30, {40*KVP}, v17
  v_mul_u32_u24 v31, {KVP}, v26
  v_add_u32 v30, v30, v31
  v_add_u32 v30, {KVB}, v30
  v_cndmask_b32 v30, v29, v30, vcc""")
    for b in range(5):
        for s in range(3):
            for t in range(2):
                reg = WA + (b*3 + s)*4 + 2*t; d0 = 8*s + 4*t
                if d0 < 20: k(f"  ds_read_b64_tr_b16 v[{reg}:{reg+1}], v28 offset:{d0*40 + 8*b}")
                else: k(f"  v_mov_b32 v{reg}, 0\n  v_mov_b32 v{reg+1}, 0")
        if b % 2 == 1: k("  s_waitcnt lgkmcnt(0)")
    k(f"  v_mov_b32 v{Q+10}, 0\n  v_mov_b32 v{Q+11}, 0")
    k.wait_vm("q", " lgkmcnt(0)")
    P = 128
    for b in range(5):
        for s in range(3):
            c = "0" if s == 0 else f"v[{P+4*b}:{P+4*b+3}]"
            w = WA + (b*3 + s)*4
            k(f"  v_mfma_f32_16x16x32_bf16 v[{P+4*b}:{P+4*b+3}], v[{w}:{w+3}], v[{Q+4*s}:{Q+4*s+3}], {c}")
    def kvreads(betas):
        n = 0
        for bi, beta in enumerate(betas):
            for s in range(5):
                for t in range(2):
                    reg = WA + (bi*5 + s)*4 + 2*t
                    k(f"  ds_read_b64_tr_b16 v[{reg}:{reg+1}], v30 offset:{(8*s + 4*t)*KVP + 8*beta}")
                    n += 1
                    if n % 14 == 0: k("  s_waitcnt lgkmcnt(0)")
    k("  s_nop 7")
    kvreads([0, 1, 2])
    E = 188
    k(f"  v_max3_f32 v44+0, v{P}, v{P+1}, v{P+2}".replace("v44+0", "v52"))
    k(f"  v_min3_f32 v53, v{P}, v{P+1}, v{P+2}")
    for i in range(3, 19, 2):
        k(f"  v_max3_f32 v52, v52, v{P+i}, v{P+i+1}\n  v_min3_f32 v53, v53, v{P+i}, v{P+i+1}")
    k(f"  v_max_f32 v52, v52, v{P+19}\n  v_min_f32 v53, v53, v{P+19}")
    k(f"  v_mul_f32 v54, {fl(LOG2E)}, v21\n  v_mul_f32 v52, v52, v54\n  v_mul_f32 v53, v53, v54")
    for i in range(20):
        k(f"  v_fma_f32 v{E+i}, v{P+i}, v54, -v52\n  v_fma_f32 v{E+20+i}, -v{P+i}, v54, v53")
    for i in range(40): k(f"  v_exp_f32 v{E+i}, v{E+i}")
    PH = 228
    for h_ in range(2):
        b0 = E + 20*h_
        k(f"  v_add_f32 v55, v{b0}, v{b0+1}")
        for i in range(2, 20): k(f"  v_add_f32 v55, v55, v{b0+i}")
        k("  v_rcp_f32 v55, v55")
        for i in range(10):
            k(f"  v_mul_f32 v52, v55, v{b0+2*i}\n  v_mul_f32 v53, v55, v{b0+2*i+1}\n  v_cvt_pk_bf16_f32 v{PH+10*h_+i}, v52, v53")
    O = 128
    k("  s_waitcnt lgkmcnt(0)")
    for rnd, betas in enumerate(([0, 1, 2], [3, 4, 5])):
        if rnd == 1:
            k("  s_nop 7")
            kvreads(betas)
            k("  s_waitcnt lgkmcnt(0)")
        for bi, beta in enumerate(betas):
            for s in range(5):
                c = "0" if s == 0 else f"v[{O+4*beta}:{O+4*beta+3}]"
                w = WA + (bi*5 + s)*4
                k(f"  v_mfma_f32_16x16x32_bf16 v[{O+4*beta}:{O+4*beta+3}], v[{w}:{w+3}], v[{PH+4*s}:{PH+4*s+3}], {c}")
    k(f"  v_add_f32 v55, {fl(1e-6)}, v{O+20}\n  v_rcp_f32 v55, v55")
    OB = 188
    for i in range(10):
        k(f"  v_mul_f32 v52, v55, v{O+2*i}\n  v_mul_f32 v53, v55, v{O+2*i+1}\n  v_cvt_pk_bf16_f32 v{OB+i}, v52, v53")
    k(f"""
  v_lshlrev_b32 v22, 4, v1                 ; lane*16
  s_mul_i32 s44, s37, 74
  s_lshr_b32 s45, s38, 1
  s_mul_i32 s45, s45, 5
  s_add_u32 s44, s44, s45
  s_add_u32 s44, s44, 54
  s_lshl_b32 s44, s44, 10
  s_add_u32 s44, s44, {L.WS_HO}
  s_bitcmp1_b32 s38, 0
  s_cbranch_scc1 {k.L('o_odd')}
  buffer_store_dwordx4 v[{OB}:{OB+3}], v22, s[24:27], s44 offen sc1
  buffer_store_dwordx4 v[{OB+4}:{OB+7}], v22, s[24:27], s44 offen offset:1024 sc1
  buffer_store_dwordx2 v[{OB+8}:{OB+9}], v22, s[24:27], s44 offen offset:2048 sc1
  s_branch {k.L('o_done')}
{k.L('o_odd')}:
  buffer_store_dwordx2 v[{OB}:{OB+1}], v22, s[24:27], s44 offen offset:2056 sc1
  buffer_store_dwordx4 v[{OB+2}:{OB+5}], v22, s[24:27], s44 offen offset:3072 sc1
  s_add_u32 s44, s44, 4096
  buffer_store_dwordx4 v[{OB+6}:{OB+9}], v22, s[24:27], s44 offen sc1
{k.L('o_done')}:
  s_waitcnt vmcnt(0)""")
    k.vm = []

def breads(st4, ks):
    base = FR[ks]
    r = [f"  ds_read_b128 v[{base}:{base+3}], v{VA[st4]} offset:{ks*1024}"]
    for cb in range(5):
        r.append(f"  ds_read_b128 v[{base+4+4*cb}:{base+7+4*cb}], v{VS[st4]} offset:{(ks*5+cb)*1024}")
    return r
def bmfma(ks):
    base = FR[ks]
    return [f"  v_mfma_f32_16x16x32_bf16 v[{ACCB+4*cb}:{ACCB+4*cb+3}], v[{base+4+4*cb}:{base+7+4*cb}], v[{base}:{base+3}], v[{ACCB+4*cb}:{ACCB+4*cb+3}]" for cb in range(5)]

def bstage(k, st4, nks=4, next_exists=True, next_nks=4):
    for ks in range(nks):
        mf = bmfma(ks)
        if ks == 2 or (nks == 2 and False):
            pass
        if ks < 2:
            rd = breads(st4, ks + 2) if ks + 2 < nks else []
            k(f"  s_waitcnt lgkmcnt({6 if (ks == 0 or rd is not None) and True else 0})" if ks == 0 else f"  s_waitcnt lgkmcnt({6 if nks == 4 else 0})")
            for i, m in enumerate(mf):
                k(m)
                if rd: k(rd.pop(0))
            while rd: k(rd.pop(0))
        else:
            if ks == 2:
                k("  s_waitcnt lgkmcnt(0)\n  s_barrier")
            else:
                k("  s_waitcnt lgkmcnt(6)") if next_exists else None
            rd = breads((st4 + 1) % 4, ks - 2) if (next_exists and ks - 2 < next_nks) else []
            for i, m in enumerate(mf):
                k(m)
                if rd: k(rd.pop(0))
            while rd: k(rd.pop(0))

def compute_b(k):
    k.vm = []
    kb.stamp(k, 0, rt=True)
    oprod(k)
    kb.stamp(k, 2)
    k("  s_barrier")
    kb.stamp(k, 3)
    k(f"""
  s_cmp_eq_u32 s39, 0
  s_cbranch_scc0 {k.L('noflag')}
  s_lshl_b32 s44, s36, 3
  s_add_u32 s44, s44, s38
  v_mov_b32 v22, s44
  v_mov_b32 v23, 1
  v_cmp_eq_u32 vcc, 0, v1
  s_and_saveexec_b64 s[48:49], vcc
  global_store_byte v22, v23, s[16:17] sc1
  s_mov_b64 exec, s[48:49]
{k.L('noflag')}:""")
    k(f"  v_lshlrev_b32 v22, 4, v1\n  s_lshl_b32 s44, s39, 12\n  s_add_u32 s44, s44, 20480")
    for s in range(4):
        k(f"  v_add_u32 v{VS[s]}, {s*SLOT}, v22\n  v_add_u32 v{VA[s]}, s44, v{VS[s]}")
    for i in range(20): k(f"  v_mov_b32 v{ACCB+i}, 0")
    for ks in range(2):
        for l in breads(0, ks): k(l)
    k("  s_mov_b32 s46, 0\n.p2align 3")
    k.label("bloop")
    for st4 in range(4): bstage(k, st4)
    k(f"  s_add_u32 s46, s46, 1\n  s_cmp_lt_u32 s46, 4\n  s_cbranch_scc1 {k.L('bloop')}")
    bstage(k, 0)
    bstage(k, 1, next_nks=2)
    k("  s_waitcnt lgkmcnt(0)")
    for ks in range(2):
        for m in bmfma(ks): k(m)
    kb.stamp(k, 4)
    k.wait_vm_all()
    k("  s_nop 7")
    for cb in range(5):
        a = ACCB + 4*cb; x = XR_ + 2*cb; b = BR_ + 2*cb
        k(f"""
  v_lshlrev_b32 v52, 16, v{x}
  v_and_b32 v53, 0xffff0000, v{x}
  v_lshlrev_b32 v54, 16, v{x+1}
  v_and_b32 v55, 0xffff0000, v{x+1}
  v_add_f32 v{a}, v{a}, v52
  v_add_f32 v{a+1}, v{a+1}, v53
  v_add_f32 v{a+2}, v{a+2}, v54
  v_add_f32 v{a+3}, v{a+3}, v55
  v_lshlrev_b32 v52, 16, v{b}
  v_and_b32 v53, 0xffff0000, v{b}
  v_lshlrev_b32 v54, 16, v{b+1}
  v_and_b32 v55, 0xffff0000, v{b+1}
  v_add_f32 v{a}, v{a}, v52
  v_add_f32 v{a+1}, v{a+1}, v53
  v_add_f32 v{a+2}, v{a+2}, v54
  v_add_f32 v{a+3}, v{a+3}, v55
  v_cvt_pk_bf16_f32 v56, v{a}, v{a+1}
  v_cvt_pk_bf16_f32 v57, v{a+2}, v{a+3}
  buffer_store_dwordx2 v[56:57], v24, s[60:63], 0 offen offset:{32*cb}
  s_nop 0""")
    if kb.PROF:
        k("  s_waitcnt vmcnt(0)")
        kb.stamp(k, 6, rt=True)
        kb.dump(k, 14, 1)
    k("  s_endpgm")

def build_kb(name):
    k = K(name)
    k(f"""
  s_cmp_ge_u32 s2, 256
  s_cbranch_scc1 {k.L('end')}
  s_load_dwordx2 s[4:5], s[0:1], 0
  s_load_dwordx2 s[8:9], s[0:1], 16
  s_load_dwordx2 s[12:13], s[0:1], 64
  s_load_dwordx2 s[14:15], s[0:1], 88
  s_load_dwordx4 s[64:67], s[0:1], 72""")
    decode_b(k)
    k("  s_waitcnt lgkmcnt(0)")
    srd(k, 20, 4, 5, 2621440)
    srd(k, 24, 14, 15, L.WS_END)
    srd(k, 28, 12, 13, 1280)
    srd(k, 60, 64, 65, 2621440)
    k("  s_mov_b32 s16, s66\n  s_mov_b32 s17, s67")
    k(f"  s_cmp_ge_u32 s3, 4\n  s_cbranch_scc1 {k.L('loader')}")
    compute_b(k)
    loader_b(k)
    k(f"{k.L('end')}:\n  s_endpgm")
    rep = []
    t = k.text(rep)
    return dict(name=name, body=t, vgpr=256, sgpr=96, accum=256, maxwg=512), rep

if __name__ == "__main__":
    import asmlib, g_k0, g_ka
    ka, _ = g_ka.build_ka("ka_kernel")
    kb_, rep = build_kb("kb_kernel")
    print("nops inserted:", len(rep))
    asmlib.build("kbt", [g_k0.build_k0("k0_kernel"), ka, kb_])
    print("ok")
```

```python
import re

TRANS = ("v_exp_f32", "v_log_f32", "v_rcp_f32", "v_rsq_f32", "v_sqrt_f32", "v_sin_f32", "v_cos_f32")

def regs_of(tok):
    tok = tok.strip()
    neg = tok.lstrip("-")
    if neg.startswith("abs(") or neg.startswith("|"):
        neg = neg.replace("abs(", "").replace(")", "").replace("|", "")
    tok = neg
    m = re.fullmatch(r"([vas])\[(\d+):(\d+)\]", tok)
    if m:
        return [(m.group(1), i) for i in range(int(m.group(2)), int(m.group(3)) + 1)]
    m = re.fullmatch(r"([vas])(\d+)", tok)
    if m:
        return [(m.group(1), int(m.group(2)))]
    if tok == "vcc":
        return [("s", "vcc")]
    if tok in ("vcc_lo", "vcc_hi"):
        return [("s", "vcc")]
    if tok == "exec":
        return [("s", "exec")]
    if tok == "m0":
        return [("s", "m0")]
    return []

class Ins:
    __slots__ = ("text", "op", "defs", "uses", "cls", "srcC", "passes", "ab", "stdata", "dpp")
    def __init__(self, text):
        self.text = text
        t = text.split(";")[0].strip()
        self.op = None; self.defs = []; self.uses = []; self.cls = "other"; self.srcC = []; self.passes = 0; self.ab = []
        self.stdata = []; self.dpp = False
        if not t or t.endswith(":") or t.startswith("."):
            self.cls = "meta"; return
        parts = t.split(None, 1)
        op = parts[0]; self.op = op
        rest = parts[1] if len(parts) > 1 else ""
        ops = []; cur = ""; depth = 0
        for ch in rest:
            if ch == "[": depth += 1
            if ch == "]": depth -= 1
            if ch == "," and depth == 0:
                ops.append(cur); cur = ""
            else:
                cur += ch
        if cur.strip(): ops.append(cur)
        mods = ""
        if ops:
            l = ops[-1].strip().split(None, 1)
            ops[-1] = l[0]
            if len(l) > 1: mods = l[1]
        ops = [o.strip() for o in ops]
        R = [regs_of(o) for o in ops]
        if op.startswith("v_mfma"):
            self.cls = "mfma"
            self.defs = R[0]; self.ab = R[1] + R[2]; self.srcC = R[3]; self.uses = self.ab + self.srcC
            self.passes = 8 if "32x32" in op else 4
        elif op.startswith("v_"):
            self.cls = "trans" if op.replace("_e32", "").replace("_e64", "") in TRANS else "valu"
            self.dpp = ("_dpp" in op) or ("row_" in mods) or ("quad_perm" in mods)
            if op.startswith("v_cmp"):
                self.defs = R[0]; self.uses = sum(R[1:], [])
            elif op.startswith("v_readfirstlane") or op.startswith("v_readlane"):
                self.cls = "valu"; self.defs = R[0]; self.uses = sum(R[1:], [])
            elif op.startswith("v_permlane"):
                self.defs = R[0] + R[1]; self.uses = R[0] + R[1]
            elif "_co_" in op or op.startswith("v_div_scale") or op.startswith("v_mad_u64"):
                self.defs = R[0] + R[1]; self.uses = sum(R[2:], [])
            else:
                self.defs = R[0]; self.uses = sum(R[1:], [])
                if op.startswith("v_fmac") or op.startswith("v_writelane") or op.startswith("v_dot2c") or op.startswith("v_pk_fmac"):
                    self.uses = self.uses + R[0]
                if op.startswith("v_cndmask") and len(ops) == 3:
                    self.uses = self.uses + [("s", "vcc")]
        elif op.startswith("ds_"):
            self.cls = "ds"
            if op.startswith("ds_read") or op.startswith("ds_swizzle") or op.startswith("ds_bpermute") or op.startswith("ds_permute"):
                self.defs = R[0]; self.uses = sum(R[1:], [])
            else:
                self.uses = sum(R, [])
        elif op.startswith("buffer_") or op.startswith("global_") or op.startswith("flat_"):
            self.cls = "vmem"
            islds = " lds" in (" " + mods) or "_lds_" in op
            if op in ("buffer_wbl2", "buffer_inv"):
                pass
            elif "load" in op and not islds:
                self.defs = R[0]; self.uses = sum(R[1:], [])
            elif "load" in op:
                self.uses = sum(R, []) + [("s", "m0")]
            elif op.startswith("buffer_store") or op.startswith("buffer_atomic"):
                self.uses = sum(R, [])
                if "x4" in op or "x3" in op: self.stdata = R[0]
            else:
                self.uses = sum(R, [])
                if "x4" in op or "x3" in op: self.stdata = R[1]
        elif op.startswith("s_"):
            self.cls = "salu"
            if op in ("s_nop", "s_waitcnt", "s_barrier", "s_endpgm", "s_sleep", "s_setprio", "s_branch") or op.startswith("s_cbranch"):
                self.cls = "sctl"
            elif op.startswith("s_cmp") or op.startswith("s_bitcmp"):
                self.uses = sum(R, [])
            elif op.startswith("s_load") or op.startswith("s_memtime") or op.startswith("s_memrealtime"):
                self.cls = "smem"; self.defs = R[0]; self.uses = sum(R[1:], [])
            else:
                self.defs = R[0]; self.uses = sum(R[1:], [])
                if "saveexec" in op:
                    self.defs = self.defs + [("s", "exec")]
    def states(self):
        if self.cls == "meta": return 0
        if self.op == "s_nop":
            return int(self.text.split(";")[0].split()[1], 0) + 1
        return 1

def isv(r): return r[0] in ("v", "a")

def need(prev, cur):
    n = 0
    pd = set(prev.defs); cu = set(cur.uses); cd = set(cur.defs)
    pv = {r for r in pd if isv(r)}; ps = {r for r in pd if r[0] == "s"}
    if prev.cls in ("valu", "trans"):
        if cur.cls == "mfma" and pv & cu: n = max(n, 2)
        if prev.cls == "trans" and cur.cls in ("valu", "mfma") and pv & cu: n = max(n, 1)
        if prev.cls == "trans" and cur.cls in ("ds", "vmem") and pv & cu: n = max(n, 1)
        if cur.cls in ("valu", "trans"):
            if cur.op.startswith("v_readlane") or cur.op.startswith("v_readfirstlane"):
                if pv & cu: n = max(n, 1)
            if cur.op.startswith("v_permlane") and pv & cu: n = max(n, 2)
            if cur.dpp and pv & cu: n = max(n, 2)
            if ps & cu:
                n = max(n, 4 if (cur.op.startswith("v_readlane") or cur.op.startswith("v_writelane")) else 2)
        if cur.cls == "vmem" and ps & cu: n = max(n, 5)
        if cur.cls in ("salu", "smem", "sctl") and ps & cu: n = max(n, 1)
    if prev.cls == "mfma":
        big = prev.passes == 8
        if cur.cls == "mfma":
            if pv & set(cur.ab): n = max(n, 12 if big else 8)
            if pv & set(cur.srcC):
                if not (set(prev.defs) == set(cur.srcC) and prev.passes == cur.passes):
                    n = max(n, 10 if big else 6)
            if (pv & cd) and not (pv & set(cur.srcC)): n = max(n, 10 if big else 6)
        elif cur.cls in ("valu", "trans", "ds", "vmem"):
            if pv & (cu | cd): n = max(n, 12 if big else 8)
        if cur.cls in ("valu", "trans") and set(prev.srcC) & cd: n = max(n, 7 if big else 3)
    if prev.cls == "vmem" and prev.stdata and cur.cls in ("valu", "trans", "mfma") and set(prev.stdata) & cd:
        n = max(n, 2)
    if prev.cls == "salu" and ("s", "m0") in pd and cur.cls == "vmem" and ("s", "m0") in cu: n = max(n, 1)
    return n

def fix_hazards(lines, window=24, report=None):
    out = []
    added = 0
    for l in lines:
        for sub in l.split("\n"):
            cur = Ins(sub)
            if cur.cls != "meta":
                reqd = 0
                dist = 0
                for p in reversed(out):
                    if p.cls == "meta": continue
                    nd = need(p, cur)
                    if nd > dist: reqd = max(reqd, nd - dist)
                    dist += p.states()
                    if dist >= window: break
                while reqd > 0:
                    k = min(reqd, 16)
                    out.append(Ins(f"  s_nop {k-1}")); added += 1
                    if report is not None: report.append((k, sub))
                    reqd -= k
            out.append(cur)
    return [i.text for i in out], added

class K:
    def __init__(self, name):
        self.name = name
        self.lines = []
        self.vm = []
    def __call__(self, s):
        for l in s.strip("\n").split("\n"):
            self.lines.append(l)
    def L(self, n): return f"L_{self.name}_{n}"
    def label(self, n): self.lines.append(self.L(n) + ":")
    def vmem(self, s, tag=None):
        self(s); self.vm.append(tag)
    def wait_vm(self, tag, extra=""):
        idx = [i for i, t in enumerate(self.vm) if t == tag]
        if not idx: return
        n = len(self.vm) - 1 - idx[-1]
        assert n <= 63, n
        self(f"  s_waitcnt vmcnt({n}){extra}")
        self.vm = self.vm[idx[-1] + 1:]
    def note_vm(self, tags): self.vm += list(tags)
    def begin(self): pass
    def end(self): pass
    def wait_vm_all(self):
        self("  s_waitcnt vmcnt(0)"); self.vm = []
    def text(self, report=None):
        ls, added = fix_hazards(self.lines, report=report)
        return "\n".join(ls) + "\n"

PROF = False
PROF_OFF = 0x2000000
FINE = True
def stamp(k, i, rt=False):
    if not PROF: return
    if not FINE and i >= 11 and i not in (11, 12, 13, 14): return
    if i == 0: k("  v_mov_b32 v3, 0")
    k(f"""
  s_memtime s[70:71]
  s_waitcnt lgkmcnt(0)
  v_writelane_b32 v3, s70, {i}""")
    if rt:
        k(f"""
  s_memrealtime s[70:71]
  s_waitcnt lgkmcnt(0)
  v_writelane_b32 v3, s70, {i+1}""")
def dump(k, wsptr_lo, kidx=0):
    if not PROF: return
    k(f"""
  s_add_u32 s72, s{wsptr_lo}, {PROF_OFF + kidx*256*8*256}
  s_addc_u32 s73, s{wsptr_lo+1}, 0
  s_lshl_b32 s74, s2, 3
  s_add_u32 s74, s74, s3
  s_lshl_b32 s74, s74, 8
  v_lshlrev_b32 v2, 2, v1
  v_add_u32 v2, s74, v2
  global_store_dword v2, v3, s[72:73]""")

class Rec:
    def __init__(self, k):
        self.k = k; self.name = k.name; self.items = []; self.grp = None; self.vm = []
    def L(self, n): return self.k.L(n)
    def _add(self, it):
        if self.grp is not None: self.grp.append(it)
        else: self.items.append([it])
    def __call__(self, s):
        ls = [l for l in s.strip("\n").split("\n")]
        if self.grp is None and not any(l.strip().endswith(":") or "branch" in l or "exec" in l or "vcc" in l or "s_cmp" in l or "s_csel" in l or "s_cmov" in l or "m0" in l or "s_addc" in l or "s_bitcmp" in l for l in ls):
            for l in ls: self.items.append([("t", l)])
        else:
            self._add(("t", s))
    def label(self, n): self._add(("t", self.L(n) + ":"))
    def vmem(self, s, tag=None): self._add(("v", s, tag))
    def wait_vm(self, tag, extra=""): self._add(("w", tag, extra))
    def note_vm(self, tags): self._add(("n", tags))
    def begin(self): self.grp = []
    def end(self):
        g = self.grp; self.grp = None; self.items.append(g)
def replay(k, grp):
    for it in grp:
        if it[0] == "t": k(it[1])
        elif it[0] == "v": k.vmem(it[1], it[2])
        elif it[0] == "n": k.note_vm(it[1])
        else: k.wait_vm(it[1], it[2])
def interleave(k, main_groups, rec_items, lead=0):
    n = len(main_groups)
    items = list(rec_items)
    if n == 0:
        for g in items: replay(k, g)
        return
    per = (len(items) + n - 1)//n
    for i, m in enumerate(main_groups):
        m(k)
        for g in items[i*per:(i+1)*per]: replay(k, g)
```

```python
import numpy as np
S, D, H, DH, F = 2048, 640, 32, 20, 1728
NCOL = 3648
WS_STATS = 0
WS_FLAGS = 0x1400000
WS_CSP   = 0x10000
WS_KV    = 0x40000
WS_Q     = 0x80000
WS_W2    = 0x400000
WS_HO    = 0x800000
WS_KP    = 0x1200000
WS_END   = 0x1400000 + 800*128
SZ_STATS = 2048*16
SZ_CSP = 10*NCOL*4
SZ_KV = 32*40*32*4
SZ_Q = 128*160*128
SZ_W2 = 8*74*5*1024
SZ_HO = 128*74*1024

def f_of(g, e):
    return 16*(g & 1) + 8*(e >> 2) + 4*(g >> 1) + (e & 3)

def wo_row(sigma, g, e):
    p, sp = divmod(sigma, 5)
    pos = 8*sp + e
    jj = 2*p + (1 if pos >= 20 else 0)
    d = pos % 20
    return (4*jj + g)*20 + d

def hblk(sp):
    return 4*(sp >> 1) + (sp & 1) if sp < 28 else 4*((sp - 28) >> 1) + 2 + (sp & 1)
```

```python
import sys, g_f, mkfinal, kb
import os
if os.environ.get('DBG'):
    kb.PROF = True; kb.FINE = False; kb.DBGDUMP = True
NAME = mkfinal.NAME
kf, rep = g_f.build(NAME + "_kernel")
out = sys.argv[1] if len(sys.argv) > 1 else f"cdna_kernels/{NAME}.s"
mkfinal.write(out, [kf], [(NAME + "_kernel", 256, 512, 163840)])
```

```python
from kb import K
import kb
import layout as L

LOG2E = 1.4426950408889634
C0 = -2.0*0.7978845608028654*LOG2E
C1 = C0*0.044715
def fl(x):
    import struct
    return "0x%08x" % struct.unpack("<I", struct.pack("<f", x))[0]

XR = 0; WR = 49152; SCR = 114688; TT = 147456; ST = 151552; WP = 153600; ZR = 157696
PHI = 73728; PHI_P = 336; VV = PHI + 43008; VV_P = 208
SLOT = 36864; WPB = 147456; KVB = 151552; KVP = 48; ZB = 159232
LDS_BYTES = 163840
NSTB = 19
P1_J = 2
P2_J = 7
OFLAG_J = 9
FL = L.WS_FLAGS
FL_F2 = FL; FL_H1 = FL + 16*128; FL_H2 = FL + 32*128; FL_Q = FL + 48*128; FL_KV = FL + 64*128; FL_O = FL + 72*128; FL_F3 = FL + 104*128
NFL = 120

S_X, S_WQ, S_WPHI, S_W1, S_B1, S_WS = 4, 6, 8, 10, 12, 14
S_WO, S_W2, S_B2, S_OUT, S_DBG = 76, 78, 80, 82, 84
R_X, R_W, R_WS, R_B, R_T, R_OUT, R_WQ, R_W1, R_W2, R_WO = 16, 20, 24, 28, 32, 60, 64, 88, 92, 96
S_I64, S_JB, S_T16 = 68, 69, 86

def srd(k, s, lo, size):
    k(f"""
  s_mov_b32 s{s}, s{lo}
  s_and_b32 s{s+1}, s{lo+1}, 0xffff
  s_mov_b32 s{s+2}, {size}
  s_mov_b32 s{s+3}, 0x20000""")
def R(s): return f"s[{s}:{s+3}]"

def job_ids(k):
    k(f"""
  s_lshl_b32 s40, s2, 2
  s_add_u32 s40, s40, s39                    ; gw
  s_mul_i32 s41, s40, 570
  s_add_u32 s42, s41, 570
  s_lshr_b32 s41, s41, 10
  s_lshr_b32 s42, s42, 10
  s_cmp_lg_u32 s41, s42
  s_cselect_b32 s50, s41, -1
  s_mul_i32 s41, s40, 740
  s_add_u32 s42, s41, 740
  s_lshr_b32 s41, s41, 10
  s_lshr_b32 s42, s42, 10
  s_cmp_lg_u32 s41, s42
  s_cselect_b32 s51, s41, -1
  s_lshl_b32 s52, s39, 13
  s_add_u32 s52, s52, {SCR}
  s_lshl_b32 s87, s39, 12
  s_add_u32 s87, s87, {SCR2}""")

V_ST = 36
def stats_issue(k):
    v = V_ST
    k(f"""
  v_lshrrev_b32 v{v}, 5, v1                  ; hh
  v_and_b32 v{v+1}, 31, v1                   ; n
  s_lshl_b32 s41, s40, 1
  v_add_u32 v{v+2}, s41, v{v}                ; token
  v_mul_u32_u24 v{v+3}, 1280, v{v+2}
  v_lshl_add_u32 v{v+3}, v{v+1}, 3, v{v+3}""")
    for r in range(5):
        k.vmem(f"  buffer_load_dwordx2 v[{v+4+2*r}:{v+5+2*r}], v{v+3}, {R(R_X)}, 0 offen offset:{256*r}", "st")
def stats_a1(k):
    v = V_ST; U = v + 16
    k.wait_vm("st")
    for d in range(10):
        k(f"  v_lshlrev_b32 v{U+2*d}, 16, v{v+4+d}\n  v_and_b32 v{U+2*d+1}, 0xffff0000, v{v+4+d}")
def stats_a2(k):
    v = V_ST; U = v + 16; S = v + 36; T = v + 37
    k(f"  v_add_f32 v{S}, v{U}, v{U+1}\n  v_add_f32 v{T}, v{U+2}, v{U+3}")
    for i in range(4, 20, 2):
        k(f"  v_add_f32 v{S}, v{S}, v{U+i}\n  v_add_f32 v{T}, v{T}, v{U+i+1}")
    k(f"  v_add_f32 v{S}, v{S}, v{T}")
def red32(k, S, T):
    for r in (8, 4, 2, 1):
        k(f"  v_add_f32_dpp v{S}, v{S}, v{S} row_ror:{r} row_mask:0xf bank_mask:0xf")
    k(f"  ds_swizzle_b32 v{T}, v{S} offset:0x401F\n  s_waitcnt lgkmcnt(0)\n  v_add_f32 v{S}, v{S}, v{T}")
def stats_b(k):
    v = V_ST; U = v + 16; S = v + 36; T = v + 37; M = v + 38
    red32(k, S, T)
    k(f"  v_mul_f32 v{M}, {1.0/640.0!r}, v{S}")
    for i in range(20): k(f"  v_sub_f32 v{U+i}, v{U+i}, v{M}")
def stats_c(k):
    v = V_ST; U = v + 16; S = v + 36; T = v + 37
    k(f"  v_mul_f32 v{S}, v{U}, v{U}\n  v_mul_f32 v{T}, v{U+1}, v{U+1}")
    for i in range(2, 20, 2):
        k(f"  v_fmac_f32 v{S}, v{U+i}, v{U+i}\n  v_fmac_f32 v{T}, v{U+i+1}, v{U+i+1}")
    k(f"  v_add_f32 v{S}, v{S}, v{T}")
def stats_d(k):
    v = V_ST; U = v + 16; S = v + 36; T = v + 37; M = v + 38; O = v + 40
    red32(k, S, T)
    k(f"""
  v_mul_f32 v{S}, {1.0/640.0!r}, v{S}
  v_add_f32 v{T}, 0x3727c5ac, v{S}
  v_rsq_f32 v{O+1}, v{T}
  v_mov_b32 v{O}, v{M}
  v_mul_f32 v{T}, v{O+1}, v{O+1}
  v_mul_f32 v{T}, v{T}, v{S}
  v_add_f32 v{T}, 0x3727c5ac, v{T}
  v_rsq_f32 v{T}, v{T}
  v_mov_b32 v{O+3}, 0
  v_mul_f32 v{O+2}, v{O+1}, v{T}
  v_lshlrev_b32 v{v+3}, 4, v{v+2}
  v_add_u32 v{v+3}, {L.WS_STATS}, v{v+3}
  v_cmp_eq_u32 vcc, 0, v{v+1}
  v_mov_b32 v{T}, 0x7fff0000
  v_cndmask_b32 v{v+3}, v{T}, v{v+3}, vcc""")
    if 'nost' not in EXP: k.vmem(f"  buffer_store_dwordx4 v[{O}:{O+3}], v{v+3}, {R(R_WS)}, 0 offen sc1", "jst")

V_CS = 176
V_CSI = 100
def cs_issue(k):
    v = V_CSI; t = 41
    k(f"""
  s_cmp_eq_u32 s50, -1
  s_cselect_b32 s53, 0, s50
  s_mul_i32 s{t}, s53, 6554
  s_lshr_b32 s{t}, s{t}, 16                  ; u
  s_mul_i32 s{t+1}, s{t}, 10
  s_sub_u32 s{t+1}, s53, s{t+1}              ; kappa
  s_mov_b32 s54, s{t}
  s_mov_b32 s55, s{t+1}
  s_cmp_lt_u32 s{t}, 30
  s_cselect_b32 s{R_T}, s{R_WQ}, s{R_W1}
  s_cselect_b32 s{R_T+1}, s{R_WQ+1}, s{R_W1+1}
  s_cselect_b32 s{R_T+2}, s{R_WQ+2}, s{R_W1+2}
  s_mov_b32 s{R_T+3}, 0x20000
  s_mov_b32 s{t+2}, 3456
  s_cmov_b32 s{t+2}, 3840
  s_cselect_b32 s{t+3}, 0, 30
  s_sub_u32 s{t+3}, s{t}, s{t+3}
  s_lshl_b32 s{t+3}, s{t+3}, 7
  s_mul_i32 s{t+4}, s{t+1}, s{t+2}
  s_lshl_b32 s{t+4}, s{t+4}, 6
  s_add_u32 s{t+4}, s{t+4}, s{t+3}           ; soffset
  s_lshl_b32 s{t+5}, s{t+2}, 3
  s_cmp_eq_u32 s50, -1
  s_cselect_b32 s{R_T+2}, 0, s{R_T+2}
  v_lshrrev_b32 v{v}, 3, v1
  v_lshrrev_b32 v{v+1}, 1, v{v}
  v_and_b32 v{v+1}, 1, v{v+1}
  v_lshlrev_b32 v{v+1}, 2, v{v+1}
  v_and_b32 v{v+2}, 7, v1
  v_xor_b32 v{v+2}, v{v+2}, v{v+1}
  v_mul_lo_u32 v{v+3}, v{v}, s{t+2}
  v_lshl_add_u32 v{v+3}, v{v+2}, 4, v{v+3}""")
    for i in range(8):
        k.begin()
        k(f"  s_add_u32 m0, s52, {i*1024}")
        k.vmem(f"  buffer_load_dwordx4 v{v+3}, {R(R_T)}, s{t+4} offen lds", "cs")
        k.end()
        if i < 7: k(f"  s_add_u32 s{t+4}, s{t+4}, s{t+5}")
def cs_a(k):
    v = V_CS
    k(f"""
  v_lshrrev_b32 v{v}, 4, v1
  v_lshrrev_b32 v{v+1}, 2, v1
  v_and_b32 v{v+1}, 3, v{v+1}
  v_and_b32 v{v+2}, 3, v1
  v_lshrrev_b32 v{v+4}, 1, v{v}
  v_lshl_add_u32 v{v+4}, v{v+4}, 3, v{v+1}
  v_lshlrev_b32 v{v+4}, 7, v{v+4}
  v_and_b32 v{v+5}, 1, v{v}
  v_lshlrev_b32 v{v+5}, 1, v{v+5}
  v_lshrrev_b32 v{v+6}, 1, v{v+2}
  v_add_u32 v{v+5}, v{v+5}, v{v+6}
  v_lshrrev_b32 v{v+6}, 1, v{v+1}
  v_lshlrev_b32 v{v+6}, 2, v{v+6}
  v_and_b32 v{v+7}, 1, v{v+2}
  v_lshl_add_u32 v{v+4}, v{v+7}, 3, v{v+4}
  v_add_u32 v{v+4}, s52, v{v+4}
  v_xor_b32 v{v+7}, v{v+5}, v{v+6}
  v_lshl_add_u32 v{v+8}, v{v+7}, 4, v{v+4}
  v_xor_b32 v{v+7}, 4, v{v+7}
  v_lshl_add_u32 v{v+9}, v{v+7}, 4, v{v+4}""")
    ONE = v + 12; FRG = v + 16; ACC_ = v + 48
    for i in range(4): k(f"  v_mov_b32 v{ONE+i}, 0x3f803f80")
    k.wait_vm("cs")
    for ks in range(4):
        for b in range(2):
            for tt in range(2):
                d = FRG + (ks*2 + b)*4 + 2*tt
                k(f"  ds_read_b64_tr_b16 v[{d}:{d+1}], v{v+8+b} offset:{ks*2048 + tt*512}")
        if ks == 2: k("  s_waitcnt lgkmcnt(4)")
    k("  s_waitcnt lgkmcnt(0)")
def cs_b(k):
    v = V_CS; ONE = v + 12; FRG = v + 16; ACC_ = v + 48
    for ks in range(4):
        for b in range(2):
            d = FRG + (ks*2 + b)*4
            c = "0" if ks == 0 else f"v[{ACC_+16*b}:{ACC_+16*b+15}]"
            k(f"  v_mfma_f32_32x32x16_bf16 v[{ACC_+16*b}:{ACC_+16*b+15}], v[{ONE}:{ONE+3}], v[{d}:{d+3}], {c}")
    k(f"""
  s_mul_i32 s41, s55, {L.NCOL*4}
  s_lshl_b32 s42, s54, 8
  s_add_u32 s41, s41, s42
  s_add_u32 s41, s41, {L.WS_CSP}
  v_lshlrev_b32 v{v}, 2, v1
  v_cmp_gt_u32 vcc, 32, v1
  v_mov_b32 v{v+1}, 0x7fff0000
  v_cndmask_b32 v{v}, v{v+1}, v{v}, vcc
  s_cmp_eq_u32 s50, -1
  s_cselect_b32 s42, 0x7fff0000, 0
  v_add_u32 v{v}, s42, v{v}""")
    k(f"  v_mov_b32 v{v+1}, 0x7fff0000\n  v_min_u32 v{v}, v{v}, v{v+1}")
    for b in range(2):
        if 'nocs' not in EXP: k.vmem(f"  buffer_store_dword v{ACC_+16*b}, v{v}, {R(R_WS)}, s41 offen offset:{128*b} sc1", "jst")

V_SW = 36
V_SWI = 108
SCR2 = WR + 2*16384
def sw_addr(k):
    v = V_SWI; t = 41
    k.begin()
    k(f"""
  s_cmp_eq_u32 s51, -1
  s_cselect_b32 s53, 0, s51
  s_mul_i32 s{t}, s53, 6554
  s_lshr_b32 s{t}, s{t}, 16
  s_mul_i32 s{t+1}, s{t}, 10
  s_sub_u32 s{t+1}, s53, s{t+1}              ; lambda
  s_mov_b32 s56, s{t}
  s_mov_b32 s57, s{t+1}
  s_cmp_lt_u32 s{t}, 54
  s_cselect_b32 s{R_T}, s{R_W2}, s{R_WO}
  s_cselect_b32 s{R_T+1}, s{R_W2+1}, s{R_WO+1}
  s_cselect_b32 s{R_T+2}, s{R_W2+2}, s{R_WO+2}
  s_mov_b32 s{R_T+3}, 0x20000
  s_cmp_eq_u32 s51, -1
  s_cselect_b32 s{R_T+2}, 0, s{R_T+2}
  v_lshrrev_b32 v{v}, 3, v1                  ; e
  v_and_b32 v{v+1}, 7, v1
  s_lshl_b32 s{t+2}, s{t+1}, 7
  v_lshl_add_u32 v{v+1}, v{v+1}, 4, s{t+2}
  s_cmp_lt_u32 s{t}, 54
  s_cbranch_scc0 {k.L('sw_wo')}
  s_cmp_lt_u32 s{t}, 28
  s_cselect_b32 s{t+3}, 0, 28
  s_cselect_b32 s{t+4}, 0, 2
  s_sub_u32 s{t+3}, s{t}, s{t+3}
  s_lshr_b32 s{t+5}, s{t+3}, 1
  s_lshl_b32 s{t+5}, s{t+5}, 2
  s_and_b32 s{t+3}, s{t+3}, 1
  s_add_u32 s{t+5}, s{t+5}, s{t+3}
  s_add_u32 s{t+5}, s{t+5}, s{t+4}           ; F block
  v_lshrrev_b32 v{v+2}, 2, v{v}
  v_lshlrev_b32 v{v+2}, 3, v{v+2}
  v_and_b32 v{v+3}, 3, v{v}
  v_add_u32 v{v+2}, v{v+2}, v{v+3}
  s_lshl_b32 s{t+5}, s{t+5}, 5
  v_add_u32 v{v+2}, s{t+5}, v{v+2}""")
    for i in range(4): k(f"  v_add_u32 v{v+4+i}, {16*(i&1) + 4*(i>>1)}, v{v+2}")
    k(f"""
  s_branch {k.L('sw_go')}
{k.L('sw_wo')}:
  s_sub_u32 s{t+3}, s{t}, 54
  s_mul_i32 s{t+4}, s{t+3}, 52
  s_lshr_b32 s{t+4}, s{t+4}, 8
  s_mul_i32 s{t+5}, s{t+4}, 5
  s_sub_u32 s{t+5}, s{t+3}, s{t+5}
  s_lshl_b32 s{t+5}, s{t+5}, 3
  v_add_u32 v{v+2}, s{t+5}, v{v}
  v_cmp_le_u32 vcc, 20, v{v+2}
  v_cndmask_b32 v{v+3}, 0, 1, vcc
  v_mul_u32_u24 v{v+8}, 20, v{v+3}
  v_sub_u32 v{v+2}, v{v+2}, v{v+8}
  s_lshl_b32 s{t+4}, s{t+4}, 1
  v_add_u32 v{v+3}, s{t+4}, v{v+3}
  v_mul_u32_u24 v{v+3}, 80, v{v+3}
  v_add_u32 v{v+2}, v{v+2}, v{v+3}""")
    for i in range(4): k(f"  v_add_u32 v{v+4+i}, {20*i}, v{v+2}")
    k(f"{k.L('sw_go')}:")
    for i in range(4): k(f"  v_mul_u32_u24 v{v+4+i}, 1280, v{v+4+i}\n  v_add_u32 v{v+4+i}, v{v+4+i}, v{v+1}")
    k.end()
def sw_dma(k):
    v = V_SWI
    for i in range(4):
        k.begin()
        k(f"  s_add_u32 m0, s87, {i*1024}")
        k.vmem(f"  buffer_load_dwordx4 v{v+4+i}, {R(R_T)}, 0 offen lds", "sw")
        k.end()
def sw_proc1(k):
    v = V_SW; t = 41; FRG = v + 16
    k(f"""
  v_lshrrev_b32 v{v}, 4, v1
  v_lshrrev_b32 v{v+1}, 2, v1
  v_and_b32 v{v+1}, 3, v{v+1}
  v_lshl_add_u32 v{v}, v{v}, 3, v{v+1}
  v_lshlrev_b32 v{v}, 7, v{v}
  v_and_b32 v{v+1}, 3, v1
  v_lshl_add_u32 v{v}, v{v+1}, 3, v{v}
  v_add_u32 v{v}, s87, v{v}
  v_lshlrev_b32 v{v+1}, 4, v1
  s_cmp_eq_u32 s51, -1
  s_cselect_b32 s{t}, 0x7fff0000, 0
  v_add_u32 v{v+1}, s{t}, v{v+1}""")
    k.wait_vm("sw")
    for b in range(4):
        for tt in range(2):
            d = FRG + 4*b + 2*tt
            k(f"  ds_read_b64_tr_b16 v[{d}:{d+1}], v{v} offset:{32*b + 512*tt}")
    k("  s_waitcnt lgkmcnt(0)")
def sw_proc2(k):
    v = V_SW; t = 41; FRG = v + 16
    for b in range(4):
        k.begin()
        k(f"""
  s_lshl_b32 s{t}, s57, 2
  s_add_u32 s{t}, s{t}, {b}
  s_mul_i32 s{t+1}, s{t}, 13
  s_lshr_b32 s{t+1}, s{t+1}, 6
  s_mul_i32 s{t+2}, s{t+1}, 5
  s_sub_u32 s{t+2}, s{t}, s{t+2}
  s_mul_i32 s{t+1}, s{t+1}, 74
  s_add_u32 s{t+1}, s{t+1}, s56
  s_mul_i32 s{t+1}, s{t+1}, 5
  s_add_u32 s{t+1}, s{t+1}, s{t+2}
  s_lshl_b32 s{t+1}, s{t+1}, 10
  s_add_u32 s{t+1}, s{t+1}, {L.WS_W2}""")
        if 'nosw' not in EXP: k.vmem(f"  buffer_store_dwordx4 v[{FRG+4*b}:{FRG+4*b+3}], v{v+1}, {R(R_WS)}, s{t+1} offen sc1", "jst")
        k.end()
def zero_job(k):
    k(f"""
  s_mul_i32 s41, s40, 160
  s_add_u32 s41, s41, {L.WS_KV}
  v_lshlrev_b32 v56, 4, v1
  v_cmp_gt_u32 vcc, 10, v1
  v_mov_b32 v57, 0x7fff0000
  v_cndmask_b32 v58, v57, v56, vcc
  v_mov_b32 v60, 0
  v_mov_b32 v61, 0
  v_mov_b32 v62, 0
  v_mov_b32 v63, 0""")
    if 'nozero' not in EXP: k.vmem(f"  buffer_store_dwordx4 v[60:63], v58, {R(R_WS)}, s41 offen sc1", "jst")

def store_flag(k, cond_s, cond_val, addr_code, lbl):
    k.begin()
    k(f"  s_cmp_eq_u32 s{cond_s}, {cond_val}\n  s_cbranch_scc0 {k.L(lbl)}")
    k(addr_code)
    k(f"""
  v_mov_b32 v2, s41
  v_mov_b32 v0, 1
  s_mov_b64 exec, 1
  buffer_store_byte v0, v2, {R(R_WS)}, 0 offen sc1
  s_mov_b64 exec, -1
{k.L(lbl)}:""")
    k.end()

def poll_issue(k, vdst, addr_code, tag, only0=True):
    k.begin()
    k(addr_code)
    if only0:
        k(f"  s_cmp_eq_u32 s39, 0\n  s_cselect_b32 s41, 0, 0x7fff0000\n  v_or_b32 v{vdst+1}, s41, v{vdst+1}")
    k.vmem(f"  buffer_load_dword v{vdst}, v{vdst+1}, {R(R_WS)}, 0 offen sc1", tag)
    k.end()
def poll_check(k, vdst, tag, lbl, only0=True, slp=6):
    k.wait_vm(tag)
    saved = list(k.vm)
    if only0: k(f"  s_cmp_eq_u32 s39, 0\n  s_cbranch_scc0 {k.L(lbl+'_ok')}")
    k(f"""
  v_cmp_ne_u32 vcc, 0x01010101, v{vdst}
  s_cmp_eq_u64 vcc, 0
  s_cbranch_scc1 {k.L(lbl+'_ok')}
{k.L(lbl+'_sp')}:
  s_sleep {slp}
  buffer_load_dword v{vdst}, v{vdst+1}, {R(R_WS)}, 0 offen sc1
  s_waitcnt vmcnt(0)
  v_cmp_ne_u32 vcc, 0x01010101, v{vdst}
  s_cmp_eq_u64 vcc, 0
  s_cbranch_scc0 {k.L(lbl+'_sp')}
{k.L(lbl+'_ok')}:""")
    k.vm = saved
def words(vdst, scode, n):
    return scode + f"\n  v_lshlrev_b32 v{vdst+1}, 2, v1\n  v_min_u32 v{vdst+1}, {4*(n-1)}, v{vdst+1}\n  v_add_u32 v{vdst+1}, s41, v{vdst+1}"

def unit_of_slot(k, sg, sslot, su, sty, lbl):
    k(f"""
  s_lshl_b32 s{su}, s{sg}, 2
  s_add_u32 s{su}, s{su}, s{sslot}
  s_cmp_lt_u32 s{su}, 27
  s_cbranch_scc0 {k.L(lbl+'a')}
  s_mov_b32 s{sty}, 0
  s_add_u32 s{su}, s{su}, 30
  s_branch {k.L(lbl+'b')}
{k.L(lbl+'a')}:
  s_mov_b32 s{sty}, 2
  s_cmp_eq_u32 s{su}, 28
  s_cmov_b32 s{sty}, 1
  s_cmp_eq_u32 s{su}, 30
  s_cmov_b32 s{sty}, 1
  s_lshr_b32 s{su}, s{su}, 1
  s_sub_u32 s{su}, s{su}, 6
{k.L(lbl+'b')}:""")

vDx, vDx2, vDw, vG = 10, 11, 12, 20
NWS = 4

def loader_a_setup(k):
    k(f"""
  v_lshrrev_b32 v4, 3, v1
  v_lshrrev_b32 v5, 1, v4
  v_and_b32 v6, 7, v1
  v_xor_b32 v7, v6, v5
  v_mul_u32_u24 v8, 1280, v4
  v_lshl_add_u32 v{vDx}, v7, 4, v8
  v_xor_b32 v7, 4, v7
  v_lshl_add_u32 v{vDx2}, v7, 4, v8
  s_mul_i32 s101, s36, {128*1280}
  s_mul_i32 s47, s39, {32*1280}
  s_add_u32 s101, s101, s47
  s_lshl_b32 s47, s39, 12                  ; lw*4096""")
def loader_a_setup_w(k):
    k(f"""
  v_and_b32 v5, 1, v5
  v_lshlrev_b32 v5, 2, v5
  v_xor_b32 v6, v6, v5
  s_cmp_eq_u32 s37, 0
  s_cbranch_scc1 {k.L('ld_kv')}""")
    unit_of_slot(k, 38, 39, 48, 49, "uos")
    k(f"""
  s_cmp_eq_u32 s49, 0
  s_cselect_b32 s20, s{R_W1}, s{R_WQ}
  s_cselect_b32 s21, s{R_W1+1}, s{R_WQ+1}
  s_mov_b32 s44, 3840
  s_cmov_b32 s44, 3456
  s_cselect_b32 s22, s{R_W1+2}, s{R_WQ+2}
  s_cselect_b32 s58, 30, 0
  s_sub_u32 s58, s48, s58
  s_lshl_b32 s100, s58, 7
  s_cmp_eq_u32 s49, 2
  s_cmov_b32 s22, 0
  v_lshlrev_b32 v7, 4, v6
  s_lshl_b32 s58, s48, 6
  v_add_u32 v{vG}, s58, v1
  s_branch {k.L('ld_go')}
{k.L('ld_kv')}:
  s_mov_b32 s20, s{R_WQ}
  s_mov_b32 s21, s{R_WQ+1}
  s_mov_b32 s22, s{R_WQ+2}
  s_mov_b32 s44, 3840
  s_mov_b32 s100, 0
  s_mul_i32 s58, s38, 160
  v_lshlrev_b32 v7, 4, v6
  s_cmp_eq_u32 s39, 0
  s_cbranch_scc0 {k.L('ld_v1')}
  s_add_u32 s59, s58, 1280
  v_add_u32 v7, s59, v7
  s_branch {k.L('ld_kvgc')}
{k.L('ld_v1')}:
  s_cmp_eq_u32 s39, 1
  s_cbranch_scc0 {k.L('ld_v2')}
  s_add_u32 s59, s58, {1280 + 128}
  s_add_u32 s58, s58, {2560 - 32}
  v_mov_b32 v8, s59
  v_mov_b32 v9, s58
  v_cmp_gt_u32 vcc, 2, v6
  v_cndmask_b32 v8, v9, v8, vcc
  v_add_u32 v7, v8, v7
  s_branch {k.L('ld_kvgc')}
{k.L('ld_v2')}:
  s_cmp_eq_u32 s39, 2
  s_cbranch_scc0 {k.L('ld_v3')}
  s_add_u32 s59, s58, {2560 + 96}
  v_add_u32 v7, s59, v7
  v_mov_b32 v8, 0x7fff0000
  v_cmp_gt_u32 vcc, 4, v6
  v_cndmask_b32 v7, v8, v7, vcc
  s_branch {k.L('ld_kvgc')}
{k.L('ld_v3')}:
  s_lshl_b32 s59, s38, 7
  v_add_u32 v7, s59, v7
{k.L('ld_kvgc')}:
  v_and_b32 v12, 31, v1
  v_lshrrev_b32 v13, 5, v1
  s_and_b32 s58, s39, 1
  s_lshl_b32 s58, s58, 1
  v_add_u32 v13, s58, v13
  v_lshrrev_b32 v14, 3, v12
  v_lshl_add_u32 v14, v13, 2, v14
  v_lshrrev_b32 v15, 2, v12
  v_and_b32 v15, 1, v15
  s_lshr_b32 s59, s39, 1
  s_lshl_b32 s58, s59, 1
  v_add_u32 v16, s58, v15
  v_and_b32 v17, 3, v12
  v_mul_u32_u24 v18, 20, v16
  v_lshl_add_u32 v18, v14, 2, v18
  v_add_u32 v18, v18, v17
  s_mul_i32 s58, s38, 80
  v_add_u32 v18, s58, v18
  v_add_u32 v19, 640, v18
  v_add_u32 v21, {1280 - 20}, v18
  v_cmp_gt_u32 vcc, 5, v14
  v_cndmask_b32 v{vG}, v21, v19, vcc
  s_lshl_b32 s58, s59, 3
  v_lshl_add_u32 v21, v15, 2, s58
  v_add_u32 v21, v21, v14
  v_subrev_u32 v21, 10, v21
  v_lshl_add_u32 v21, v21, 2, v17
  s_lshl_b32 s58, s38, 6
  v_add_u32 v21, s58, v21
  v_cmp_gt_u32 vcc, 10, v14
  v_cndmask_b32 v{vG}, v21, v{vG}, vcc
  v_cmp_gt_u32 vcc, 14, v14
  v_cndmask_b32 v{vG}, 0, v{vG}, vcc
{k.L('ld_go')}:
  s_mov_b32 s23, 0x20000
  v_mul_lo_u32 v8, v4, s44
  v_add_u32 v{vDw}, v8, v7
  s_add_u32 s48, s47, {WR}
  s_lshl_b32 s49, s44, 3                   ; 8*stride""")

def gW(j):
    def mk(i):
        def f(k):
            k(f"  s_add_u32 m0, s48, {(j % NWS)*16384 + i*1024}")
            k.vmem(f"  buffer_load_dwordx4 v{vDw}, {R(R_W)}, s100 offen lds", ("W", j))
            k("  s_add_u32 s100, s100, s49")
        return f
    return [mk(i) for i in range(4)]
def gX(m):
    def mk(i):
        def f(k):
            k(f"  s_add_u32 m0, s47, {XR + (m % 3)*16384 + i*1024}\n  s_add_u32 s87, s101, {m*128 + i*8*1280}")
            k.vmem(f"  buffer_load_dwordx4 v{vDx if i % 2 == 0 else vDx2}, {R(R_X)}, s87 offen lds", ("X", m))
        return f
    return [mk(i) for i in range(4)]
def dW(k, j):
    for f in gW(j): f(k)
def dX(k, m):
    for f in gX(m): f(k)
def rec(k, fns):
    r = kb.Rec(k)
    for f in fns: f(r)
    return r.items

def t_issue(k):
    k(f"""
  v_lshlrev_b32 v21, 2, v{vG}
  v_subrev_u32 v22, 1920, v{vG}
  v_lshlrev_b32 v22, 1, v22
  s_lshl_b32 s58, s36, 7
  s_lshl_b32 s59, s39, 6
  s_add_u32 s58, s58, s59
  v_add_u32 v23, s58, v1
  v_lshlrev_b32 v23, 4, v23
  s_cmp_lt_u32 s39, 2
  s_cselect_b32 s59, 0, 0x7fff0000
  v_add_u32 v23, s59, v23""")
    for p in range(10):
        k.begin()
        k(f"  s_mov_b32 s58, {L.WS_CSP + p*L.NCOL*4}")
        k.vmem(f"  buffer_load_dword v{24+p}, v21, {R(R_WS)}, s58 offen sc1", "side")
        k.end()
    k.vmem(f"  buffer_load_ushort v34, v22, {R(R_B)}, 0 offen", "side")
    k.vmem(f"  buffer_load_dwordx4 v[36:39], v23, {R(R_WS)}, 0 offen sc1", "side")
def wphi_dma(k, head_code, dst, enable_kv_only):
    k.begin()
    k(head_code)
    k(f"""
  s_mul_i32 s58, s58, 800
  s_add_u32 s{R_T}, s{S_WPHI}, s58
  s_addc_u32 s{R_T+1}, s{S_WPHI+1}, 0
  s_and_b32 s{R_T+1}, s{R_T+1}, 0xffff
  s_mov_b32 s{R_T+2}, 800
  s_mov_b32 s{R_T+3}, 0x20000""")
    if enable_kv_only:
        k(f"  s_cmp_eq_u32 s37, 0\n  s_cselect_b32 s{R_T+2}, s{R_T+2}, 0")
    k(f"""
  v_lshlrev_b32 v40, 4, v1
  s_lshl_b32 s58, s39, 10
  s_add_u32 m0, s58, {dst}""")
    k.vmem(f"  buffer_load_dwordx4 v40, {R(R_T)}, 0 offen lds", "side")
    k.end()
def t_build1(k):
    k.wait_vm("side")
    k("  v_add_f32 v24, v24, v25")
    for p in range(2, 10): k(f"  v_add_f32 v24, v24, v{24+p}")
    k(f"""
  v_cvt_pk_bf16_f32 v25, v24, v24
  v_and_b32 v26, 0xffff0000, v25
  v_sub_f32 v26, v24, v26
  v_cvt_pk_bf16_f32 v28, v24, v26
  v_and_b32 v29, 0xffff, v25
  v_lshl_or_b32 v29, v34, 16, v29
  v_mov_b32 v30, v34
  v_mov_b32 v31, 0""")
def t_build2(k):
    k(f"""
  v_lshlrev_b32 v27, 4, v1
  s_lshl_b32 s58, s39, 10
  s_add_u32 s58, s58, {TT}
  v_add_u32 v27, s58, v27
  ds_write_b128 v27, v[28:31]
  v_mov_b32 v44, 0
  v_mov_b32 v45, 0
  v_mov_b32 v46, 0
  v_mov_b32 v47, 0
  v_add_u32 v27, {ZR - TT}, v27
  s_cmp_lt_u32 s39, 2
  s_cbranch_scc0 {k.L('ld_nost')}
  ds_write_b128 v27, v[44:47]
  v_add_u32 v27, {ST - ZR + 2**32 if ST < ZR else ST - ZR}, v27
  ds_write_b128 v27, v[36:39]
{k.L('ld_nost')}:
  s_waitcnt lgkmcnt(0)""")

def loader_a_start(k):
    loader_a_setup(k)
    loader_a_setup_w(k)
    k("  s_barrier")
    dX(k, 0); dW(k, 0); dW(k, 1)
    if CODE_PF:
        k(f"""
  s_cmp_eq_u32 s39, 3
  s_cbranch_scc0 {k.L('nopf')}
  s_getpc_b64 s[58:59]
{k.L('pc')}:
  s_sub_u32 s58, s58, {k.L('pc')}-{k.name}
  s_subb_u32 s59, s59, 0
  s_lshr_b32 s41, s2, 3
  s_and_b32 s41, s41, 7
  s_lshl_b32 s41, s41, 13
  v_lshl_add_u32 v50, v1, 7, s41
  v_min_u32 v50, {k.L('codeend')}-{k.name}-4, v50
  global_load_dword v51, v50, s[58:59]
{k.L('nopf')}:""")
    wphi_dma(k, "  s_lshl_b32 s58, s38, 2\n  s_add_u32 s58, s58, s39", WP, True)
    kb.stamp(k, 2)
    k.wait_vm(("W", 0))
    k("  s_barrier")
    kb.stamp(k, 3)
    dX(k, 1); dW(k, 2); dW(k, 3); dX(k, 2)
def loader_a(k):
    for j in range(20):
        if j + 1 <= 19:
            k.wait_vm(("W", j + 1))
            if (j + 1) % 2 == 0: k.wait_vm(("X", (j + 1)//2))
        if j == 14: poll_check(k, 52, "f2", "f2", slp=2)
        k("  s_barrier")
        groups = []
        if j + NWS <= 19: groups += gW(j + NWS)
        if j % 2 == 1 and (j + 1)//2 + 2 <= 9: groups += gX((j + 1)//2 + 2)
        fns = []
        if j == 12:
            fns.append(lambda k: poll_issue(k, 52, f"  v_lshrrev_b32 v53, 2, v1\n  v_lshlrev_b32 v53, 7, v53\n  v_and_b32 v54, 3, v1\n  v_lshl_add_u32 v53, v54, 2, v53\n  v_add_u32 v53, {FL_F2}, v53", "f2"))
        if j == 14: fns.append(t_issue)
        if j == 16: fns.append(t_build1)
        if j == 17: fns.append(t_build2)
        kb.interleave(k, groups, rec(k, fns))
        kb.stamp(k, 16 + j)
CODE_PF = True
import os
EXP = os.environ.get('EXP', '')

VXA = [4, 5, 6, 7]; VXB = [8, 9, 10, 11]; VWA = [12, 13, 14, 15]
FX = [[80, 84], [104, 108]]
FW = [[88, 92, 96, 100], [112, 116, 120, 124]]
ACC = 128
WA_KV = 56
def acc(tb, b): return ACC + tb*64 + b*16

def a_reads(set_, st4, ks2):
    ksl = 2*(st4 & 1) + ks2
    r = []
    for tb in range(2):
        r.append(f"  ds_read_b128 v[{FX[set_][tb]}:{FX[set_][tb]+3}], v{VXA[ksl]} offset:{tb*4096}")
    for b in range(4):
        for t in range(2):
            d = FW[set_][b] + 2*t
            r.append(f"  ds_read_b64_tr_b16 v[{d}:{d+1}], v{VWA[b]} offset:{st4*16384 + ks2*2048 + t*512}")
    return r
def a_mfmas(cur, zero=False):
    return [f"  v_mfma_f32_32x32x16_bf16 v[{acc(tb,b)}:{acc(tb,b)+15}], v[{FW[cur][b]}:{FW[cur][b]+3}], v[{FX[cur][tb]}:{FX[cur][tb]+3}], " + ("0" if zero else f"v[{acc(tb,b)}:{acc(tb,b)+15}]")
            for b in range(4) for tb in range(2)]

def a_stage(k, st4, tail=None, pre_barrier=None, post_barrier=None, first=False):
    odd = st4 & 1
    mf = a_mfmas(0, zero=first); rd = a_reads(1, st4, 1)
    k("  s_waitcnt lgkmcnt(0)")
    sched = [2, 2, 2, 2, 1, 1, 0, 0]
    extra = []
    if odd:
        extra = [f"  v_add_u32 v{VXA[i]}, s47, v{VXB[i]}" for i in range(3)]
    for i, m in enumerate(mf):
        k(m)
        for _ in range(sched[i]): k(rd.pop(0))
        if i >= 5 and extra: k(extra.pop(0))
    mf = a_mfmas(1)
    k("  s_waitcnt lgkmcnt(0)")
    k(mf[0])
    if pre_barrier: k(pre_barrier)
    k("  s_barrier")
    if post_barrier: post_barrier(k)
    rd = a_reads(0, (st4 + 1) % 4, 0) if tail is None else list(tail)
    sched = [2, 2, 2, 2, 1, 1, 0]
    for i, m in enumerate(mf[1:]):
        for _ in range(sched[i]):
            if rd: k(rd.pop(0))
        k(m)
    while rd: k(rd.pop(0))
    if odd:
        k(f"  v_add_u32 v{VXA[3]}, s47, v{VXB[3]}")
        k("  s_add_u32 s47, s47, 16384\n  s_cmp_eq_u32 s47, 49152\n  s_cselect_b32 s47, 0, s47")

def compute_a(k):
    kb.stamp(k, 0, rt=True)
    k(f"""
  s_or_b32 s41, s2, s3
  s_cmp_eq_u32 s41, 0
  s_cbranch_scc0 {k.L('nog0')}
  v_lshlrev_b32 v4, 7, v1
  v_add_u32 v4, {FL}, v4
  v_add_u32 v5, {64*128}, v4
  v_mov_b32 v6, 0x7fff0000
  v_cmp_gt_u32 vcc, {NFL - 64}, v1
  v_cndmask_b32 v5, v6, v5, vcc
  v_mov_b32 v8, 0
  v_mov_b32 v9, 0
  v_mov_b32 v10, 0
  v_mov_b32 v11, 0
  buffer_store_dwordx4 v[8:11], v4, {R(R_WS)}, 0 offen sc1
  buffer_store_dwordx4 v[8:11], v5, {R(R_WS)}, 0 offen sc1
  buffer_store_dwordx4 v[8:11], v4, {R(R_WS)}, 0 offen offset:16 sc1
  buffer_store_dwordx4 v[8:11], v5, {R(R_WS)}, 0 offen offset:16 sc1
  buffer_store_dwordx4 v[8:11], v5, {R(R_WS)}, 0 offen offset:32 sc1
  buffer_store_dwordx4 v[8:11], v5, {R(R_WS)}, 0 offen offset:48 sc1
  s_waitcnt vmcnt(0)
  v_mov_b32 v4, 0
  v_mov_b32 v5, 1
  s_mov_b64 exec, 1
  global_store_dword v4, v5, s[{S_DBG}:{S_DBG+1}] sc1
  s_mov_b64 exec, -1
{k.L('nog0')}:""")
    srd(k, R_W2, S_W2, 2211840)
    srd(k, R_WO, S_WO, 819200)
    job_ids(k)
    stats_issue(k); cs_issue(k)
    k("  s_barrier")
    sw_addr(k); sw_dma(k)
    kb.stamp(k, 62)
    k(f"""
  s_lshr_b32 s43, s39, 1                   ; Th
  s_and_b32 s44, s39, 1                    ; Fh
  v_and_b32 v16, 31, v1                    ; n
  v_lshrrev_b32 v17, 5, v1                 ; hh
  v_lshrrev_b32 v18, 1, v16
  v_and_b32 v18, 7, v18
  v_xor_b32 v18, v17, v18
  v_lshlrev_b32 v18, 4, v18
  v_lshl_add_u32 v18, v16, 7, v18
  s_lshl_b32 s45, s43, 13
  v_add_u32 v{VXB[0]}, s45, v18
  v_xor_b32 v{VXB[1]}, 32, v{VXB[0]}
  v_xor_b32 v{VXB[2]}, 64, v{VXB[0]}
  v_xor_b32 v{VXB[3]}, 96, v{VXB[0]}
  v_mov_b32 v{VXA[0]}, v{VXB[0]}
  v_mov_b32 v{VXA[1]}, v{VXB[1]}
  v_mov_b32 v{VXA[2]}, v{VXB[2]}
  v_mov_b32 v{VXA[3]}, v{VXB[3]}
  s_mov_b32 s47, 16384
  v_lshrrev_b32 v18, 4, v1                 ; G
  v_lshrrev_b32 v19, 2, v1
  v_and_b32 v19, 3, v19                    ; r
  v_and_b32 v20, 3, v1                     ; c
  v_lshrrev_b32 v21, 1, v18
  v_lshl_add_u32 v21, v21, 3, v19
  v_lshlrev_b32 v21, 7, v21
  v_add_u32 v21, {WR}, v21
  v_lshrrev_b32 v22, 1, v19
  v_lshlrev_b32 v22, 2, v22
  v_and_b32 v23, 1, v18
  v_lshlrev_b32 v23, 1, v23
  v_lshrrev_b32 v24, 1, v20
  v_add_u32 v23, v23, v24                  ; j'
  v_and_b32 v24, 1, v20                    ; hh'
  s_cmp_eq_u32 s37, 0
  s_cbranch_scc1 {k.L('c_kv')}""")
    for b in range(4):
        k(f"""
  v_add_u32 v25, {4*(b&1)}, v23
  v_xor_b32 v25, v25, v22
  v_lshl_add_u32 v25, v25, 4, v21
  v_lshl_add_u32 v25, v24, 3, v25
  s_lshl_b32 s45, s44, 13
  s_add_u32 s45, s45, {(b>>1)*4096}
  v_add_u32 v{VWA[b]}, s45, v25""")
    k(f"  s_branch {k.L('c_go')}\n{k.L('c_kv')}:")
    k(f"  s_lshl_b32 s45, s44, 1\n  v_add_u32 v26, s45, v24\n  v_mul_u32_u24 v26, 5, v26")
    for b in range(4):
        k(f"""
  v_add_u32 v27, {4*b}, v23
  v_add_u32 v28, v26, v27
  v_add_u32 v29, 15, v28
  v_cmp_gt_u32 vcc, 5, v27
  v_cndmask_b32 v28, v29, v28, vcc
  s_lshl_b32 s45, s44, 3
  v_lshl_add_u32 v29, v24, 2, s45
  v_add_u32 v29, v29, v27
  v_add_u32 v29, {48 - 10}, v29
  v_cmp_gt_u32 vcc, 10, v27
  v_cndmask_b32 v28, v29, v28, vcc
  v_cmp_gt_u32 vcc, 14, v27
  v_cndmask_b32 v28, v24, v28, vcc
  v_lshrrev_b32 v29, 4, v28
  v_lshrrev_b32 v30, 1, v28
  v_and_b32 v30, 7, v30
  v_xor_b32 v30, v30, v22
  v_and_b32 v31, 1, v28
  v_lshl_add_u32 v30, v30, 4, v21
  v_lshl_add_u32 v30, v31, 3, v30
  v_lshl_add_u32 v{VWA[b]}, v29, 12, v30""")
    k(f"{k.L('c_go')}:")
    k(f"""
  s_lshl_b32 s45, s43, 10
  s_add_u32 s45, s45, {ST}
  v_lshl_add_u32 v32, v16, 4, s45
  s_lshl_b32 s45, s44, 11
  s_add_u32 s45, s45, {TT}
  v_lshl_add_u32 v33, v16, 4, s45
  v_mov_b32 v34, {ZR}
  v_cmp_eq_u32 vcc, 0, v17
  v_cndmask_b32 v33, v34, v33, vcc
  v_lshrrev_b32 v25, 1, v18                ; hh_k
  s_lshl_b32 s45, s44, 1
  v_add_u32 v26, s45, v24
  v_lshlrev_b32 v26, 10, v26
  v_add_u32 v26, {WP}, v26
  v_mul_u32_u24 v27, 40, v19
  v_add_u32 v27, v27, v26
  v_lshl_add_u32 v27, v23, 3, v27
  v_mov_b32 v28, {ZR}
  v_cmp_eq_u32 vcc, v24, v25
  v_cndmask_b32 v35, v28, v27, vcc
  v_add_u32 v30, 32, v27
  v_cmp_eq_u32 s[58:59], 0, v23
  s_and_b64 vcc, vcc, s[58:59]
  v_cndmask_b32 v31, v28, v30, vcc""")
    kb.stamp(k, 15)
    A_ = rec(k, [stats_a1, stats_a2, stats_b, stats_c, stats_d]); B_ = rec(k, [cs_a, cs_b])
    k.wait_vm("cs")
    na, nb = len(A_), len(B_); ia = ib = 0
    while ia < na or ib < nb:
        for _ in range(2):
            if ia < na: kb.replay(k, A_[ia]); ia += 1
        if ib < nb and (ib + 1)*na <= (ia + 2)*nb*1.0 + na: kb.replay(k, B_[ib]); ib += 1
        elif ia >= na and ib < nb: kb.replay(k, B_[ib]); ib += 1
    kb.stamp(k, 59)
    zero_job(k)
    sw_proc1(k); kb.stamp(k, 61); sw_proc2(k)
    k("  v_mov_b32 v48, 0\n  s_lshr_b32 s43, s39, 1\n  s_and_b32 s44, s39, 1")
    k(f"  global_load_dword v49, v48, s[{S_DBG}:{S_DBG+1}] sc1")
    k.vm = []
    kb.stamp(k, 2)
    k("  s_barrier")
    kb.stamp(k, 3)
    for l in a_reads(0, 0, 0): k(l)
    a_stage(k, 0, first=True)
    for st4 in (1, 2, 3): a_stage(k, st4)
    k("  s_mov_b32 s46, 1\n.p2align 3")
    k.label("kloop")
    pre = f"""  s_cmp_eq_u32 s46, 2
  s_cbranch_scc0 {k.L('f2n1')}
  s_waitcnt vmcnt(0)
{k.L('f2n1')}:"""
    def post(k):
        k(f"""
  s_lshl_b32 s41, s46, 2
  s_or_b32 s41, s41, s39
  s_cmp_eq_u32 s41, 8
  s_cbranch_scc0 {k.L('f2n2')}
  v_readfirstlane_b32 s53, v49
  s_cmp_eq_u32 s53, 1
  s_cbranch_scc1 {k.L('f2go')}
{k.L('f2g0')}:
  s_sleep 4
  global_load_dword v49, v48, s[{S_DBG}:{S_DBG+1}] sc1
  s_waitcnt vmcnt(0)
  v_readfirstlane_b32 s53, v49
  s_cmp_eq_u32 s53, 1
  s_cbranch_scc0 {k.L('f2g0')}
{k.L('f2go')}:
  s_lshr_b32 s41, s2, 4
  s_lshl_b32 s41, s41, 7
  s_and_b32 s42, s2, 15
  s_add_u32 s41, s41, s42
  s_add_u32 s41, s41, {FL_F2}
  v_mov_b32 v2, s41
  v_mov_b32 v0, 1
  s_mov_b64 exec, 1
  buffer_store_byte v0, v2, {R(R_WS)}, 0 offen sc1
  s_mov_b64 exec, -1
{k.L('f2n2')}:""")
    for st4 in range(4): a_stage(k, st4, pre_barrier=(pre if st4 == 0 else None), post_barrier=(post if st4 == 0 else None))
    k(f"  s_add_u32 s46, s46, 1\n  s_cmp_lt_u32 s46, 4\n  s_cbranch_scc1 {k.L('kloop')}")
    for st4 in range(3): a_stage(k, st4)
    tail = [f"  ds_read_b128 v[{36+4*tb}:{39+4*tb}], v32 offset:{tb*512}" for tb in range(2)] + \
           [f"  ds_read_b128 v[{FW[0][b]}:{FW[0][b]+3}], v33 offset:{b*512}" for b in range(4)]
    a_stage(k, 3, tail=tail)
    for beta in range(2):
        for st in range(3):
            for t in range(2):
                d0 = 8*st + 4*t; reg = WA_KV + (beta*3 + st)*4 + 2*t
                if d0 < 20: k(f"  ds_read_b64_tr_b16 v[{reg}:{reg+1}], v{35 if beta == 0 else 31} offset:{d0*40}")
                else: k(f"  v_mov_b32 v{reg}, 0\n  v_mov_b32 v{reg+1}, 0")
    k("  s_waitcnt lgkmcnt(10)")
    kb.stamp(k, 4)
    for tb in range(2):
        s = 36 + 4*tb; d = FX[0][tb]
        k(f"""
  v_rcp_f32 v44, v{s+2}
  v_sub_f32 v45, 0, v{s}
  v_cvt_pk_bf16_f32 v{d}, v45, v45
  v_and_b32 v46, 0xffff0000, v{d}
  v_sub_f32 v46, v45, v46
  v_cvt_pk_bf16_f32 v47, v44, v44
  v_and_b32 v48, 0xffff0000, v47
  v_sub_f32 v48, v44, v48
  v_cvt_pk_bf16_f32 v{d+1}, v46, v44
  v_cvt_pk_bf16_f32 v{d+2}, v48, 0
  v_mov_b32 v{d+3}, 0
  v_mov_b32 v{s+3}, v44
  v_cmp_eq_u32 vcc, 0, v17
  v_cndmask_b32 v{d}, 0, v{d}, vcc
  v_cndmask_b32 v{d+1}, 0, v{d+1}, vcc
  v_cndmask_b32 v{d+2}, 0, v{d+2}, vcc""")
    for m in a_mfmas(0): k(m)
    k(f"  s_cmp_eq_u32 s37, 0\n  s_cbranch_scc1 {k.L('epi_kv')}")
    epi_g(k)
    k(f"  s_branch {k.L('phase_b')}")
    k.label("epi_kv")
    epi_kv(k)
    k.label("phase_b")

def gelu_block(k, a, dst):
    T = 60
    for p in range(0, 16, 8):
        prs = [(a + p + 2*i, T + 2*i) for i in range(4)]
        for (x, t) in prs: k(f"  v_pk_mul_f32 v[{t}:{t+1}], v[{x}:{x+1}], v[{x}:{x+1}]")
        for (x, t) in prs: k(f"  v_pk_fma_f32 v[{t}:{t+1}], v[{t}:{t+1}], v[52:53], v[50:51]")
        for (x, t) in prs: k(f"  v_pk_mul_f32 v[{t}:{t+1}], v[{t}:{t+1}], v[{x}:{x+1}]")
        for i in range(8): k(f"  v_exp_f32 v{T+i}, v{T+i}")
        for (x, t) in prs: k(f"  v_pk_fma_f32 v[{t}:{t+1}], v[{t}:{t+1}], v[54:55], v[54:55]")
        for i in range(8): k(f"  v_rcp_f32 v{T+i}, v{T+i}")
        for (x, t) in prs: k(f"  v_pk_mul_f32 v[{t}:{t+1}], v[{t}:{t+1}], v[{x}:{x+1}]")
        for n_, (x, t) in enumerate(prs): k(f"  v_cvt_pk_bf16_f32 v{dst + p//2 + n_}, v{t}, v{t+1}")

def epi_g_part(k, uu, tb, wait_older=False):
    n = f"{uu}{tb}"
    k(f"""
  s_lshl_b32 s50, s44, 1
  s_add_u32 s50, s50, {uu}
  s_lshl_b32 s51, s38, 2
  s_add_u32 s51, s51, s50                  ; u_lin
  s_cmp_lt_u32 s51, 27
  s_cbranch_scc1 {k.L('g_w1_' + n)}
  s_bitcmp1_b32 s51, 0
  s_cbranch_scc1 {k.L('g_none_' + n)}
  s_cmp_lt_u32 s51, 28
  s_cbranch_scc1 {k.L('g_none_' + n)}
  s_lshr_b32 s51, s51, 1
  s_sub_u32 s51, s51, 6
  s_add_u32 s52, s48, {2*tb}
  s_mul_i32 s52, s52, 160
  s_lshl_b32 s53, s51, 4
  s_add_u32 s52, s52, s53
  s_lshl_b32 s52, s52, 7
  s_add_u32 s52, s52, {L.WS_Q}""")
    for bb in range(2):
        a = acc(tb, 2*uu + bb)
        for jp in range(4):
            r = 60 + 2*(jp % 4)
            k(f"  v_cvt_pk_bf16_f32 v{r}, v{a+4*jp}, v{a+4*jp+1}\n  v_cvt_pk_bf16_f32 v{r+1}, v{a+4*jp+2}, v{a+4*jp+3}")
            k(f"  buffer_store_dwordx2 v[{r}:{r+1}], v59, {R(R_WS)}, s52 offen offset:{bb*1024 + jp*256} sc1")
    if wait_older: k("  s_waitcnt vmcnt(8)")
    k(f"  s_branch {k.L('g_done_' + n)}\n{k.L('g_none_' + n)}:")
    if wait_older: k("  s_waitcnt vmcnt(0)")
    k(f"  s_branch {k.L('g_done_' + n)}\n{k.L('g_w1_' + n)}:")
    s_ = 36 + 4*tb
    k(f"""
  s_and_b32 s53, s51, 1
  s_mul_i32 s53, s53, 27
  s_add_u32 s51, s51, s53
  v_mul_f32 v50, {fl(C0)}, v{s_+2}
  v_mul_f32 v52, v{s_+2}, v{s_+2}
  v_mul_f32 v52, v52, v{s_+2}
  v_mov_b32 v51, v50
  v_mul_f32 v52, {fl(C1)}, v52
  v_mov_b32 v54, v{s_+3}
  v_mov_b32 v55, v{s_+3}
  v_mov_b32 v53, v52
  s_add_u32 s52, s48, {2*tb}
  s_mul_i32 s52, s52, 74
  s_add_u32 s52, s52, s51
  s_lshl_b32 s52, s52, 10
  s_add_u32 s52, s52, {L.WS_HO}""")
    for bb in range(2):
        a = acc(tb, 2*uu + bb)
        d = 68 if bb == 0 else 20
        gelu_block(k, a, d)
        k(f"  buffer_store_dwordx4 v[{d}:{d+3}], v58, {R(R_WS)}, s52 offen offset:{bb*1024} sc1")
        k(f"  buffer_store_dwordx4 v[{d+4}:{d+7}], v58, {R(R_WS)}, s52 offen offset:{bb*1024 + 256} sc1")
    if wait_older: k("  s_waitcnt vmcnt(4)")
    k(f"{k.L('g_done_' + n)}:")

def epi_g(k):
    k(f"""
  s_waitcnt lgkmcnt(0)
  v_lshrrev_b32 v56, 4, v16
  v_and_b32 v57, 15, v16
  v_mul_u32_u24 v58, {74*1024}, v56
  v_lshl_add_u32 v58, v17, 9, v58
  v_lshl_add_u32 v58, v57, 4, v58
  v_mul_u32_u24 v59, {160*128}, v56
  v_lshl_add_u32 v59, v17, 7, v59
  v_lshl_add_u32 v59, v57, 3, v59
  s_lshl_b32 s48, s36, 3
  s_lshl_b32 s49, s43, 2
  s_add_u32 s48, s48, s49""")
    decode_b(k)
    epi_g_part(k, 0, 0); epi_g_part(k, 0, 1)
    epi_g_part(k, 1, 0, wait_older=True)
    k("  s_barrier")
    kb.stamp(k, 5)
    store_flag(k, 39, 0, f"  s_lshl_b32 s41, s36, 7\n  s_add_u32 s41, s41, s38\n  s_add_u32 s41, s41, {FL_H1}", "fh1")
    epi_g_part(k, 1, 1)
    kb.stamp(k, 8)
    k("  s_barrier")

def epi_kv(k):
    decode_b(k)
    WA = WA_KV; KB_ = 80
    k(f"""
  s_lshl_b32 s45, s43, 6
  v_add_u32 v32, s45, v16
  s_lshl_b32 s45, s44, 1
  v_add_u32 v33, s45, v17
  v_mul_u32_u24 v34, {PHI_P}, v32
  v_mul_u32_u24 v35, 80, v33
  v_add_u32 v34, v34, v35
  v_add_u32 v34, {PHI}, v34
  v_mul_u32_u24 v35, {VV_P}, v32
  v_mul_u32_u24 v33, 48, v33
  v_add_u32 v35, v35, v33
  v_add_u32 v35, {VV}, v35""")
    for tb in range(2):
        a = ACC + tb*64
        for i in range(10): k(f"  v_cvt_pk_bf16_f32 v{KB_+12*tb+i}, v{a+2*i}, v{a+2*i+1}")
        k(f"  v_mov_b32 v{KB_+12*tb+10}, 0\n  v_mov_b32 v{KB_+12*tb+11}, 0")
    k(f"""
  v_lshrrev_b32 v2, 4, v16
  v_and_b32 v0, 15, v16
  v_mul_u32_u24 v18, {160*128}, v2
  v_lshl_add_u32 v18, v17, 9, v18
  v_lshl_add_u32 v18, v0, 3, v18
  s_lshl_b32 s48, s36, 3
  s_lshl_b32 s49, s43, 2
  s_add_u32 s48, s48, s49""")
    for tb in range(2):
        k(f"""
  s_add_u32 s52, s48, {2*tb}
  s_mul_i32 s52, s52, 160
  s_lshl_b32 s53, s38, 4
  s_add_u32 s52, s52, s53
  s_lshl_b32 s53, s44, 3
  s_add_u32 s52, s52, s53
  s_lshl_b32 s52, s52, 7
  s_add_u32 s52, s52, {L.WS_Q}""")
        a = ACC + tb*64 + 40
        for g in range(4):
            r = 104 + 8*tb + 2*g
            k(f"  v_cvt_pk_bf16_f32 v{r}, v{a+4*g}, v{a+4*g+1}\n  v_cvt_pk_bf16_f32 v{r+1}, v{a+4*g+2}, v{a+4*g+3}")
            k(f"  buffer_store_dwordx2 v[{r}:{r+1}], v18, {R(R_WS)}, s52 offen offset:{g*128} sc1")
    k("  s_waitcnt lgkmcnt(0)")
    B1 = [112, 18]
    for st in range(3):
        for tb in range(2):
            for beta in range(2):
                d = (ACC + tb*64 + 40) if beta == 0 else B1[tb]
                c = "0" if st == 0 else f"v[{d}:{d+15}]"
                w = WA + (beta*3 + st)*4
                k(f"  v_mfma_f32_32x32x16_bf16 v[{d}:{d+15}], v[{w}:{w+3}], v[{KB_+12*tb+4*st}:{KB_+12*tb+4*st+3}], {c}")
    VB = 44
    for tb in range(2):
        a = ACC + tb*64; s_ = 36 + 4*tb
        k(f"  v_mov_b32 v4, v{s_+1}\n  v_mov_b32 v5, v{s_+1}")
        for i in range(10): k(f"  v_pk_mul_f32 v[{a+20+2*i}:{a+21+2*i}], v[{a+20+2*i}:{a+21+2*i}], v[4:5]")
        for i in range(10): k(f"  v_cvt_pk_bf16_f32 v{VB+i}, v{a+20+2*i}, v{a+21+2*i}")
        k(f"  v_mov_b32 v{VB+10}, 0x3f80\n  v_mov_b32 v{VB+11}, 0")
        for c in range(3): k(f"  ds_write_b128 v35, v[{VB+4*c}:{VB+4*c+3}] offset:{tb*32*VV_P + 16*c}")
    for tb in range(2):
        a = ACC + tb*64; s_ = 36 + 4*tb
        for i in range(4): k(f"  v_mov_b32 v{a+56+i}, v{B1[tb]+i}")
        PH = 80 + 0
        softmax_pair(k, [a + 40 + i for i in range(20)], s_ + 1, a, PH, T=44)
        for c in range(5): k(f"  ds_write_b128 v34, v[{PH+4*c}:{PH+4*c+3}] offset:{tb*32*PHI_P + 16*c}")
        if tb == 0:
            k(f"""
  s_waitcnt vmcnt(0)
  s_lshl_b32 s41, s36, 7
  s_lshl_b32 s42, s43, 4
  s_add_u32 s41, s41, s42
  s_lshl_b32 s42, s38, 1
  s_add_u32 s41, s41, s42
  s_add_u32 s41, s41, s44
  s_add_u32 s41, s41, {FL_Q}
  v_mov_b32 v2, s41
  v_mov_b32 v0, 1
  s_mov_b64 exec, 1
  buffer_store_byte v0, v2, {R(R_WS)}, 0 offen sc1
  s_mov_b64 exec, -1""")
    k("  s_waitcnt lgkmcnt(0)\n  s_barrier")
    kb.stamp(k, 5)
    k(f"""
  v_lshrrev_b32 v18, 4, v1
  v_lshrrev_b32 v19, 2, v1
  v_and_b32 v19, 3, v19
  v_and_b32 v20, 3, v1
  v_lshrrev_b32 v21, 1, v18
  v_lshl_add_u32 v21, v21, 3, v19
  v_and_b32 v22, 1, v18
  v_lshlrev_b32 v22, 2, v22
  v_add_u32 v22, v22, v20
  v_mul_u32_u24 v23, {PHI_P}, v21
  s_mul_i32 s45, s39, 80
  s_add_u32 s45, s45, {PHI}
  v_add_u32 v23, s45, v23
  v_lshl_add_u32 v24, v22, 3, v23
  v_and_b32 v25, 1, v22
  v_lshl_add_u32 v25, v25, 3, v23
  v_add_u32 v25, 64, v25
  v_mul_u32_u24 v26, {VV_P}, v21
  s_mul_i32 s45, s39, 48
  s_add_u32 s45, s45, {VV}
  v_add_u32 v26, s45, v26
  v_min_u32 v27, 5, v22
  v_lshl_add_u32 v26, v27, 3, v26""")
    KA = 48; FA = 128
    def rd(st):
        base = FA + st*12
        for t in range(2):
            tok = 16*st + 4*t
            k(f"  ds_read_b64_tr_b16 v[{base+2*t}:{base+2*t+1}], v24 offset:{tok*PHI_P}")
            k(f"  ds_read_b64_tr_b16 v[{base+4+2*t}:{base+5+2*t}], v25 offset:{tok*PHI_P}")
            k(f"  ds_read_b64_tr_b16 v[{base+8+2*t}:{base+9+2*t}], v26 offset:{tok*VV_P}")
    rd(0); rd(1)
    k(f"""
  v_lshlrev_b32 v28, 2, v16
  v_lshl_add_u32 v28, v17, 9, v28
  v_mov_b32 v29, 0x7fff0000
  v_cmp_gt_u32 vcc, 21, v16
  v_cndmask_b32 v28, v29, v28, vcc
  s_lshl_b32 s45, s38, 2
  s_add_u32 s45, s45, s39
  s_mul_i32 s45, s45, {40*128}
  s_add_u32 s45, s45, {L.WS_KV}
  s_add_u32 s46, s45, {32*128}""")
    for st in range(8):
        k(f"  s_waitcnt lgkmcnt({6 if st < 7 else 0})")
        base = FA + st*12
        for beta in range(2):
            c = "0" if st == 0 else f"v[{KA+16*beta}:{KA+16*beta+15}]"
            k(f"  v_mfma_f32_32x32x16_bf16 v[{KA+16*beta}:{KA+16*beta+15}], v[{base+4*beta}:{base+4*beta+3}], v[{base+8}:{base+11}], {c}")
        if st + 2 < 8: rd(st + 2)
    for i in range(4):
        k(f"  buffer_atomic_add_f32 v{KA+16+i}, v28, {R(R_WS)}, s46 offen offset:{i*128}")
    for jp in range(4):
        for i in range(4):
            k(f"  buffer_atomic_add_f32 v{KA+4*jp+i}, v28, {R(R_WS)}, s45 offen offset:{(8*jp+i)*128}")
    kb.stamp(k, 8)
    k("  s_barrier")

def softmax_1(k, P, vr1, E, T=44):
    k(f"  v_max3_f32 v{T+0}, v{P[0]}, v{P[1]}, v{P[2]}\n  v_min3_f32 v{T+1}, v{P[0]}, v{P[1]}, v{P[2]}")
    k(f"  v_max3_f32 v{T+2}, v{P[3]}, v{P[4]}, v{P[5]}\n  v_min3_f32 v{T+3}, v{P[3]}, v{P[4]}, v{P[5]}")
    for i in range(6, 18, 4):
        k(f"  v_max3_f32 v{T+0}, v{T+0}, v{P[i]}, v{P[i+1]}\n  v_min3_f32 v{T+1}, v{T+1}, v{P[i]}, v{P[i+1]}")
        k(f"  v_max3_f32 v{T+2}, v{T+2}, v{P[i+2]}, v{P[i+3]}\n  v_min3_f32 v{T+3}, v{T+3}, v{P[i+2]}, v{P[i+3]}")
    k(f"  v_max3_f32 v{T+0}, v{T+0}, v{P[18]}, v{P[19]}\n  v_min3_f32 v{T+1}, v{T+1}, v{P[18]}, v{P[19]}")
    k(f"  v_max_f32 v{T+0}, v{T+0}, v{T+2}\n  v_min_f32 v{T+1}, v{T+1}, v{T+3}")
    k(f"""
  v_mul_f32 v{T+2}, {fl(LOG2E)}, v{vr1}
  v_mov_b32 v{T+3}, v{T+2}
  v_mul_f32 v2, v{T+0}, v{T+2}
  v_mul_f32 v0, v{T+1}, v{T+2}
  v_sub_f32 v{T+0}, 0, v2
  v_sub_f32 v{T+1}, 0, v2""")
    for i in range(10):
        k(f"  v_pk_fma_f32 v[{E+2*i}:{E+2*i+1}], v[{P[2*i]}:{P[2*i]+1}], v[{T+2}:{T+3}], v[{T}:{T+1}]")
    k(f"  v_mov_b32 v{T+0}, v0\n  v_mov_b32 v{T+1}, v0")
    for i in range(10):
        k(f"  v_pk_fma_f32 v[{E+20+2*i}:{E+21+2*i}], v[{P[2*i]}:{P[2*i]+1}], v[{T+2}:{T+3}], v[{T}:{T+1}] neg_lo:[1,0,0] neg_hi:[1,0,0]")
    for i in range(20): k(f"  v_exp_f32 v{E+i}, v{E+i}")
def softmax_2(k, E, T=44):
    for i in range(20, 40): k(f"  v_exp_f32 v{E+i}, v{E+i}")
    for h_ in range(2):
        b0 = E + 20*h_; d = T + 2*h_
        k(f"  v_pk_add_f32 v[{d}:{d+1}], v[{b0}:{b0+1}], v[{b0+2}:{b0+3}]")
    for i in range(2, 10):
        for h_ in range(2):
            b0 = E + 20*h_; d = T + 2*h_
            k(f"  v_pk_add_f32 v[{d}:{d+1}], v[{d}:{d+1}], v[{b0+2*i}:{b0+2*i+1}]")
    k(f"  v_add_f32 v{T+0}, v{T+0}, v{T+1}\n  v_add_f32 v{T+2}, v{T+2}, v{T+3}\n  v_rcp_f32 v{T+0}, v{T+0}\n  v_rcp_f32 v{T+2}, v{T+2}")
    k(f"  v_mov_b32 v{T+1}, v{T+0}\n  v_mov_b32 v{T+3}, v{T+2}")
def softmax_3(k, E, PH, T=44):
    for i in range(10):
        for h_ in range(2):
            b0 = E + 20*h_; d = T + 2*h_
            k(f"  v_pk_mul_f32 v[{b0+2*i}:{b0+2*i+1}], v[{b0+2*i}:{b0+2*i+1}], v[{d}:{d+1}]")
    for h_ in range(2):
        for i in range(10):
            k(f"  v_cvt_pk_bf16_f32 v{PH+10*h_+i}, v{E+20*h_+2*i}, v{E+20*h_+2*i+1}")
def softmax_pair(k, P, vr1, E, PH, T=44):
    softmax_1(k, P, vr1, E, T); softmax_2(k, E, T); softmax_3(k, E, PH, T)

VS = [4, 5, 6, 7]; VA = [8, 9, 10, 11]
FR = [64 + 24*s for s in range(4)]
ACCB = 32
XT = 2*SLOT + 10240
BT = 161280

def decode_b(k):
    k(f"""
  s_lshr_b32 s40, s2, 3
  s_and_b32 s{S_I64}, s2, 3
  s_lshl_b32 s{S_I64}, s{S_I64}, 3
  s_lshr_b32 s41, s40, 2
  s_add_u32 s{S_I64}, s{S_I64}, s41
  s_lshr_b32 s{S_JB}, s2, 2
  s_and_b32 s{S_JB}, s{S_JB}, 1
  s_lshl_b32 s{S_JB}, s{S_JB}, 2
  s_and_b32 s41, s40, 3
  s_add_u32 s{S_JB}, s{S_JB}, s41
  s_lshl_b32 s{S_T16}, s{S_I64}, 2
  s_add_u32 s{S_T16}, s{S_T16}, s39""")

def breads(st4, ks):
    base = FR[ks]
    r = [f"  ds_read_b128 v[{base}:{base+3}], v{VA[st4]} offset:{ks*1024}"]
    for cb in range(5):
        r.append(f"  ds_read_b128 v[{base+4+4*cb}:{base+7+4*cb}], v{VS[st4]} offset:{(ks*5+cb)*1024}")
    return r
def bmfma(ks):
    base = FR[ks]
    return [f"  v_mfma_f32_16x16x32_bf16 v[{ACCB+4*cb}:{ACCB+4*cb+3}], v[{base+4+4*cb}:{base+7+4*cb}], v[{base}:{base+3}], v[{ACCB+4*cb}:{ACCB+4*cb+3}]" for cb in range(5)]
def bstage(k, j, next_nks=4, pre_barrier=None, post_barrier=None, extra=None):
    st4 = j % 4
    extra = list(extra or [])
    per = (len(extra) + 19)//20
    for ks in range(4):
        mf = bmfma(ks)
        if ks < 2:
            rd = [(l, ("r", j, ks + 2)) for l in breads(st4, ks + 2)]
            k.wait_ds(("r", j, ks))
        else:
            if ks == 2:
                k.wait_ds(("r", j, 3))
                if pre_barrier: k(pre_barrier)
                k("  s_barrier")
                if post_barrier: post_barrier(k)
            rd = [(l, ("r", j + 1, ks - 2)) for l in breads((st4 + 1) % 4, ks - 2)] if ks - 2 < next_nks else []
        for i, m in enumerate(mf):
            k(m)
            if rd: k.ds(*rd.pop(0))
            for _ in range(per):
                if extra: kb.replay(k, extra.pop(0))
        while rd: k.ds(*rd.pop(0))
    while extra: kb.replay(k, extra.pop(0))

def compute_b(k):
    k(f"""
  v_and_b32 v16, 15, v1
  v_lshrrev_b32 v17, 4, v1
  s_lshl_b32 s45, s{S_T16}, 4
  v_add_u32 v19, s45, v16
  v_mul_u32_u24 v24, 1280, v19
  s_mul_i32 s45, s{S_JB}, 160
  v_lshl_add_u32 v25, v17, 3, s45
  v_add_u32 v24, v24, v25
  v_lshlrev_b32 v22, 4, v1
  s_lshl_b32 s44, s39, 12
  s_add_u32 s44, s44, 20480""")
    for s in range(4):
        k(f"  v_add_u32 v{VS[s]}, {s*SLOT}, v22\n  v_add_u32 v{VA[s]}, s44, v{VS[s]}")
    for i in range(20): k(f"  v_mov_b32 v{ACCB+i}, 0")
    op_addr(k)
    k("  s_barrier")
    kb.stamp(k, 9)
    k.lg = []
    for ks in range(2):
        for l in breads(0, ks): k.ds(l, ("r", 0, ks))
    def flagH2(k):
        k(f"  s_cmp_eq_u32 s37, 0\n  s_cbranch_scc1 {k.L('fh2_b')}")
        store_flag(k, 39, 0, f"  s_lshl_b32 s41, s36, 7\n  s_add_u32 s41, s41, s38\n  s_add_u32 s41, s41, {FL_H2}", "fh2")
        k(f"{k.L('fh2_b')}:")
    def flagO(k):
        k(f"""
  s_waitcnt vmcnt(0)
  s_lshl_b32 s41, s{S_I64}, 7
  s_lshl_b32 s42, s39, 3
  s_add_u32 s41, s41, s42
  s_add_u32 s41, s41, s{S_JB}
  s_add_u32 s41, s41, {FL_O}
  v_mov_b32 v2, s41
  v_mov_b32 v0, 1
  s_mov_b64 exec, 1
  buffer_store_byte v0, v2, {R(R_WS)}, 0 offen sc1
  s_mov_b64 exec, -1""")
    for j in range(17):
        kw = {}
        if j == 0: kw = dict(post_barrier=op_q_issue)
        if j == 1:
            kw = dict(pre_barrier=f"  s_cmp_eq_u32 s37, 0\n  s_cbranch_scc1 {k.L('h2w')}\n  s_waitcnt vmcnt(6)\n{k.L('h2w')}:", post_barrier=flagH2)
        bstage(k, j, **kw)
        if j == P1_J:
            kb.stamp(k, 11); pause1(k); kb.stamp(k, 12)
        if j == P2_J:
            kb.stamp(k, 13); pause2(k); kb.stamp(k, 14)
        if j == OFLAG_J: flagO(k)
    bstage(k, 17, next_nks=2)
    k("  s_waitcnt lgkmcnt(0)")
    for ks in range(2):
        for m in bmfma(ks): k(m)
    kb.stamp(k, 10)
    k(f"""
  s_lshl_b32 s44, s39, 4
  v_add_u32 v52, s44, v16
  v_mul_u32_u24 v52, 160, v52
  v_lshl_add_u32 v52, v17, 3, v52
  v_add_u32 v52, {XT}, v52
  v_lshlrev_b32 v53, 3, v17
  v_add_u32 v53, {BT}, v53""")
    for cb in range(5):
        k(f"  ds_read_b64 v[{64+2*cb}:{65+2*cb}], v52 offset:{32*cb}\n  ds_read_b64 v[{76+2*cb}:{77+2*cb}], v53 offset:{32*cb}")
    for i in range(3):
        k(f"""
  v_add_u32 v{88+i}, {64*i}, v1
  v_mul_u32_u24 v91, 6554, v{88+i}
  v_lshrrev_b32 v91, 16, v91               ; row
  v_mul_u32_u24 v92, 10, v91
  v_sub_u32 v92, v{88+i}, v92              ; c
  s_lshl_b32 s44, s39, 4
  v_add_u32 v93, s44, v91
  v_mul_u32_u24 v{94+i}, 160, v93
  v_lshl_add_u32 v{94+i}, v92, 4, v{94+i}
  v_add_u32 v{94+i}, {XT}, v{94+i}
  s_lshl_b32 s44, s{S_T16}, 4
  v_add_u32 v91, s44, v91
  v_mul_u32_u24 v91, 1280, v91
  v_lshl_add_u32 v91, v92, 4, v91
  s_mul_i32 s44, s{S_JB}, 160
  v_add_u32 v{97+i}, s44, v91""")
    k(f"  v_mov_b32 v91, 0x7fff0000\n  v_cmp_gt_u32 vcc, 160, v90\n  v_cndmask_b32 v99, v91, v99, vcc\n  v_mov_b32 v91, {XT}\n  v_cndmask_b32 v96, v91, v96, vcc")
    k("  s_waitcnt lgkmcnt(0)")
    for cb in range(5):
        a = ACCB + 4*cb; x = 64 + 2*cb; b = 76 + 2*cb
        k(f"""
  v_lshlrev_b32 v52+0, 16, v{x}
  v_and_b32 v55, 0xffff0000, v{x}
  v_lshlrev_b32 v56, 16, v{x+1}
  v_and_b32 v57, 0xffff0000, v{x+1}
  v_lshlrev_b32 v58, 16, v{b}
  v_and_b32 v59, 0xffff0000, v{b}
  v_lshlrev_b32 v60, 16, v{b+1}
  v_and_b32 v61, 0xffff0000, v{b+1}
  v_pk_add_f32 v[54:55], v[54:55], v[58:59]
  v_pk_add_f32 v[56:57], v[56:57], v[60:61]
  v_pk_add_f32 v[{a}:{a+1}], v[{a}:{a+1}], v[54:55]
  v_pk_add_f32 v[{a+2}:{a+3}], v[{a+2}:{a+3}], v[56:57]
  v_cvt_pk_bf16_f32 v62, v{a}, v{a+1}
  v_cvt_pk_bf16_f32 v63, v{a+2}, v{a+3}
  ds_write_b64 v52, v[62:63] offset:{32*cb}""".replace("v52+0", "v54"))
    k("  s_waitcnt lgkmcnt(0)")
    for i in range(3): k(f"  ds_read_b128 v[{100+4*i}:{103+4*i}], v{94+i}")
    for i in range(3):
        k(f"  s_waitcnt lgkmcnt({2-i})\n  buffer_store_dwordx4 v[{100+4*i}:{103+4*i}], v{97+i}, {R(R_OUT)}, 0 offen")
    if kb.PROF:
        k("  s_waitcnt vmcnt(0)")
        kb.stamp(k, 6, rt=True); kb.dump(k, S_WS)
    k("  s_endpgm")

def wfrag(i): return 160 + 4*i
OQ = 220; OP = 232; OE = 160; OPH = 200; OO = 220; OB = 244; OKF = 160
def op_addr(k):
    k(f"""
  v_lshrrev_b32 v26, 2, v1
  v_and_b32 v26, 3, v26
  v_and_b32 v27, 3, v1
  v_lshlrev_b32 v28, 10, v17
  v_mul_u32_u24 v29, 40, v26
  v_add_u32 v28, v28, v29
  v_add_u32 v28, {WPB}, v28
  v_mov_b32 v29, {ZB}
  v_cmp_eq_u32 vcc, v27, v17
  v_cndmask_b32 v28, v29, v28, vcc
  v_mul_u32_u24 v30, {40*KVP}, v17
  v_mul_u32_u24 v31, {KVP}, v26
  v_add_u32 v30, v30, v31
  v_add_u32 v30, {KVB}, v30
  v_cndmask_b32 v30, v29, v30, vcc""")
QR1 = 21
def q_poll_issue(k):
    k(f"""
  s_lshr_b32 s41, s{S_I64}, 1
  s_lshl_b32 s41, s41, 7
  s_and_b32 s42, s{S_I64}, 1
  s_lshl_b32 s42, s42, 4
  s_add_u32 s41, s41, s42
  v_lshlrev_b32 v77, 2, v1
  v_min_u32 v77, 16, v77
  v_add_u32 v77, s41, v77
  v_add_u32 v78, {FL_Q}, v77
  s_lshr_b32 s41, s{S_I64}, 1
  s_lshl_b32 s41, s41, 7
  s_add_u32 s41, s41, {FL_H1 + 4}
  v_mov_b32 v77, s41
  v_cmp_gt_u32 vcc, 4, v1
  v_cndmask_b32 v77, v77, v78, vcc
  buffer_load_dword v76, v77, {R(R_WS)}, 0 offen sc1""")
def q_poll_check(k, lbl):
    k(f"""
  v_mov_b32 v78, 0x01000000
  v_mov_b32 v79, 0x01010101
  v_cmp_gt_u32 vcc, 4, v1
  v_cndmask_b32 v78, v78, v79, vcc
{k.L(lbl + '_t')}:
  v_and_b32 v79, v76, v78
  v_cmp_ne_u32 vcc, v79, v78
  s_cmp_eq_u64 vcc, 0
  s_cbranch_scc1 {k.L(lbl + '_ok')}
  s_sleep 2
  buffer_load_dword v76, v77, {R(R_WS)}, 0 offen sc1
  s_waitcnt vmcnt(0)
  s_branch {k.L(lbl + '_t')}
{k.L(lbl + '_ok')}:""")
def op_q_issue(k):
    k(f"""
  v_and_b32 v12, 15, v1                    ; n'
  v_lshrrev_b32 v13, 4, v1                 ; g
  v_mul_u32_u24 v14, 640, v13
  v_lshl_add_u32 v14, v12, 3, v14
  s_mul_i32 s58, s{S_T16}, 160
  s_mul_i32 s59, s{S_JB}, 20
  s_add_u32 s58, s58, s59
  s_lshl_b32 s58, s58, 7
  s_add_u32 s58, s58, {L.WS_Q}
  s_lshl_b32 s59, s{S_T16}, 4
  v_add_u32 v15, s59, v12
  v_lshlrev_b32 v15, 4, v15""")
    for g in range(5):
        k(f"  buffer_load_dwordx2 v[{OQ+2*g}:{OQ+2*g+1}], v14, {R(R_WS)}, s58 offen offset:{128*g} sc1")
    k(f"  buffer_load_dword v{QR1}, v15, {R(R_WS)}, 0 offen offset:{L.WS_STATS + 4} sc1")
def pause1(k):
    for b in range(5):
        for s_ in range(3):
            for t in range(2):
                reg = wfrag(b*3 + s_) + 2*t; d0 = 8*s_ + 4*t
                if d0 < 20: k.ds(f"  ds_read_b64_tr_b16 v[{reg}:{reg+1}], v28 offset:{d0*40 + 8*b}", "xw")
                else: k(f"  v_mov_b32 v{reg}, 0\n  v_mov_b32 v{reg+1}, 0")
    k(f"  v_mov_b32 v{OQ+10}, 0\n  v_mov_b32 v{OQ+11}, 0")
    k("  s_waitcnt vmcnt(0)")
    k(f"""
  s_cmp_eq_u32 s37, 0
  s_cbranch_scc0 {k.L('nokvf')}
  s_lshl_b32 s41, s38, 7
  s_lshl_b32 s42, s36, 2
  s_add_u32 s41, s41, s42
  s_add_u32 s41, s41, s39
  s_add_u32 s41, s41, {FL_KV}
  v_mov_b32 v2, s41
  v_mov_b32 v0, 1
  s_mov_b64 exec, 1
  buffer_store_byte v0, v2, {R(R_WS)}, 0 offen sc1
  s_mov_b64 exec, -1
{k.L('nokvf')}:""")
    k.wait_ds("xw")
    for s_ in range(3):
        for b in range(5):
            c = "0" if s_ == 0 else f"v[{OP+4*b}:{OP+4*b+3}]"
            w = wfrag(b*3 + s_)
            k(f"  v_mfma_f32_16x16x32_bf16 v[{OP+4*b}:{OP+4*b+3}], v[{w}:{w+3}], v[{OQ+4*s_}:{OQ+4*s_+3}], {c}")
    softmax_pair(k, [OP + i for i in range(20)], QR1, 112, OPH, T=52)
def pause2(k):
    FA_, FB_ = 160, 112
    rounds = ([0, 1], [2, 3], [4, 5])
    OOx = 220
    def rd(ri):
        base = FA_ if ri % 2 == 0 else FB_
        for s_ in range(5):
            for bi, beta in enumerate(rounds[ri]):
                for t in range(2):
                    reg = base + (bi*5 + s_)*4 + 2*t
                    k.ds(f"  ds_read_b64_tr_b16 v[{reg}:{reg+1}], v30 offset:{(8*s_ + 4*t)*KVP + 8*beta}", ("xk", ri, s_))
    def mm(ri, nxt):
        base = FA_ if ri % 2 == 0 else FB_
        for s_ in range(5):
            k.wait_ds(("xk", ri, s_))
            for bi, beta in enumerate(rounds[ri]):
                c = "0" if s_ == 0 else f"v[{OOx+4*beta}:{OOx+4*beta+3}]"
                w = base + (bi*5 + s_)*4
                k(f"  v_mfma_f32_16x16x32_bf16 v[{OOx+4*beta}:{OOx+4*beta+3}], v[{w}:{w+3}], v[{OPH+4*s_}:{OPH+4*s_+3}], {c}")
            for _ in range(4):
                if nxt: k.ds(*nxt.pop(0))
    def rdl(ri):
        r = kb.Rec(k); out = []
        base = FA_ if ri % 2 == 0 else FB_
        for s_ in range(5):
            for bi, beta in enumerate(rounds[ri]):
                for t in range(2):
                    reg = base + (bi*5 + s_)*4 + 2*t
                    out.append((f"  ds_read_b64_tr_b16 v[{reg}:{reg+1}], v30 offset:{(8*s_ + 4*t)*KVP + 8*beta}", ("xk", ri, s_)))
        return out
    rd(0)
    mm(0, rdl(1)); mm(1, rdl(2)); mm(2, [])
    k(f"  v_add_f32 v52, {fl(1e-6)}, v{OOx+20}\n  v_rcp_f32 v52, v52\n  s_nop 0\n  v_mov_b32 v53, v52")
    for i in range(10): k(f"  v_pk_mul_f32 v[{OOx+2*i}:{OOx+2*i+1}], v[{OOx+2*i}:{OOx+2*i+1}], v[52:53]")
    for i in range(10): k(f"  v_cvt_pk_bf16_f32 v{OB+i}, v{OOx+2*i}, v{OOx+2*i+1}")
    k(f"""
  s_mul_i32 s58, s{S_T16}, 74
  s_lshr_b32 s59, s{S_JB}, 1
  s_mul_i32 s59, s59, 5
  s_add_u32 s58, s58, s59
  s_add_u32 s58, s58, 54
  s_lshl_b32 s58, s58, 10
  s_add_u32 s58, s58, {L.WS_HO}
  s_bitcmp1_b32 s{S_JB}, 0
  s_cbranch_scc1 {k.L('o_odd')}
  buffer_store_dwordx4 v[{OB}:{OB+3}], v22, {R(R_WS)}, s58 offen sc1
  buffer_store_dwordx4 v[{OB+4}:{OB+7}], v22, {R(R_WS)}, s58 offen offset:1024 sc1
  buffer_store_dwordx2 v[{OB+8}:{OB+9}], v22, {R(R_WS)}, s58 offen offset:2048 sc1
  s_branch {k.L('o_done')}
{k.L('o_odd')}:
  buffer_store_dwordx2 v[{OB}:{OB+1}], v22, {R(R_WS)}, s58 offen offset:2056 sc1
  buffer_store_dwordx4 v[{OB+2}:{OB+5}], v22, {R(R_WS)}, s58 offen offset:3072 sc1
  s_add_u32 s58, s58, 4096
  buffer_store_dwordx4 v[{OB+6}:{OB+9}], v22, {R(R_WS)}, s58 offen sc1
{k.L('o_done')}:""")
KVR = 148
def op_kv_issue(k):
    k(f"""
  s_lshl_b32 s58, s39, 6
  v_add_u32 v22, s58, v1
  v_lshlrev_b32 v23, 4, v22
  s_mul_i32 s58, s{S_JB}, {4*40*128}
  s_add_u32 s58, s58, {L.WS_KV}""")
    for r in range(5):
        k.begin()
        k(f"  s_add_u32 s59, s58, {r*4096}")
        k.vmem(f"  buffer_load_dwordx4 v[{KVR+4*r}:{KVR+4*r+3}], v23, {R(R_WS)}, s59 offen sc1", "kv")
        k.end()
def op_kv_stage(k):
    k(f"""
  v_and_b32 v23, 7, v22
  v_lshrrev_b32 v18, 3, v22
  v_mul_u32_u24 v18, {KVP}, v18
  v_lshl_add_u32 v18, v23, 3, v18
  v_add_u32 v18, {KVB}, v18""")
    k.wait_vm("kv")
    for r in range(5):
        k(f"  v_cvt_pk_bf16_f32 v{32+2*r}, v{KVR+4*r}, v{KVR+4*r+1}\n  v_cvt_pk_bf16_f32 v{33+2*r}, v{KVR+4*r+2}, v{KVR+4*r+3}")
    k.begin()
    k("  v_cmp_gt_u32 vcc, 6, v23\n  s_and_saveexec_b64 s[58:59], vcc")
    for r in range(5):
        k(f"  ds_write_b64 v18, v[{32+2*r}:{33+2*r}] offset:{r*32*KVP}")
    k("  s_mov_b64 exec, s[58:59]\n  s_waitcnt lgkmcnt(0)")
    k.end()

def loader_b(k):
    if 'noprioB' not in EXP: k("  s_setprio 2")
    decode_b(k)
    k(f"""
  v_lshlrev_b32 v4, 4, v1
  s_mul_i32 s44, s{S_JB}, {74*5*1024}
  s_mul_i32 s45, s39, {5*1024}
  s_add_u32 s44, s44, s45
  s_add_u32 s44, s44, {L.WS_W2}
  s_mul_i32 s46, s{S_T16}, {74*1024}
  s_add_u32 s46, s46, {L.WS_HO}
  s_mul_i32 s47, s39, {5*1024}
  s_lshl_b32 s48, s39, 12
  s_add_u32 s48, s48, 20480""")
    def gDW(j):
        slot = (j % 4)*SLOT
        def mk(cb):
            def f(k):
                if j == 18:
                    k(f"""  s_add_u32 s87, s47, {slot + cb*1024}
  s_cmp_lt_u32 s39, 2
  s_cselect_b32 m0, s87, {ZB}
  s_cselect_b32 s26, {L.WS_END}, 0
  s_add_u32 s87, s44, {4*j*5*1024 + cb*1024}""")
                else:
                    k(f"  s_add_u32 m0, s47, {slot + cb*1024}\n  s_add_u32 s87, s44, {4*j*5*1024 + cb*1024}")
                k.vmem(f"  buffer_load_dwordx4 v4, {R(R_WS)}, s87 offen sc1 lds", ("D", j))
                if j == 18: k(f"  s_mov_b32 s26, {L.WS_END}")
            return f
        return [mk(cb) for cb in range(5)]
    def gDA(j):
        nks = 4 if j < 18 else 2
        slot = (j % 4)*SLOT
        def mk(ks):
            def f(k):
                k(f"  s_add_u32 m0, s48, {slot + ks*1024}\n  s_add_u32 s87, s46, {(4*j + ks)*1024}")
                k.vmem(f"  buffer_load_dwordx4 v4, {R(R_WS)}, s87 offen sc1 lds", ("D", j))
            return f
        return [mk(ks) for ks in range(nks)]
    def DW(j):
        for f in gDW(j): f(k)
    def DA(j):
        for f in gDA(j): f(k)
    iB = f"  s_lshr_b32 s41, s{S_I64}, 1\n  s_lshl_b32 s41, s41, 7\n"
    DW(0); DW(1)
    k("  s_barrier")
    wphi_dma(k, f"  s_lshl_b32 s58, s{S_JB}, 2\n  s_add_u32 s58, s58, s39", WPB, False)
    k(f"""
  s_mov_b32 s{R_T+2}, 0
  s_and_b32 s58, s39, 1
  s_lshl_b32 s58, s58, 10
  s_add_u32 m0, s58, {ZB}""")
    k.vmem(f"  buffer_load_dwordx4 v40, {R(R_T)}, 0 offen lds", "side")
    poll_issue(k, 50, words(50, iB + f"  s_add_u32 s41, s41, {FL_H1}", 2), "ph1", only0=False)
    poll_check(k, 50, "ph1", "ph1", only0=False, slp=3)
    DA(0); DA(1)
    k.wait_vm("side")
    k("  s_barrier")
    kb.stamp(k, 9)
    k.wait_vm(("D", 0))
    k("  s_barrier")
    kb.stamp(k, 10)
    poll_issue(k, 50, words(50, iB + f"  s_and_b32 s42, s{S_I64}, 1\n  s_lshl_b32 s42, s42, 4\n  s_add_u32 s41, s41, s42\n  s_add_u32 s41, s41, {FL_Q}", 4), "pq")
    DA(2); DW(2); DW(3); DA(3)
    def res_dma(k):
        for r in range(3):
            k.begin()
            k(f"""
  s_add_u32 s58, s39, {4*r}
  s_lshl_b32 s59, s58, 6
  v_add_u32 v60, s59, v1
  v_mul_u32_u24 v61, 6554, v60
  v_lshrrev_b32 v61, 16, v61
  v_mul_u32_u24 v62, 10, v61
  v_sub_u32 v62, v60, v62
  s_lshl_b32 s59, s{S_I64}, 6
  v_add_u32 v61, s59, v61
  v_mul_u32_u24 v61, 1280, v61
  v_lshl_add_u32 v61, v62, 4, v61
  s_mul_i32 s59, s{S_JB}, 160
  v_add_u32 v61, s59, v61
  s_lshl_b32 s59, s58, 10
  s_add_u32 s59, s59, {XT}
  s_cmp_lt_u32 s58, 10
  s_cselect_b32 s59, s59, {ZB}
  s_cselect_b32 s58, 0, 0x7fff0000
  v_or_b32 v61, s58, v61
  s_mov_b32 m0, s59""")
            k.vmem(f"  buffer_load_dwordx4 v61, {R(R_X)}, 0 offen lds", ("D", 18))
            k.end()
        k.begin()
        k(f"""
  s_mul_i32 s58, s{S_JB}, 160
  s_add_u32 s{R_T}, s{S_B2}, s58
  s_addc_u32 s{R_T+1}, s{S_B2+1}, 0
  s_and_b32 s{R_T+1}, s{R_T+1}, 0xffff
  s_mov_b32 s{R_T+2}, 160
  s_mov_b32 s{R_T+3}, 0x20000
  s_mov_b32 m0, {BT}""")
        k.vmem(f"  buffer_load_dwordx4 v4, {R(R_T)}, 0 offen lds", ("D", 18))
        k.end()
    KVJ = 5
    OJ = 11
    for j in range(NSTB - 1):
        if j == OJ + 1: pass
        k.wait_vm(("D", j + 1))
        if j == 0: poll_check(k, 50, "pq", "pq", slp=1)
        if j == 3: poll_check(k, 50, "ph2", "ph2", slp=1)
        if j == KVJ: poll_check(k, 50, "pkv", "pkv", slp=1)
        k("  s_barrier")
        groups = []; fns = []
        if j + 4 < 13 or j + 4 > OJ + 4:
            if j + 4 < NSTB: groups = gDW(j + 4) + gDA(j + 4)
        else: groups = gDW(j + 4)
        if j == 2: fns = [lambda k: poll_issue(k, 50, words(50, iB + f"  s_add_u32 s41, s41, {FL_H2}", 2), "ph2")]
        if j == KVJ - 1: fns = [lambda k: poll_issue(k, 50, words(50, f"  s_lshl_b32 s41, s{S_JB}, 7\n  s_add_u32 s41, s41, {FL_KV}", 16), "pkv")]
        if j == 14: fns = [res_dma]
        if j == KVJ: op_kv_issue(k)
        if j == KVJ + 1:
            kb.interleave(k, groups, []); groups = []; fns = [op_kv_stage]
        if j == OJ - 1:
            fns = [lambda k: poll_issue(k, 50, words(50, f"  s_lshl_b32 s41, s{S_I64}, 7\n  s_lshl_b32 s42, s39, 3\n  s_add_u32 s41, s41, s42\n  s_add_u32 s41, s41, {FL_O}", 2), "po", only0=False)]
        kb.interleave(k, groups, rec(k, fns))
        if j == OJ:
            poll_check(k, 50, "po", "po", only0=False, slp=1)
            for q in range(13, OJ + 5): DA(q)
        kb.stamp(k, 40 + j)
    kb.stamp(k, 6, rt=True)
    kb.dump(k, S_WS)
    k("  s_endpgm")

def build(name):
    k = K(name)
    k(f"""
  s_cmp_ge_u32 s2, 256
  s_cbranch_scc1 {k.L('end')}
  s_load_dwordx4 s[4:7], s[0:1], 0
  s_load_dwordx2 s[14:15], s[0:1], 88
  s_load_dwordx2 s[10:11], s[0:1], 40
  s_getpc_b64 s[58:59]
{k.L('pc0')}:
  v_lshrrev_b32 v2, 6, v0
  v_and_b32 v1, 63, v0
  v_lshlrev_b32 v4, 10, v2
  v_lshl_add_u32 v4, v1, 7, v4
  v_cmp_gt_u32 vcc, 8, v1
  v_readfirstlane_b32 s3, v2
  s_and_saveexec_b64 s[56:57], vcc
  global_load_dword v127, v4, s[58:59]
  s_mov_b64 exec, s[56:57]
  s_load_dwordx2 s[8:9], s[0:1], 16
  s_load_dwordx2 s[12:13], s[0:1], 48
  s_load_dwordx2 s[{S_WO}:{S_WO+1}], s[0:1], 24
  s_load_dwordx2 s[{S_W2}:{S_W2+1}], s[0:1], 56
  s_load_dwordx2 s[{S_B2}:{S_B2+1}], s[0:1], 64
  s_load_dwordx2 s[{S_OUT}:{S_OUT+1}], s[0:1], 72
  s_load_dwordx2 s[{S_DBG}:{S_DBG+1}], s[0:1], 80
  s_lshr_b32 s40, s2, 3
  s_lshr_b32 s36, s40, 2
  s_and_b32 s41, s2, 1
  s_lshl_b32 s41, s41, 3
  s_add_u32 s36, s36, s41
  s_and_b32 s41, s40, 3
  s_lshr_b32 s37, s41, 1
  s_and_b32 s41, s41, 1
  s_and_b32 s38, s2, 7
  s_lshr_b32 s38, s38, 1
  s_lshl_b32 s38, s38, 1
  s_add_u32 s38, s38, s41
  s_and_b32 s39, s3, 3
  s_waitcnt lgkmcnt(0)""")
    srd(k, R_X, S_X, 2621440)
    srd(k, R_WS, S_WS, L.WS_END)
    srd(k, R_WQ, S_WQ, 2457600)
    srd(k, R_W1, S_W1, 2211840)
    k(f"  s_cmp_lt_u32 s3, 4\n  s_cbranch_scc1 {k.L('compute')}")
    k.vm = []
    kb.stamp(k, 0, rt=True)
    loader_a_start(k)
    srd(k, R_B, S_B1, 3456)
    k(f"  s_branch {k.L('loader')}")
    vm_loader = list(k.vm)
    k.label("compute")
    srd(k, R_OUT, S_OUT, 2621440)
    k.vm = []
    compute_a(k)
    compute_b(k)
    k.label("loader")
    k.vm = vm_loader
    loader_a(k)
    loader_b(k)
    k(f"{k.L('end')}:\n  s_endpgm")
    k(f"{k.L('codeend')}:")
    rep = []
    t = k.text(rep)
    return dict(name=name, body=t, vgpr=256, sgpr=102, accum=256, maxwg=512), rep

if __name__ == "__main__":
    import asmlib, sys
    if len(sys.argv) > 1 and sys.argv[1] in ("prof", "coarse"): kb.PROF = True
    if len(sys.argv) > 1 and sys.argv[1] == "coarse": kb.FINE = False
    kf, rep = build("kf_kernel")
    print("nops inserted:", len(rep))
    asmlib.build("kfp" if kb.PROF else "kft", [kf])
    print("ok")
```

```python
import re

TRANS = ("v_exp_f32", "v_log_f32", "v_rcp_f32", "v_rsq_f32", "v_sqrt_f32", "v_sin_f32", "v_cos_f32")

def regs_of(tok):
    tok = tok.strip()
    neg = tok.lstrip("-")
    if neg.startswith("abs(") or neg.startswith("|"):
        neg = neg.replace("abs(", "").replace(")", "").replace("|", "")
    tok = neg
    m = re.fullmatch(r"([vas])\[(\d+):(\d+)\]", tok)
    if m:
        return [(m.group(1), i) for i in range(int(m.group(2)), int(m.group(3)) + 1)]
    m = re.fullmatch(r"([vas])(\d+)", tok)
    if m:
        return [(m.group(1), int(m.group(2)))]
    if tok == "vcc":
        return [("s", "vcc")]
    if tok in ("vcc_lo", "vcc_hi"):
        return [("s", "vcc")]
    if tok == "exec":
        return [("s", "exec")]
    if tok == "m0":
        return [("s", "m0")]
    return []

class Ins:
    __slots__ = ("text", "op", "defs", "uses", "cls", "srcC", "passes", "ab", "stdata", "dpp")
    def __init__(self, text):
        self.text = text
        t = text.split(";")[0].strip()
        self.op = None; self.defs = []; self.uses = []; self.cls = "other"; self.srcC = []; self.passes = 0; self.ab = []
        self.stdata = []; self.dpp = False
        if not t or t.endswith(":") or t.startswith("."):
            self.cls = "meta"; return
        parts = t.split(None, 1)
        op = parts[0]; self.op = op
        rest = parts[1] if len(parts) > 1 else ""
        ops = []; cur = ""; depth = 0
        for ch in rest:
            if ch == "[": depth += 1
            if ch == "]": depth -= 1
            if ch == "," and depth == 0:
                ops.append(cur); cur = ""
            else:
                cur += ch
        if cur.strip(): ops.append(cur)
        mods = ""
        if ops:
            l = ops[-1].strip().split(None, 1)
            ops[-1] = l[0]
            if len(l) > 1: mods = l[1]
        ops = [o.strip() for o in ops]
        R = [regs_of(o) for o in ops]
        if op.startswith("v_mfma"):
            self.cls = "mfma"
            self.defs = R[0]; self.ab = R[1] + R[2]; self.srcC = R[3]; self.uses = self.ab + self.srcC
            self.passes = 8 if "32x32" in op else 4
        elif op.startswith("v_"):
            self.cls = "trans" if op.replace("_e32", "").replace("_e64", "") in TRANS else "valu"
            self.dpp = ("_dpp" in op) or ("row_" in mods) or ("quad_perm" in mods)
            if op.startswith("v_cmp"):
                self.defs = R[0]; self.uses = sum(R[1:], [])
            elif op.startswith("v_readfirstlane") or op.startswith("v_readlane"):
                self.cls = "valu"; self.defs = R[0]; self.uses = sum(R[1:], [])
            elif op.startswith("v_permlane"):
                self.defs = R[0] + R[1]; self.uses = R[0] + R[1]
            elif "_co_" in op or op.startswith("v_div_scale") or op.startswith("v_mad_u64"):
                self.defs = R[0] + R[1]; self.uses = sum(R[2:], [])
            else:
                self.defs = R[0]; self.uses = sum(R[1:], [])
                if op.startswith("v_fmac") or op.startswith("v_writelane") or op.startswith("v_dot2c") or op.startswith("v_pk_fmac"):
                    self.uses = self.uses + R[0]
                if op.startswith("v_cndmask") and len(ops) == 3:
                    self.uses = self.uses + [("s", "vcc")]
        elif op.startswith("ds_"):
            self.cls = "ds"
            if op.startswith("ds_read") or op.startswith("ds_swizzle") or op.startswith("ds_bpermute") or op.startswith("ds_permute"):
                self.defs = R[0]; self.uses = sum(R[1:], [])
            else:
                self.uses = sum(R, [])
        elif op.startswith("buffer_") or op.startswith("global_") or op.startswith("flat_"):
            self.cls = "vmem"
            islds = " lds" in (" " + mods) or "_lds_" in op
            if op in ("buffer_wbl2", "buffer_inv"):
                pass
            elif "load" in op and not islds:
                self.defs = R[0]; self.uses = sum(R[1:], [])
            elif "load" in op:
                self.uses = sum(R, []) + [("s", "m0")]
            elif op.startswith("buffer_store") or op.startswith("buffer_atomic"):
                self.uses = sum(R, [])
                if "x4" in op or "x3" in op: self.stdata = R[0]
            else:
                self.uses = sum(R, [])
                if "x4" in op or "x3" in op: self.stdata = R[1]
        elif op.startswith("s_"):
            self.cls = "salu"
            if op in ("s_nop", "s_waitcnt", "s_barrier", "s_endpgm", "s_sleep", "s_setprio", "s_branch") or op.startswith("s_cbranch"):
                self.cls = "sctl"
            elif op.startswith("s_cmp") or op.startswith("s_bitcmp"):
                self.uses = sum(R, [])
            elif op.startswith("s_load") or op.startswith("s_memtime") or op.startswith("s_memrealtime"):
                self.cls = "smem"; self.defs = R[0]; self.uses = sum(R[1:], [])
            else:
                self.defs = R[0]; self.uses = sum(R[1:], [])
                if "saveexec" in op:
                    self.defs = self.defs + [("s", "exec")]
    def states(self):
        if self.cls == "meta": return 0
        if self.op == "s_nop":
            return int(self.text.split(";")[0].split()[1], 0) + 1
        return 1

def isv(r): return r[0] in ("v", "a")

def need(prev, cur):
    n = 0
    pd = set(prev.defs); cu = set(cur.uses); cd = set(cur.defs)
    pv = {r for r in pd if isv(r)}; ps = {r for r in pd if r[0] == "s"}
    if prev.cls in ("valu", "trans"):
        if cur.cls == "mfma" and pv & cu: n = max(n, 2)
        if prev.cls == "trans" and cur.cls in ("valu", "mfma") and pv & cu: n = max(n, 1)
        if prev.cls == "trans" and cur.cls in ("ds", "vmem") and pv & cu: n = max(n, 1)
        if cur.cls in ("valu", "trans"):
            if cur.op.startswith("v_readlane") or cur.op.startswith("v_readfirstlane"):
                if pv & cu: n = max(n, 1)
            if cur.op.startswith("v_permlane") and pv & cu: n = max(n, 2)
            if cur.dpp and pv & cu: n = max(n, 2)
            if ps & cu:
                n = max(n, 4 if (cur.op.startswith("v_readlane") or cur.op.startswith("v_writelane")) else 2)
        if cur.cls == "vmem" and ps & cu: n = max(n, 5)
        if cur.cls in ("salu", "smem", "sctl") and ps & cu: n = max(n, 1)
    if prev.cls == "mfma":
        big = prev.passes == 8
        if cur.cls == "mfma":
            if pv & set(cur.ab): n = max(n, 12 if big else 8)
            if pv & set(cur.srcC):
                if not (set(prev.defs) == set(cur.srcC) and prev.passes == cur.passes):
                    n = max(n, 10 if big else 6)
            if (pv & cd) and not (pv & set(cur.srcC)): n = max(n, 10 if big else 6)
        elif cur.cls in ("valu", "trans", "ds", "vmem"):
            if pv & (cu | cd): n = max(n, 12 if big else 8)
        if cur.cls in ("valu", "trans") and set(prev.srcC) & cd: n = max(n, 7 if big else 3)
    if prev.cls == "vmem" and prev.stdata and cur.cls in ("valu", "trans", "mfma") and set(prev.stdata) & cd:
        n = max(n, 2)
    if prev.cls == "salu" and ("s", "m0") in pd and cur.cls == "vmem" and ("s", "m0") in cu: n = max(n, 1)
    return n

def fix_hazards(lines, window=24, report=None):
    out = []
    added = 0
    for l in lines:
        for sub in l.split("\n"):
            cur = Ins(sub)
            if cur.cls != "meta":
                reqd = 0
                dist = 0
                for p in reversed(out):
                    if p.cls == "meta": continue
                    nd = need(p, cur)
                    if nd > dist: reqd = max(reqd, nd - dist)
                    dist += p.states()
                    if dist >= window: break
                while reqd > 0:
                    k = min(reqd, 16)
                    out.append(Ins(f"  s_nop {k-1}")); added += 1
                    if report is not None: report.append((k, sub))
                    reqd -= k
            out.append(cur)
    return [i.text for i in out], added

class K:
    def __init__(self, name):
        self.name = name
        self.lines = []
        self.vm = []
        self.lg = []
    def __call__(self, s):
        for l in s.strip("\n").split("\n"):
            self.lines.append(l)
    def L(self, n): return f"L_{self.name}_{n}"
    def label(self, n): self.lines.append(self.L(n) + ":")
    def vmem(self, s, tag=None):
        self(s); self.vm.append(tag)
    def wait_vm(self, tag, extra=""):
        idx = [i for i, t in enumerate(self.vm) if t == tag]
        if not idx: return
        n = len(self.vm) - 1 - idx[-1]
        assert n <= 63, n
        self(f"  s_waitcnt vmcnt({n}){extra}")
        self.vm = self.vm[idx[-1] + 1:]
    def note_vm(self, tags): self.vm += list(tags)
    def ds(self, s, tag=None):
        self(s); self.lg.append(tag)
    def wait_ds(self, tag):
        idx = [i for i, t in enumerate(self.lg) if t == tag]
        if not idx: return
        n = min(15, len(self.lg) - 1 - idx[-1])
        self(f"  s_waitcnt lgkmcnt({n})")
        self.lg = self.lg[len(self.lg) - n:] if n else []
    def wait_ds_all(self):
        self("  s_waitcnt lgkmcnt(0)"); self.lg = []
    def begin(self): pass
    def end(self): pass
    def wait_vm_all(self):
        self("  s_waitcnt vmcnt(0)"); self.vm = []
    def text(self, report=None):
        ls, added = fix_hazards(self.lines, report=report)
        return "\n".join(ls) + "\n"

PROF = False
PROF_OFF = 0x2000000
FINE = True
def stamp(k, i, rt=False):
    if not PROF: return
    if not FINE and i >= 11 and i not in (11, 12, 13, 14, 15, 58, 59, 60, 61, 62): return
    if i == 0: k("  v_mov_b32 v3, 0")
    k(f"""
  s_memtime s[70:71]
  s_waitcnt lgkmcnt(0)
  v_writelane_b32 v3, s70, {i}""")
    if rt:
        k(f"""
  s_memrealtime s[70:71]
  s_waitcnt lgkmcnt(0)
  v_writelane_b32 v3, s70, {i+1}""")
def dump(k, wsptr_lo, kidx=0):
    if not PROF: return
    k(f"""
  s_add_u32 s72, s{wsptr_lo}, {PROF_OFF + kidx*256*8*256}
  s_addc_u32 s73, s{wsptr_lo+1}, 0
  s_lshl_b32 s74, s2, 3
  s_add_u32 s74, s74, s3
  s_lshl_b32 s74, s74, 8
  v_lshlrev_b32 v2, 2, v1
  v_add_u32 v2, s74, v2
  global_store_dword v2, v3, s[72:73]""")

class Rec:
    def __init__(self, k):
        self.k = k; self.name = k.name; self.items = []; self.grp = None; self.vm = []
    def L(self, n): return self.k.L(n)
    def _add(self, it):
        if self.grp is not None: self.grp.append(it)
        else: self.items.append([it])
    def __call__(self, s):
        ls = [l for l in s.strip("\n").split("\n")]
        if self.grp is None and not any(l.strip().endswith(":") or "branch" in l or "exec" in l or "vcc" in l or "s_cmp" in l or "s_csel" in l or "s_cmov" in l or "m0" in l or "s_addc" in l or "s_bitcmp" in l for l in ls):
            for l in ls: self.items.append([("t", l)])
        else:
            self._add(("t", s))
    def label(self, n): self._add(("t", self.L(n) + ":"))
    def vmem(self, s, tag=None): self._add(("v", s, tag))
    def wait_vm(self, tag, extra=""): self._add(("w", tag, extra))
    def note_vm(self, tags): self._add(("n", tags))
    def ds(self, s, tag=None): self._add(("d", s, tag))
    def wait_ds(self, tag): self._add(("wd", tag))
    def begin(self): self.grp = []
    def end(self):
        g = self.grp; self.grp = None; self.items.append(g)
def replay(k, grp):
    for it in grp:
        if it[0] == "t": k(it[1])
        elif it[0] == "v": k.vmem(it[1], it[2])
        elif it[0] == "n": k.note_vm(it[1])
        elif it[0] == "d": k.ds(it[1], it[2])
        elif it[0] == "wd": k.wait_ds(it[1])
        else: k.wait_vm(it[1], it[2])
def interleave(k, main_groups, rec_items, lead=0):
    n = len(main_groups)
    items = list(rec_items)
    if n == 0:
        for g in items: replay(k, g)
        return
    per = (len(items) + n - 1)//n
    for i, m in enumerate(main_groups):
        m(k)
        for g in items[i*per:(i+1)*per]: replay(k, g)
```

```python
from kb import K
import kb, os
import layout as L

LOG2E = 1.4426950408889634
C0 = -2.0*0.7978845608028654*LOG2E
C1 = C0*0.044715
def fl(x):
    import struct
    return "0x%08x" % struct.unpack("<I", struct.pack("<f", x))[0]

XR = 0; WR = 49152; SCR = 114688; TT = 147456; ST = 151552; WP = 153600; ZR = 157696
PHI = 73728; PHI_P = 336; VV = PHI + 43008; VV_P = 208; KPS = 20480
SLOT = 36864; WPB = 147456; KVB = 151552; KVP = 48; ZB = 159232
LDS_BYTES = 163840
NSTB = 19
WP0, WP1 = 4, int(os.environ.get('WP1', 12))
def wpreg(s_, cb): return 64 + (s_ - WP0)*20 + 4*cb
SCHED = {
    "kv": dict(P1_J=1, RED_J=None, KVJ=int(os.environ.get("KVJ_KV", 4)), OFLAG_D=2),
    "g":  dict(P1_J=2, RED_J=int(os.environ.get("RED_J", 1)), KVJ=int(os.environ.get("KVJ_G", 6)), OFLAG_D=2),
}
FL = L.WS_FLAGS
FL_F2 = FL; FL_H1 = FL + 16*128; FL_H2 = FL + 48*128; FL_Q = FL + 80*128; FL_PF = FL + 208*128; FL_KF = FL + 336*128; FL_O = FL + 368*128
NFL = 624

S_X, S_WQ, S_WPHI, S_W1, S_B1, S_WS = 4, 6, 8, 10, 12, 14
S_WO, S_W2, S_B2, S_OUT, S_DBG = 76, 78, 80, 82, 84
R_X, R_W, R_WS, R_B, R_T, R_OUT, R_WQ, R_W1, R_W2, R_WO = 16, 20, 24, 28, 32, 60, 64, 88, 92, 96
S_I64, S_JB, S_T16 = 68, 69, 86

def srd(k, s, lo, size):
    k(f"""
  s_mov_b32 s{s}, s{lo}
  s_and_b32 s{s+1}, s{lo+1}, 0xffff
  s_mov_b32 s{s+2}, {size}
  s_mov_b32 s{s+3}, 0x20000""")
def R(s): return f"s[{s}:{s+3}]"

def job_ids(k):
    k(f"""
  s_lshl_b32 s40, s2, 2
  s_add_u32 s40, s40, s39                    ; gw
  s_lshl_b32 s41, s36, 3
  s_add_u32 s41, s41, s38
  s_lshl_b32 s41, s41, 2
  s_add_u32 s41, s41, s39                    ; u = 4 (8 i + role) + w
  s_add_u32 s42, s41, 512
  s_cmp_eq_u32 s37, 1
  s_cselect_b32 s50, s41, s42
  s_cselect_b32 s51, s41, -1
  s_cselect_b32 s49, s42, -1
  s_cmp_lt_u32 s50, 570
  s_cselect_b32 s50, s50, -1
  s_cmp_lt_u32 s49, 740
  s_cselect_b32 s49, s49, -1
  s_lshl_b32 s52, s39, 13
  s_add_u32 s52, s52, {SCR}
  s_lshl_b32 s87, s39, 12
  s_add_u32 s87, s87, {SCR2}
  s_add_u32 s48, s87, 16384""")

V_ST = 36
def stats_issue(k):
    v = V_ST
    k(f"""
  v_lshrrev_b32 v{v}, 5, v1                  ; hh
  v_and_b32 v{v+1}, 31, v1                   ; n
  s_lshl_b32 s41, s40, 1
  v_add_u32 v{v+2}, s41, v{v}                ; token
  v_mul_u32_u24 v{v+3}, 1280, v{v+2}
  v_lshl_add_u32 v{v+3}, v{v+1}, 3, v{v+3}""")
    for r in range(5):
        k.vmem(f"  buffer_load_dwordx2 v[{v+4+2*r}:{v+5+2*r}], v{v+3}, {R(R_X)}, 0 offen offset:{256*r}", "st")
def stats_a1(k):
    v = V_ST; U = v + 16
    k.wait_vm("st")
    for d in range(10):
        k(f"  v_lshlrev_b32 v{U+2*d}, 16, v{v+4+d}\n  v_and_b32 v{U+2*d+1}, 0xffff0000, v{v+4+d}")
def stats_a2(k):
    v = V_ST; U = v + 16; S = v + 36; T = v + 37
    k(f"  v_add_f32 v{S}, v{U}, v{U+1}\n  v_add_f32 v{T}, v{U+2}, v{U+3}")
    for i in range(4, 20, 2):
        k(f"  v_add_f32 v{S}, v{S}, v{U+i}\n  v_add_f32 v{T}, v{T}, v{U+i+1}")
    k(f"  v_add_f32 v{S}, v{S}, v{T}")
def red32(k, S, T):
    for r in (8, 4, 2, 1):
        k(f"  v_add_f32_dpp v{S}, v{S}, v{S} row_ror:{r} row_mask:0xf bank_mask:0xf")
    k(f"  ds_swizzle_b32 v{T}, v{S} offset:0x401F\n  s_waitcnt lgkmcnt(0)\n  v_add_f32 v{S}, v{S}, v{T}")
def stats_b(k):
    v = V_ST; U = v + 16; S = v + 36; T = v + 37; M = v + 38
    red32(k, S, T)
    k(f"  v_mul_f32 v{M}, {1.0/640.0!r}, v{S}")
    for i in range(20): k(f"  v_sub_f32 v{U+i}, v{U+i}, v{M}")
def stats_c(k):
    v = V_ST; U = v + 16; S = v + 36; T = v + 37
    k(f"  v_mul_f32 v{S}, v{U}, v{U}\n  v_mul_f32 v{T}, v{U+1}, v{U+1}")
    for i in range(2, 20, 2):
        k(f"  v_fmac_f32 v{S}, v{U+i}, v{U+i}\n  v_fmac_f32 v{T}, v{U+i+1}, v{U+i+1}")
    k(f"  v_add_f32 v{S}, v{S}, v{T}")
def stats_d(k):
    v = V_ST; U = v + 16; S = v + 36; T = v + 37; M = v + 38; O = v + 40
    red32(k, S, T)
    k(f"""
  v_mul_f32 v{S}, {1.0/640.0!r}, v{S}
  v_add_f32 v{T}, 0x3727c5ac, v{S}
  v_rsq_f32 v{O+1}, v{T}
  v_mov_b32 v{O}, v{M}
  v_mul_f32 v{T}, v{O+1}, v{O+1}
  v_mul_f32 v{T}, v{T}, v{S}
  v_add_f32 v{T}, 0x3727c5ac, v{T}
  v_rsq_f32 v{T}, v{T}
  v_mov_b32 v{O+3}, 0
  v_mul_f32 v{O+2}, v{O+1}, v{T}
  v_lshlrev_b32 v{v+3}, 4, v{v+2}
  v_add_u32 v{v+3}, {L.WS_STATS}, v{v+3}
  v_cmp_eq_u32 vcc, 0, v{v+1}
  v_mov_b32 v{T}, 0x7fff0000
  v_cndmask_b32 v{v+3}, v{T}, v{v+3}, vcc""")
    if 'nost' not in EXP: k.vmem(f"  buffer_store_dwordx4 v[{O}:{O+3}], v{v+3}, {R(R_WS)}, 0 offen sc1", "jst")

V_CS = 176
V_CSI = 100
def cs_issue(k):
    v = V_CSI; t = 41
    k(f"""
  s_cmp_eq_u32 s50, -1
  s_cselect_b32 s53, 0, s50
  s_mul_i32 s{t}, s53, 6554
  s_lshr_b32 s{t}, s{t}, 16                  ; u
  s_mul_i32 s{t+1}, s{t}, 10
  s_sub_u32 s{t+1}, s53, s{t+1}              ; kappa
  s_mov_b32 s54, s{t}
  s_mov_b32 s55, s{t+1}
  s_cmp_lt_u32 s{t}, 30
  s_cselect_b32 s{R_T}, s{R_WQ}, s{R_W1}
  s_cselect_b32 s{R_T+1}, s{R_WQ+1}, s{R_W1+1}
  s_cselect_b32 s{R_T+2}, s{R_WQ+2}, s{R_W1+2}
  s_mov_b32 s{R_T+3}, 0x20000
  s_mov_b32 s{t+2}, 3456
  s_cmov_b32 s{t+2}, 3840
  s_cselect_b32 s{t+3}, 0, 30
  s_sub_u32 s{t+3}, s{t}, s{t+3}
  s_lshl_b32 s{t+3}, s{t+3}, 7
  s_mul_i32 s{t+4}, s{t+1}, s{t+2}
  s_lshl_b32 s{t+4}, s{t+4}, 6
  s_add_u32 s{t+4}, s{t+4}, s{t+3}           ; soffset
  s_lshl_b32 s{t+5}, s{t+2}, 3
  s_cmp_eq_u32 s50, -1
  s_cselect_b32 s{R_T+2}, 0, s{R_T+2}
  v_lshrrev_b32 v{v}, 3, v1
  v_lshrrev_b32 v{v+1}, 1, v{v}
  v_and_b32 v{v+1}, 1, v{v+1}
  v_lshlrev_b32 v{v+1}, 2, v{v+1}
  v_and_b32 v{v+2}, 7, v1
  v_xor_b32 v{v+2}, v{v+2}, v{v+1}
  v_mul_lo_u32 v{v+3}, v{v}, s{t+2}
  v_lshl_add_u32 v{v+3}, v{v+2}, 4, v{v+3}""")
    for i in range(8):
        k.begin()
        k(f"  s_add_u32 m0, s52, {i*1024}")
        k.vmem(f"  buffer_load_dwordx4 v{v+3}, {R(R_T)}, s{t+4} offen lds", "cs")
        k.end()
        if i < 7: k(f"  s_add_u32 s{t+4}, s{t+4}, s{t+5}")
def cs_a(k):
    v = V_CS
    k(f"""
  v_lshrrev_b32 v{v}, 4, v1
  v_lshrrev_b32 v{v+1}, 2, v1
  v_and_b32 v{v+1}, 3, v{v+1}
  v_and_b32 v{v+2}, 3, v1
  v_lshrrev_b32 v{v+4}, 1, v{v}
  v_lshl_add_u32 v{v+4}, v{v+4}, 3, v{v+1}
  v_lshlrev_b32 v{v+4}, 7, v{v+4}
  v_and_b32 v{v+5}, 1, v{v}
  v_lshlrev_b32 v{v+5}, 1, v{v+5}
  v_lshrrev_b32 v{v+6}, 1, v{v+2}
  v_add_u32 v{v+5}, v{v+5}, v{v+6}
  v_lshrrev_b32 v{v+6}, 1, v{v+1}
  v_lshlrev_b32 v{v+6}, 2, v{v+6}
  v_and_b32 v{v+7}, 1, v{v+2}
  v_lshl_add_u32 v{v+4}, v{v+7}, 3, v{v+4}
  v_add_u32 v{v+4}, s52, v{v+4}
  v_xor_b32 v{v+7}, v{v+5}, v{v+6}
  v_lshl_add_u32 v{v+8}, v{v+7}, 4, v{v+4}
  v_xor_b32 v{v+7}, 4, v{v+7}
  v_lshl_add_u32 v{v+9}, v{v+7}, 4, v{v+4}""")
    ONE = v + 12; FRG = v + 16; ACC_ = v + 48
    for i in range(4): k(f"  v_mov_b32 v{ONE+i}, 0x3f803f80")
    k.wait_vm("cs")
    for ks in range(4):
        for b in range(2):
            for tt in range(2):
                d = FRG + (ks*2 + b)*4 + 2*tt
                k(f"  ds_read_b64_tr_b16 v[{d}:{d+1}], v{v+8+b} offset:{ks*2048 + tt*512}")
        if ks == 2: k("  s_waitcnt lgkmcnt(4)")
    k("  s_waitcnt lgkmcnt(0)")
def cs_b(k):
    v = V_CS; ONE = v + 12; FRG = v + 16; ACC_ = v + 48
    for ks in range(4):
        for b in range(2):
            d = FRG + (ks*2 + b)*4
            c = "0" if ks == 0 else f"v[{ACC_+16*b}:{ACC_+16*b+15}]"
            k(f"  v_mfma_f32_32x32x16_bf16 v[{ACC_+16*b}:{ACC_+16*b+15}], v[{ONE}:{ONE+3}], v[{d}:{d+3}], {c}")
    k(f"""
  s_mul_i32 s41, s55, {L.NCOL*4}
  s_lshl_b32 s42, s54, 8
  s_add_u32 s41, s41, s42
  s_add_u32 s41, s41, {L.WS_CSP}
  v_lshlrev_b32 v{v}, 2, v1
  v_cmp_gt_u32 vcc, 32, v1
  v_mov_b32 v{v+1}, 0x7fff0000
  v_cndmask_b32 v{v}, v{v+1}, v{v}, vcc
  s_cmp_eq_u32 s50, -1
  s_cselect_b32 s42, 0x7fff0000, 0
  v_add_u32 v{v}, s42, v{v}""")
    k(f"  v_mov_b32 v{v+1}, 0x7fff0000\n  v_min_u32 v{v}, v{v}, v{v+1}")
    for b in range(2):
        if 'nocs' not in EXP: k.vmem(f"  buffer_store_dword v{ACC_+16*b}, v{v}, {R(R_WS)}, s41 offen offset:{128*b} sc1", "jst")

V_SW = 36
V_SWI = 108
SCR2 = WR + 2*16384
def sw_addr(k, n=0):
    sid, sS, sL, v = [(51, 56, 57, V_SWI), (49, 100, 101, V_SWI + 10)][n]; t = 41
    k.begin()
    k(f"""
  s_cmp_eq_u32 s{sid}, -1
  s_cselect_b32 s53, 0, s{sid}
  s_mul_i32 s{t}, s53, 6554
  s_lshr_b32 s{t}, s{t}, 16
  s_mul_i32 s{t+1}, s{t}, 10
  s_sub_u32 s{t+1}, s53, s{t+1}              ; lambda
  s_mov_b32 s{sS}, s{t}
  s_mov_b32 s{sL}, s{t+1}
  s_cmp_lt_u32 s{t}, 54
  s_cselect_b32 s{R_T}, s{R_W2}, s{R_WO}
  s_cselect_b32 s{R_T+1}, s{R_W2+1}, s{R_WO+1}
  s_cselect_b32 s{R_T+2}, s{R_W2+2}, s{R_WO+2}
  s_mov_b32 s{R_T+3}, 0x20000
  s_cmp_eq_u32 s{sid}, -1
  s_cselect_b32 s{R_T+2}, 0, s{R_T+2}
  v_lshrrev_b32 v{v}, 3, v1                  ; e
  v_and_b32 v{v+1}, 7, v1
  s_lshl_b32 s{t+2}, s{t+1}, 7
  v_lshl_add_u32 v{v+1}, v{v+1}, 4, s{t+2}
  s_cmp_lt_u32 s{t}, 54
  s_cbranch_scc0 {k.L('sw_wo%d' % n)}
  s_cmp_lt_u32 s{t}, 28
  s_cselect_b32 s{t+3}, 0, 28
  s_cselect_b32 s{t+4}, 0, 2
  s_sub_u32 s{t+3}, s{t}, s{t+3}
  s_lshr_b32 s{t+5}, s{t+3}, 1
  s_lshl_b32 s{t+5}, s{t+5}, 2
  s_and_b32 s{t+3}, s{t+3}, 1
  s_add_u32 s{t+5}, s{t+5}, s{t+3}
  s_add_u32 s{t+5}, s{t+5}, s{t+4}           ; F block
  v_lshrrev_b32 v{v+2}, 2, v{v}
  v_lshlrev_b32 v{v+2}, 3, v{v+2}
  v_and_b32 v{v+3}, 3, v{v}
  v_add_u32 v{v+2}, v{v+2}, v{v+3}
  s_lshl_b32 s{t+5}, s{t+5}, 5
  v_add_u32 v{v+2}, s{t+5}, v{v+2}""")
    for i in range(4): k(f"  v_add_u32 v{v+4+i}, {16*(i&1) + 4*(i>>1)}, v{v+2}")
    k(f"""
  s_branch {k.L('sw_go%d' % n)}
{k.L('sw_wo%d' % n)}:
  s_sub_u32 s{t+3}, s{t}, 54
  s_mul_i32 s{t+4}, s{t+3}, 52
  s_lshr_b32 s{t+4}, s{t+4}, 8
  s_mul_i32 s{t+5}, s{t+4}, 5
  s_sub_u32 s{t+5}, s{t+3}, s{t+5}
  s_lshl_b32 s{t+5}, s{t+5}, 3
  v_add_u32 v{v+2}, s{t+5}, v{v}
  v_cmp_le_u32 vcc, 20, v{v+2}
  v_cndmask_b32 v{v+3}, 0, 1, vcc
  v_mul_u32_u24 v{v+8}, 20, v{v+3}
  v_sub_u32 v{v+2}, v{v+2}, v{v+8}
  s_lshl_b32 s{t+4}, s{t+4}, 1
  v_add_u32 v{v+3}, s{t+4}, v{v+3}
  v_mul_u32_u24 v{v+3}, 80, v{v+3}
  v_add_u32 v{v+2}, v{v+2}, v{v+3}""")
    for i in range(4): k(f"  v_add_u32 v{v+4+i}, {20*i}, v{v+2}")
    k(f"{k.L('sw_go%d' % n)}:")
    for i in range(4): k(f"  v_mul_u32_u24 v{v+4+i}, 1280, v{v+4+i}\n  v_add_u32 v{v+4+i}, v{v+4+i}, v{v+1}")
    k.end()
def sw_dma(k, n=0):
    v = V_SWI + 10*n; scr = [87, 48][n]
    for i in range(4):
        k.begin()
        k(f"  s_add_u32 m0, s{scr}, {i*1024}")
        k.vmem(f"  buffer_load_dwordx4 v{v+4+i}, {R(R_T)}, 0 offen lds", ("sw", n))
        k.end()
def sw_proc1(k, n=0):
    v = V_SW + 40*n; t = 41; FRG = v + 16; sid = [51, 49][n]; scr = [87, 48][n]
    k(f"""
  v_lshrrev_b32 v{v}, 4, v1
  v_lshrrev_b32 v{v+1}, 2, v1
  v_and_b32 v{v+1}, 3, v{v+1}
  v_lshl_add_u32 v{v}, v{v}, 3, v{v+1}
  v_lshlrev_b32 v{v}, 7, v{v}
  v_and_b32 v{v+1}, 3, v1
  v_lshl_add_u32 v{v}, v{v+1}, 3, v{v}
  v_add_u32 v{v}, s{scr}, v{v}
  v_lshlrev_b32 v{v+1}, 4, v1
  s_cmp_eq_u32 s{sid}, -1
  s_cselect_b32 s{t}, 0x7fff0000, 0
  v_add_u32 v{v+1}, s{t}, v{v+1}""")
    k.wait_vm(("sw", n))
    for b in range(4):
        for tt in range(2):
            d = FRG + 4*b + 2*tt
            k(f"  ds_read_b64_tr_b16 v[{d}:{d+1}], v{v} offset:{32*b + 512*tt}")
    k("  s_waitcnt lgkmcnt(0)")
def sw_proc2(k, n=0):
    v = V_SW + 40*n; t = 41; FRG = v + 16; sS, sL = [(56, 57), (100, 101)][n]
    for b in range(4):
        k.begin()
        k(f"""
  s_lshl_b32 s{t}, s{sL}, 2
  s_add_u32 s{t}, s{t}, {b}
  s_mul_i32 s{t+1}, s{t}, 13
  s_lshr_b32 s{t+1}, s{t+1}, 6
  s_mul_i32 s{t+2}, s{t+1}, 5
  s_sub_u32 s{t+2}, s{t}, s{t+2}
  s_mul_i32 s{t+1}, s{t+1}, 74
  s_add_u32 s{t+1}, s{t+1}, s{sS}
  s_mul_i32 s{t+1}, s{t+1}, 5
  s_add_u32 s{t+1}, s{t+1}, s{t+2}
  s_lshl_b32 s{t+1}, s{t+1}, 10
  s_add_u32 s{t+1}, s{t+1}, {L.WS_W2}""")
        if 'nosw' not in EXP: k.vmem(f"  buffer_store_dwordx4 v[{FRG+4*b}:{FRG+4*b+3}], v{v+1}, {R(R_WS)}, s{t+1} offen sc1", "jst")
        k.end()
def zero_job(k):
    k(f"""
  s_mul_i32 s41, s40, 160
  s_add_u32 s41, s41, {L.WS_KV}
  v_lshlrev_b32 v56, 4, v1
  v_cmp_gt_u32 vcc, 10, v1
  v_mov_b32 v57, 0x7fff0000
  v_cndmask_b32 v58, v57, v56, vcc
  v_mov_b32 v60, 0
  v_mov_b32 v61, 0
  v_mov_b32 v62, 0
  v_mov_b32 v63, 0""")
    if 'nozero' not in EXP: k.vmem(f"  buffer_store_dwordx4 v[60:63], v58, {R(R_WS)}, s41 offen sc1", "jst")

def store_flag(k, cond_s, cond_val, addr_code, lbl):
    k.begin()
    k(f"  s_cmp_eq_u32 s{cond_s}, {cond_val}\n  s_cbranch_scc0 {k.L(lbl)}")
    k(addr_code)
    k(f"""
  v_mov_b32 v2, s41
  v_mov_b32 v0, 1
  s_mov_b64 exec, 1
  buffer_store_byte v0, v2, {R(R_WS)}, 0 offen sc1
  s_mov_b64 exec, -1
{k.L(lbl)}:""")
    k.end()

def poll_issue(k, vdst, addr_code, tag, only0=True):
    k.begin()
    k(addr_code)
    if only0:
        k(f"  s_cmp_eq_u32 s39, 0\n  s_cselect_b32 s41, 0, 0x7fff0000\n  v_or_b32 v{vdst+1}, s41, v{vdst+1}")
    k.vmem(f"  buffer_load_dword v{vdst}, v{vdst+1}, {R(R_WS)}, 0 offen sc1", tag)
    k.end()
def poll_check(k, vdst, tag, lbl, only0=True, slp=6):
    k.wait_vm(tag)
    saved = list(k.vm)
    if only0: k(f"  s_cmp_eq_u32 s39, 0\n  s_cbranch_scc0 {k.L(lbl+'_ok')}")
    k(f"""
  v_cmp_ne_u32 vcc, 0x01010101, v{vdst}
  s_cmp_eq_u64 vcc, 0
  s_cbranch_scc1 {k.L(lbl+'_ok')}
{k.L(lbl+'_sp')}:
  s_sleep {slp}
  buffer_load_dword v{vdst}, v{vdst+1}, {R(R_WS)}, 0 offen sc1
  s_waitcnt vmcnt(0)
  v_cmp_ne_u32 vcc, 0x01010101, v{vdst}
  s_cmp_eq_u64 vcc, 0
  s_cbranch_scc0 {k.L(lbl+'_sp')}
{k.L(lbl+'_ok')}:""")
    k.vm = saved
def lines(vdst, scode, n):
    return scode + f"\n  v_min_u32 v{vdst+1}, {n-1}, v1\n  v_lshlrev_b32 v{vdst+1}, 7, v{vdst+1}\n  v_add_u32 v{vdst+1}, s41, v{vdst+1}"
def words(vdst, scode, n):
    return scode + f"\n  v_lshlrev_b32 v{vdst+1}, 2, v1\n  v_min_u32 v{vdst+1}, {4*(n-1)}, v{vdst+1}\n  v_add_u32 v{vdst+1}, s41, v{vdst+1}"

def unit_of_slot(k, sg, sslot, su, sty, lbl):
    k(f"""
  s_lshl_b32 s{su}, s{sg}, 2
  s_add_u32 s{su}, s{su}, s{sslot}
  s_cmp_lt_u32 s{su}, 27
  s_cbranch_scc0 {k.L(lbl+'a')}
  s_mov_b32 s{sty}, 0
  s_add_u32 s{su}, s{su}, 30
  s_branch {k.L(lbl+'b')}
{k.L(lbl+'a')}:
  s_mov_b32 s{sty}, 2
  s_cmp_eq_u32 s{su}, 28
  s_cmov_b32 s{sty}, 1
  s_cmp_eq_u32 s{su}, 30
  s_cmov_b32 s{sty}, 1
  s_lshr_b32 s{su}, s{su}, 1
  s_sub_u32 s{su}, s{su}, 6
{k.L(lbl+'b')}:""")

vDx, vDx2, vDw, vG = 10, 11, 12, 20
NWS = 4

def loader_a_setup(k):
    k(f"""
  v_lshrrev_b32 v4, 3, v1
  v_lshrrev_b32 v5, 1, v4
  v_and_b32 v6, 7, v1
  v_xor_b32 v7, v6, v5
  v_mul_u32_u24 v8, 1280, v4
  v_lshl_add_u32 v{vDx}, v7, 4, v8
  v_xor_b32 v7, 4, v7
  v_lshl_add_u32 v{vDx2}, v7, 4, v8
  s_mul_i32 s101, s36, {128*1280}
  s_mul_i32 s47, s39, {32*1280}
  s_add_u32 s101, s101, s47
  s_lshl_b32 s47, s39, 12                  ; lw*4096""")
def loader_a_setup_w(k):
    k(f"""
  v_and_b32 v5, 1, v5
  v_lshlrev_b32 v5, 2, v5
  v_xor_b32 v6, v6, v5
  s_cmp_eq_u32 s37, 0
  s_cbranch_scc1 {k.L('ld_kv')}""")
    unit_of_slot(k, 38, 39, 48, 49, "uos")
    k(f"""
  s_cmp_eq_u32 s49, 0
  s_cselect_b32 s20, s{R_W1}, s{R_WQ}
  s_cselect_b32 s21, s{R_W1+1}, s{R_WQ+1}
  s_mov_b32 s44, 3840
  s_cmov_b32 s44, 3456
  s_cselect_b32 s22, s{R_W1+2}, s{R_WQ+2}
  s_cselect_b32 s58, 30, 0
  s_sub_u32 s58, s48, s58
  s_lshl_b32 s100, s58, 7
  s_cmp_eq_u32 s49, 2
  s_cmov_b32 s22, 0
  v_lshlrev_b32 v7, 4, v6
  s_lshl_b32 s58, s48, 6
  v_add_u32 v{vG}, s58, v1
  s_branch {k.L('ld_go')}
{k.L('ld_kv')}:
  s_mov_b32 s20, s{R_WQ}
  s_mov_b32 s21, s{R_WQ+1}
  s_mov_b32 s22, s{R_WQ+2}
  s_mov_b32 s44, 3840
  s_mov_b32 s100, 0
  ; position p' = 8 lw + p  ->  chunk c' = (p' & ~3) | inv(p')  (bank-conflict-free placement, see kvmap2.py)
  s_lshl_b32 s58, s39, 3
  v_add_u32 v7, s58, v6                    ; p'
  v_mov_b32 v8, 0x9c1b39b4
  v_mov_b32 v9, 0xd8e1e472
  v_cmp_gt_u32 vcc, 16, v7
  v_cndmask_b32 v8, v9, v8, vcc
  v_and_b32 v9, 15, v7
  v_lshlrev_b32 v9, 1, v9
  v_lshrrev_b32 v8, v9, v8
  v_and_b32 v8, 3, v8
  v_and_b32 v7, 0xfc, v7
  v_or_b32 v7, v7, v8                      ; c'
  s_mul_i32 s58, s38, 160
  s_add_u32 s59, s58, 1280                 ; k: 1280 + 160 j + 16 c'
  v_mov_b32 v8, s59
  s_add_u32 s59, s58, {2560 - 160}         ; v: 2560 + 160 j + 16 (c' - 10)
  v_mov_b32 v9, s59
  v_cmp_gt_u32 vcc, 10, v7
  v_cndmask_b32 v8, v9, v8, vcc
  v_mov_b32 v9, 0x7fff0000
  v_cmp_gt_u32 vcc, 20, v7
  v_cndmask_b32 v8, v9, v8, vcc
  s_lshl_b32 s59, s38, 7
  s_sub_u32 s59, s59, {24*16}              ; q: 128 j + 16 (c' - 24)
  v_mov_b32 v9, s59
  v_cmp_gt_u32 vcc, 24, v7
  v_cndmask_b32 v8, v9, v8, vcc
  v_lshl_add_u32 v7, v7, 4, v8
{k.L('ld_kvgc')}:
  v_and_b32 v12, 31, v1
  v_lshrrev_b32 v13, 5, v1
  s_and_b32 s58, s39, 1
  s_lshl_b32 s58, s58, 1
  v_add_u32 v13, s58, v13
  v_lshrrev_b32 v14, 3, v12
  v_lshl_add_u32 v14, v13, 2, v14
  v_lshrrev_b32 v15, 2, v12
  v_and_b32 v15, 1, v15
  s_lshr_b32 s59, s39, 1
  s_lshl_b32 s58, s59, 1
  v_add_u32 v16, s58, v15
  v_and_b32 v17, 3, v12
  v_mul_u32_u24 v18, 20, v16
  v_lshl_add_u32 v18, v14, 2, v18
  v_add_u32 v18, v18, v17
  s_mul_i32 s58, s38, 80
  v_add_u32 v18, s58, v18
  v_add_u32 v19, 640, v18
  v_add_u32 v21, {1280 - 20}, v18
  v_cmp_gt_u32 vcc, 5, v14
  v_cndmask_b32 v{vG}, v21, v19, vcc
  s_lshl_b32 s58, s59, 3
  v_lshl_add_u32 v21, v15, 2, s58
  v_add_u32 v21, v21, v14
  v_subrev_u32 v21, 10, v21
  v_lshl_add_u32 v21, v21, 2, v17
  s_lshl_b32 s58, s38, 6
  v_add_u32 v21, s58, v21
  v_cmp_gt_u32 vcc, 10, v14
  v_cndmask_b32 v{vG}, v21, v{vG}, vcc
  v_cmp_gt_u32 vcc, 14, v14
  v_cndmask_b32 v{vG}, 0, v{vG}, vcc
{k.L('ld_go')}:
  s_mov_b32 s23, 0x20000
  v_mul_lo_u32 v8, v4, s44
  v_add_u32 v{vDw}, v8, v7
  s_add_u32 s48, s47, {WR}
  s_lshl_b32 s49, s44, 3                   ; 8*stride""")

def gW(j):
    def mk(i):
        def f(k):
            k(f"  s_add_u32 m0, s48, {(j % NWS)*16384 + i*1024}")
            k.vmem(f"  buffer_load_dwordx4 v{vDw}, {R(R_W)}, s100 offen lds", ("W", j))
            k("  s_add_u32 s100, s100, s49")
        return f
    return [mk(i) for i in range(4)]
def gX(m):
    def mk(i):
        def f(k):
            k(f"  s_add_u32 m0, s47, {XR + (m % 3)*16384 + i*1024}\n  s_add_u32 s87, s101, {m*128 + i*8*1280}")
            k.vmem(f"  buffer_load_dwordx4 v{vDx if i % 2 == 0 else vDx2}, {R(R_X)}, s87 offen lds", ("X", m))
        return f
    return [mk(i) for i in range(4)]
def dW(k, j):
    for f in gW(j): f(k)
def dX(k, m):
    for f in gX(m): f(k)
def rec(k, fns):
    r = kb.Rec(k)
    for f in fns: f(r)
    return r.items

def t_issue(k):
    k(f"""
  v_lshlrev_b32 v21, 2, v{vG}
  v_subrev_u32 v22, 1920, v{vG}
  v_lshlrev_b32 v22, 1, v22
  s_lshl_b32 s58, s36, 7
  s_lshl_b32 s59, s39, 6
  s_add_u32 s58, s58, s59
  v_add_u32 v23, s58, v1
  v_lshlrev_b32 v23, 4, v23
  s_cmp_lt_u32 s39, 2
  s_cselect_b32 s59, 0, 0x7fff0000
  v_add_u32 v23, s59, v23""")
    for p in range(10):
        k.begin()
        k(f"  s_mov_b32 s58, {L.WS_CSP + p*L.NCOL*4}")
        k.vmem(f"  buffer_load_dword v{24+p}, v21, {R(R_WS)}, s58 offen sc1", "side")
        k.end()
    k.vmem(f"  buffer_load_ushort v34, v22, {R(R_B)}, 0 offen", "side")
    k.vmem(f"  buffer_load_dwordx4 v[36:39], v23, {R(R_WS)}, 0 offen sc1", "side")
def wphi_dma(k, head_code, dst, enable_kv_only):
    k.begin()
    k(head_code)
    k(f"""
  s_mul_i32 s58, s58, 800
  s_add_u32 s{R_T}, s{S_WPHI}, s58
  s_addc_u32 s{R_T+1}, s{S_WPHI+1}, 0
  s_and_b32 s{R_T+1}, s{R_T+1}, 0xffff
  s_mov_b32 s{R_T+2}, 800
  s_mov_b32 s{R_T+3}, 0x20000""")
    if enable_kv_only:
        k(f"  s_cmp_eq_u32 s37, 0\n  s_cselect_b32 s{R_T+2}, s{R_T+2}, 0")
    k(f"""
  v_lshlrev_b32 v40, 4, v1
  s_lshl_b32 s58, s39, 10
  s_add_u32 m0, s58, {dst}""")
    k.vmem(f"  buffer_load_dwordx4 v40, {R(R_T)}, 0 offen lds", "side")
    k.end()
def t_build1(k):
    k.wait_vm("side")
    k("  v_add_f32 v24, v24, v25")
    for p in range(2, 10): k(f"  v_add_f32 v24, v24, v{24+p}")
    k(f"""
  v_cvt_pk_bf16_f32 v25, v24, v24
  v_and_b32 v26, 0xffff0000, v25
  v_sub_f32 v26, v24, v26
  v_cvt_pk_bf16_f32 v28, v24, v26
  v_and_b32 v29, 0xffff, v25
  v_lshl_or_b32 v29, v34, 16, v29
  v_mov_b32 v30, v34
  v_mov_b32 v31, 0""")
def t_build2(k):
    k(f"""
  v_lshlrev_b32 v27, 4, v1
  s_lshl_b32 s58, s39, 10
  s_add_u32 s58, s58, {TT}
  v_add_u32 v27, s58, v27
  ds_write_b128 v27, v[28:31]
  v_mov_b32 v44, 0
  v_mov_b32 v45, 0
  v_mov_b32 v46, 0
  v_mov_b32 v47, 0
  v_add_u32 v27, {ZR - TT}, v27
  s_cmp_lt_u32 s39, 2
  s_cbranch_scc0 {k.L('ld_nost')}
  ds_write_b128 v27, v[44:47]
  v_add_u32 v27, {ST - ZR + 2**32 if ST < ZR else ST - ZR}, v27
  ds_write_b128 v27, v[36:39]
{k.L('ld_nost')}:
  s_waitcnt lgkmcnt(0)""")

def loader_a_start(k):
    loader_a_setup(k)
    loader_a_setup_w(k)
    k("  s_barrier")
    dX(k, 0); dW(k, 0); dW(k, 1)
    if CODE_PF:
        k(f"""
  s_cmp_eq_u32 s39, 3
  s_cbranch_scc0 {k.L('nopf')}
  s_getpc_b64 s[58:59]
{k.L('pc')}:
  s_sub_u32 s58, s58, {k.L('pc')}-{k.name}
  s_subb_u32 s59, s59, 0
  s_lshr_b32 s41, s2, 3
  s_and_b32 s41, s41, 7
  s_lshl_b32 s41, s41, 13
  v_lshl_add_u32 v50, v1, 7, s41
  v_min_u32 v50, {k.L('codeend')}-{k.name}-4, v50
  global_load_dword v51, v50, s[58:59]
{k.L('nopf')}:""")
    wphi_dma(k, "  s_lshl_b32 s58, s38, 2\n  s_add_u32 s58, s58, s39", WP, True)
    kb.stamp(k, 2)
    k.wait_vm(("W", 0))
    k("  s_barrier")
    kb.stamp(k, 3)
    dX(k, 1); dW(k, 2); dW(k, 3); dX(k, 2)
def loader_a(k):
    for j in range(20):
        if j + 1 <= 19:
            k.wait_vm(("W", j + 1))
            if (j + 1) % 2 == 0: k.wait_vm(("X", (j + 1)//2))
        if j == 16: poll_check(k, 52, "f2", "f2", slp=1)
        k("  s_barrier")
        groups = []
        if j + NWS <= 19: groups += gW(j + NWS)
        if j % 2 == 1 and (j + 1)//2 + 2 <= 9: groups += gX((j + 1)//2 + 2)
        fns = []
        if j == 14:
            fns.append(lambda k: poll_issue(k, 52, f"  v_lshrrev_b32 v53, 2, v1\n  v_lshlrev_b32 v53, 7, v53\n  v_and_b32 v54, 3, v1\n  v_lshl_add_u32 v53, v54, 2, v53\n  v_add_u32 v53, {FL_F2}, v53", "f2"))
        if j == 16: fns.append(t_issue)
        if j == 16: fns.append(loader_b_setup)
        if j == 18:
            fns.append(t_build1); fns.append(t_build2)
        if j in (17, 18, 19): groups += gWP(WPL[4*(j - 17):4*(j - 16)])
        kb.interleave(k, groups, rec(k, fns))
        kb.stamp(k, 16 + j)
CODE_PF = True
import os
EXP = os.environ.get('EXP', '')

VXA = [4, 5, 6, 7]; VXB = [8, 9, 10, 11]; VWA = [12, 13, 14, 15]
FX = [[80, 84], [104, 108]]
FW = [[88, 92, 96, 100], [112, 116, 120, 124]]
ACC = 128
WA_KV = 56
def acc(tb, b): return ACC + tb*64 + b*16

def a_reads(set_, st4, ks2):
    ksl = 2*(st4 & 1) + ks2
    r = []
    for tb in range(2):
        r.append(f"  ds_read_b128 v[{FX[set_][tb]}:{FX[set_][tb]+3}], v{VXA[ksl]} offset:{tb*4096}")
    for b in range(4):
        for t in range(2):
            d = FW[set_][b] + 2*t
            r.append(f"  ds_read_b64_tr_b16 v[{d}:{d+1}], v{VWA[b]} offset:{st4*16384 + ks2*2048 + t*512}")
    return r
def a_mfmas(cur, zero=False):
    return [f"  v_mfma_f32_32x32x16_bf16 v[{acc(tb,b)}:{acc(tb,b)+15}], v[{FW[cur][b]}:{FW[cur][b]+3}], v[{FX[cur][tb]}:{FX[cur][tb]+3}], " + ("0" if zero else f"v[{acc(tb,b)}:{acc(tb,b)+15}]")
            for b in range(4) for tb in range(2)]

def a_stage(k, st4, tail=None, pre_barrier=None, post_barrier=None, first=False):
    odd = st4 & 1
    mf = a_mfmas(0, zero=first); rd = a_reads(1, st4, 1)
    k("  s_waitcnt lgkmcnt(0)")
    sched = [2, 2, 2, 2, 1, 1, 0, 0]
    extra = []
    if odd:
        extra = [f"  v_add_u32 v{VXA[i]}, s47, v{VXB[i]}" for i in range(3)]
    for i, m in enumerate(mf):
        k(m)
        for _ in range(sched[i]): k(rd.pop(0))
        if i >= 5 and extra: k(extra.pop(0))
    mf = a_mfmas(1)
    k("  s_waitcnt lgkmcnt(0)")
    k(mf[0])
    if pre_barrier: k(pre_barrier)
    k("  s_barrier")
    if post_barrier: post_barrier(k)
    rd = a_reads(0, (st4 + 1) % 4, 0) if tail is None else list(tail)
    sched = [2, 2, 2, 2, 1, 1, 0]
    for i, m in enumerate(mf[1:]):
        for _ in range(sched[i]):
            if rd: k(rd.pop(0))
        k(m)
    while rd: k(rd.pop(0))
    if odd:
        k(f"  v_add_u32 v{VXA[3]}, s47, v{VXB[3]}")
        k("  s_add_u32 s47, s47, 16384\n  s_cmp_eq_u32 s47, 49152\n  s_cselect_b32 s47, 0, s47")

def compute_a(k):
    kb.stamp(k, 0, rt=True)
    k(f"""
  s_or_b32 s41, s2, s3
  s_cmp_eq_u32 s41, 0
  s_cbranch_scc0 {k.L('nog0')}
  v_lshlrev_b32 v4, 7, v1
  v_add_u32 v4, {FL}, v4
  v_mov_b32 v6, 0x7fff0000
  v_cmp_gt_u32 vcc, 16, v1
  v_cndmask_b32 v4, v6, v4, vcc
  v_mov_b32 v8, 0
  v_mov_b32 v9, 0
  v_mov_b32 v10, 0
  v_mov_b32 v11, 0
  buffer_store_dwordx4 v[8:11], v4, {R(R_WS)}, 0 offen sc1
  s_waitcnt vmcnt(0)
  v_mov_b32 v4, 0
  v_mov_b32 v5, 1
  s_mov_b64 exec, 1
  global_store_dword v4, v5, s[{S_DBG}:{S_DBG+1}] sc1
  s_mov_b64 exec, -1
{k.L('nog0')}:""")
    srd(k, R_W2, S_W2, 2211840)
    srd(k, R_WO, S_WO, 819200)
    job_ids(k)
    stats_issue(k); cs_issue(k)
    k("  s_barrier")
    vm_kv = list(k.vm)
    k(f"  s_cmp_eq_u32 s37, 0\n  s_cbranch_scc1 {k.L('nosw')}")
    sw_addr(k, 0); sw_dma(k, 0); sw_addr(k, 1); sw_dma(k, 1)
    k.label("nosw")
    vm_g = list(k.vm)
    kb.stamp(k, 62)
    k(f"""
  s_lshr_b32 s43, s39, 1                   ; Th
  s_and_b32 s44, s39, 1                    ; Fh
  v_and_b32 v16, 31, v1                    ; n
  v_lshrrev_b32 v17, 5, v1                 ; hh
  v_lshrrev_b32 v18, 1, v16
  v_and_b32 v18, 7, v18
  v_xor_b32 v18, v17, v18
  v_lshlrev_b32 v18, 4, v18
  v_lshl_add_u32 v18, v16, 7, v18
  s_lshl_b32 s45, s43, 13
  v_add_u32 v{VXB[0]}, s45, v18
  v_xor_b32 v{VXB[1]}, 32, v{VXB[0]}
  v_xor_b32 v{VXB[2]}, 64, v{VXB[0]}
  v_xor_b32 v{VXB[3]}, 96, v{VXB[0]}
  v_mov_b32 v{VXA[0]}, v{VXB[0]}
  v_mov_b32 v{VXA[1]}, v{VXB[1]}
  v_mov_b32 v{VXA[2]}, v{VXB[2]}
  v_mov_b32 v{VXA[3]}, v{VXB[3]}
  s_mov_b32 s47, 16384
  v_lshrrev_b32 v18, 4, v1                 ; G
  v_lshrrev_b32 v19, 2, v1
  v_and_b32 v19, 3, v19                    ; r
  v_and_b32 v20, 3, v1                     ; c
  v_lshrrev_b32 v21, 1, v18
  v_lshl_add_u32 v21, v21, 3, v19
  v_lshlrev_b32 v21, 7, v21
  v_add_u32 v21, {WR}, v21
  v_lshrrev_b32 v22, 1, v19
  v_lshlrev_b32 v22, 2, v22
  v_and_b32 v23, 1, v18
  v_lshlrev_b32 v23, 1, v23
  v_lshrrev_b32 v24, 1, v20
  v_add_u32 v23, v23, v24                  ; j'
  v_and_b32 v24, 1, v20                    ; hh'
  s_cmp_eq_u32 s37, 0
  s_cbranch_scc1 {k.L('c_kv')}""")
    for b in range(4):
        k(f"""
  v_add_u32 v25, {4*(b&1)}, v23
  v_xor_b32 v25, v25, v22
  v_lshl_add_u32 v25, v25, 4, v21
  v_lshl_add_u32 v25, v24, 3, v25
  s_lshl_b32 s45, s44, 13
  s_add_u32 s45, s45, {(b>>1)*4096}
  v_add_u32 v{VWA[b]}, s45, v25""")
    k(f"  s_branch {k.L('c_go')}\n{k.L('c_kv')}:")
    k(f"  s_lshl_b32 s45, s44, 1\n  v_add_u32 v26, s45, v24\n  v_mul_u32_u24 v26, 5, v26")
    for b in range(4):
        k(f"""
  v_add_u32 v27, {4*b}, v23
  v_add_u32 v28, v26, v27
  v_add_u32 v29, 15, v28
  v_cmp_gt_u32 vcc, 5, v27
  v_cndmask_b32 v28, v29, v28, vcc
  s_lshl_b32 s45, s44, 3
  v_lshl_add_u32 v29, v24, 2, s45
  v_add_u32 v29, v29, v27
  v_add_u32 v29, {48 - 10}, v29
  v_cmp_gt_u32 vcc, 10, v27
  v_cndmask_b32 v28, v29, v28, vcc
  v_cmp_gt_u32 vcc, 14, v27
  v_add_u32 v29, 42, v24
  v_cndmask_b32 v28, v29, v28, vcc
  v_lshrrev_b32 v30, 1, v28                ; chunk c'
  v_mov_b32 v29, 0x781b93b4
  v_mov_b32 v31, 0xd8e1e48d
  v_cmp_gt_u32 vcc, 16, v30
  v_cndmask_b32 v29, v31, v29, vcc
  v_and_b32 v31, 15, v30
  v_lshlrev_b32 v31, 1, v31
  v_lshrrev_b32 v29, v31, v29
  v_and_b32 v29, 3, v29
  v_and_b32 v30, 0xfc, v30
  v_or_b32 v30, v30, v29                   ; position p'
  v_lshrrev_b32 v29, 3, v30                ; VU
  v_and_b32 v30, 7, v30
  v_xor_b32 v30, v30, v22
  v_and_b32 v31, 1, v28
  v_lshl_add_u32 v30, v30, 4, v21
  v_lshl_add_u32 v30, v31, 3, v30
  v_lshl_add_u32 v{VWA[b]}, v29, 12, v30""")
    k(f"{k.L('c_go')}:")
    k(f"""
  s_lshl_b32 s45, s43, 10
  s_add_u32 s45, s45, {ST}
  v_lshl_add_u32 v32, v16, 4, s45
  s_lshl_b32 s45, s44, 11
  s_add_u32 s45, s45, {TT}
  v_lshl_add_u32 v33, v16, 4, s45
  v_mov_b32 v34, {ZR}
  v_cmp_eq_u32 vcc, 0, v17
  v_cndmask_b32 v33, v34, v33, vcc
  v_lshrrev_b32 v25, 1, v18                ; hh_k
  s_lshl_b32 s45, s44, 1
  v_add_u32 v26, s45, v24
  v_lshlrev_b32 v26, 10, v26
  v_add_u32 v26, {WP}, v26
  v_mul_u32_u24 v27, 40, v19
  v_add_u32 v27, v27, v26
  v_lshl_add_u32 v27, v23, 3, v27
  v_mov_b32 v28, {ZR}
  v_cmp_eq_u32 vcc, v24, v25
  v_cndmask_b32 v35, v28, v27, vcc
  v_add_u32 v30, 32, v27
  v_cmp_eq_u32 s[58:59], 0, v23
  s_and_b64 vcc, vcc, s[58:59]
  v_cndmask_b32 v31, v28, v30, vcc""")
    kb.stamp(k, 15)
    def stats_cs():
        A_ = rec(k, [stats_a1, stats_a2, stats_b, stats_c, stats_d]); B_ = rec(k, [cs_a, cs_b])
        k.wait_vm("cs")
        na, nb = len(A_), len(B_); ia = ib = 0
        while ia < na or ib < nb:
            for _ in range(2):
                if ia < na: kb.replay(k, A_[ia]); ia += 1
            if ib < nb and (ib + 1)*na <= (ia + 2)*nb*1.0 + na: kb.replay(k, B_[ib]); ib += 1
            elif ia >= na and ib < nb: kb.replay(k, B_[ib]); ib += 1
    k(f"  s_cmp_eq_u32 s37, 0\n  s_cbranch_scc1 {k.L('jobs_kv')}")
    k.vm = vm_g
    stats_cs()
    kb.stamp(k, 59)
    sw_proc1(k, 0); sw_proc1(k, 1); kb.stamp(k, 61); sw_proc2(k, 0); sw_proc2(k, 1)
    k(f"  s_branch {k.L('jobs_done')}")
    k.label("jobs_kv")
    k.vm = vm_kv
    base_ = k.name
    k.lname = base_ + "_jk"
    stats_a1(k); stats_a2(k); stats_b(k); stats_c(k); stats_d(k)
    k(f"  s_cmp_eq_u32 s50, -1\n  s_cbranch_scc1 {k.L('nocs')}")
    cs_a(k); cs_b(k)
    k.label("nocs")
    k.lname = None
    k.label("jobs_done")
    k(f"""
  s_mul_i32 s41, s2, 3
  s_add_u32 s41, s41, 16
  v_add_u32 v36, s41, v1                   ; line
  v_cmp_gt_u32 vcc, {NFL}, v36
  s_mov_b64 s[58:59], vcc
  v_cmp_gt_u32 vcc, 3, v1
  s_and_b64 vcc, vcc, s[58:59]
  s_cmp_eq_u32 s39, 1
  s_cselect_b64 s[58:59], -1, 0
  s_and_b64 vcc, vcc, s[58:59]
  v_lshlrev_b32 v36, 7, v36
  v_add_u32 v36, {FL}, v36
  v_mov_b32 v37, 0x7fff0000
  v_cndmask_b32 v36, v37, v36, vcc
  v_mov_b32 v38, 0
  buffer_store_dword v38, v36, {R(R_WS)}, 0 offen sc1""")
    k("  v_mov_b32 v48, 0\n  s_lshr_b32 s43, s39, 1\n  s_and_b32 s44, s39, 1")
    k(f"  global_load_dword v49, v48, s[{S_DBG}:{S_DBG+1}] sc1")
    k.vm = []
    kb.stamp(k, 2)
    k("  s_barrier")
    kb.stamp(k, 3)
    kb.stamp(k, 40, rt=True)
    for l in a_reads(0, 0, 0): k(l)
    a_stage(k, 0, first=True)
    for st4 in (1, 2, 3): a_stage(k, st4)
    k("  s_mov_b32 s46, 1\n.p2align 3")
    k.label("kloop")
    pre = f"""  s_cmp_eq_u32 s46, 2
  s_cbranch_scc0 {k.L('f2n1')}
  s_waitcnt vmcnt(0)
{k.L('f2n1')}:"""
    def post(k):
        k(f"""
  s_lshl_b32 s41, s46, 2
  s_or_b32 s41, s41, s39
  s_cmp_eq_u32 s41, 8
  s_cbranch_scc0 {k.L('f2n2')}
  v_readfirstlane_b32 s53, v49
  s_cmp_eq_u32 s53, 1
  s_cbranch_scc1 {k.L('f2go')}
{k.L('f2g0')}:
  s_sleep 4
  global_load_dword v49, v48, s[{S_DBG}:{S_DBG+1}] sc1
  s_waitcnt vmcnt(0)
  v_readfirstlane_b32 s53, v49
  s_cmp_eq_u32 s53, 1
  s_cbranch_scc0 {k.L('f2g0')}
{k.L('f2go')}:
  s_lshr_b32 s41, s2, 4
  s_lshl_b32 s41, s41, 7
  s_and_b32 s42, s2, 15
  s_add_u32 s41, s41, s42
  s_add_u32 s41, s41, {FL_F2}
  v_mov_b32 v2, s41
  v_mov_b32 v0, 1
  s_mov_b64 exec, 1
  buffer_store_byte v0, v2, {R(R_WS)}, 0 offen sc1
  s_mov_b64 exec, -1
{k.L('f2n2')}:""")
    for st4 in range(4): a_stage(k, st4, pre_barrier=(pre if st4 == 0 else None), post_barrier=(post if st4 == 0 else None))
    k(f"  s_add_u32 s46, s46, 1\n  s_cmp_lt_u32 s46, 4\n  s_cbranch_scc1 {k.L('kloop')}")
    for st4 in range(3): a_stage(k, st4)
    tail = [f"  ds_read_b128 v[{36+4*tb}:{39+4*tb}], v32 offset:{tb*512}" for tb in range(2)] + \
           [f"  ds_read_b128 v[{FW[0][b]}:{FW[0][b]+3}], v33 offset:{b*512}" for b in range(4)]
    a_stage(k, 3, tail=tail)
    for beta in range(2):
        for st in range(3):
            for t in range(2):
                d0 = 8*st + 4*t; reg = WA_KV + (beta*3 + st)*4 + 2*t
                if d0 < 20: k(f"  ds_read_b64_tr_b16 v[{reg}:{reg+1}], v{35 if beta == 0 else 31} offset:{d0*40}")
                else: k(f"  v_mov_b32 v{reg}, 0\n  v_mov_b32 v{reg+1}, 0")
    k("  s_waitcnt lgkmcnt(10)")
    kb.stamp(k, 4)
    kb.stamp(k, 42, rt=True)
    for tb in range(2):
        s = 36 + 4*tb; d = FX[0][tb]
        k(f"""
  v_rcp_f32 v44, v{s+2}
  v_sub_f32 v45, 0, v{s}
  v_cvt_pk_bf16_f32 v{d}, v45, v45
  v_and_b32 v46, 0xffff0000, v{d}
  v_sub_f32 v46, v45, v46
  v_cvt_pk_bf16_f32 v47, v44, v44
  v_and_b32 v48, 0xffff0000, v47
  v_sub_f32 v48, v44, v48
  v_cvt_pk_bf16_f32 v{d+1}, v46, v44
  v_cvt_pk_bf16_f32 v{d+2}, v48, 0
  v_mov_b32 v{d+3}, 0
  v_mov_b32 v{s+3}, v44
  v_cmp_eq_u32 vcc, 0, v17
  v_cndmask_b32 v{d}, 0, v{d}, vcc
  v_cndmask_b32 v{d+1}, 0, v{d+1}, vcc
  v_cndmask_b32 v{d+2}, 0, v{d+2}, vcc""")
    for m in a_mfmas(0): k(m)
    k(f"  s_cmp_eq_u32 s37, 0\n  s_cbranch_scc1 {k.L('epi_kv')}")
    epi_g(k)
    k(f"  s_branch {k.L('phase_b')}")
    k.label("epi_kv")
    epi_kv(k)
    k.label("phase_b")

def gelu_block(k, a, dst):
    T = 60
    for p in range(0, 16, 8):
        prs = [(a + p + 2*i, T + 2*i) for i in range(4)]
        for (x, t) in prs: k(f"  v_pk_mul_f32 v[{t}:{t+1}], v[{x}:{x+1}], v[{x}:{x+1}]")
        for (x, t) in prs: k(f"  v_pk_fma_f32 v[{t}:{t+1}], v[{t}:{t+1}], v[52:53], v[50:51]")
        for (x, t) in prs: k(f"  v_pk_mul_f32 v[{t}:{t+1}], v[{t}:{t+1}], v[{x}:{x+1}]")
        for i in range(8): k(f"  v_exp_f32 v{T+i}, v{T+i}")
        for (x, t) in prs: k(f"  v_pk_fma_f32 v[{t}:{t+1}], v[{t}:{t+1}], v[54:55], v[54:55]")
        for i in range(8): k(f"  v_rcp_f32 v{T+i}, v{T+i}")
        for (x, t) in prs: k(f"  v_pk_mul_f32 v[{t}:{t+1}], v[{t}:{t+1}], v[{x}:{x+1}]")
        for n_, (x, t) in enumerate(prs): k(f"  v_cvt_pk_bf16_f32 v{dst + p//2 + n_}, v{t}, v{t+1}")

def epi_g_part(k, uu, tb, wait_older=False):
    n = f"{uu}{tb}"
    k(f"""
  s_lshl_b32 s50, s44, 1
  s_add_u32 s50, s50, {uu}
  s_lshl_b32 s51, s38, 2
  s_add_u32 s51, s51, s50                  ; u_lin
  s_cmp_lt_u32 s51, 27
  s_cbranch_scc1 {k.L('g_w1_' + n)}
  s_bitcmp1_b32 s51, 0
  s_cbranch_scc1 {k.L('g_none_' + n)}
  s_cmp_lt_u32 s51, 28
  s_cbranch_scc1 {k.L('g_none_' + n)}
  s_lshr_b32 s51, s51, 1
  s_sub_u32 s51, s51, 6
  s_add_u32 s52, s48, {2*tb}
  s_mul_i32 s52, s52, 160
  s_lshl_b32 s53, s51, 4
  s_add_u32 s52, s52, s53
  s_lshl_b32 s52, s52, 7
  s_add_u32 s52, s52, {L.WS_Q}""")
    for bb in range(2):
        a = acc(tb, 2*uu + bb)
        for jp in range(4):
            r = 60 + 2*(jp % 4)
            k(f"  v_cvt_pk_bf16_f32 v{r}, v{a+4*jp}, v{a+4*jp+1}\n  v_cvt_pk_bf16_f32 v{r+1}, v{a+4*jp+2}, v{a+4*jp+3}")
            k(f"  buffer_store_dwordx2 v[{r}:{r+1}], v59, {R(R_WS)}, s52 offen offset:{bb*1024 + jp*256} sc1")
    if wait_older: k("  s_waitcnt vmcnt(8)")
    k(f"  s_branch {k.L('g_done_' + n)}\n{k.L('g_none_' + n)}:")
    if wait_older: k("  s_waitcnt vmcnt(0)")
    k(f"  s_branch {k.L('g_done_' + n)}\n{k.L('g_w1_' + n)}:")
    s_ = 36 + 4*tb
    k(f"""
  s_and_b32 s53, s51, 1
  s_mul_i32 s53, s53, 27
  s_add_u32 s51, s51, s53
  v_mul_f32 v50, {fl(C0)}, v{s_+2}
  v_mul_f32 v52, v{s_+2}, v{s_+2}
  v_mul_f32 v52, v52, v{s_+2}
  v_mov_b32 v51, v50
  v_mul_f32 v52, {fl(C1)}, v52
  v_mov_b32 v54, v{s_+3}
  v_mov_b32 v55, v{s_+3}
  v_mov_b32 v53, v52
  s_add_u32 s52, s48, {2*tb}
  s_mul_i32 s52, s52, 74
  s_add_u32 s52, s52, s51
  s_lshl_b32 s52, s52, 10
  s_add_u32 s52, s52, {L.WS_HO}""")
    for bb in range(2):
        a = acc(tb, 2*uu + bb)
        d = 68 if bb == 0 else 20
        gelu_block(k, a, d)
        k(f"  buffer_store_dwordx4 v[{d}:{d+3}], v58, {R(R_WS)}, s52 offen offset:{bb*1024} sc1")
        k(f"  buffer_store_dwordx4 v[{d+4}:{d+7}], v58, {R(R_WS)}, s52 offen offset:{bb*1024 + 256} sc1")
    if wait_older: k("  s_waitcnt vmcnt(4)")
    k(f"{k.L('g_done_' + n)}:")

def epi_g(k):
    if 'delayG' in EXP: k("  s_sleep 39")
    k(f"""
  s_waitcnt lgkmcnt(0)
  v_lshrrev_b32 v56, 4, v16
  v_and_b32 v57, 15, v16
  v_mul_u32_u24 v58, {74*1024}, v56
  v_lshl_add_u32 v58, v17, 9, v58
  v_lshl_add_u32 v58, v57, 4, v58
  v_mul_u32_u24 v59, {160*128}, v56
  v_lshl_add_u32 v59, v17, 7, v59
  v_lshl_add_u32 v59, v57, 3, v59
  s_lshl_b32 s48, s36, 3
  s_lshl_b32 s49, s43, 2
  s_add_u32 s48, s48, s49""")
    decode_b(k)
    epi_g_part(k, 0, 0); epi_g_part(k, 0, 1)
    epi_g_part(k, 1, 0, wait_older=True)
    k("  s_barrier")
    kb.stamp(k, 5)
    store_flag(k, 39, 0, f"  s_lshl_b32 s41, s36, 1\n  s_lshr_b32 s42, s38, 2\n  s_add_u32 s41, s41, s42\n  s_lshl_b32 s41, s41, 7\n  s_and_b32 s42, s38, 3\n  s_add_u32 s41, s41, s42\n  s_add_u32 s41, s41, {FL_H1}", "fh1")
    epi_g_part(k, 1, 1)
    kb.stamp(k, 8)
    k("  s_barrier")

def epi_kv(k):
    if 'delayK' in EXP: k("  s_sleep 39")
    decode_b(k)
    WA = WA_KV; KB_ = 80
    k(f"""
  s_lshl_b32 s45, s43, 6
  v_add_u32 v32, s45, v16
  s_lshl_b32 s45, s44, 1
  v_add_u32 v33, s45, v17
  v_mul_u32_u24 v34, {PHI_P}, v32
  v_mul_u32_u24 v35, 80, v33
  v_add_u32 v34, v34, v35
  v_add_u32 v34, {PHI}, v34
  v_mul_u32_u24 v35, {VV_P}, v32
  v_mul_u32_u24 v33, 48, v33
  v_add_u32 v35, v35, v33
  v_add_u32 v35, {VV}, v35""")
    for tb in range(2):
        a = ACC + tb*64
        for i in range(10): k(f"  v_cvt_pk_bf16_f32 v{KB_+12*tb+i}, v{a+2*i}, v{a+2*i+1}")
        k(f"  v_mov_b32 v{KB_+12*tb+10}, 0\n  v_mov_b32 v{KB_+12*tb+11}, 0")
    k(f"""
  v_lshrrev_b32 v2, 4, v16
  v_and_b32 v0, 15, v16
  v_mul_u32_u24 v18, {160*128}, v2
  v_lshl_add_u32 v18, v17, 9, v18
  v_lshl_add_u32 v18, v0, 3, v18
  s_lshl_b32 s48, s36, 3
  s_lshl_b32 s49, s43, 2
  s_add_u32 s48, s48, s49""")
    for tb in range(2):
        k(f"""
  s_add_u32 s52, s48, {2*tb}
  s_mul_i32 s52, s52, 160
  s_lshl_b32 s53, s38, 4
  s_add_u32 s52, s52, s53
  s_lshl_b32 s53, s44, 3
  s_add_u32 s52, s52, s53
  s_lshl_b32 s52, s52, 7
  s_add_u32 s52, s52, {L.WS_Q}""")
        a = ACC + tb*64 + 40
        for g in range(4):
            r = 104 + 8*tb + 2*g
            k(f"  v_cvt_pk_bf16_f32 v{r}, v{a+4*g}, v{a+4*g+1}\n  v_cvt_pk_bf16_f32 v{r+1}, v{a+4*g+2}, v{a+4*g+3}")
            k(f"  buffer_store_dwordx2 v[{r}:{r+1}], v18, {R(R_WS)}, s52 offen offset:{g*128} sc1")
    k("  s_waitcnt lgkmcnt(0)")
    B1 = [112, 18]
    for st in range(3):
        for tb in range(2):
            for beta in range(2):
                d = (ACC + tb*64 + 40) if beta == 0 else B1[tb]
                c = "0" if st == 0 else f"v[{d}:{d+15}]"
                w = WA + (beta*3 + st)*4
                k(f"  v_mfma_f32_32x32x16_bf16 v[{d}:{d+15}], v[{w}:{w+3}], v[{KB_+12*tb+4*st}:{KB_+12*tb+4*st+3}], {c}")
    VB = 44
    for tb in range(2):
        a = ACC + tb*64; s_ = 36 + 4*tb
        k(f"  v_mov_b32 v4, v{s_+1}\n  v_mov_b32 v5, v{s_+1}")
        for i in range(10): k(f"  v_pk_mul_f32 v[{a+20+2*i}:{a+21+2*i}], v[{a+20+2*i}:{a+21+2*i}], v[4:5]")
        for i in range(10): k(f"  v_cvt_pk_bf16_f32 v{VB+i}, v{a+20+2*i}, v{a+21+2*i}")
        k(f"  v_mov_b32 v{VB+10}, 0x3f80\n  v_mov_b32 v{VB+11}, 0")
        for c in range(3): k(f"  ds_write_b128 v35, v[{VB+4*c}:{VB+4*c+3}] offset:{tb*32*VV_P + 16*c}")
    for tb in range(2):
        a = ACC + tb*64; s_ = 36 + 4*tb
        for i in range(4): k(f"  v_mov_b32 v{a+56+i}, v{B1[tb]+i}")
        PH = 80 + 0
        softmax_pair(k, [a + 40 + i for i in range(20)], s_ + 1, a, PH, T=44)
        for c in range(5): k(f"  ds_write_b128 v34, v[{PH+4*c}:{PH+4*c+3}] offset:{tb*32*PHI_P + 16*c}")
        if tb == 0:
            k(f"""
  s_waitcnt vmcnt(0)
  s_lshl_b32 s41, s36, 1
  s_add_u32 s41, s41, s43
  s_lshl_b32 s41, s41, 2
  s_lshr_b32 s42, s38, 1
  s_add_u32 s41, s41, s42
  s_lshl_b32 s41, s41, 7
  s_and_b32 s42, s38, 1
  s_lshl_b32 s42, s42, 1
  s_add_u32 s41, s41, s42
  s_add_u32 s41, s41, s44
  s_add_u32 s41, s41, {FL_Q}
  v_mov_b32 v2, s41
  v_mov_b32 v0, 1
  s_mov_b64 exec, 1
  buffer_store_byte v0, v2, {R(R_WS)}, 0 offen sc1
  s_mov_b64 exec, -1""")
    k("  s_waitcnt lgkmcnt(0)\n  s_barrier")
    kb.stamp(k, 5)
    k(f"""
  v_lshrrev_b32 v18, 4, v1
  v_lshrrev_b32 v19, 2, v1
  v_and_b32 v19, 3, v19
  v_and_b32 v20, 3, v1
  v_lshrrev_b32 v21, 1, v18
  v_lshl_add_u32 v21, v21, 3, v19
  v_and_b32 v22, 1, v18
  v_lshlrev_b32 v22, 2, v22
  v_add_u32 v22, v22, v20
  v_mul_u32_u24 v23, {PHI_P}, v21
  s_mul_i32 s45, s39, 80
  s_add_u32 s45, s45, {PHI}
  v_add_u32 v23, s45, v23
  v_lshl_add_u32 v24, v22, 3, v23
  v_and_b32 v25, 1, v22
  v_lshl_add_u32 v25, v25, 3, v23
  v_add_u32 v25, 64, v25
  v_mul_u32_u24 v26, {VV_P}, v21
  s_mul_i32 s45, s39, 48
  s_add_u32 s45, s45, {VV}
  v_add_u32 v26, s45, v26
  v_min_u32 v27, 5, v22
  v_lshl_add_u32 v26, v27, 3, v26""")
    KA = 48; FA = 128
    def rd(st):
        base = FA + st*12
        for t in range(2):
            tok = 16*st + 4*t
            k(f"  ds_read_b64_tr_b16 v[{base+2*t}:{base+2*t+1}], v24 offset:{tok*PHI_P}")
            k(f"  ds_read_b64_tr_b16 v[{base+4+2*t}:{base+5+2*t}], v25 offset:{tok*PHI_P}")
            k(f"  ds_read_b64_tr_b16 v[{base+8+2*t}:{base+9+2*t}], v26 offset:{tok*VV_P}")
    rd(0); rd(1)
    k(f"""
  v_lshlrev_b32 v28, 2, v16
  v_mul_u32_u24 v29, {4*96}, v17
  v_add_u32 v28, v28, v29
  s_mul_i32 s46, s39, 3840
  s_add_u32 s46, s46, {KPS}
  v_add_u32 v28, s46, v28
  v_lshlrev_b32 v30, 4, v1
  v_add_u32 v31, s46, v30
  s_lshl_b32 s45, s38, 4
  s_add_u32 s45, s45, s36                  ; j*16 + i
  s_mul_i32 s45, s45, 160
  s_mul_i32 s46, s39, 40
  s_add_u32 s45, s45, s46
  s_mul_i32 s45, s45, 96
  s_add_u32 s45, s45, {L.WS_KP}""")
    for st in range(8):
        k(f"  s_waitcnt lgkmcnt({6 if st < 7 else 0})")
        base = FA + st*12
        for beta in range(2):
            c = "0" if st == 0 else f"v[{KA+16*beta}:{KA+16*beta+15}]"
            k(f"  v_mfma_f32_32x32x16_bf16 v[{KA+16*beta}:{KA+16*beta+15}], v[{base+4*beta}:{base+4*beta+3}], v[{base+8}:{base+11}], {c}")
        if st + 2 < 8: rd(st + 2)
    k("  v_cmp_gt_u32 vcc, 24, v16\n  s_and_saveexec_b64 s[50:51], vcc")
    for jp in range(4):
        for i in range(4):
            k(f"  ds_write_b32 v28, v{KA+4*jp+i} offset:{(8*jp+i)*96}")
    for i in range(4):
        k(f"  ds_write_b32 v28, v{KA+16+i} offset:{(32+i)*96}")
    k("  s_mov_b64 exec, s[50:51]\n  s_waitcnt lgkmcnt(0)")
    for r in range(4): k(f"  ds_read_b128 v[{80+4*r}:{83+4*r}], v31 offset:{r*1024}")
    k("  v_mov_b32 v29, 0x7fff0000\n  v_cmp_gt_u32 vcc, 48, v1\n  v_cndmask_b32 v29, v29, v30, vcc")
    for r in range(4):
        k(f"  s_waitcnt lgkmcnt({3-r})")
        k(f"  buffer_store_dwordx4 v[{80+4*r}:{83+4*r}], v{30 if r < 3 else 29}, {R(R_WS)}, s45 offen offset:{r*1024} sc1")
    kb.stamp(k, 8)
    k("  s_barrier")

def softmax_1(k, P, vr1, E, T=44):
    k(f"  v_max3_f32 v{T+0}, v{P[0]}, v{P[1]}, v{P[2]}\n  v_min3_f32 v{T+1}, v{P[0]}, v{P[1]}, v{P[2]}")
    k(f"  v_max3_f32 v{T+2}, v{P[3]}, v{P[4]}, v{P[5]}\n  v_min3_f32 v{T+3}, v{P[3]}, v{P[4]}, v{P[5]}")
    for i in range(6, 18, 4):
        k(f"  v_max3_f32 v{T+0}, v{T+0}, v{P[i]}, v{P[i+1]}\n  v_min3_f32 v{T+1}, v{T+1}, v{P[i]}, v{P[i+1]}")
        k(f"  v_max3_f32 v{T+2}, v{T+2}, v{P[i+2]}, v{P[i+3]}\n  v_min3_f32 v{T+3}, v{T+3}, v{P[i+2]}, v{P[i+3]}")
    k(f"  v_max3_f32 v{T+0}, v{T+0}, v{P[18]}, v{P[19]}\n  v_min3_f32 v{T+1}, v{T+1}, v{P[18]}, v{P[19]}")
    k(f"  v_max_f32 v{T+0}, v{T+0}, v{T+2}\n  v_min_f32 v{T+1}, v{T+1}, v{T+3}")
    k(f"""
  v_mul_f32 v{T+2}, {fl(LOG2E)}, v{vr1}
  v_mov_b32 v{T+3}, v{T+2}
  v_mul_f32 v2, v{T+0}, v{T+2}
  v_mul_f32 v0, v{T+1}, v{T+2}
  v_sub_f32 v{T+0}, 0, v2
  v_sub_f32 v{T+1}, 0, v2""")
    for i in range(10):
        k(f"  v_pk_fma_f32 v[{E+2*i}:{E+2*i+1}], v[{P[2*i]}:{P[2*i]+1}], v[{T+2}:{T+3}], v[{T}:{T+1}]")
    k(f"  v_mov_b32 v{T+0}, v0\n  v_mov_b32 v{T+1}, v0")
    for i in range(10):
        k(f"  v_pk_fma_f32 v[{E+20+2*i}:{E+21+2*i}], v[{P[2*i]}:{P[2*i]+1}], v[{T+2}:{T+3}], v[{T}:{T+1}] neg_lo:[1,0,0] neg_hi:[1,0,0]")
    for i in range(20): k(f"  v_exp_f32 v{E+i}, v{E+i}")
def softmax_2(k, E, T=44):
    for i in range(20, 40): k(f"  v_exp_f32 v{E+i}, v{E+i}")
    for h_ in range(2):
        b0 = E + 20*h_; d = T + 2*h_
        k(f"  v_pk_add_f32 v[{d}:{d+1}], v[{b0}:{b0+1}], v[{b0+2}:{b0+3}]")
    for i in range(2, 10):
        for h_ in range(2):
            b0 = E + 20*h_; d = T + 2*h_
            k(f"  v_pk_add_f32 v[{d}:{d+1}], v[{d}:{d+1}], v[{b0+2*i}:{b0+2*i+1}]")
    k(f"  v_add_f32 v{T+0}, v{T+0}, v{T+1}\n  v_add_f32 v{T+2}, v{T+2}, v{T+3}\n  v_rcp_f32 v{T+0}, v{T+0}\n  v_rcp_f32 v{T+2}, v{T+2}")
    k(f"  v_mov_b32 v{T+1}, v{T+0}\n  v_mov_b32 v{T+3}, v{T+2}")
def softmax_3(k, E, PH, T=44):
    for i in range(10):
        for h_ in range(2):
            b0 = E + 20*h_; d = T + 2*h_
            k(f"  v_pk_mul_f32 v[{b0+2*i}:{b0+2*i+1}], v[{b0+2*i}:{b0+2*i+1}], v[{d}:{d+1}]")
    for h_ in range(2):
        for i in range(10):
            k(f"  v_cvt_pk_bf16_f32 v{PH+10*h_+i}, v{E+20*h_+2*i}, v{E+20*h_+2*i+1}")
def softmax_pair(k, P, vr1, E, PH, T=44):
    softmax_1(k, P, vr1, E, T); softmax_2(k, E, T); softmax_3(k, E, PH, T)

VS = [4, 5, 6, 7]; VA = [8, 9, 10, 11]
FR = [64 + 24*s for s in range(4)]
ACCB = 32
XT = 2*SLOT + 10240
BT = 161280

def decode_b(k):
    k(f"""
  s_lshr_b32 s40, s2, 3
  s_and_b32 s{S_I64}, s2, 3
  s_lshl_b32 s{S_I64}, s{S_I64}, 3
  s_lshr_b32 s41, s40, 2
  s_add_u32 s{S_I64}, s{S_I64}, s41
  s_lshr_b32 s{S_JB}, s2, 2
  s_and_b32 s{S_JB}, s{S_JB}, 1
  s_lshl_b32 s{S_JB}, s{S_JB}, 2
  s_and_b32 s41, s40, 3
  s_add_u32 s{S_JB}, s{S_JB}, s41
  s_lshl_b32 s{S_T16}, s{S_I64}, 2
  s_add_u32 s{S_T16}, s{S_T16}, s39""")

def breads(st4, ks):
    base = FR[ks]
    r = [f"  ds_read_b128 v[{base}:{base+3}], v{VA[st4]} offset:{ks*1024}"]
    for cb in range(5):
        r.append(f"  ds_read_b128 v[{base+4+4*cb}:{base+7+4*cb}], v{VS[st4]} offset:{(ks*5+cb)*1024}")
    return r
def bmfma(ks):
    base = FR[ks]
    return [f"  v_mfma_f32_16x16x32_bf16 v[{ACCB+4*cb}:{ACCB+4*cb+3}], v[{base+4+4*cb}:{base+7+4*cb}], v[{base}:{base+3}], v[{ACCB+4*cb}:{ACCB+4*cb+3}]" for cb in range(5)]
def bstage(k, j, next_nks=4, pre_barrier=None, post_barrier=None, extra=None):
    st4 = j % 4
    extra = list(extra or [])
    per = (len(extra) + 19)//20
    for ks in range(4):
        mf = bmfma(ks)
        if ks < 2:
            rd = [(l, ("r", j, ks + 2)) for l in breads(st4, ks + 2)]
            k.wait_ds(("r", j, ks))
        else:
            if ks == 2:
                k.wait_ds(("r", j, 3))
                if pre_barrier: k(pre_barrier)
                k("  s_barrier")
                if post_barrier: post_barrier(k)
            rd = [(l, ("r", j + 1, ks - 2)) for l in breads((st4 + 1) % 4, ks - 2)] if ks - 2 < next_nks else []
        for i, m in enumerate(mf):
            k(m)
            if rd: k.ds(*rd.pop(0))
            for _ in range(per):
                if extra: kb.replay(k, extra.pop(0))
        while rd: k.ds(*rd.pop(0))
    while extra: kb.replay(k, extra.pop(0))

def compute_b(k, role):
    P = SCHED[role]; P1_J = P['P1_J']; RED_J = P['RED_J']; P2_J = P['KVJ'] + 1; OFLAG_J = min(11, P2_J + P['OFLAG_D'])
    k(f"""
  v_and_b32 v16, 15, v1
  v_lshrrev_b32 v17, 4, v1
  s_lshl_b32 s45, s{S_T16}, 4
  v_add_u32 v19, s45, v16
  v_mul_u32_u24 v24, 1280, v19
  s_mul_i32 s45, s{S_JB}, 160
  v_lshl_add_u32 v25, v17, 3, s45
  v_add_u32 v24, v24, v25
  v_lshlrev_b32 v22, 4, v1
  s_lshl_b32 s44, s39, 12
  s_add_u32 s44, s44, 20480""")
    for s in range(4):
        k(f"  v_add_u32 v{VS[s]}, {s*SLOT}, v22\n  v_add_u32 v{VA[s]}, s44, v{VS[s]}")
    for i in range(20): k(f"  v_mov_b32 v{ACCB+i}, 0")
    op_addr(k)
    k(f"""
  s_cmp_eq_u32 s37, 0
  s_cbranch_scc0 {k.L('nopf2')}
  s_waitcnt vmcnt(0)
  s_lshl_b32 s41, s38, 4
  s_add_u32 s41, s41, s36
  s_lshl_b32 s41, s41, 7
  s_add_u32 s41, s41, s39
  s_add_u32 s41, s41, {FL_PF}
  v_mov_b32 v2, s41
  v_mov_b32 v0, 1
  s_mov_b64 exec, 1
  buffer_store_byte v0, v2, {R(R_WS)}, 0 offen sc1
  s_mov_b64 exec, -1
{k.L('nopf2')}:""")
    kb.stamp(k, 36)
    if role == "kv" and 'nored' not in EXP:
        red_poll(k); red_issue(k); red_sum(k)
        if 'kflate' not in EXP:
            red_flag(k); kb.stamp(k, 38)
    k("  s_barrier")
    kb.stamp(k, 9)
    kb.stamp(k, 44, rt=True)
    k.lg = []
    for ks in range(2):
        for l in breads(0, ks): k.ds(l, ("r", 0, ks))
    def flagH2(k):
        k(f"  s_cmp_eq_u32 s37, 0\n  s_cbranch_scc1 {k.L('fh2_b')}")
        store_flag(k, 39, 0, f"  s_lshl_b32 s41, s36, 1\n  s_lshr_b32 s42, s38, 2\n  s_add_u32 s41, s41, s42\n  s_lshl_b32 s41, s41, 7\n  s_and_b32 s42, s38, 3\n  s_add_u32 s41, s41, s42\n  s_add_u32 s41, s41, {FL_H2}", "fh2")
        k(f"{k.L('fh2_b')}:")
    def flagO(k):
        k(f"""
  s_waitcnt vmcnt(0)
  s_lshl_b32 s41, s{S_T16}, 1
  s_lshr_b32 s42, s{S_JB}, 2
  s_add_u32 s41, s41, s42
  s_lshl_b32 s41, s41, 7
  s_and_b32 s42, s{S_JB}, 3
  s_add_u32 s41, s41, s42
  s_add_u32 s41, s41, {FL_O}
  v_mov_b32 v2, s41
  v_mov_b32 v0, 1
  s_mov_b64 exec, 1
  buffer_store_byte v0, v2, {R(R_WS)}, 0 offen sc1
  s_mov_b64 exec, -1""")
    for j in range(17):
        kw = {}
        if j == 0: kw = dict(post_barrier=op_q_issue)
        if j == 1:
            kw = dict(pre_barrier=f"  s_cmp_eq_u32 s37, 0\n  s_cbranch_scc1 {k.L('h2w')}\n  s_waitcnt vmcnt(6)\n{k.L('h2w')}:", post_barrier=flagH2)
        bstage(k, j, **kw)
        if j == P1_J:
            kb.stamp(k, 11); pause1(k); kb.stamp(k, 12)
        if j == P2_J:
            kb.stamp(k, 13); pause2(k); kb.stamp(k, 14)
        if role == "kv" and j == 0 and 'kflate' in EXP:
            red_flag(k); kb.stamp(k, 38)
        if j == OFLAG_J:
            flagO(k); kb.stamp(k, 39)
    bstage(k, 17, next_nks=2)
    k("  s_waitcnt lgkmcnt(0)")
    for ks in range(2):
        for m in bmfma(ks): k(m)
    kb.stamp(k, 10)
    k(f"""
  s_lshl_b32 s44, s39, 4
  v_add_u32 v52, s44, v16
  v_mul_u32_u24 v52, 160, v52
  v_lshl_add_u32 v52, v17, 3, v52
  v_add_u32 v52, {XT}, v52
  v_lshlrev_b32 v53, 3, v17
  v_add_u32 v53, {BT}, v53""")
    for cb in range(5):
        k(f"  ds_read_b64 v[{64+2*cb}:{65+2*cb}], v52 offset:{32*cb}\n  ds_read_b64 v[{76+2*cb}:{77+2*cb}], v53 offset:{32*cb}")
    for i in range(3):
        k(f"""
  v_add_u32 v{88+i}, {64*i}, v1
  v_mul_u32_u24 v91, 6554, v{88+i}
  v_lshrrev_b32 v91, 16, v91               ; row
  v_mul_u32_u24 v92, 10, v91
  v_sub_u32 v92, v{88+i}, v92              ; c
  s_lshl_b32 s44, s39, 4
  v_add_u32 v93, s44, v91
  v_mul_u32_u24 v{94+i}, 160, v93
  v_lshl_add_u32 v{94+i}, v92, 4, v{94+i}
  v_add_u32 v{94+i}, {XT}, v{94+i}
  s_lshl_b32 s44, s{S_T16}, 4
  v_add_u32 v91, s44, v91
  v_mul_u32_u24 v91, 1280, v91
  v_lshl_add_u32 v91, v92, 4, v91
  s_mul_i32 s44, s{S_JB}, 160
  v_add_u32 v{97+i}, s44, v91""")
    k(f"  v_mov_b32 v91, 0x7fff0000\n  v_cmp_gt_u32 vcc, 160, v90\n  v_cndmask_b32 v99, v91, v99, vcc\n  v_mov_b32 v91, {XT}\n  v_cndmask_b32 v96, v91, v96, vcc")
    k("  s_waitcnt lgkmcnt(0)")
    for cb in range(5):
        a = ACCB + 4*cb; x = 64 + 2*cb; b = 76 + 2*cb
        k(f"""
  v_lshlrev_b32 v52+0, 16, v{x}
  v_and_b32 v55, 0xffff0000, v{x}
  v_lshlrev_b32 v56, 16, v{x+1}
  v_and_b32 v57, 0xffff0000, v{x+1}
  v_lshlrev_b32 v58, 16, v{b}
  v_and_b32 v59, 0xffff0000, v{b}
  v_lshlrev_b32 v60, 16, v{b+1}
  v_and_b32 v61, 0xffff0000, v{b+1}
  v_pk_add_f32 v[54:55], v[54:55], v[58:59]
  v_pk_add_f32 v[56:57], v[56:57], v[60:61]
  v_pk_add_f32 v[{a}:{a+1}], v[{a}:{a+1}], v[54:55]
  v_pk_add_f32 v[{a+2}:{a+3}], v[{a+2}:{a+3}], v[56:57]
  v_cvt_pk_bf16_f32 v62, v{a}, v{a+1}
  v_cvt_pk_bf16_f32 v63, v{a+2}, v{a+3}
  ds_write_b64 v52, v[62:63] offset:{32*cb}""".replace("v52+0", "v54"))
    k("  s_waitcnt lgkmcnt(0)")
    for i in range(3): k(f"  ds_read_b128 v[{100+4*i}:{103+4*i}], v{94+i}")
    for i in range(3):
        k(f"  s_waitcnt lgkmcnt({2-i})\n  buffer_store_dwordx4 v[{100+4*i}:{103+4*i}], v{97+i}, {R(R_OUT)}, 0 offen")
    if kb.PROF:
        k("  s_waitcnt vmcnt(0)")
        kb.stamp(k, 6, rt=True); kb.dump(k, S_WS)
    k("  s_endpgm")

def wfrag(i): return 112 + 4*i
OQ = 172; OP = 184; OPH = 160; OB = 244
def op_addr(k):
    k(f"""
  v_lshrrev_b32 v26, 2, v1
  v_and_b32 v26, 3, v26
  v_and_b32 v27, 3, v1
  v_lshlrev_b32 v28, 10, v17
  v_mul_u32_u24 v29, 40, v26
  v_add_u32 v28, v28, v29
  v_add_u32 v28, {WPB}, v28
  v_mov_b32 v29, {ZB}
  v_cmp_eq_u32 vcc, v27, v17
  v_cndmask_b32 v28, v29, v28, vcc
  v_mul_u32_u24 v30, {40*KVP}, v17
  v_mul_u32_u24 v31, {KVP}, v26
  v_add_u32 v30, v30, v31
  v_add_u32 v30, {KVB}, v30
  v_cndmask_b32 v30, v29, v30, vcc""")
QR1 = 21
def q_poll_issue(k):
    k(f"""
  s_lshr_b32 s41, s{S_I64}, 1
  s_lshl_b32 s41, s41, 7
  s_and_b32 s42, s{S_I64}, 1
  s_lshl_b32 s42, s42, 4
  s_add_u32 s41, s41, s42
  v_lshlrev_b32 v77, 2, v1
  v_min_u32 v77, 16, v77
  v_add_u32 v77, s41, v77
  v_add_u32 v78, {FL_Q}, v77
  s_lshr_b32 s41, s{S_I64}, 1
  s_lshl_b32 s41, s41, 7
  s_add_u32 s41, s41, {FL_H1 + 4}
  v_mov_b32 v77, s41
  v_cmp_gt_u32 vcc, 4, v1
  v_cndmask_b32 v77, v77, v78, vcc
  buffer_load_dword v76, v77, {R(R_WS)}, 0 offen sc1""")
def q_poll_check(k, lbl):
    k(f"""
  v_mov_b32 v78, 0x01000000
  v_mov_b32 v79, 0x01010101
  v_cmp_gt_u32 vcc, 4, v1
  v_cndmask_b32 v78, v78, v79, vcc
{k.L(lbl + '_t')}:
  v_and_b32 v79, v76, v78
  v_cmp_ne_u32 vcc, v79, v78
  s_cmp_eq_u64 vcc, 0
  s_cbranch_scc1 {k.L(lbl + '_ok')}
  s_sleep 2
  buffer_load_dword v76, v77, {R(R_WS)}, 0 offen sc1
  s_waitcnt vmcnt(0)
  s_branch {k.L(lbl + '_t')}
{k.L(lbl + '_ok')}:""")
def op_q_issue(k):
    k(f"""
  v_and_b32 v12, 15, v1                    ; n'
  v_lshrrev_b32 v13, 4, v1                 ; g
  v_mul_u32_u24 v14, 640, v13
  v_lshl_add_u32 v14, v12, 3, v14
  s_mul_i32 s58, s{S_T16}, 160
  s_mul_i32 s59, s{S_JB}, 20
  s_add_u32 s58, s58, s59
  s_lshl_b32 s58, s58, 7
  s_add_u32 s58, s58, {L.WS_Q}
  s_lshl_b32 s59, s{S_T16}, 4
  v_add_u32 v15, s59, v12
  v_lshlrev_b32 v15, 4, v15""")
    for g in range(5):
        k(f"  buffer_load_dwordx2 v[{OQ+2*g}:{OQ+2*g+1}], v14, {R(R_WS)}, s58 offen offset:{128*g} sc1")
    k(f"  buffer_load_dword v{QR1}, v15, {R(R_WS)}, 0 offen offset:{L.WS_STATS + 4} sc1")
def red_cond(k, lbl):
    k(f"  s_lshl_b32 s41, s37, 2\n  s_or_b32 s41, s41, s39\n  s_cmp_eq_u32 s41, 0\n  s_cbranch_scc0 {k.L(lbl)}")
def red_poll(k):
    red_cond(k, "rp_x")
    k(f"""
  s_lshl_b32 s41, s38, 11
  s_add_u32 s41, s41, {FL_PF}
  v_min_u32 v57, 15, v1
  v_lshlrev_b32 v57, 7, v57
  v_add_u32 v57, s41, v57
  buffer_load_dword v56, v57, {R(R_WS)}, 0 offen sc1
{k.L('rp_x')}:""")
RDR = [204 + 4*p for p in range(13)] + [12, 56, 60]
def red_issue(k):
    red_cond(k, "ri_x")
    k(f"""
  s_waitcnt vmcnt(0)
{k.L('ri_t')}:
  v_cmp_ne_u32 vcc, 0x01010101, v56
  s_cmp_eq_u64 vcc, 0
  s_cbranch_scc1 {k.L('ri_ok')}
  s_sleep 1
  buffer_load_dword v56, v57, {R(R_WS)}, 0 offen sc1
  s_waitcnt vmcnt(0)
  s_branch {k.L('ri_t')}
{k.L('ri_ok')}:""")
    kb.stamp(k, 37)
    k(f"""
  v_lshlrev_b32 v18, 4, v1
  v_mov_b32 v19, 0x7fff0000
  v_cmp_gt_u32 vcc, 60, v1
  v_cndmask_b32 v18, v19, v18, vcc
  s_lshl_b32 s41, s38, 4
  s_mul_i32 s41, s41, 15360
  s_mul_i32 s42, s36, 960
  s_add_u32 s41, s41, s42
  s_add_u32 s41, s41, {L.WS_KP}""")
    for p in range(16):
        k(f"  buffer_load_dwordx4 v[{RDR[p]}:{RDR[p]+3}], v18, {R(R_WS)}, s41 offen sc1\n  s_add_u32 s41, s41, 15360")
    k(f"{k.L('ri_x')}:")
def red_sum(k):
    red_cond(k, "rs_x")
    k("  s_waitcnt vmcnt(0)")
    step = 1
    while step < 16:
        for p in range(0, 16, 2*step):
            a, b = RDR[p], RDR[p + step]
            k(f"  v_pk_add_f32 v[{a}:{a+1}], v[{a}:{a+1}], v[{b}:{b+1}]\n  v_pk_add_f32 v[{a+2}:{a+3}], v[{a+2}:{a+3}], v[{b+2}:{b+3}]")
        step *= 2
    a = RDR[0]
    k(f"""
  v_cvt_pk_bf16_f32 v{a}, v{a}, v{a+1}
  v_cvt_pk_bf16_f32 v{a+1}, v{a+2}, v{a+3}
  v_lshlrev_b32 v18, 3, v1
  v_mov_b32 v19, 0x7fff0000
  v_cmp_gt_u32 vcc, 60, v1
  v_cndmask_b32 v18, v19, v18, vcc
  s_mul_i32 s41, s38, 7680
  s_mul_i32 s42, s36, 480
  s_add_u32 s41, s41, s42
  s_add_u32 s41, s41, {L.WS_KV}
  buffer_store_dwordx2 v[{a}:{a+1}], v18, {R(R_WS)}, s41 offen sc1
{k.L('rs_x')}:""")
def red_flag(k):
    red_cond(k, "rf_x")
    k(f"""
  s_waitcnt vmcnt({6 if 'kflate' in EXP else 0})
  s_lshl_b32 s41, s38, 2
  s_lshr_b32 s42, s36, 2
  s_add_u32 s41, s41, s42
  s_lshl_b32 s41, s41, 7
  s_and_b32 s42, s36, 3
  s_add_u32 s41, s41, s42
  s_add_u32 s41, s41, {FL_KF}
  v_mov_b32 v2, s41
  v_mov_b32 v0, 1
  s_mov_b64 exec, 1
  buffer_store_byte v0, v2, {R(R_WS)}, 0 offen sc1
  s_mov_b64 exec, -1
{k.L('rf_x')}:""")
def pause1(k):
    for b in range(5):
        for s_ in range(3):
            for t in range(2):
                reg = wfrag(b*3 + s_) + 2*t; d0 = 8*s_ + 4*t
                if d0 < 20: k.ds(f"  ds_read_b64_tr_b16 v[{reg}:{reg+1}], v28 offset:{d0*40 + 8*b}", "xw")
                else: k(f"  v_mov_b32 v{reg}, 0\n  v_mov_b32 v{reg+1}, 0")
    k(f"  v_mov_b32 v{OQ+10}, 0\n  v_mov_b32 v{OQ+11}, 0")
    k("  s_waitcnt vmcnt(0)")
    k.wait_ds("xw")
    for s_ in range(3):
        for b in range(5):
            c = "0" if s_ == 0 else f"v[{OP+4*b}:{OP+4*b+3}]"
            w = wfrag(b*3 + s_)
            k(f"  v_mfma_f32_16x16x32_bf16 v[{OP+4*b}:{OP+4*b+3}], v[{w}:{w+3}], v[{OQ+4*s_}:{OQ+4*s_+3}], {c}")
    softmax_pair(k, [OP + i for i in range(20)], QR1, 112, OPH, T=52)
def pause2(k):
    FA_, FB_ = 180, 112
    rounds = ([0, 1], [2, 3], [4, 5])
    OOx = 220
    def rd(ri):
        base = FA_ if ri % 2 == 0 else FB_
        for s_ in range(5):
            for bi, beta in enumerate(rounds[ri]):
                for t in range(2):
                    reg = base + (bi*5 + s_)*4 + 2*t
                    k.ds(f"  ds_read_b64_tr_b16 v[{reg}:{reg+1}], v30 offset:{(8*s_ + 4*t)*KVP + 8*beta}", ("xk", ri, s_))
    def mm(ri, nxt):
        base = FA_ if ri % 2 == 0 else FB_
        for s_ in range(5):
            k.wait_ds(("xk", ri, s_))
            for bi, beta in enumerate(rounds[ri]):
                c = "0" if s_ == 0 else f"v[{OOx+4*beta}:{OOx+4*beta+3}]"
                w = base + (bi*5 + s_)*4
                k(f"  v_mfma_f32_16x16x32_bf16 v[{OOx+4*beta}:{OOx+4*beta+3}], v[{w}:{w+3}], v[{OPH+4*s_}:{OPH+4*s_+3}], {c}")
            for _ in range(4):
                if nxt: k.ds(*nxt.pop(0))
    def rdl(ri):
        r = kb.Rec(k); out = []
        base = FA_ if ri % 2 == 0 else FB_
        for s_ in range(5):
            for bi, beta in enumerate(rounds[ri]):
                for t in range(2):
                    reg = base + (bi*5 + s_)*4 + 2*t
                    out.append((f"  ds_read_b64_tr_b16 v[{reg}:{reg+1}], v30 offset:{(8*s_ + 4*t)*KVP + 8*beta}", ("xk", ri, s_)))
        return out
    rd(0)
    mm(0, rdl(1)); mm(1, rdl(2)); mm(2, [])
    k(f"  v_add_f32 v52, {fl(1e-6)}, v{OOx+20}\n  v_rcp_f32 v52, v52\n  s_nop 0\n  v_mov_b32 v53, v52")
    for i in range(10): k(f"  v_pk_mul_f32 v[{OOx+2*i}:{OOx+2*i+1}], v[{OOx+2*i}:{OOx+2*i+1}], v[52:53]")
    for i in range(10): k(f"  v_cvt_pk_bf16_f32 v{OB+i}, v{OOx+2*i}, v{OOx+2*i+1}")
    k(f"""
  s_mul_i32 s58, s{S_T16}, 74
  s_lshr_b32 s59, s{S_JB}, 1
  s_mul_i32 s59, s59, 5
  s_add_u32 s58, s58, s59
  s_add_u32 s58, s58, 54
  s_lshl_b32 s58, s58, 10
  s_add_u32 s58, s58, {L.WS_HO}
  s_bitcmp1_b32 s{S_JB}, 0
  s_cbranch_scc1 {k.L('o_odd')}
  buffer_store_dwordx4 v[{OB}:{OB+3}], v22, {R(R_WS)}, s58 offen sc1
  buffer_store_dwordx4 v[{OB+4}:{OB+7}], v22, {R(R_WS)}, s58 offen offset:1024 sc1
  buffer_store_dwordx2 v[{OB+8}:{OB+9}], v22, {R(R_WS)}, s58 offen offset:2048 sc1
  s_branch {k.L('o_done')}
{k.L('o_odd')}:
  buffer_store_dwordx2 v[{OB}:{OB+1}], v22, {R(R_WS)}, s58 offen offset:2056 sc1
  buffer_store_dwordx4 v[{OB+2}:{OB+5}], v22, {R(R_WS)}, s58 offen offset:3072 sc1
  s_add_u32 s58, s58, 4096
  buffer_store_dwordx4 v[{OB+6}:{OB+9}], v22, {R(R_WS)}, s58 offen sc1
{k.L('o_done')}:""")
def kv_dma(k):
    for r in range(2):
        k.begin()
        k(f"""
  s_lshl_b32 s58, s39, 1
  s_add_u32 s58, s58, {r}
  s_lshl_b32 s59, s58, 10
  v_add_u32 v60, s59, v4
  v_mov_b32 v61, 0x7fff0000
  v_cmp_gt_u32 vcc, 7680, v60
  v_cndmask_b32 v60, v61, v60, vcc
  s_add_u32 m0, s59, {KVB}
  s_mul_i32 s58, s{S_JB}, 7680
  s_add_u32 s58, s58, {L.WS_KV}""")
        k.vmem(f"  buffer_load_dwordx4 v60, {R(R_WS)}, s58 offen sc1 lds", "kvd")
        k.end()

def loader_b_setup(k):
    decode_b(k)
    k(f"""
  v_lshlrev_b32 v4, 4, v1
  s_mul_i32 s44, s{S_JB}, {74*5*1024}
  s_mul_i32 s45, s39, {5*1024}
  s_add_u32 s44, s44, s45
  s_add_u32 s44, s44, {L.WS_W2}
  s_mul_i32 s46, s{S_T16}, {74*1024}
  s_add_u32 s46, s46, {L.WS_HO}""")
def gWP(lst):
    def mk(s_, cb):
        def f(k):
            k(f"  s_add_u32 s87, s44, {4*s_*5*1024 + cb*1024}")
            k.vmem(f"  buffer_load_dwordx4 v[{wpreg(s_, cb)}:{wpreg(s_, cb)+3}], v4, {R(R_WS)}, s87 offen sc1", ("WP", s_))
        return f
    return [mk(s_, cb) for (s_, cb) in lst]
NPF1 = int(os.environ.get('NPF1', 20))
WPL = [(s_, cb) for s_ in range(WP0, WP1 + 1) for cb in range(5)]
def loader_b(k, role):
    P = SCHED[role]; KVJ = P['KVJ']
    if 'noprioB' not in EXP: k("  s_setprio 2")
    k(f"""
  s_mul_i32 s47, s39, {5*1024}
  s_lshl_b32 s48, s39, 12
  s_add_u32 s48, s48, 20480
  v_add_u32 v5, s47, v4""")
    def gDW(j):
        slot = (j % 4)*SLOT
        def mk(cb):
            def f(k):
                if j == 18:
                    k(f"""  s_add_u32 s87, s47, {slot + cb*1024}
  s_cmp_lt_u32 s39, 2
  s_cselect_b32 m0, s87, {ZB}
  s_cselect_b32 s26, {L.WS_END}, 0
  s_add_u32 s87, s44, {4*j*5*1024 + cb*1024}""")
                else:
                    k(f"  s_add_u32 m0, s47, {slot + cb*1024}\n  s_add_u32 s87, s44, {4*j*5*1024 + cb*1024}")
                k.vmem(f"  buffer_load_dwordx4 v4, {R(R_WS)}, s87 offen sc1 lds", ("D", j))
                if j == 18: k(f"  s_mov_b32 s26, {L.WS_END}")
            return f
        return [mk(cb) for cb in range(5)]
    def gDA(j):
        nks = 4 if j < 18 else 2
        slot = (j % 4)*SLOT
        def mk(ks):
            def f(k):
                k(f"  s_add_u32 m0, s48, {slot + ks*1024}\n  s_add_u32 s87, s46, {(4*j + ks)*1024}")
                k.vmem(f"  buffer_load_dwordx4 v4, {R(R_WS)}, s87 offen sc1 lds", ("D", j))
            return f
        return [mk(ks) for ks in range(nks)]
    def gWW(j):
        slot = (j % 4)*SLOT
        def mk(cb):
            def f(k):
                if cb == 0: k.wait_vm(("WP", j))
                k(f"  ds_write_b128 v5, v[{wpreg(j, cb)}:{wpreg(j, cb)+3}] offset:{cb*1024}" if slot == 0 else
                  f"  ds_write_b128 v{6 + (j % 4) - 1}, v[{wpreg(j, cb)}:{wpreg(j, cb)+3}] offset:{cb*1024}")
            return f
        return [mk(cb) for cb in range(5)]
    for q in (1, 2, 3): k(f"  v_add_u32 v{5+q}, {q*SLOT}, v5")
    gDW0 = gDW
    def gDW(j): return gWW(j) if WP0 <= j <= WP1 else gDW0(j)
    def DW(j):
        for f in gDW(j): f(k)
    def DA(j):
        for f in gDA(j): f(k)
    iB = f"  s_lshr_b32 s41, s{S_I64}, 1\n  s_lshl_b32 s41, s41, 8\n"
    DW(0); DW(1)
    if role == "g": DW(2); DW(3)
    rest = gWP(WPL[12:])
    for n, f in enumerate(rest[:NPF1]):
        f(k)
        if n % 4 == 3: k(f"  s_waitcnt vmcnt(6)")
    k("  s_barrier")
    wphi_dma(k, f"  s_lshl_b32 s58, s{S_JB}, 2\n  s_add_u32 s58, s58, s39", WPB, False)
    k(f"""
  s_mov_b32 s{R_T+2}, 0
  s_and_b32 s58, s39, 1
  s_lshl_b32 s58, s58, 10
  s_add_u32 m0, s58, {ZB}""")
    k.vmem(f"  buffer_load_dwordx4 v40, {R(R_T)}, 0 offen lds", "side")
    def h1():
        poll_issue(k, 50, lines(50, iB + f"  s_add_u32 s41, s41, {FL_H1}", 2), "ph1", only0=False)
        poll_check(k, 50, "ph1", "ph1", only0=False, slp=2)
        DA(0); DA(1)
        if role == "g": DA(2); DA(3)
    if role == "g": h1()
    for n, f in enumerate(rest[NPF1:]):
        f(k)
        if n % 4 == 3: k(f"  s_waitcnt vmcnt(6)")
    k.wait_vm("side")
    k("  s_barrier")
    kb.stamp(k, 9)
    if role == "kv": h1()
    k.wait_vm(("D", 0))
    k("  s_barrier")
    kb.stamp(k, 10)
    poll_issue(k, 50, lines(50, f"  s_lshl_b32 s41, s{S_I64}, 9\n  s_add_u32 s41, s41, {FL_Q}", 4), "pq")
    if role == "kv": DA(2); DW(2)
    def res_dma(k):
        for r in range(3):
            k.begin()
            k(f"""
  s_add_u32 s58, s39, {4*r}
  s_lshl_b32 s59, s58, 6
  v_add_u32 v60, s59, v1
  v_mul_u32_u24 v61, 6554, v60
  v_lshrrev_b32 v61, 16, v61
  v_mul_u32_u24 v62, 10, v61
  v_sub_u32 v62, v60, v62
  s_lshl_b32 s59, s{S_I64}, 6
  v_add_u32 v61, s59, v61
  v_mul_u32_u24 v61, 1280, v61
  v_lshl_add_u32 v61, v62, 4, v61
  s_mul_i32 s59, s{S_JB}, 160
  v_add_u32 v61, s59, v61
  s_lshl_b32 s59, s58, 10
  s_add_u32 s59, s59, {XT}
  s_cmp_lt_u32 s58, 10
  s_cselect_b32 s59, s59, {ZB}
  s_cselect_b32 s58, 0, 0x7fff0000
  v_or_b32 v61, s58, v61
  s_mov_b32 m0, s59""")
            k.vmem(f"  buffer_load_dwordx4 v61, {R(R_X)}, 0 offen lds", ("D", 18))
            k.end()
        k.begin()
        k(f"""
  s_mul_i32 s58, s{S_JB}, 160
  s_add_u32 s{R_T}, s{S_B2}, s58
  s_addc_u32 s{R_T+1}, s{S_B2+1}, 0
  s_and_b32 s{R_T+1}, s{R_T+1}, 0xffff
  s_mov_b32 s{R_T+2}, 160
  s_mov_b32 s{R_T+3}, 0x20000
  s_mov_b32 m0, {BT}""")
        k.vmem(f"  buffer_load_dwordx4 v4, {R(R_T)}, 0 offen lds", ("D", 18))
        k.end()
    for j in range(NSTB - 1):
        if j == 12:
            poll_issue(k, 50, lines(50, f"  s_lshl_b32 s41, s{S_T16}, 8\n  s_add_u32 s41, s41, {FL_O}", 2), "po", only0=False)
            if 'nochain' not in EXP: poll_check(k, 50, "po", "po", only0=False, slp=1)
            kb.stamp(k, 63)
            for q in (13, 14, 15): DA(q)
            k.wait_vm(("D", 13)) if False else None
            idx = [i for i, t in enumerate(k.vm) if t == ("D", 13)][-1]
            k(f"  s_waitcnt vmcnt({len(k.vm) - 1 - idx})"); k.vm = k.vm[idx + 1:]
        else:
            k.wait_vm(("D", j + 1))
        if j == 0: poll_check(k, 50, "pq", "pq", slp=1)
        if j == 3: poll_check(k, 50, "ph2", "ph2", slp=1)
        if j == KVJ:
            if 'nochain' not in EXP: poll_check(k, 56, "pkv", "pkv", slp=1)
        if j == KVJ + 1: k.wait_vm("kvd")
        k("  s_waitcnt lgkmcnt(0)")
        k("  s_barrier")
        groups = []; fns = []
        if 13 <= j + 4 <= 15: groups = gDW(j + 4)
        elif j + 4 < NSTB: groups = gDW(j + 4) + gDA(j + 4)
        if j == 0 and role == "kv": groups = gDW(3) + gDA(3) + groups
        if j == 2: fns.append(lambda k: poll_issue(k, 50, lines(50, iB + f"  s_add_u32 s41, s41, {FL_H2}", 2), "ph2"))
        if j == KVJ - 1: fns.append(lambda k: poll_issue(k, 56, lines(56, f"  s_lshl_b32 s41, s{S_JB}, 9\n  s_add_u32 s41, s41, {FL_KF}", 4), "pkv"))
        if j == 14: fns.append(res_dma)
        if j == KVJ: kv_dma(k)
        kb.interleave(k, groups, rec(k, fns))
        kb.stamp(k, 40 + j)
    kb.stamp(k, 6, rt=True)
    kb.dump(k, S_WS)
    k("  s_endpgm")

def build(name):
    k = K(name)
    k(f"""
  s_cmp_ge_u32 s2, 256
  s_cbranch_scc1 {k.L('end')}
  s_load_dwordx4 s[4:7], s[0:1], 0
  s_load_dwordx2 s[14:15], s[0:1], 88
  s_load_dwordx2 s[10:11], s[0:1], 40
  s_getpc_b64 s[58:59]
{k.L('pc0')}:
  v_lshrrev_b32 v2, 6, v0
  v_and_b32 v1, 63, v0
  v_lshlrev_b32 v4, 10, v2
  v_lshl_add_u32 v4, v1, 7, v4
  v_cmp_gt_u32 vcc, 8, v1
  v_readfirstlane_b32 s3, v2
  s_and_saveexec_b64 s[56:57], vcc
  global_load_dword v127, v4, s[58:59]
  s_mov_b64 exec, s[56:57]
  s_load_dwordx2 s[8:9], s[0:1], 16
  s_load_dwordx2 s[12:13], s[0:1], 48
  s_load_dwordx2 s[{S_WO}:{S_WO+1}], s[0:1], 24
  s_load_dwordx2 s[{S_W2}:{S_W2+1}], s[0:1], 56
  s_load_dwordx2 s[{S_B2}:{S_B2+1}], s[0:1], 64
  s_load_dwordx2 s[{S_OUT}:{S_OUT+1}], s[0:1], 72
  s_load_dwordx2 s[{S_DBG}:{S_DBG+1}], s[0:1], 80
  s_lshr_b32 s40, s2, 3
  s_lshr_b32 s36, s40, 2
  s_and_b32 s41, s2, 1
  s_lshl_b32 s41, s41, 3
  s_add_u32 s36, s36, s41
  s_and_b32 s41, s40, 3
  s_lshr_b32 s37, s41, 1
  s_and_b32 s41, s41, 1
  s_and_b32 s38, s2, 7
  s_lshr_b32 s38, s38, 1
  s_lshl_b32 s38, s38, 1
  s_add_u32 s38, s38, s41
  s_and_b32 s39, s3, 3
  s_waitcnt lgkmcnt(0)""")
    srd(k, R_X, S_X, 2621440)
    srd(k, R_WS, S_WS, L.WS_END)
    srd(k, R_WQ, S_WQ, 2457600)
    srd(k, R_W1, S_W1, 2211840)
    k(f"  s_cmp_lt_u32 s3, 4\n  s_cbranch_scc1 {k.L('compute')}")
    k.vm = []
    kb.stamp(k, 0, rt=True)
    loader_a_start(k)
    srd(k, R_B, S_B1, 3456)
    k(f"  s_branch {k.L('loader')}")
    vm_loader = list(k.vm)
    k.label("compute")
    srd(k, R_OUT, S_OUT, 2621440)
    k.vm = []
    compute_a(k)
    k(f"  s_cmp_eq_u32 s37, 0\n  s_cbranch_scc1 {k.L('cb_kv')}")
    base = k.name
    k.lname = base + "_g"; compute_b(k, "g")
    k.lname = base; k.label("cb_kv")
    k.lname = base + "_k"; compute_b(k, "kv")
    k.lname = base
    k.label("loader")
    k.vm = vm_loader
    loader_a(k)
    k(f"  s_cmp_eq_u32 s37, 0\n  s_cbranch_scc1 {k.L('lb_kv')}")
    vm0 = list(k.vm)
    k.lname = base + "_g"; loader_b(k, "g")
    k.lname = base; k.label("lb_kv")
    k.vm = list(vm0)
    k.lname = base + "_k"; loader_b(k, "kv")
    k.lname = base
    k(f"{k.L('end')}:\n  s_endpgm")
    k(f"{k.L('codeend')}:")
    rep = []
    t = k.text(rep)
    return dict(name=name, body=t, vgpr=256, sgpr=102, accum=256, maxwg=512), rep

if __name__ == "__main__":
    import asmlib, sys
    if len(sys.argv) > 1 and sys.argv[1] in ("prof", "coarse", "mini"): kb.PROF = True
    if len(sys.argv) > 1 and sys.argv[1] == "mini": kb.MINI = True
    if len(sys.argv) > 1 and sys.argv[1] == "coarse": kb.FINE = False
    kf, rep = build("kf_kernel")
    print("nops inserted:", len(rep))
    asmlib.build("kfp" if kb.PROF else "kft", [kf])
    print("ok")
```

```python
import re

TRANS = ("v_exp_f32", "v_log_f32", "v_rcp_f32", "v_rsq_f32", "v_sqrt_f32", "v_sin_f32", "v_cos_f32")

def regs_of(tok):
    tok = tok.strip()
    neg = tok.lstrip("-")
    if neg.startswith("abs(") or neg.startswith("|"):
        neg = neg.replace("abs(", "").replace(")", "").replace("|", "")
    tok = neg
    m = re.fullmatch(r"([vas])\[(\d+):(\d+)\]", tok)
    if m:
        return [(m.group(1), i) for i in range(int(m.group(2)), int(m.group(3)) + 1)]
    m = re.fullmatch(r"([vas])(\d+)", tok)
    if m:
        return [(m.group(1), int(m.group(2)))]
    if tok == "vcc":
        return [("s", "vcc")]
    if tok in ("vcc_lo", "vcc_hi"):
        return [("s", "vcc")]
    if tok == "exec":
        return [("s", "exec")]
    if tok == "m0":
        return [("s", "m0")]
    return []

class Ins:
    __slots__ = ("text", "op", "defs", "uses", "cls", "srcC", "passes", "ab", "stdata", "dpp")
    def __init__(self, text):
        self.text = text
        t = text.split(";")[0].strip()
        self.op = None; self.defs = []; self.uses = []; self.cls = "other"; self.srcC = []; self.passes = 0; self.ab = []
        self.stdata = []; self.dpp = False
        if not t or t.endswith(":") or t.startswith("."):
            self.cls = "meta"; return
        parts = t.split(None, 1)
        op = parts[0]; self.op = op
        rest = parts[1] if len(parts) > 1 else ""
        ops = []; cur = ""; depth = 0
        for ch in rest:
            if ch == "[": depth += 1
            if ch == "]": depth -= 1
            if ch == "," and depth == 0:
                ops.append(cur); cur = ""
            else:
                cur += ch
        if cur.strip(): ops.append(cur)
        mods = ""
        if ops:
            l = ops[-1].strip().split(None, 1)
            ops[-1] = l[0]
            if len(l) > 1: mods = l[1]
        ops = [o.strip() for o in ops]
        R = [regs_of(o) for o in ops]
        if op.startswith("v_mfma"):
            self.cls = "mfma"
            self.defs = R[0]; self.ab = R[1] + R[2]; self.srcC = R[3]; self.uses = self.ab + self.srcC
            self.passes = 8 if "32x32" in op else 4
        elif op.startswith("v_"):
            self.cls = "trans" if op.replace("_e32", "").replace("_e64", "") in TRANS else "valu"
            self.dpp = ("_dpp" in op) or ("row_" in mods) or ("quad_perm" in mods)
            if op.startswith("v_cmp"):
                self.defs = R[0]; self.uses = sum(R[1:], [])
            elif op.startswith("v_readfirstlane") or op.startswith("v_readlane"):
                self.cls = "valu"; self.defs = R[0]; self.uses = sum(R[1:], [])
            elif op.startswith("v_permlane"):
                self.defs = R[0] + R[1]; self.uses = R[0] + R[1]
            elif "_co_" in op or op.startswith("v_div_scale") or op.startswith("v_mad_u64"):
                self.defs = R[0] + R[1]; self.uses = sum(R[2:], [])
            else:
                self.defs = R[0]; self.uses = sum(R[1:], [])
                if op.startswith("v_fmac") or op.startswith("v_writelane") or op.startswith("v_dot2c") or op.startswith("v_pk_fmac"):
                    self.uses = self.uses + R[0]
                if op.startswith("v_cndmask") and len(ops) == 3:
                    self.uses = self.uses + [("s", "vcc")]
        elif op.startswith("ds_"):
            self.cls = "ds"
            if op.startswith("ds_read") or op.startswith("ds_swizzle") or op.startswith("ds_bpermute") or op.startswith("ds_permute"):
                self.defs = R[0]; self.uses = sum(R[1:], [])
            else:
                self.uses = sum(R, [])
        elif op.startswith("buffer_") or op.startswith("global_") or op.startswith("flat_"):
            self.cls = "vmem"
            islds = " lds" in (" " + mods) or "_lds_" in op
            if op in ("buffer_wbl2", "buffer_inv"):
                pass
            elif "load" in op and not islds:
                self.defs = R[0]; self.uses = sum(R[1:], [])
            elif "load" in op:
                self.uses = sum(R, []) + [("s", "m0")]
            elif op.startswith("buffer_store") or op.startswith("buffer_atomic"):
                self.uses = sum(R, [])
                if "x4" in op or "x3" in op: self.stdata = R[0]
            else:
                self.uses = sum(R, [])
                if "x4" in op or "x3" in op: self.stdata = R[1]
        elif op.startswith("s_"):
            self.cls = "salu"
            if op in ("s_nop", "s_waitcnt", "s_barrier", "s_endpgm", "s_sleep", "s_setprio", "s_branch") or op.startswith("s_cbranch"):
                self.cls = "sctl"
            elif op.startswith("s_cmp") or op.startswith("s_bitcmp"):
                self.uses = sum(R, [])
            elif op.startswith("s_load") or op.startswith("s_memtime") or op.startswith("s_memrealtime"):
                self.cls = "smem"; self.defs = R[0]; self.uses = sum(R[1:], [])
            else:
                self.defs = R[0]; self.uses = sum(R[1:], [])
                if "saveexec" in op:
                    self.defs = self.defs + [("s", "exec")]
    def states(self):
        if self.cls == "meta": return 0
        if self.op == "s_nop":
            return int(self.text.split(";")[0].split()[1], 0) + 1
        return 1

def isv(r): return r[0] in ("v", "a")

def need(prev, cur):
    n = 0
    pd = set(prev.defs); cu = set(cur.uses); cd = set(cur.defs)
    pv = {r for r in pd if isv(r)}; ps = {r for r in pd if r[0] == "s"}
    if prev.cls in ("valu", "trans"):
        if cur.cls == "mfma" and pv & cu: n = max(n, 2)
        if prev.cls == "trans" and cur.cls in ("valu", "mfma") and pv & cu: n = max(n, 1)
        if prev.cls == "trans" and cur.cls in ("ds", "vmem") and pv & cu: n = max(n, 1)
        if cur.cls in ("valu", "trans"):
            if cur.op.startswith("v_readlane") or cur.op.startswith("v_readfirstlane"):
                if pv & cu: n = max(n, 1)
            if cur.op.startswith("v_permlane") and pv & cu: n = max(n, 2)
            if cur.dpp and pv & cu: n = max(n, 2)
            if ps & cu:
                n = max(n, 4 if (cur.op.startswith("v_readlane") or cur.op.startswith("v_writelane")) else 2)
        if cur.cls == "vmem" and ps & cu: n = max(n, 5)
        if cur.cls in ("salu", "smem", "sctl") and ps & cu: n = max(n, 1)
    if prev.cls == "mfma":
        big = prev.passes == 8
        if cur.cls == "mfma":
            if pv & set(cur.ab): n = max(n, 12 if big else 8)
            if pv & set(cur.srcC):
                if not (set(prev.defs) == set(cur.srcC) and prev.passes == cur.passes):
                    n = max(n, 10 if big else 6)
            if (pv & cd) and not (pv & set(cur.srcC)): n = max(n, 10 if big else 6)
        elif cur.cls in ("valu", "trans", "ds", "vmem"):
            if pv & (cu | cd): n = max(n, 12 if big else 8)
        if cur.cls in ("valu", "trans") and set(prev.srcC) & cd: n = max(n, 7 if big else 3)
    if prev.cls == "vmem" and prev.stdata and cur.cls in ("valu", "trans", "mfma") and set(prev.stdata) & cd:
        n = max(n, 2)
    if prev.cls == "salu" and ("s", "m0") in pd and cur.cls == "vmem" and ("s", "m0") in cu: n = max(n, 1)
    return n

def fix_hazards(lines, window=24, report=None):
    out = []
    added = 0
    for l in lines:
        for sub in l.split("\n"):
            cur = Ins(sub)
            if cur.cls != "meta":
                reqd = 0
                dist = 0
                for p in reversed(out):
                    if p.cls == "meta": continue
                    nd = need(p, cur)
                    if nd > dist: reqd = max(reqd, nd - dist)
                    dist += p.states()
                    if dist >= window: break
                while reqd > 0:
                    k = min(reqd, 16)
                    out.append(Ins(f"  s_nop {k-1}")); added += 1
                    if report is not None: report.append((k, sub))
                    reqd -= k
            out.append(cur)
    return [i.text for i in out], added

class K:
    def __init__(self, name):
        self.name = name
        self.lines = []
        self.vm = []
        self.lg = []
    def __call__(self, s):
        for l in s.strip("\n").split("\n"):
            self.lines.append(l)
    def L(self, n): return f"L_{getattr(self, 'lname', None) or self.name}_{n}"
    def label(self, n): self.lines.append(self.L(n) + ":")
    def vmem(self, s, tag=None):
        self(s); self.vm.append(tag)
    def wait_vm(self, tag, extra=""):
        idx = [i for i, t in enumerate(self.vm) if t == tag]
        if not idx: return
        n = len(self.vm) - 1 - idx[-1]
        n = min(n, 63)
        self(f"  s_waitcnt vmcnt({n}){extra}")
        self.vm = self.vm[len(self.vm) - n:] if n else []
    def note_vm(self, tags): self.vm += list(tags)
    def ds(self, s, tag=None):
        self(s); self.lg.append(tag)
    def wait_ds(self, tag):
        idx = [i for i, t in enumerate(self.lg) if t == tag]
        if not idx: return
        n = min(15, len(self.lg) - 1 - idx[-1])
        self(f"  s_waitcnt lgkmcnt({n})")
        self.lg = self.lg[len(self.lg) - n:] if n else []
    def wait_ds_all(self):
        self("  s_waitcnt lgkmcnt(0)"); self.lg = []
    def begin(self): pass
    def end(self): pass
    def wait_vm_all(self):
        self("  s_waitcnt vmcnt(0)"); self.vm = []
    def text(self, report=None):
        ls, added = fix_hazards(self.lines, report=report)
        return "\n".join(ls) + "\n"

PROF = False
PROF_OFF = 0x2000000
FINE = True
MINI = False
def stamp(k, i, rt=False):
    if not PROF: return
    if MINI and i not in (0, 6): return
    if not FINE and i >= 11 and i not in (11, 12, 13, 14, 15, 58, 59, 60, 61, 62, 36, 37, 38, 39, 63, 57, 56, 40, 42, 44): return
    if i == 0: k("  v_mov_b32 v3, 0")
    k(f"""
  s_memtime s[70:71]
  s_waitcnt lgkmcnt(0)
  v_writelane_b32 v3, s70, {i}""")
    if rt:
        k(f"""
  s_memrealtime s[70:71]
  s_waitcnt lgkmcnt(0)
  v_writelane_b32 v3, s70, {i+1}""")
def dump(k, wsptr_lo, kidx=0):
    if not PROF: return
    k(f"""
  s_add_u32 s72, s{wsptr_lo}, {PROF_OFF + kidx*256*8*256}
  s_addc_u32 s73, s{wsptr_lo+1}, 0
  s_lshl_b32 s74, s2, 3
  s_add_u32 s74, s74, s3
  s_lshl_b32 s74, s74, 8
  v_lshlrev_b32 v2, 2, v1
  v_add_u32 v2, s74, v2
  global_store_dword v2, v3, s[72:73]""")

class Rec:
    def __init__(self, k):
        self.k = k; self.name = k.name; self.items = []; self.grp = None; self.vm = []
    def L(self, n): return self.k.L(n)
    def _add(self, it):
        if self.grp is not None: self.grp.append(it)
        else: self.items.append([it])
    def __call__(self, s):
        ls = [l for l in s.strip("\n").split("\n")]
        if self.grp is None and not any(l.strip().endswith(":") or "branch" in l or "exec" in l or "vcc" in l or "s_cmp" in l or "s_csel" in l or "s_cmov" in l or "m0" in l or "s_addc" in l or "s_bitcmp" in l for l in ls):
            for l in ls: self.items.append([("t", l)])
        else:
            self._add(("t", s))
    def label(self, n): self._add(("t", self.L(n) + ":"))
    def vmem(self, s, tag=None): self._add(("v", s, tag))
    def wait_vm(self, tag, extra=""): self._add(("w", tag, extra))
    def note_vm(self, tags): self._add(("n", tags))
    def ds(self, s, tag=None): self._add(("d", s, tag))
    def wait_ds(self, tag): self._add(("wd", tag))
    def begin(self): self.grp = []
    def end(self):
        g = self.grp; self.grp = None; self.items.append(g)
def replay(k, grp):
    for it in grp:
        if it[0] == "t": k(it[1])
        elif it[0] == "v": k.vmem(it[1], it[2])
        elif it[0] == "n": k.note_vm(it[1])
        elif it[0] == "d": k.ds(it[1], it[2])
        elif it[0] == "wd": k.wait_ds(it[1])
        else: k.wait_vm(it[1], it[2])
def interleave(k, main_groups, rec_items, lead=0):
    n = len(main_groups)
    items = list(rec_items)
    if n == 0:
        for g in items: replay(k, g)
        return
    per = (len(items) + n - 1)//n
    for i, m in enumerate(main_groups):
        m(k)
        for g in items[i*per:(i+1)*per]: replay(k, g)
```

```python
from kb import K
import kb, os
import layout as L

LOG2E = 1.4426950408889634
C0 = -2.0*0.7978845608028654*LOG2E
C1 = C0*0.044715
def fl(x):
    import struct
    return "0x%08x" % struct.unpack("<I", struct.pack("<f", x))[0]

XR = 0; WR = 49152; SCR = 114688; TT = 147456; ST = 151552; WP = 153600; ZR = 157696
PHI = 73728; PHI_P = 336; VV = PHI + 43008; VV_P = 208; KPS = 20480
SLOT = 36864; WPB = 147456; KVB = 151552; KVP = 48; ZB = 159232
LDS_BYTES = 163840
NSTB = 19
WP0, WP1 = 4, int(os.environ.get('WP1', 12))
def wpreg(s_, cb): return 64 + (s_ - WP0)*20 + 4*cb
SCHED = {
    "kv": dict(P1_J=1, RED_J=None, KVJ=int(os.environ.get("KVJ_KV", 4)), OFLAG_D=2),
    "g":  dict(P1_J=2, RED_J=int(os.environ.get("RED_J", 1)), KVJ=int(os.environ.get("KVJ_G", 6)), OFLAG_D=2),
}
FL = L.WS_FLAGS
FL_F2 = FL; FL_H1 = FL + 16*128; FL_H2 = FL + 48*128; FL_Q = FL + 80*128; FL_PF = FL + 208*128; FL_KF = FL + 336*128; FL_O = FL + 368*128
NFL = 624

S_X, S_WQ, S_WPHI, S_W1, S_B1, S_WS = 4, 6, 8, 10, 12, 14
S_WO, S_W2, S_B2, S_OUT, S_DBG = 76, 78, 80, 82, 84
R_X, R_W, R_WS, R_B, R_T, R_OUT, R_WQ, R_W1, R_W2, R_WO = 16, 20, 24, 28, 32, 60, 64, 88, 92, 96
S_I64, S_JB, S_T16 = 68, 69, 86

def srd(k, s, lo, size):
    k(f"""
  s_mov_b32 s{s}, s{lo}
  s_and_b32 s{s+1}, s{lo+1}, 0xffff
  s_mov_b32 s{s+2}, {size}
  s_mov_b32 s{s+3}, 0x20000""")
def R(s): return f"s[{s}:{s+3}]"

def job_ids(k):
    k(f"""
  s_lshl_b32 s40, s2, 2
  s_add_u32 s40, s40, s39                    ; gw
  s_lshl_b32 s41, s36, 3
  s_add_u32 s41, s41, s38
  s_lshl_b32 s41, s41, 2
  s_add_u32 s41, s41, s39                    ; u = 4 (8 i + role) + w
  s_add_u32 s42, s41, 512
  s_cmp_eq_u32 s37, 1
  s_cselect_b32 s50, s41, s42
  s_cselect_b32 s51, s41, -1
  s_cselect_b32 s49, s42, -1
  s_cmp_lt_u32 s50, 570
  s_cselect_b32 s50, s50, -1
  s_cmp_lt_u32 s49, 740
  s_cselect_b32 s49, s49, -1
  s_lshl_b32 s52, s39, 13
  s_add_u32 s52, s52, {SCR}
  s_lshl_b32 s87, s39, 12
  s_add_u32 s87, s87, {SCR2}
  s_add_u32 s48, s87, 16384""")

V_ST = 36
def stats_issue(k):
    v = V_ST
    k(f"""
  v_lshrrev_b32 v{v}, 5, v1                  ; hh
  v_and_b32 v{v+1}, 31, v1                   ; n
  s_lshl_b32 s41, s40, 1
  v_add_u32 v{v+2}, s41, v{v}                ; token
  v_mul_u32_u24 v{v+3}, 1280, v{v+2}
  v_lshl_add_u32 v{v+3}, v{v+1}, 3, v{v+3}""")
    for r in range(5):
        k.vmem(f"  buffer_load_dwordx2 v[{v+4+2*r}:{v+5+2*r}], v{v+3}, {R(R_X)}, 0 offen offset:{256*r}", "st")
def stats_a1(k):
    v = V_ST; U = v + 16
    k.wait_vm("st")
    for d in range(10):
        k(f"  v_lshlrev_b32 v{U+2*d}, 16, v{v+4+d}\n  v_and_b32 v{U+2*d+1}, 0xffff0000, v{v+4+d}")
def stats_a2(k):
    v = V_ST; U = v + 16; S = v + 36; T = v + 37
    k(f"  v_add_f32 v{S}, v{U}, v{U+1}\n  v_add_f32 v{T}, v{U+2}, v{U+3}")
    for i in range(4, 20, 2):
        k(f"  v_add_f32 v{S}, v{S}, v{U+i}\n  v_add_f32 v{T}, v{T}, v{U+i+1}")
    k(f"  v_add_f32 v{S}, v{S}, v{T}")
def red32(k, S, T):
    for r in (8, 4, 2, 1):
        k(f"  v_add_f32_dpp v{S}, v{S}, v{S} row_ror:{r} row_mask:0xf bank_mask:0xf")
    k(f"  ds_swizzle_b32 v{T}, v{S} offset:0x401F\n  s_waitcnt lgkmcnt(0)\n  v_add_f32 v{S}, v{S}, v{T}")
def stats_b(k):
    v = V_ST; U = v + 16; S = v + 36; T = v + 37; M = v + 38
    red32(k, S, T)
    k(f"  v_mul_f32 v{M}, {1.0/640.0!r}, v{S}")
    for i in range(20): k(f"  v_sub_f32 v{U+i}, v{U+i}, v{M}")
def stats_c(k):
    v = V_ST; U = v + 16; S = v + 36; T = v + 37
    k(f"  v_mul_f32 v{S}, v{U}, v{U}\n  v_mul_f32 v{T}, v{U+1}, v{U+1}")
    for i in range(2, 20, 2):
        k(f"  v_fmac_f32 v{S}, v{U+i}, v{U+i}\n  v_fmac_f32 v{T}, v{U+i+1}, v{U+i+1}")
    k(f"  v_add_f32 v{S}, v{S}, v{T}")
def stats_d(k):
    v = V_ST; U = v + 16; S = v + 36; T = v + 37; M = v + 38; O = v + 40
    red32(k, S, T)
    k(f"""
  v_mul_f32 v{S}, {1.0/640.0!r}, v{S}
  v_add_f32 v{T}, 0x3727c5ac, v{S}
  v_rsq_f32 v{O+1}, v{T}
  v_mov_b32 v{O}, v{M}
  v_mul_f32 v{T}, v{O+1}, v{O+1}
  v_mul_f32 v{T}, v{T}, v{S}
  v_add_f32 v{T}, 0x3727c5ac, v{T}
  v_rsq_f32 v{T}, v{T}
  v_mov_b32 v{O+3}, 0
  v_mul_f32 v{O+2}, v{O+1}, v{T}
  v_lshlrev_b32 v{v+3}, 4, v{v+2}
  v_add_u32 v{v+3}, {L.WS_STATS}, v{v+3}
  v_cmp_eq_u32 vcc, 0, v{v+1}
  v_mov_b32 v{T}, 0x7fff0000
  v_cndmask_b32 v{v+3}, v{T}, v{v+3}, vcc""")
    if 'nost' not in EXP: k.vmem(f"  buffer_store_dwordx4 v[{O}:{O+3}], v{v+3}, {R(R_WS)}, 0 offen sc1", "jst")

V_CS = 176
V_CSI = 100
def cs_issue(k):
    v = V_CSI; t = 41
    k(f"""
  s_cmp_eq_u32 s50, -1
  s_cselect_b32 s53, 0, s50
  s_mul_i32 s{t}, s53, 6554
  s_lshr_b32 s{t}, s{t}, 16                  ; u
  s_mul_i32 s{t+1}, s{t}, 10
  s_sub_u32 s{t+1}, s53, s{t+1}              ; kappa
  s_mov_b32 s54, s{t}
  s_mov_b32 s55, s{t+1}
  s_cmp_lt_u32 s{t}, 30
  s_cselect_b32 s{R_T}, s{R_WQ}, s{R_W1}
  s_cselect_b32 s{R_T+1}, s{R_WQ+1}, s{R_W1+1}
  s_cselect_b32 s{R_T+2}, s{R_WQ+2}, s{R_W1+2}
  s_mov_b32 s{R_T+3}, 0x20000
  s_mov_b32 s{t+2}, 3456
  s_cmov_b32 s{t+2}, 3840
  s_cselect_b32 s{t+3}, 0, 30
  s_sub_u32 s{t+3}, s{t}, s{t+3}
  s_lshl_b32 s{t+3}, s{t+3}, 7
  s_mul_i32 s{t+4}, s{t+1}, s{t+2}
  s_lshl_b32 s{t+4}, s{t+4}, 6
  s_add_u32 s{t+4}, s{t+4}, s{t+3}           ; soffset
  s_lshl_b32 s{t+5}, s{t+2}, 3
  s_cmp_eq_u32 s50, -1
  s_cselect_b32 s{R_T+2}, 0, s{R_T+2}
  v_lshrrev_b32 v{v}, 3, v1
  v_lshrrev_b32 v{v+1}, 1, v{v}
  v_and_b32 v{v+1}, 1, v{v+1}
  v_lshlrev_b32 v{v+1}, 2, v{v+1}
  v_and_b32 v{v+2}, 7, v1
  v_xor_b32 v{v+2}, v{v+2}, v{v+1}
  v_mul_lo_u32 v{v+3}, v{v}, s{t+2}
  v_lshl_add_u32 v{v+3}, v{v+2}, 4, v{v+3}""")
    for i in range(8):
        k.begin()
        k(f"  s_add_u32 m0, s52, {i*1024}")
        k.vmem(f"  buffer_load_dwordx4 v{v+3}, {R(R_T)}, s{t+4} offen lds", "cs")
        k.end()
        if i < 7: k(f"  s_add_u32 s{t+4}, s{t+4}, s{t+5}")
def cs_a(k):
    v = V_CS
    k(f"""
  v_lshrrev_b32 v{v}, 4, v1
  v_lshrrev_b32 v{v+1}, 2, v1
  v_and_b32 v{v+1}, 3, v{v+1}
  v_and_b32 v{v+2}, 3, v1
  v_lshrrev_b32 v{v+4}, 1, v{v}
  v_lshl_add_u32 v{v+4}, v{v+4}, 3, v{v+1}
  v_lshlrev_b32 v{v+4}, 7, v{v+4}
  v_and_b32 v{v+5}, 1, v{v}
  v_lshlrev_b32 v{v+5}, 1, v{v+5}
  v_lshrrev_b32 v{v+6}, 1, v{v+2}
  v_add_u32 v{v+5}, v{v+5}, v{v+6}
  v_lshrrev_b32 v{v+6}, 1, v{v+1}
  v_lshlrev_b32 v{v+6}, 2, v{v+6}
  v_and_b32 v{v+7}, 1, v{v+2}
  v_lshl_add_u32 v{v+4}, v{v+7}, 3, v{v+4}
  v_add_u32 v{v+4}, s52, v{v+4}
  v_xor_b32 v{v+7}, v{v+5}, v{v+6}
  v_lshl_add_u32 v{v+8}, v{v+7}, 4, v{v+4}
  v_xor_b32 v{v+7}, 4, v{v+7}
  v_lshl_add_u32 v{v+9}, v{v+7}, 4, v{v+4}""")
    ONE = v + 12; FRG = v + 16; ACC_ = v + 48
    for i in range(4): k(f"  v_mov_b32 v{ONE+i}, 0x3f803f80")
    k.wait_vm("cs")
    for ks in range(4):
        for b in range(2):
            for tt in range(2):
                d = FRG + (ks*2 + b)*4 + 2*tt
                k(f"  ds_read_b64_tr_b16 v[{d}:{d+1}], v{v+8+b} offset:{ks*2048 + tt*512}")
        if ks == 2: k("  s_waitcnt lgkmcnt(4)")
    k("  s_waitcnt lgkmcnt(0)")
def cs_b(k):
    v = V_CS; ONE = v + 12; FRG = v + 16; ACC_ = v + 48
    for ks in range(4):
        for b in range(2):
            d = FRG + (ks*2 + b)*4
            c = "0" if ks == 0 else f"v[{ACC_+16*b}:{ACC_+16*b+15}]"
            k(f"  v_mfma_f32_32x32x16_bf16 v[{ACC_+16*b}:{ACC_+16*b+15}], v[{ONE}:{ONE+3}], v[{d}:{d+3}], {c}")
    k(f"""
  s_mul_i32 s41, s55, {L.NCOL*4}
  s_lshl_b32 s42, s54, 8
  s_add_u32 s41, s41, s42
  s_add_u32 s41, s41, {L.WS_CSP}
  v_lshlrev_b32 v{v}, 2, v1
  v_cmp_gt_u32 vcc, 32, v1
  v_mov_b32 v{v+1}, 0x7fff0000
  v_cndmask_b32 v{v}, v{v+1}, v{v}, vcc
  s_cmp_eq_u32 s50, -1
  s_cselect_b32 s42, 0x7fff0000, 0
  v_add_u32 v{v}, s42, v{v}""")
    k(f"  v_mov_b32 v{v+1}, 0x7fff0000\n  v_min_u32 v{v}, v{v}, v{v+1}")
    for b in range(2):
        if 'nocs' not in EXP: k.vmem(f"  buffer_store_dword v{ACC_+16*b}, v{v}, {R(R_WS)}, s41 offen offset:{128*b} sc1", "jst")

V_SW = 36
V_SWI = 108
SCR2 = WR + 2*16384
def sw_addr(k, n=0):
    sid, sS, sL, v = [(51, 56, 57, V_SWI), (49, 100, 101, V_SWI + 10)][n]; t = 41
    k.begin()
    k(f"""
  s_cmp_eq_u32 s{sid}, -1
  s_cselect_b32 s53, 0, s{sid}
  s_mul_i32 s{t}, s53, 6554
  s_lshr_b32 s{t}, s{t}, 16
  s_mul_i32 s{t+1}, s{t}, 10
  s_sub_u32 s{t+1}, s53, s{t+1}              ; lambda
  s_mov_b32 s{sS}, s{t}
  s_mov_b32 s{sL}, s{t+1}
  s_cmp_lt_u32 s{t}, 54
  s_cselect_b32 s{R_T}, s{R_W2}, s{R_WO}
  s_cselect_b32 s{R_T+1}, s{R_W2+1}, s{R_WO+1}
  s_cselect_b32 s{R_T+2}, s{R_W2+2}, s{R_WO+2}
  s_mov_b32 s{R_T+3}, 0x20000
  s_cmp_eq_u32 s{sid}, -1
  s_cselect_b32 s{R_T+2}, 0, s{R_T+2}
  v_lshrrev_b32 v{v}, 3, v1                  ; e
  v_and_b32 v{v+1}, 7, v1
  s_lshl_b32 s{t+2}, s{t+1}, 7
  v_lshl_add_u32 v{v+1}, v{v+1}, 4, s{t+2}
  s_cmp_lt_u32 s{t}, 54
  s_cbranch_scc0 {k.L('sw_wo%d' % n)}
  s_cmp_lt_u32 s{t}, 28
  s_cselect_b32 s{t+3}, 0, 28
  s_cselect_b32 s{t+4}, 0, 2
  s_sub_u32 s{t+3}, s{t}, s{t+3}
  s_lshr_b32 s{t+5}, s{t+3}, 1
  s_lshl_b32 s{t+5}, s{t+5}, 2
  s_and_b32 s{t+3}, s{t+3}, 1
  s_add_u32 s{t+5}, s{t+5}, s{t+3}
  s_add_u32 s{t+5}, s{t+5}, s{t+4}           ; F block
  v_lshrrev_b32 v{v+2}, 2, v{v}
  v_lshlrev_b32 v{v+2}, 3, v{v+2}
  v_and_b32 v{v+3}, 3, v{v}
  v_add_u32 v{v+2}, v{v+2}, v{v+3}
  s_lshl_b32 s{t+5}, s{t+5}, 5
  v_add_u32 v{v+2}, s{t+5}, v{v+2}""")
    for i in range(4): k(f"  v_add_u32 v{v+4+i}, {16*(i&1) + 4*(i>>1)}, v{v+2}")
    k(f"""
  s_branch {k.L('sw_go%d' % n)}
{k.L('sw_wo%d' % n)}:
  s_sub_u32 s{t+3}, s{t}, 54
  s_mul_i32 s{t+4}, s{t+3}, 52
  s_lshr_b32 s{t+4}, s{t+4}, 8
  s_mul_i32 s{t+5}, s{t+4}, 5
  s_sub_u32 s{t+5}, s{t+3}, s{t+5}
  s_lshl_b32 s{t+5}, s{t+5}, 3
  v_add_u32 v{v+2}, s{t+5}, v{v}
  v_cmp_le_u32 vcc, 20, v{v+2}
  v_cndmask_b32 v{v+3}, 0, 1, vcc
  v_mul_u32_u24 v{v+8}, 20, v{v+3}
  v_sub_u32 v{v+2}, v{v+2}, v{v+8}
  s_lshl_b32 s{t+4}, s{t+4}, 1
  v_add_u32 v{v+3}, s{t+4}, v{v+3}
  v_mul_u32_u24 v{v+3}, 80, v{v+3}
  v_add_u32 v{v+2}, v{v+2}, v{v+3}""")
    for i in range(4): k(f"  v_add_u32 v{v+4+i}, {20*i}, v{v+2}")
    k(f"{k.L('sw_go%d' % n)}:")
    for i in range(4): k(f"  v_mul_u32_u24 v{v+4+i}, 1280, v{v+4+i}\n  v_add_u32 v{v+4+i}, v{v+4+i}, v{v+1}")
    k.end()
def sw_dma(k, n=0):
    v = V_SWI + 10*n; scr = [87, 48][n]
    for i in range(4):
        k.begin()
        k(f"  s_add_u32 m0, s{scr}, {i*1024}")
        k.vmem(f"  buffer_load_dwordx4 v{v+4+i}, {R(R_T)}, 0 offen lds", ("sw", n))
        k.end()
def sw_proc1(k, n=0):
    v = V_SW + 40*n; t = 41; FRG = v + 16; sid = [51, 49][n]; scr = [87, 48][n]
    k(f"""
  v_lshrrev_b32 v{v}, 4, v1
  v_lshrrev_b32 v{v+1}, 2, v1
  v_and_b32 v{v+1}, 3, v{v+1}
  v_lshl_add_u32 v{v}, v{v}, 3, v{v+1}
  v_lshlrev_b32 v{v}, 7, v{v}
  v_and_b32 v{v+1}, 3, v1
  v_lshl_add_u32 v{v}, v{v+1}, 3, v{v}
  v_add_u32 v{v}, s{scr}, v{v}
  v_lshlrev_b32 v{v+1}, 4, v1
  s_cmp_eq_u32 s{sid}, -1
  s_cselect_b32 s{t}, 0x7fff0000, 0
  v_add_u32 v{v+1}, s{t}, v{v+1}""")
    k.wait_vm(("sw", n))
    for b in range(4):
        for tt in range(2):
            d = FRG + 4*b + 2*tt
            k(f"  ds_read_b64_tr_b16 v[{d}:{d+1}], v{v} offset:{32*b + 512*tt}")
    k("  s_waitcnt lgkmcnt(0)")
def sw_proc2(k, n=0):
    v = V_SW + 40*n; t = 41; FRG = v + 16; sS, sL = [(56, 57), (100, 101)][n]
    for b in range(4):
        k.begin()
        k(f"""
  s_lshl_b32 s{t}, s{sL}, 2
  s_add_u32 s{t}, s{t}, {b}
  s_mul_i32 s{t+1}, s{t}, 13
  s_lshr_b32 s{t+1}, s{t+1}, 6
  s_mul_i32 s{t+2}, s{t+1}, 5
  s_sub_u32 s{t+2}, s{t}, s{t+2}
  s_mul_i32 s{t+1}, s{t+1}, 74
  s_add_u32 s{t+1}, s{t+1}, s{sS}
  s_mul_i32 s{t+1}, s{t+1}, 5
  s_add_u32 s{t+1}, s{t+1}, s{t+2}
  s_lshl_b32 s{t+1}, s{t+1}, 10
  s_add_u32 s{t+1}, s{t+1}, {L.WS_W2}""")
        if 'nosw' not in EXP: k.vmem(f"  buffer_store_dwordx4 v[{FRG+4*b}:{FRG+4*b+3}], v{v+1}, {R(R_WS)}, s{t+1} offen sc1", "jst")
        k.end()
def zero_job(k):
    k(f"""
  s_mul_i32 s41, s40, 160
  s_add_u32 s41, s41, {L.WS_KV}
  v_lshlrev_b32 v56, 4, v1
  v_cmp_gt_u32 vcc, 10, v1
  v_mov_b32 v57, 0x7fff0000
  v_cndmask_b32 v58, v57, v56, vcc
  v_mov_b32 v60, 0
  v_mov_b32 v61, 0
  v_mov_b32 v62, 0
  v_mov_b32 v63, 0""")
    if 'nozero' not in EXP: k.vmem(f"  buffer_store_dwordx4 v[60:63], v58, {R(R_WS)}, s41 offen sc1", "jst")

def store_flag(k, cond_s, cond_val, addr_code, lbl):
    k.begin()
    k(f"  s_cmp_eq_u32 s{cond_s}, {cond_val}\n  s_cbranch_scc0 {k.L(lbl)}")
    k(addr_code)
    k(f"""
  v_mov_b32 v2, s41
  v_mov_b32 v0, 1
  s_mov_b64 exec, 1
  buffer_store_byte v0, v2, {R(R_WS)}, 0 offen sc1
  s_mov_b64 exec, -1
{k.L(lbl)}:""")
    k.end()

def poll_issue(k, vdst, addr_code, tag, only0=True):
    k.begin()
    k(addr_code)
    if only0:
        k(f"  s_cmp_eq_u32 s39, 0\n  s_cselect_b32 s41, 0, 0x7fff0000\n  v_or_b32 v{vdst+1}, s41, v{vdst+1}")
    k.vmem(f"  buffer_load_dword v{vdst}, v{vdst+1}, {R(R_WS)}, 0 offen sc1", tag)
    k.end()
def poll_check(k, vdst, tag, lbl, only0=True, slp=6):
    k.wait_vm(tag)
    saved = list(k.vm)
    if only0: k(f"  s_cmp_eq_u32 s39, 0\n  s_cbranch_scc0 {k.L(lbl+'_ok')}")
    k(f"""
  v_cmp_ne_u32 vcc, 0x01010101, v{vdst}
  s_cmp_eq_u64 vcc, 0
  s_cbranch_scc1 {k.L(lbl+'_ok')}
{k.L(lbl+'_sp')}:
  s_sleep {slp}
  buffer_load_dword v{vdst}, v{vdst+1}, {R(R_WS)}, 0 offen sc1
  s_waitcnt vmcnt(0)
  v_cmp_ne_u32 vcc, 0x01010101, v{vdst}
  s_cmp_eq_u64 vcc, 0
  s_cbranch_scc0 {k.L(lbl+'_sp')}
{k.L(lbl+'_ok')}:""")
    k.vm = saved
def lines(vdst, scode, n):
    return scode + f"\n  v_min_u32 v{vdst+1}, {n-1}, v1\n  v_lshlrev_b32 v{vdst+1}, 7, v{vdst+1}\n  v_add_u32 v{vdst+1}, s41, v{vdst+1}"
def words(vdst, scode, n):
    return scode + f"\n  v_lshlrev_b32 v{vdst+1}, 2, v1\n  v_min_u32 v{vdst+1}, {4*(n-1)}, v{vdst+1}\n  v_add_u32 v{vdst+1}, s41, v{vdst+1}"

def unit_of_slot(k, sg, sslot, su, sty, lbl):
    k(f"""
  s_lshl_b32 s{su}, s{sg}, 2
  s_add_u32 s{su}, s{su}, s{sslot}
  s_cmp_lt_u32 s{su}, 27
  s_cbranch_scc0 {k.L(lbl+'a')}
  s_mov_b32 s{sty}, 0
  s_add_u32 s{su}, s{su}, 30
  s_branch {k.L(lbl+'b')}
{k.L(lbl+'a')}:
  s_mov_b32 s{sty}, 2
  s_cmp_eq_u32 s{su}, 28
  s_cmov_b32 s{sty}, 1
  s_cmp_eq_u32 s{su}, 30
  s_cmov_b32 s{sty}, 1
  s_lshr_b32 s{su}, s{su}, 1
  s_sub_u32 s{su}, s{su}, 6
{k.L(lbl+'b')}:""")

vDx, vDx2, vDw, vG = 10, 11, 12, 20
NWS = 4

def loader_a_setup(k):
    k(f"""
  v_lshrrev_b32 v4, 3, v1
  v_lshrrev_b32 v5, 1, v4
  v_and_b32 v6, 7, v1
  v_xor_b32 v7, v6, v5
  v_mul_u32_u24 v8, 1280, v4
  v_lshl_add_u32 v{vDx}, v7, 4, v8
  v_xor_b32 v7, 4, v7
  v_lshl_add_u32 v{vDx2}, v7, 4, v8
  s_mul_i32 s101, s36, {128*1280}
  s_mul_i32 s47, s39, {32*1280}
  s_add_u32 s101, s101, s47
  s_lshl_b32 s47, s39, 12                  ; lw*4096""")
def loader_a_setup_w(k):
    k(f"""
  v_and_b32 v5, 1, v5
  v_lshlrev_b32 v5, 2, v5
  v_xor_b32 v6, v6, v5
  s_cmp_eq_u32 s37, 0
  s_cbranch_scc1 {k.L('ld_kv')}""")
    unit_of_slot(k, 38, 39, 48, 49, "uos")
    k(f"""
  s_cmp_eq_u32 s49, 0
  s_cselect_b32 s20, s{R_W1}, s{R_WQ}
  s_cselect_b32 s21, s{R_W1+1}, s{R_WQ+1}
  s_mov_b32 s44, 3840
  s_cmov_b32 s44, 3456
  s_cselect_b32 s22, s{R_W1+2}, s{R_WQ+2}
  s_cselect_b32 s58, 30, 0
  s_sub_u32 s58, s48, s58
  s_lshl_b32 s100, s58, 7
  s_cmp_eq_u32 s49, 2
  s_cmov_b32 s22, 0
  v_lshlrev_b32 v7, 4, v6
  s_lshl_b32 s58, s48, 6
  v_add_u32 v{vG}, s58, v1
  s_branch {k.L('ld_go')}
{k.L('ld_kv')}:
  s_mov_b32 s20, s{R_WQ}
  s_mov_b32 s21, s{R_WQ+1}
  s_mov_b32 s22, s{R_WQ+2}
  s_mov_b32 s44, 3840
  s_mov_b32 s100, 0
  ; position p' = 8 lw + p  ->  chunk c' = (p' & ~3) | inv(p')  (bank-conflict-free placement, see kvmap2.py)
  s_lshl_b32 s58, s39, 3
  v_add_u32 v7, s58, v6                    ; p'
  v_mov_b32 v8, 0x9c1b39b4
  v_mov_b32 v9, 0xd8e1e472
  v_cmp_gt_u32 vcc, 16, v7
  v_cndmask_b32 v8, v9, v8, vcc
  v_and_b32 v9, 15, v7
  v_lshlrev_b32 v9, 1, v9
  v_lshrrev_b32 v8, v9, v8
  v_and_b32 v8, 3, v8
  v_and_b32 v7, 0xfc, v7
  v_or_b32 v7, v7, v8                      ; c'
  s_mul_i32 s58, s38, 160
  s_add_u32 s59, s58, 1280                 ; k: 1280 + 160 j + 16 c'
  v_mov_b32 v8, s59
  s_add_u32 s59, s58, {2560 - 160}         ; v: 2560 + 160 j + 16 (c' - 10)
  v_mov_b32 v9, s59
  v_cmp_gt_u32 vcc, 10, v7
  v_cndmask_b32 v8, v9, v8, vcc
  v_mov_b32 v9, 0x7fff0000
  v_cmp_gt_u32 vcc, 20, v7
  v_cndmask_b32 v8, v9, v8, vcc
  s_lshl_b32 s59, s38, 7
  s_sub_u32 s59, s59, {24*16}              ; q: 128 j + 16 (c' - 24)
  v_mov_b32 v9, s59
  v_cmp_gt_u32 vcc, 24, v7
  v_cndmask_b32 v8, v9, v8, vcc
  v_lshl_add_u32 v7, v7, 4, v8
{k.L('ld_kvgc')}:
  v_and_b32 v12, 31, v1
  v_lshrrev_b32 v13, 5, v1
  s_and_b32 s58, s39, 1
  s_lshl_b32 s58, s58, 1
  v_add_u32 v13, s58, v13
  v_lshrrev_b32 v14, 3, v12
  v_lshl_add_u32 v14, v13, 2, v14
  v_lshrrev_b32 v15, 2, v12
  v_and_b32 v15, 1, v15
  s_lshr_b32 s59, s39, 1
  s_lshl_b32 s58, s59, 1
  v_add_u32 v16, s58, v15
  v_and_b32 v17, 3, v12
  v_mul_u32_u24 v18, 20, v16
  v_lshl_add_u32 v18, v14, 2, v18
  v_add_u32 v18, v18, v17
  s_mul_i32 s58, s38, 80
  v_add_u32 v18, s58, v18
  v_add_u32 v19, 640, v18
  v_add_u32 v21, {1280 - 20}, v18
  v_cmp_gt_u32 vcc, 5, v14
  v_cndmask_b32 v{vG}, v21, v19, vcc
  s_lshl_b32 s58, s59, 3
  v_lshl_add_u32 v21, v15, 2, s58
  v_add_u32 v21, v21, v14
  v_subrev_u32 v21, 10, v21
  v_lshl_add_u32 v21, v21, 2, v17
  s_lshl_b32 s58, s38, 6
  v_add_u32 v21, s58, v21
  v_cmp_gt_u32 vcc, 10, v14
  v_cndmask_b32 v{vG}, v21, v{vG}, vcc
  v_cmp_gt_u32 vcc, 14, v14
  v_cndmask_b32 v{vG}, 0, v{vG}, vcc
{k.L('ld_go')}:
  s_mov_b32 s23, 0x20000
  v_mul_lo_u32 v8, v4, s44
  v_add_u32 v{vDw}, v8, v7
  s_add_u32 s48, s47, {WR}
  s_lshl_b32 s49, s44, 3                   ; 8*stride""")

def gW(j):
    def mk(i):
        def f(k):
            k(f"  s_add_u32 m0, s48, {(j % NWS)*16384 + i*1024}")
            k.vmem(f"  buffer_load_dwordx4 v{vDw}, {R(R_W)}, s100 offen lds", ("W", j))
            k("  s_add_u32 s100, s100, s49")
        return f
    return [mk(i) for i in range(4)]
def gX(m):
    def mk(i):
        def f(k):
            k(f"  s_add_u32 m0, s47, {XR + (m % 3)*16384 + i*1024}\n  s_add_u32 s87, s101, {m*128 + i*8*1280}")
            k.vmem(f"  buffer_load_dwordx4 v{vDx if i % 2 == 0 else vDx2}, {R(R_X)}, s87 offen lds", ("X", m))
        return f
    return [mk(i) for i in range(4)]
def dW(k, j):
    for f in gW(j): f(k)
def dX(k, m):
    for f in gX(m): f(k)
def rec(k, fns):
    r = kb.Rec(k)
    for f in fns: f(r)
    return r.items

def t_issue(k):
    k(f"""
  v_lshlrev_b32 v21, 2, v{vG}
  v_subrev_u32 v22, 1920, v{vG}
  v_lshlrev_b32 v22, 1, v22
  s_lshl_b32 s58, s36, 7
  s_lshl_b32 s59, s39, 6
  s_add_u32 s58, s58, s59
  v_add_u32 v23, s58, v1
  v_lshlrev_b32 v23, 4, v23
  s_cmp_lt_u32 s39, 2
  s_cselect_b32 s59, 0, 0x7fff0000
  v_add_u32 v23, s59, v23""")
    for p in range(10):
        k.begin()
        k(f"  s_mov_b32 s58, {L.WS_CSP + p*L.NCOL*4}")
        k.vmem(f"  buffer_load_dword v{24+p}, v21, {R(R_WS)}, s58 offen sc1", "side")
        k.end()
    k.vmem(f"  buffer_load_ushort v34, v22, {R(R_B)}, 0 offen", "side")
    k.vmem(f"  buffer_load_dwordx4 v[36:39], v23, {R(R_WS)}, 0 offen sc1", "side")
def wphi_dma(k, head_code, dst, enable_kv_only):
    k.begin()
    k(head_code)
    k(f"""
  s_mul_i32 s58, s58, 800
  s_add_u32 s{R_T}, s{S_WPHI}, s58
  s_addc_u32 s{R_T+1}, s{S_WPHI+1}, 0
  s_and_b32 s{R_T+1}, s{R_T+1}, 0xffff
  s_mov_b32 s{R_T+2}, 800
  s_mov_b32 s{R_T+3}, 0x20000""")
    if enable_kv_only:
        k(f"  s_cmp_eq_u32 s37, 0\n  s_cselect_b32 s{R_T+2}, s{R_T+2}, 0")
    k(f"""
  v_lshlrev_b32 v40, 4, v1
  s_lshl_b32 s58, s39, 10
  s_add_u32 m0, s58, {dst}""")
    k.vmem(f"  buffer_load_dwordx4 v40, {R(R_T)}, 0 offen lds", "side")
    k.end()
def t_build1(k):
    k.wait_vm("side")
    k("  v_add_f32 v24, v24, v25")
    for p in range(2, 10): k(f"  v_add_f32 v24, v24, v{24+p}")
    k(f"""
  v_cvt_pk_bf16_f32 v25, v24, v24
  v_and_b32 v26, 0xffff0000, v25
  v_sub_f32 v26, v24, v26
  v_cvt_pk_bf16_f32 v28, v24, v26
  v_and_b32 v29, 0xffff, v25
  v_lshl_or_b32 v29, v34, 16, v29
  v_mov_b32 v30, v34
  v_mov_b32 v31, 0""")
def t_build2(k):
    k(f"""
  v_lshlrev_b32 v27, 4, v1
  s_lshl_b32 s58, s39, 10
  s_add_u32 s58, s58, {TT}
  v_add_u32 v27, s58, v27
  ds_write_b128 v27, v[28:31]
  v_mov_b32 v44, 0
  v_mov_b32 v45, 0
  v_mov_b32 v46, 0
  v_mov_b32 v47, 0
  v_add_u32 v27, {ZR - TT}, v27
  s_cmp_lt_u32 s39, 2
  s_cbranch_scc0 {k.L('ld_nost')}
  ds_write_b128 v27, v[44:47]
  v_add_u32 v27, {ST - ZR + 2**32 if ST < ZR else ST - ZR}, v27
  ds_write_b128 v27, v[36:39]
{k.L('ld_nost')}:
  s_waitcnt lgkmcnt(0)""")

def tlb_touch(k):
    k(f"  s_cmp_eq_u32 s39, 2\n  s_cbranch_scc0 {k.L('notlb')}")
    items = [(S_X, 0), (S_X, 0x200000), (S_WQ, 0), (S_WQ, 0x200000), (S_W1, 0), (S_W1, 0x200000), (S_W2, 0), (S_W2, 0x200000), (S_WO, 0),
             (S_WPHI, 0), (S_B1, 0), (S_B2, 0), (S_OUT, 0), (S_OUT, 0x200000), (S_DBG, 0)] + [(S_WS, o) for o in range(0, L.WS_END, 0x200000)]
    for (p, o) in items:
        if o == 0: k(f"  s_load_dword s70, s[{p}:{p+1}], 0")
        else: k(f"  s_add_u32 s72, s{p}, {o}\n  s_addc_u32 s73, s{p+1}, 0\n  s_load_dword s70, s[72:73], 0\n  s_waitcnt lgkmcnt(0)" if False else
                f"  s_add_u32 s{{a}}, s{p}, {o}\n  s_addc_u32 s{{b}}, s{p+1}, 0\n  s_load_dword s70, s[{{a}}:{{b}}], 0".format(a=72, b=73))
    k(f"{k.L('notlb')}:")
def loader_a_start(k):
    if 'tlb' in EXP: tlb_touch(k)
    loader_a_setup(k)
    loader_a_setup_w(k)
    if 'noS0' not in EXP: k("  s_barrier")
    dX(k, 0); dW(k, 0); dW(k, 1)
    if CODE_PF:
        k(f"""
  s_cmp_eq_u32 s39, 3
  s_cbranch_scc0 {k.L('nopf')}
  s_getpc_b64 s[58:59]
{k.L('pc')}:
  s_sub_u32 s58, s58, {k.L('pc')}-{k.name}
  s_subb_u32 s59, s59, 0
  s_lshr_b32 s41, s2, 3
  s_and_b32 s41, s41, 7
  s_lshl_b32 s41, s41, 13
  v_lshl_add_u32 v50, v1, 7, s41
  v_min_u32 v50, {k.L('codeend')}-{k.name}-4, v50
  global_load_dword v51, v50, s[58:59]
{k.L('nopf')}:""")
    wphi_dma(k, "  s_lshl_b32 s58, s38, 2\n  s_add_u32 s58, s58, s39", WP, True)
    kb.stamp(k, 2)
    k.wait_vm(("W", 0))
    k("  s_barrier")
    kb.stamp(k, 3)
    dX(k, 1); dW(k, 2); dW(k, 3); dX(k, 2)
def loader_a(k):
    for j in range(20):
        if j + 1 <= 19:
            k.wait_vm(("W", j + 1))
            if (j + 1) % 2 == 0: k.wait_vm(("X", (j + 1)//2))
        if j == 16: poll_check(k, 52, "f2", "f2", slp=1)
        k("  s_barrier")
        groups = []
        if j + NWS <= 19: groups += gW(j + NWS)
        if j % 2 == 1 and (j + 1)//2 + 2 <= 9: groups += gX((j + 1)//2 + 2)
        fns = []
        if j == 14:
            fns.append(lambda k: poll_issue(k, 52, f"  v_lshrrev_b32 v53, 2, v1\n  v_lshlrev_b32 v53, 7, v53\n  v_and_b32 v54, 3, v1\n  v_lshl_add_u32 v53, v54, 2, v53\n  v_add_u32 v53, {FL_F2}, v53", "f2"))
        if j == 16: fns.append(t_issue)
        if j == 16: fns.append(loader_b_setup)
        if j == 18:
            fns.append(t_build1); fns.append(t_build2)
        if j in (17, 18, 19): groups += gWP(WPL[4*(j - 17):4*(j - 16)])
        kb.interleave(k, groups, rec(k, fns))
        kb.stamp(k, 16 + j)
CODE_PF = True
import os
EXP = os.environ.get('EXP', '')

VXA = [4, 5, 6, 7]; VXB = [8, 9, 10, 11]; VWA = [12, 13, 14, 15]
FX = [[80, 84], [104, 108]]
FW = [[88, 92, 96, 100], [112, 116, 120, 124]]
ACC = 128
WA_KV = 56
def acc(tb, b): return ACC + tb*64 + b*16

def a_reads(set_, st4, ks2):
    ksl = 2*(st4 & 1) + ks2
    r = []
    for tb in range(2):
        r.append(f"  ds_read_b128 v[{FX[set_][tb]}:{FX[set_][tb]+3}], v{VXA[ksl]} offset:{tb*4096}")
    for b in range(4):
        for t in range(2):
            d = FW[set_][b] + 2*t
            r.append(f"  ds_read_b64_tr_b16 v[{d}:{d+1}], v{VWA[b]} offset:{st4*16384 + ks2*2048 + t*512}")
    return r
def a_mfmas(cur, zero=False):
    return [f"  v_mfma_f32_32x32x16_bf16 v[{acc(tb,b)}:{acc(tb,b)+15}], v[{FW[cur][b]}:{FW[cur][b]+3}], v[{FX[cur][tb]}:{FX[cur][tb]+3}], " + ("0" if zero else f"v[{acc(tb,b)}:{acc(tb,b)+15}]")
            for b in range(4) for tb in range(2)]

def a_stage(k, st4, tail=None, pre_barrier=None, post_barrier=None, first=False):
    odd = st4 & 1
    mf = a_mfmas(0, zero=first); rd = a_reads(1, st4, 1)
    k("  s_waitcnt lgkmcnt(0)")
    sched = [2, 2, 2, 2, 1, 1, 0, 0]
    extra = []
    if odd:
        extra = [f"  v_add_u32 v{VXA[i]}, s47, v{VXB[i]}" for i in range(3)]
    for i, m in enumerate(mf):
        k(m)
        for _ in range(sched[i]): k(rd.pop(0))
        if i >= 5 and extra: k(extra.pop(0))
    mf = a_mfmas(1)
    k("  s_waitcnt lgkmcnt(0)")
    k(mf[0])
    if pre_barrier: k(pre_barrier)
    k("  s_barrier")
    if post_barrier: post_barrier(k)
    rd = a_reads(0, (st4 + 1) % 4, 0) if tail is None else list(tail)
    sched = [2, 2, 2, 2, 1, 1, 0]
    for i, m in enumerate(mf[1:]):
        for _ in range(sched[i]):
            if rd: k(rd.pop(0))
        k(m)
    while rd: k(rd.pop(0))
    if odd:
        k(f"  v_add_u32 v{VXA[3]}, s47, v{VXB[3]}")
        k("  s_add_u32 s47, s47, 16384\n  s_cmp_eq_u32 s47, 49152\n  s_cselect_b32 s47, 0, s47")

def compute_a(k):
    kb.stamp(k, 0, rt=True)
    k(f"""
  s_or_b32 s41, s2, s3
  s_cmp_eq_u32 s41, 0
  s_cbranch_scc0 {k.L('nog0')}
  v_lshlrev_b32 v4, 7, v1
  v_add_u32 v4, {FL}, v4
  v_mov_b32 v6, 0x7fff0000
  v_cmp_gt_u32 vcc, 16, v1
  v_cndmask_b32 v4, v6, v4, vcc
  v_mov_b32 v8, 0
  v_mov_b32 v9, 0
  v_mov_b32 v10, 0
  v_mov_b32 v11, 0
  buffer_store_dwordx4 v[8:11], v4, {R(R_WS)}, 0 offen sc1
  s_waitcnt vmcnt(0)
  v_mov_b32 v4, 0
  v_mov_b32 v5, 1
  s_mov_b64 exec, 1
  global_store_dword v4, v5, s[{S_DBG}:{S_DBG+1}] sc1
  s_mov_b64 exec, -1
{k.L('nog0')}:""")
    srd(k, R_W2, S_W2, 2211840)
    srd(k, R_WO, S_WO, 819200)
    job_ids(k)
    stats_issue(k); cs_issue(k)
    if 'noS0' not in EXP: k("  s_barrier")
    vm_kv = list(k.vm)
    k(f"  s_cmp_eq_u32 s37, 0\n  s_cbranch_scc1 {k.L('nosw')}")
    sw_addr(k, 0); sw_dma(k, 0); sw_addr(k, 1); sw_dma(k, 1)
    k.label("nosw")
    vm_g = list(k.vm)
    kb.stamp(k, 62)
    k(f"""
  s_lshr_b32 s43, s39, 1                   ; Th
  s_and_b32 s44, s39, 1                    ; Fh
  v_and_b32 v16, 31, v1                    ; n
  v_lshrrev_b32 v17, 5, v1                 ; hh
  v_lshrrev_b32 v18, 1, v16
  v_and_b32 v18, 7, v18
  v_xor_b32 v18, v17, v18
  v_lshlrev_b32 v18, 4, v18
  v_lshl_add_u32 v18, v16, 7, v18
  s_lshl_b32 s45, s43, 13
  v_add_u32 v{VXB[0]}, s45, v18
  v_xor_b32 v{VXB[1]}, 32, v{VXB[0]}
  v_xor_b32 v{VXB[2]}, 64, v{VXB[0]}
  v_xor_b32 v{VXB[3]}, 96, v{VXB[0]}
  v_mov_b32 v{VXA[0]}, v{VXB[0]}
  v_mov_b32 v{VXA[1]}, v{VXB[1]}
  v_mov_b32 v{VXA[2]}, v{VXB[2]}
  v_mov_b32 v{VXA[3]}, v{VXB[3]}
  s_mov_b32 s47, 16384
  v_lshrrev_b32 v18, 4, v1                 ; G
  v_lshrrev_b32 v19, 2, v1
  v_and_b32 v19, 3, v19                    ; r
  v_and_b32 v20, 3, v1                     ; c
  v_lshrrev_b32 v21, 1, v18
  v_lshl_add_u32 v21, v21, 3, v19
  v_lshlrev_b32 v21, 7, v21
  v_add_u32 v21, {WR}, v21
  v_lshrrev_b32 v22, 1, v19
  v_lshlrev_b32 v22, 2, v22
  v_and_b32 v23, 1, v18
  v_lshlrev_b32 v23, 1, v23
  v_lshrrev_b32 v24, 1, v20
  v_add_u32 v23, v23, v24                  ; j'
  v_and_b32 v24, 1, v20                    ; hh'
  s_cmp_eq_u32 s37, 0
  s_cbranch_scc1 {k.L('c_kv')}""")
    for b in range(4):
        k(f"""
  v_add_u32 v25, {4*(b&1)}, v23
  v_xor_b32 v25, v25, v22
  v_lshl_add_u32 v25, v25, 4, v21
  v_lshl_add_u32 v25, v24, 3, v25
  s_lshl_b32 s45, s44, 13
  s_add_u32 s45, s45, {(b>>1)*4096}
  v_add_u32 v{VWA[b]}, s45, v25""")
    k(f"  s_branch {k.L('c_go')}\n{k.L('c_kv')}:")
    k(f"  s_lshl_b32 s45, s44, 1\n  v_add_u32 v26, s45, v24\n  v_mul_u32_u24 v26, 5, v26")
    for b in range(4):
        k(f"""
  v_add_u32 v27, {4*b}, v23
  v_add_u32 v28, v26, v27
  v_add_u32 v29, 15, v28
  v_cmp_gt_u32 vcc, 5, v27
  v_cndmask_b32 v28, v29, v28, vcc
  s_lshl_b32 s45, s44, 3
  v_lshl_add_u32 v29, v24, 2, s45
  v_add_u32 v29, v29, v27
  v_add_u32 v29, {48 - 10}, v29
  v_cmp_gt_u32 vcc, 10, v27
  v_cndmask_b32 v28, v29, v28, vcc
  v_cmp_gt_u32 vcc, 14, v27
  v_add_u32 v29, 42, v24
  v_cndmask_b32 v28, v29, v28, vcc
  v_lshrrev_b32 v30, 1, v28                ; chunk c'
  v_mov_b32 v29, 0x781b93b4
  v_mov_b32 v31, 0xd8e1e48d
  v_cmp_gt_u32 vcc, 16, v30
  v_cndmask_b32 v29, v31, v29, vcc
  v_and_b32 v31, 15, v30
  v_lshlrev_b32 v31, 1, v31
  v_lshrrev_b32 v29, v31, v29
  v_and_b32 v29, 3, v29
  v_and_b32 v30, 0xfc, v30
  v_or_b32 v30, v30, v29                   ; position p'
  v_lshrrev_b32 v29, 3, v30                ; VU
  v_and_b32 v30, 7, v30
  v_xor_b32 v30, v30, v22
  v_and_b32 v31, 1, v28
  v_lshl_add_u32 v30, v30, 4, v21
  v_lshl_add_u32 v30, v31, 3, v30
  v_lshl_add_u32 v{VWA[b]}, v29, 12, v30""")
    k(f"{k.L('c_go')}:")
    k(f"""
  s_lshl_b32 s45, s43, 10
  s_add_u32 s45, s45, {ST}
  v_lshl_add_u32 v32, v16, 4, s45
  s_lshl_b32 s45, s44, 11
  s_add_u32 s45, s45, {TT}
  v_lshl_add_u32 v33, v16, 4, s45
  v_mov_b32 v34, {ZR}
  v_cmp_eq_u32 vcc, 0, v17
  v_cndmask_b32 v33, v34, v33, vcc
  v_lshrrev_b32 v25, 1, v18                ; hh_k
  s_lshl_b32 s45, s44, 1
  v_add_u32 v26, s45, v24
  v_lshlrev_b32 v26, 10, v26
  v_add_u32 v26, {WP}, v26
  v_mul_u32_u24 v27, 40, v19
  v_add_u32 v27, v27, v26
  v_lshl_add_u32 v27, v23, 3, v27
  v_mov_b32 v28, {ZR}
  v_cmp_eq_u32 vcc, v24, v25
  v_cndmask_b32 v35, v28, v27, vcc
  v_add_u32 v30, 32, v27
  v_cmp_eq_u32 s[58:59], 0, v23
  s_and_b64 vcc, vcc, s[58:59]
  v_cndmask_b32 v31, v28, v30, vcc""")
    kb.stamp(k, 15)
    def stats_cs():
        A_ = rec(k, [stats_a1, stats_a2, stats_b, stats_c, stats_d]); B_ = rec(k, [cs_a, cs_b])
        k.wait_vm("cs")
        na, nb = len(A_), len(B_); ia = ib = 0
        while ia < na or ib < nb:
            for _ in range(2):
                if ia < na: kb.replay(k, A_[ia]); ia += 1
            if ib < nb and (ib + 1)*na <= (ia + 2)*nb*1.0 + na: kb.replay(k, B_[ib]); ib += 1
            elif ia >= na and ib < nb: kb.replay(k, B_[ib]); ib += 1
    k(f"  s_cmp_eq_u32 s37, 0\n  s_cbranch_scc1 {k.L('jobs_kv')}")
    k.vm = vm_g
    stats_cs()
    kb.stamp(k, 59)
    sw_proc1(k, 0); sw_proc1(k, 1); kb.stamp(k, 61); sw_proc2(k, 0); sw_proc2(k, 1)
    k(f"  s_branch {k.L('jobs_done')}")
    k.label("jobs_kv")
    k.vm = vm_kv
    base_ = k.name
    k.lname = base_ + "_jk"
    stats_a1(k); stats_a2(k); stats_b(k); stats_c(k); stats_d(k)
    k(f"  s_cmp_eq_u32 s50, -1\n  s_cbranch_scc1 {k.L('nocs')}")
    cs_a(k); cs_b(k)
    k.label("nocs")
    k.lname = None
    k.label("jobs_done")
    k(f"""
  s_mul_i32 s41, s2, 3
  s_add_u32 s41, s41, 16
  v_add_u32 v36, s41, v1                   ; line
  v_cmp_gt_u32 vcc, {NFL}, v36
  s_mov_b64 s[58:59], vcc
  v_cmp_gt_u32 vcc, 3, v1
  s_and_b64 vcc, vcc, s[58:59]
  s_cmp_eq_u32 s39, 1
  s_cselect_b64 s[58:59], -1, 0
  s_and_b64 vcc, vcc, s[58:59]
  v_lshlrev_b32 v36, 7, v36
  v_add_u32 v36, {FL}, v36
  v_mov_b32 v37, 0x7fff0000
  v_cndmask_b32 v36, v37, v36, vcc
  v_mov_b32 v38, 0
  buffer_store_dword v38, v36, {R(R_WS)}, 0 offen sc1""")
    k("  v_mov_b32 v48, 0\n  s_lshr_b32 s43, s39, 1\n  s_and_b32 s44, s39, 1")
    k(f"  global_load_dword v49, v48, s[{S_DBG}:{S_DBG+1}] sc1")
    k.vm = []
    kb.stamp(k, 2)
    k("  s_barrier")
    kb.stamp(k, 3)
    kb.stamp(k, 40, rt=True)
    for l in a_reads(0, 0, 0): k(l)
    a_stage(k, 0, first=True)
    for st4 in (1, 2, 3): a_stage(k, st4)
    k("  s_mov_b32 s46, 1\n.p2align 3")
    k.label("kloop")
    pre = f"""  s_cmp_eq_u32 s46, 2
  s_cbranch_scc0 {k.L('f2n1')}
  s_waitcnt vmcnt(0)
{k.L('f2n1')}:"""
    def post(k):
        k(f"""
  s_lshl_b32 s41, s46, 2
  s_or_b32 s41, s41, s39
  s_cmp_eq_u32 s41, 8
  s_cbranch_scc0 {k.L('f2n2')}
  v_readfirstlane_b32 s53, v49
  s_cmp_eq_u32 s53, 1
  s_cbranch_scc1 {k.L('f2go')}
{k.L('f2g0')}:
  s_sleep 4
  global_load_dword v49, v48, s[{S_DBG}:{S_DBG+1}] sc1
  s_waitcnt vmcnt(0)
  v_readfirstlane_b32 s53, v49
  s_cmp_eq_u32 s53, 1
  s_cbranch_scc0 {k.L('f2g0')}
{k.L('f2go')}:
  s_lshr_b32 s41, s2, 4
  s_lshl_b32 s41, s41, 7
  s_and_b32 s42, s2, 15
  s_add_u32 s41, s41, s42
  s_add_u32 s41, s41, {FL_F2}
  v_mov_b32 v2, s41
  v_mov_b32 v0, 1
  s_mov_b64 exec, 1
  buffer_store_byte v0, v2, {R(R_WS)}, 0 offen sc1
  s_mov_b64 exec, -1
{k.L('f2n2')}:""")
    for st4 in range(4): a_stage(k, st4, pre_barrier=(pre if st4 == 0 else None), post_barrier=(post if st4 == 0 else None))
    k(f"  s_add_u32 s46, s46, 1\n  s_cmp_lt_u32 s46, 4\n  s_cbranch_scc1 {k.L('kloop')}")
    for st4 in range(3): a_stage(k, st4)
    tail = [f"  ds_read_b128 v[{36+4*tb}:{39+4*tb}], v32 offset:{tb*512}" for tb in range(2)] + \
           [f"  ds_read_b128 v[{FW[0][b]}:{FW[0][b]+3}], v33 offset:{b*512}" for b in range(4)]
    a_stage(k, 3, tail=tail)
    for beta in range(2):
        for st in range(3):
            for t in range(2):
                d0 = 8*st + 4*t; reg = WA_KV + (beta*3 + st)*4 + 2*t
                if d0 < 20: k(f"  ds_read_b64_tr_b16 v[{reg}:{reg+1}], v{35 if beta == 0 else 31} offset:{d0*40}")
                else: k(f"  v_mov_b32 v{reg}, 0\n  v_mov_b32 v{reg+1}, 0")
    k("  s_waitcnt lgkmcnt(10)")
    kb.stamp(k, 4)
    kb.stamp(k, 42, rt=True)
    for tb in range(2):
        s = 36 + 4*tb; d = FX[0][tb]
        k(f"""
  v_rcp_f32 v44, v{s+2}
  v_sub_f32 v45, 0, v{s}
  v_cvt_pk_bf16_f32 v{d}, v45, v45
  v_and_b32 v46, 0xffff0000, v{d}
  v_sub_f32 v46, v45, v46
  v_cvt_pk_bf16_f32 v47, v44, v44
  v_and_b32 v48, 0xffff0000, v47
  v_sub_f32 v48, v44, v48
  v_cvt_pk_bf16_f32 v{d+1}, v46, v44
  v_cvt_pk_bf16_f32 v{d+2}, v48, 0
  v_mov_b32 v{d+3}, 0
  v_mov_b32 v{s+3}, v44
  v_cmp_eq_u32 vcc, 0, v17
  v_cndmask_b32 v{d}, 0, v{d}, vcc
  v_cndmask_b32 v{d+1}, 0, v{d+1}, vcc
  v_cndmask_b32 v{d+2}, 0, v{d+2}, vcc""")
    for m in a_mfmas(0): k(m)
    k(f"  s_cmp_eq_u32 s37, 0\n  s_cbranch_scc1 {k.L('epi_kv')}")
    epi_g(k)
    k(f"  s_branch {k.L('phase_b')}")
    k.label("epi_kv")
    epi_kv(k)
    k.label("phase_b")

def gelu_block(k, a, dst):
    T = 60
    for p in range(0, 16, 8):
        prs = [(a + p + 2*i, T + 2*i) for i in range(4)]
        for (x, t) in prs: k(f"  v_pk_mul_f32 v[{t}:{t+1}], v[{x}:{x+1}], v[{x}:{x+1}]")
        for (x, t) in prs: k(f"  v_pk_fma_f32 v[{t}:{t+1}], v[{t}:{t+1}], v[52:53], v[50:51]")
        for (x, t) in prs: k(f"  v_pk_mul_f32 v[{t}:{t+1}], v[{t}:{t+1}], v[{x}:{x+1}]")
        for i in range(8): k(f"  v_exp_f32 v{T+i}, v{T+i}")
        for (x, t) in prs: k(f"  v_pk_fma_f32 v[{t}:{t+1}], v[{t}:{t+1}], v[54:55], v[54:55]")
        for i in range(8): k(f"  v_rcp_f32 v{T+i}, v{T+i}")
        for (x, t) in prs: k(f"  v_pk_mul_f32 v[{t}:{t+1}], v[{t}:{t+1}], v[{x}:{x+1}]")
        for n_, (x, t) in enumerate(prs): k(f"  v_cvt_pk_bf16_f32 v{dst + p//2 + n_}, v{t}, v{t+1}")

def epi_g_part(k, uu, tb, wait_older=False):
    n = f"{uu}{tb}"
    k(f"""
  s_lshl_b32 s50, s44, 1
  s_add_u32 s50, s50, {uu}
  s_lshl_b32 s51, s38, 2
  s_add_u32 s51, s51, s50                  ; u_lin
  s_cmp_lt_u32 s51, 27
  s_cbranch_scc1 {k.L('g_w1_' + n)}
  s_bitcmp1_b32 s51, 0
  s_cbranch_scc1 {k.L('g_none_' + n)}
  s_cmp_lt_u32 s51, 28
  s_cbranch_scc1 {k.L('g_none_' + n)}
  s_lshr_b32 s51, s51, 1
  s_sub_u32 s51, s51, 6
  s_add_u32 s52, s48, {2*tb}
  s_mul_i32 s52, s52, 160
  s_lshl_b32 s53, s51, 4
  s_add_u32 s52, s52, s53
  s_lshl_b32 s52, s52, 7
  s_add_u32 s52, s52, {L.WS_Q}""")
    for bb in range(2):
        a = acc(tb, 2*uu + bb)
        for jp in range(4):
            r = 60 + 2*(jp % 4)
            k(f"  v_cvt_pk_bf16_f32 v{r}, v{a+4*jp}, v{a+4*jp+1}\n  v_cvt_pk_bf16_f32 v{r+1}, v{a+4*jp+2}, v{a+4*jp+3}")
            k(f"  buffer_store_dwordx2 v[{r}:{r+1}], v59, {R(R_WS)}, s52 offen offset:{bb*1024 + jp*256} sc1")
    if wait_older: k("  s_waitcnt vmcnt(8)")
    k(f"  s_branch {k.L('g_done_' + n)}\n{k.L('g_none_' + n)}:")
    if wait_older: k("  s_waitcnt vmcnt(0)")
    k(f"  s_branch {k.L('g_done_' + n)}\n{k.L('g_w1_' + n)}:")
    s_ = 36 + 4*tb
    k(f"""
  s_and_b32 s53, s51, 1
  s_mul_i32 s53, s53, 27
  s_add_u32 s51, s51, s53
  v_mul_f32 v50, {fl(C0)}, v{s_+2}
  v_mul_f32 v52, v{s_+2}, v{s_+2}
  v_mul_f32 v52, v52, v{s_+2}
  v_mov_b32 v51, v50
  v_mul_f32 v52, {fl(C1)}, v52
  v_mov_b32 v54, v{s_+3}
  v_mov_b32 v55, v{s_+3}
  v_mov_b32 v53, v52
  s_add_u32 s52, s48, {2*tb}
  s_mul_i32 s52, s52, 74
  s_add_u32 s52, s52, s51
  s_lshl_b32 s52, s52, 10
  s_add_u32 s52, s52, {L.WS_HO}""")
    for bb in range(2):
        a = acc(tb, 2*uu + bb)
        d = 68 if bb == 0 else 20
        gelu_block(k, a, d)
        k(f"  buffer_store_dwordx4 v[{d}:{d+3}], v58, {R(R_WS)}, s52 offen offset:{bb*1024} sc1")
        k(f"  buffer_store_dwordx4 v[{d+4}:{d+7}], v58, {R(R_WS)}, s52 offen offset:{bb*1024 + 256} sc1")
    if wait_older: k("  s_waitcnt vmcnt(4)")
    k(f"{k.L('g_done_' + n)}:")

def epi_g(k):
    if 'delayG' in EXP: k("  s_sleep 39")
    k(f"""
  s_waitcnt lgkmcnt(0)
  v_lshrrev_b32 v56, 4, v16
  v_and_b32 v57, 15, v16
  v_mul_u32_u24 v58, {74*1024}, v56
  v_lshl_add_u32 v58, v17, 9, v58
  v_lshl_add_u32 v58, v57, 4, v58
  v_mul_u32_u24 v59, {160*128}, v56
  v_lshl_add_u32 v59, v17, 7, v59
  v_lshl_add_u32 v59, v57, 3, v59
  s_lshl_b32 s48, s36, 3
  s_lshl_b32 s49, s43, 2
  s_add_u32 s48, s48, s49""")
    decode_b(k)
    epi_g_part(k, 0, 0); epi_g_part(k, 0, 1)
    epi_g_part(k, 1, 0, wait_older=True)
    k("  s_barrier")
    kb.stamp(k, 5)
    store_flag(k, 39, 0, f"  s_lshl_b32 s41, s36, 1\n  s_lshr_b32 s42, s38, 2\n  s_add_u32 s41, s41, s42\n  s_lshl_b32 s41, s41, 7\n  s_and_b32 s42, s38, 3\n  s_add_u32 s41, s41, s42\n  s_add_u32 s41, s41, {FL_H1}", "fh1")
    epi_g_part(k, 1, 1)
    kb.stamp(k, 8)
    k("  s_barrier")

def epi_kv(k):
    if 'delayK' in EXP: k("  s_sleep 39")
    decode_b(k)
    WA = WA_KV; KB_ = 80
    k(f"""
  s_lshl_b32 s45, s43, 6
  v_add_u32 v32, s45, v16
  s_lshl_b32 s45, s44, 1
  v_add_u32 v33, s45, v17
  v_mul_u32_u24 v34, {PHI_P}, v32
  v_mul_u32_u24 v35, 80, v33
  v_add_u32 v34, v34, v35
  v_add_u32 v34, {PHI}, v34
  v_mul_u32_u24 v35, {VV_P}, v32
  v_mul_u32_u24 v33, 48, v33
  v_add_u32 v35, v35, v33
  v_add_u32 v35, {VV}, v35""")
    for tb in range(2):
        a = ACC + tb*64
        for i in range(10): k(f"  v_cvt_pk_bf16_f32 v{KB_+12*tb+i}, v{a+2*i}, v{a+2*i+1}")
        k(f"  v_mov_b32 v{KB_+12*tb+10}, 0\n  v_mov_b32 v{KB_+12*tb+11}, 0")
    k(f"""
  v_lshrrev_b32 v2, 4, v16
  v_and_b32 v0, 15, v16
  v_mul_u32_u24 v18, {160*128}, v2
  v_lshl_add_u32 v18, v17, 9, v18
  v_lshl_add_u32 v18, v0, 3, v18
  s_lshl_b32 s48, s36, 3
  s_lshl_b32 s49, s43, 2
  s_add_u32 s48, s48, s49""")
    for tb in range(2):
        k(f"""
  s_add_u32 s52, s48, {2*tb}
  s_mul_i32 s52, s52, 160
  s_lshl_b32 s53, s38, 4
  s_add_u32 s52, s52, s53
  s_lshl_b32 s53, s44, 3
  s_add_u32 s52, s52, s53
  s_lshl_b32 s52, s52, 7
  s_add_u32 s52, s52, {L.WS_Q}""")
        a = ACC + tb*64 + 40
        for g in range(4):
            r = 104 + 8*tb + 2*g
            k(f"  v_cvt_pk_bf16_f32 v{r}, v{a+4*g}, v{a+4*g+1}\n  v_cvt_pk_bf16_f32 v{r+1}, v{a+4*g+2}, v{a+4*g+3}")
            k(f"  buffer_store_dwordx2 v[{r}:{r+1}], v18, {R(R_WS)}, s52 offen offset:{g*128} sc1")
    k("  s_waitcnt lgkmcnt(0)")
    B1 = [112, 18]
    for st in range(3):
        for tb in range(2):
            for beta in range(2):
                d = (ACC + tb*64 + 40) if beta == 0 else B1[tb]
                c = "0" if st == 0 else f"v[{d}:{d+15}]"
                w = WA + (beta*3 + st)*4
                k(f"  v_mfma_f32_32x32x16_bf16 v[{d}:{d+15}], v[{w}:{w+3}], v[{KB_+12*tb+4*st}:{KB_+12*tb+4*st+3}], {c}")
    VB = 44
    for tb in range(2):
        a = ACC + tb*64; s_ = 36 + 4*tb
        k(f"  v_mov_b32 v4, v{s_+1}\n  v_mov_b32 v5, v{s_+1}")
        for i in range(10): k(f"  v_pk_mul_f32 v[{a+20+2*i}:{a+21+2*i}], v[{a+20+2*i}:{a+21+2*i}], v[4:5]")
        for i in range(10): k(f"  v_cvt_pk_bf16_f32 v{VB+i}, v{a+20+2*i}, v{a+21+2*i}")
        k(f"  v_mov_b32 v{VB+10}, 0x3f80\n  v_mov_b32 v{VB+11}, 0")
        for c in range(3): k(f"  ds_write_b128 v35, v[{VB+4*c}:{VB+4*c+3}] offset:{tb*32*VV_P + 16*c}")
    for tb in range(2):
        a = ACC + tb*64; s_ = 36 + 4*tb
        for i in range(4): k(f"  v_mov_b32 v{a+56+i}, v{B1[tb]+i}")
        PH = 80 + 0
        softmax_pair(k, [a + 40 + i for i in range(20)], s_ + 1, a, PH, T=44)
        for c in range(5): k(f"  ds_write_b128 v34, v[{PH+4*c}:{PH+4*c+3}] offset:{tb*32*PHI_P + 16*c}")
        if tb == 0:
            k(f"""
  s_waitcnt vmcnt(0)
  s_lshl_b32 s41, s36, 1
  s_add_u32 s41, s41, s43
  s_lshl_b32 s41, s41, 2
  s_lshr_b32 s42, s38, 1
  s_add_u32 s41, s41, s42
  s_lshl_b32 s41, s41, 7
  s_and_b32 s42, s38, 1
  s_lshl_b32 s42, s42, 1
  s_add_u32 s41, s41, s42
  s_add_u32 s41, s41, s44
  s_add_u32 s41, s41, {FL_Q}
  v_mov_b32 v2, s41
  v_mov_b32 v0, 1
  s_mov_b64 exec, 1
  buffer_store_byte v0, v2, {R(R_WS)}, 0 offen sc1
  s_mov_b64 exec, -1""")
    k("  s_waitcnt lgkmcnt(0)\n  s_barrier")
    kb.stamp(k, 5)
    k(f"""
  v_lshrrev_b32 v18, 4, v1
  v_lshrrev_b32 v19, 2, v1
  v_and_b32 v19, 3, v19
  v_and_b32 v20, 3, v1
  v_lshrrev_b32 v21, 1, v18
  v_lshl_add_u32 v21, v21, 3, v19
  v_and_b32 v22, 1, v18
  v_lshlrev_b32 v22, 2, v22
  v_add_u32 v22, v22, v20
  v_mul_u32_u24 v23, {PHI_P}, v21
  s_mul_i32 s45, s39, 80
  s_add_u32 s45, s45, {PHI}
  v_add_u32 v23, s45, v23
  v_lshl_add_u32 v24, v22, 3, v23
  v_and_b32 v25, 1, v22
  v_lshl_add_u32 v25, v25, 3, v23
  v_add_u32 v25, 64, v25
  v_mul_u32_u24 v26, {VV_P}, v21
  s_mul_i32 s45, s39, 48
  s_add_u32 s45, s45, {VV}
  v_add_u32 v26, s45, v26
  v_min_u32 v27, 5, v22
  v_lshl_add_u32 v26, v27, 3, v26""")
    KA = 48; FA = 128
    def rd(st):
        base = FA + st*12
        for t in range(2):
            tok = 16*st + 4*t
            k(f"  ds_read_b64_tr_b16 v[{base+2*t}:{base+2*t+1}], v24 offset:{tok*PHI_P}")
            k(f"  ds_read_b64_tr_b16 v[{base+4+2*t}:{base+5+2*t}], v25 offset:{tok*PHI_P}")
            k(f"  ds_read_b64_tr_b16 v[{base+8+2*t}:{base+9+2*t}], v26 offset:{tok*VV_P}")
    rd(0); rd(1)
    k(f"""
  v_lshlrev_b32 v28, 2, v16
  v_mul_u32_u24 v29, {4*96}, v17
  v_add_u32 v28, v28, v29
  s_mul_i32 s46, s39, 3840
  s_add_u32 s46, s46, {KPS}
  v_add_u32 v28, s46, v28
  v_lshlrev_b32 v30, 4, v1
  v_add_u32 v31, s46, v30
  s_lshl_b32 s45, s38, 4
  s_add_u32 s45, s45, s36                  ; j*16 + i
  s_mul_i32 s45, s45, 160
  s_mul_i32 s46, s39, 40
  s_add_u32 s45, s45, s46
  s_mul_i32 s45, s45, 96
  s_add_u32 s45, s45, {L.WS_KP}""")
    for st in range(8):
        k(f"  s_waitcnt lgkmcnt({6 if st < 7 else 0})")
        base = FA + st*12
        for beta in range(2):
            c = "0" if st == 0 else f"v[{KA+16*beta}:{KA+16*beta+15}]"
            k(f"  v_mfma_f32_32x32x16_bf16 v[{KA+16*beta}:{KA+16*beta+15}], v[{base+4*beta}:{base+4*beta+3}], v[{base+8}:{base+11}], {c}")
        if st + 2 < 8: rd(st + 2)
    k("  v_cmp_gt_u32 vcc, 24, v16\n  s_and_saveexec_b64 s[50:51], vcc")
    for jp in range(4):
        for i in range(4):
            k(f"  ds_write_b32 v28, v{KA+4*jp+i} offset:{(8*jp+i)*96}")
    for i in range(4):
        k(f"  ds_write_b32 v28, v{KA+16+i} offset:{(32+i)*96}")
    k("  s_mov_b64 exec, s[50:51]\n  s_waitcnt lgkmcnt(0)")
    for r in range(4): k(f"  ds_read_b128 v[{80+4*r}:{83+4*r}], v31 offset:{r*1024}")
    k("  v_mov_b32 v29, 0x7fff0000\n  v_cmp_gt_u32 vcc, 48, v1\n  v_cndmask_b32 v29, v29, v30, vcc")
    for r in range(4):
        k(f"  s_waitcnt lgkmcnt({3-r})")
        k(f"  buffer_store_dwordx4 v[{80+4*r}:{83+4*r}], v{30 if r < 3 else 29}, {R(R_WS)}, s45 offen offset:{r*1024} sc1")
    kb.stamp(k, 8)
    k("  s_barrier")

def softmax_1(k, P, vr1, E, T=44):
    k(f"  v_max3_f32 v{T+0}, v{P[0]}, v{P[1]}, v{P[2]}\n  v_min3_f32 v{T+1}, v{P[0]}, v{P[1]}, v{P[2]}")
    k(f"  v_max3_f32 v{T+2}, v{P[3]}, v{P[4]}, v{P[5]}\n  v_min3_f32 v{T+3}, v{P[3]}, v{P[4]}, v{P[5]}")
    for i in range(6, 18, 4):
        k(f"  v_max3_f32 v{T+0}, v{T+0}, v{P[i]}, v{P[i+1]}\n  v_min3_f32 v{T+1}, v{T+1}, v{P[i]}, v{P[i+1]}")
        k(f"  v_max3_f32 v{T+2}, v{T+2}, v{P[i+2]}, v{P[i+3]}\n  v_min3_f32 v{T+3}, v{T+3}, v{P[i+2]}, v{P[i+3]}")
    k(f"  v_max3_f32 v{T+0}, v{T+0}, v{P[18]}, v{P[19]}\n  v_min3_f32 v{T+1}, v{T+1}, v{P[18]}, v{P[19]}")
    k(f"  v_max_f32 v{T+0}, v{T+0}, v{T+2}\n  v_min_f32 v{T+1}, v{T+1}, v{T+3}")
    k(f"""
  v_mul_f32 v{T+2}, {fl(LOG2E)}, v{vr1}
  v_mov_b32 v{T+3}, v{T+2}
  v_mul_f32 v2, v{T+0}, v{T+2}
  v_mul_f32 v0, v{T+1}, v{T+2}
  v_sub_f32 v{T+0}, 0, v2
  v_sub_f32 v{T+1}, 0, v2""")
    for i in range(10):
        k(f"  v_pk_fma_f32 v[{E+2*i}:{E+2*i+1}], v[{P[2*i]}:{P[2*i]+1}], v[{T+2}:{T+3}], v[{T}:{T+1}]")
    k(f"  v_mov_b32 v{T+0}, v0\n  v_mov_b32 v{T+1}, v0")
    for i in range(10):
        k(f"  v_pk_fma_f32 v[{E+20+2*i}:{E+21+2*i}], v[{P[2*i]}:{P[2*i]+1}], v[{T+2}:{T+3}], v[{T}:{T+1}] neg_lo:[1,0,0] neg_hi:[1,0,0]")
    for i in range(20): k(f"  v_exp_f32 v{E+i}, v{E+i}")
def softmax_2(k, E, T=44):
    for i in range(20, 40): k(f"  v_exp_f32 v{E+i}, v{E+i}")
    for h_ in range(2):
        b0 = E + 20*h_; d = T + 2*h_
        k(f"  v_pk_add_f32 v[{d}:{d+1}], v[{b0}:{b0+1}], v[{b0+2}:{b0+3}]")
    for i in range(2, 10):
        for h_ in range(2):
            b0 = E + 20*h_; d = T + 2*h_
            k(f"  v_pk_add_f32 v[{d}:{d+1}], v[{d}:{d+1}], v[{b0+2*i}:{b0+2*i+1}]")
    k(f"  v_add_f32 v{T+0}, v{T+0}, v{T+1}\n  v_add_f32 v{T+2}, v{T+2}, v{T+3}\n  v_rcp_f32 v{T+0}, v{T+0}\n  v_rcp_f32 v{T+2}, v{T+2}")
    k(f"  v_mov_b32 v{T+1}, v{T+0}\n  v_mov_b32 v{T+3}, v{T+2}")
def softmax_3(k, E, PH, T=44):
    for i in range(10):
        for h_ in range(2):
            b0 = E + 20*h_; d = T + 2*h_
            k(f"  v_pk_mul_f32 v[{b0+2*i}:{b0+2*i+1}], v[{b0+2*i}:{b0+2*i+1}], v[{d}:{d+1}]")
    for h_ in range(2):
        for i in range(10):
            k(f"  v_cvt_pk_bf16_f32 v{PH+10*h_+i}, v{E+20*h_+2*i}, v{E+20*h_+2*i+1}")
def softmax_pair(k, P, vr1, E, PH, T=44):
    softmax_1(k, P, vr1, E, T); softmax_2(k, E, T); softmax_3(k, E, PH, T)

VS = [4, 5, 6, 7]; VA = [8, 9, 10, 11]
FR = [64 + 24*s for s in range(4)]
ACCB = 32
XT = 2*SLOT + 10240
BT = 161280

def decode_b(k):
    k(f"""
  s_lshr_b32 s40, s2, 3
  s_and_b32 s{S_I64}, s2, 3
  s_lshl_b32 s{S_I64}, s{S_I64}, 3
  s_lshr_b32 s41, s40, 2
  s_add_u32 s{S_I64}, s{S_I64}, s41
  s_lshr_b32 s{S_JB}, s2, 2
  s_and_b32 s{S_JB}, s{S_JB}, 1
  s_lshl_b32 s{S_JB}, s{S_JB}, 2
  s_and_b32 s41, s40, 3
  s_add_u32 s{S_JB}, s{S_JB}, s41
  s_lshl_b32 s{S_T16}, s{S_I64}, 2
  s_add_u32 s{S_T16}, s{S_T16}, s39""")

def breads(st4, ks):
    base = FR[ks]
    r = [f"  ds_read_b128 v[{base}:{base+3}], v{VA[st4]} offset:{ks*1024}"]
    for cb in range(5):
        r.append(f"  ds_read_b128 v[{base+4+4*cb}:{base+7+4*cb}], v{VS[st4]} offset:{(ks*5+cb)*1024}")
    return r
def bmfma(ks):
    base = FR[ks]
    return [f"  v_mfma_f32_16x16x32_bf16 v[{ACCB+4*cb}:{ACCB+4*cb+3}], v[{base+4+4*cb}:{base+7+4*cb}], v[{base}:{base+3}], v[{ACCB+4*cb}:{ACCB+4*cb+3}]" for cb in range(5)]
def bstage(k, j, next_nks=4, pre_barrier=None, post_barrier=None, extra=None):
    st4 = j % 4
    extra = list(extra or [])
    per = (len(extra) + 19)//20
    for ks in range(4):
        mf = bmfma(ks)
        if ks < 2:
            rd = [(l, ("r", j, ks + 2)) for l in breads(st4, ks + 2)]
            k.wait_ds(("r", j, ks))
        else:
            if ks == 2:
                k.wait_ds(("r", j, 3))
                if pre_barrier: k(pre_barrier)
                k("  s_barrier")
                if post_barrier: post_barrier(k)
            rd = [(l, ("r", j + 1, ks - 2)) for l in breads((st4 + 1) % 4, ks - 2)] if ks - 2 < next_nks else []
        for i, m in enumerate(mf):
            k(m)
            if rd: k.ds(*rd.pop(0))
            for _ in range(per):
                if extra: kb.replay(k, extra.pop(0))
        while rd: k.ds(*rd.pop(0))
    while extra: kb.replay(k, extra.pop(0))

def compute_b(k, role):
    P = SCHED[role]; P1_J = P['P1_J']; RED_J = P['RED_J']; P2_J = P['KVJ'] + 1; OFLAG_J = min(11, P2_J + P['OFLAG_D'])
    k(f"""
  v_and_b32 v16, 15, v1
  v_lshrrev_b32 v17, 4, v1
  s_lshl_b32 s45, s{S_T16}, 4
  v_add_u32 v19, s45, v16
  v_mul_u32_u24 v24, 1280, v19
  s_mul_i32 s45, s{S_JB}, 160
  v_lshl_add_u32 v25, v17, 3, s45
  v_add_u32 v24, v24, v25
  v_lshlrev_b32 v22, 4, v1
  s_lshl_b32 s44, s39, 12
  s_add_u32 s44, s44, 20480""")
    for s in range(4):
        k(f"  v_add_u32 v{VS[s]}, {s*SLOT}, v22\n  v_add_u32 v{VA[s]}, s44, v{VS[s]}")
    for i in range(20): k(f"  v_mov_b32 v{ACCB+i}, 0")
    op_addr(k)
    k(f"""
  s_cmp_eq_u32 s37, 0
  s_cbranch_scc0 {k.L('nopf2')}
  s_waitcnt vmcnt(0)
  s_lshl_b32 s41, s38, 4
  s_add_u32 s41, s41, s36
  s_lshl_b32 s41, s41, 7
  s_add_u32 s41, s41, s39
  s_add_u32 s41, s41, {FL_PF}
  v_mov_b32 v2, s41
  v_mov_b32 v0, 1
  s_mov_b64 exec, 1
  buffer_store_byte v0, v2, {R(R_WS)}, 0 offen sc1
  s_mov_b64 exec, -1
{k.L('nopf2')}:""")
    kb.stamp(k, 36)
    if role == "kv" and 'nored' not in EXP:
        red_poll(k); red_issue(k); red_sum(k)
        if 'kflate' not in EXP:
            red_flag(k); kb.stamp(k, 38)
    k("  s_barrier")
    kb.stamp(k, 9)
    kb.stamp(k, 44, rt=True)
    k.lg = []
    for ks in range(2):
        for l in breads(0, ks): k.ds(l, ("r", 0, ks))
    def flagH2(k):
        k(f"  s_cmp_eq_u32 s37, 0\n  s_cbranch_scc1 {k.L('fh2_b')}")
        store_flag(k, 39, 0, f"  s_lshl_b32 s41, s36, 1\n  s_lshr_b32 s42, s38, 2\n  s_add_u32 s41, s41, s42\n  s_lshl_b32 s41, s41, 7\n  s_and_b32 s42, s38, 3\n  s_add_u32 s41, s41, s42\n  s_add_u32 s41, s41, {FL_H2}", "fh2")
        k(f"{k.L('fh2_b')}:")
    def flagO(k):
        k(f"""
  s_waitcnt vmcnt(0)
  s_lshl_b32 s41, s{S_T16}, 1
  s_lshr_b32 s42, s{S_JB}, 2
  s_add_u32 s41, s41, s42
  s_lshl_b32 s41, s41, 7
  s_and_b32 s42, s{S_JB}, 3
  s_add_u32 s41, s41, s42
  s_add_u32 s41, s41, {FL_O}
  v_mov_b32 v2, s41
  v_mov_b32 v0, 1
  s_mov_b64 exec, 1
  buffer_store_byte v0, v2, {R(R_WS)}, 0 offen sc1
  s_mov_b64 exec, -1""")
    for j in range(17):
        kw = {}
        if j == 0: kw = dict(post_barrier=op_q_issue)
        if j == 1:
            kw = dict(pre_barrier=f"  s_cmp_eq_u32 s37, 0\n  s_cbranch_scc1 {k.L('h2w')}\n  s_waitcnt vmcnt(6)\n{k.L('h2w')}:", post_barrier=flagH2)
        bstage(k, j, **kw)
        if j == P1_J:
            kb.stamp(k, 11); pause1(k); kb.stamp(k, 12)
        if j == P2_J:
            kb.stamp(k, 13); pause2(k); kb.stamp(k, 14)
        if role == "kv" and j == 0 and 'kflate' in EXP:
            red_flag(k); kb.stamp(k, 38)
        if j == OFLAG_J:
            flagO(k); kb.stamp(k, 39)
    bstage(k, 17, next_nks=2)
    k("  s_waitcnt lgkmcnt(0)")
    for ks in range(2):
        for m in bmfma(ks): k(m)
    kb.stamp(k, 10)
    k(f"""
  s_lshl_b32 s44, s39, 4
  v_add_u32 v52, s44, v16
  v_mul_u32_u24 v52, 160, v52
  v_lshl_add_u32 v52, v17, 3, v52
  v_add_u32 v52, {XT}, v52
  v_lshlrev_b32 v53, 3, v17
  v_add_u32 v53, {BT}, v53""")
    for cb in range(5):
        k(f"  ds_read_b64 v[{64+2*cb}:{65+2*cb}], v52 offset:{32*cb}\n  ds_read_b64 v[{76+2*cb}:{77+2*cb}], v53 offset:{32*cb}")
    for i in range(3):
        k(f"""
  v_add_u32 v{88+i}, {64*i}, v1
  v_mul_u32_u24 v91, 6554, v{88+i}
  v_lshrrev_b32 v91, 16, v91               ; row
  v_mul_u32_u24 v92, 10, v91
  v_sub_u32 v92, v{88+i}, v92              ; c
  s_lshl_b32 s44, s39, 4
  v_add_u32 v93, s44, v91
  v_mul_u32_u24 v{94+i}, 160, v93
  v_lshl_add_u32 v{94+i}, v92, 4, v{94+i}
  v_add_u32 v{94+i}, {XT}, v{94+i}
  s_lshl_b32 s44, s{S_T16}, 4
  v_add_u32 v91, s44, v91
  v_mul_u32_u24 v91, 1280, v91
  v_lshl_add_u32 v91, v92, 4, v91
  s_mul_i32 s44, s{S_JB}, 160
  v_add_u32 v{97+i}, s44, v91""")
    k(f"  v_mov_b32 v91, 0x7fff0000\n  v_cmp_gt_u32 vcc, 160, v90\n  v_cndmask_b32 v99, v91, v99, vcc\n  v_mov_b32 v91, {XT}\n  v_cndmask_b32 v96, v91, v96, vcc")
    k("  s_waitcnt lgkmcnt(0)")
    for cb in range(5):
        a = ACCB + 4*cb; x = 64 + 2*cb; b = 76 + 2*cb
        k(f"""
  v_lshlrev_b32 v52+0, 16, v{x}
  v_and_b32 v55, 0xffff0000, v{x}
  v_lshlrev_b32 v56, 16, v{x+1}
  v_and_b32 v57, 0xffff0000, v{x+1}
  v_lshlrev_b32 v58, 16, v{b}
  v_and_b32 v59, 0xffff0000, v{b}
  v_lshlrev_b32 v60, 16, v{b+1}
  v_and_b32 v61, 0xffff0000, v{b+1}
  v_pk_add_f32 v[54:55], v[54:55], v[58:59]
  v_pk_add_f32 v[56:57], v[56:57], v[60:61]
  v_pk_add_f32 v[{a}:{a+1}], v[{a}:{a+1}], v[54:55]
  v_pk_add_f32 v[{a+2}:{a+3}], v[{a+2}:{a+3}], v[56:57]
  v_cvt_pk_bf16_f32 v62, v{a}, v{a+1}
  v_cvt_pk_bf16_f32 v63, v{a+2}, v{a+3}
  ds_write_b64 v52, v[62:63] offset:{32*cb}""".replace("v52+0", "v54"))
    k("  s_waitcnt lgkmcnt(0)")
    for i in range(3): k(f"  ds_read_b128 v[{100+4*i}:{103+4*i}], v{94+i}")
    for i in range(3):
        k(f"  s_waitcnt lgkmcnt({2-i})\n  buffer_store_dwordx4 v[{100+4*i}:{103+4*i}], v{97+i}, {R(R_OUT)}, 0 offen {'nt' if 'outnt' in EXP else 'sc1' if 'outsc1' in EXP else ''}")
    if kb.PROF:
        k("  s_waitcnt vmcnt(0)")
        kb.stamp(k, 6, rt=True); kb.dump(k, S_WS)
    k("  s_endpgm")

def wfrag(i): return 112 + 4*i
OQ = 172; OP = 184; OPH = 160; OB = 244
def op_addr(k):
    k(f"""
  v_lshrrev_b32 v26, 2, v1
  v_and_b32 v26, 3, v26
  v_and_b32 v27, 3, v1
  v_lshlrev_b32 v28, 10, v17
  v_mul_u32_u24 v29, 40, v26
  v_add_u32 v28, v28, v29
  v_add_u32 v28, {WPB}, v28
  v_mov_b32 v29, {ZB}
  v_cmp_eq_u32 vcc, v27, v17
  v_cndmask_b32 v28, v29, v28, vcc
  v_mul_u32_u24 v30, {40*KVP}, v17
  v_mul_u32_u24 v31, {KVP}, v26
  v_add_u32 v30, v30, v31
  v_add_u32 v30, {KVB}, v30
  v_cndmask_b32 v30, v29, v30, vcc""")
QR1 = 21
def q_poll_issue(k):
    k(f"""
  s_lshr_b32 s41, s{S_I64}, 1
  s_lshl_b32 s41, s41, 7
  s_and_b32 s42, s{S_I64}, 1
  s_lshl_b32 s42, s42, 4
  s_add_u32 s41, s41, s42
  v_lshlrev_b32 v77, 2, v1
  v_min_u32 v77, 16, v77
  v_add_u32 v77, s41, v77
  v_add_u32 v78, {FL_Q}, v77
  s_lshr_b32 s41, s{S_I64}, 1
  s_lshl_b32 s41, s41, 7
  s_add_u32 s41, s41, {FL_H1 + 4}
  v_mov_b32 v77, s41
  v_cmp_gt_u32 vcc, 4, v1
  v_cndmask_b32 v77, v77, v78, vcc
  buffer_load_dword v76, v77, {R(R_WS)}, 0 offen sc1""")
def q_poll_check(k, lbl):
    k(f"""
  v_mov_b32 v78, 0x01000000
  v_mov_b32 v79, 0x01010101
  v_cmp_gt_u32 vcc, 4, v1
  v_cndmask_b32 v78, v78, v79, vcc
{k.L(lbl + '_t')}:
  v_and_b32 v79, v76, v78
  v_cmp_ne_u32 vcc, v79, v78
  s_cmp_eq_u64 vcc, 0
  s_cbranch_scc1 {k.L(lbl + '_ok')}
  s_sleep 2
  buffer_load_dword v76, v77, {R(R_WS)}, 0 offen sc1
  s_waitcnt vmcnt(0)
  s_branch {k.L(lbl + '_t')}
{k.L(lbl + '_ok')}:""")
def op_q_issue(k):
    k(f"""
  v_and_b32 v12, 15, v1                    ; n'
  v_lshrrev_b32 v13, 4, v1                 ; g
  v_mul_u32_u24 v14, 640, v13
  v_lshl_add_u32 v14, v12, 3, v14
  s_mul_i32 s58, s{S_T16}, 160
  s_mul_i32 s59, s{S_JB}, 20
  s_add_u32 s58, s58, s59
  s_lshl_b32 s58, s58, 7
  s_add_u32 s58, s58, {L.WS_Q}
  s_lshl_b32 s59, s{S_T16}, 4
  v_add_u32 v15, s59, v12
  v_lshlrev_b32 v15, 4, v15""")
    for g in range(5):
        k(f"  buffer_load_dwordx2 v[{OQ+2*g}:{OQ+2*g+1}], v14, {R(R_WS)}, s58 offen offset:{128*g} sc1")
    k(f"  buffer_load_dword v{QR1}, v15, {R(R_WS)}, 0 offen offset:{L.WS_STATS + 4} sc1")
def red_cond(k, lbl):
    k(f"  s_lshl_b32 s41, s37, 2\n  s_or_b32 s41, s41, s39\n  s_cmp_eq_u32 s41, 0\n  s_cbranch_scc0 {k.L(lbl)}")
def red_poll(k):
    red_cond(k, "rp_x")
    k(f"""
  s_lshl_b32 s41, s38, 11
  s_add_u32 s41, s41, {FL_PF}
  v_min_u32 v57, 15, v1
  v_lshlrev_b32 v57, 7, v57
  v_add_u32 v57, s41, v57
  buffer_load_dword v56, v57, {R(R_WS)}, 0 offen sc1
{k.L('rp_x')}:""")
RDR = [204 + 4*p for p in range(13)] + [12, 56, 60]
def red_issue(k):
    red_cond(k, "ri_x")
    k(f"""
  s_waitcnt vmcnt(0)
{k.L('ri_t')}:
  v_cmp_ne_u32 vcc, 0x01010101, v56
  s_cmp_eq_u64 vcc, 0
  s_cbranch_scc1 {k.L('ri_ok')}
  s_sleep 1
  buffer_load_dword v56, v57, {R(R_WS)}, 0 offen sc1
  s_waitcnt vmcnt(0)
  s_branch {k.L('ri_t')}
{k.L('ri_ok')}:""")
    kb.stamp(k, 37)
    k(f"""
  v_lshlrev_b32 v18, 4, v1
  v_mov_b32 v19, 0x7fff0000
  v_cmp_gt_u32 vcc, 60, v1
  v_cndmask_b32 v18, v19, v18, vcc
  s_lshl_b32 s41, s38, 4
  s_mul_i32 s41, s41, 15360
  s_mul_i32 s42, s36, 960
  s_add_u32 s41, s41, s42
  s_add_u32 s41, s41, {L.WS_KP}""")
    for p in range(16):
        k(f"  buffer_load_dwordx4 v[{RDR[p]}:{RDR[p]+3}], v18, {R(R_WS)}, s41 offen sc1\n  s_add_u32 s41, s41, 15360")
    k(f"{k.L('ri_x')}:")
def red_sum(k):
    red_cond(k, "rs_x")
    k("  s_waitcnt vmcnt(0)")
    step = 1
    while step < 16:
        for p in range(0, 16, 2*step):
            a, b = RDR[p], RDR[p + step]
            k(f"  v_pk_add_f32 v[{a}:{a+1}], v[{a}:{a+1}], v[{b}:{b+1}]\n  v_pk_add_f32 v[{a+2}:{a+3}], v[{a+2}:{a+3}], v[{b+2}:{b+3}]")
        step *= 2
    a = RDR[0]
    k(f"""
  v_cvt_pk_bf16_f32 v{a}, v{a}, v{a+1}
  v_cvt_pk_bf16_f32 v{a+1}, v{a+2}, v{a+3}
  v_lshlrev_b32 v18, 3, v1
  v_mov_b32 v19, 0x7fff0000
  v_cmp_gt_u32 vcc, 60, v1
  v_cndmask_b32 v18, v19, v18, vcc
  s_mul_i32 s41, s38, 7680
  s_mul_i32 s42, s36, 480
  s_add_u32 s41, s41, s42
  s_add_u32 s41, s41, {L.WS_KV}
  buffer_store_dwordx2 v[{a}:{a+1}], v18, {R(R_WS)}, s41 offen sc1
{k.L('rs_x')}:""")
def red_flag(k):
    red_cond(k, "rf_x")
    k(f"""
  s_waitcnt vmcnt({6 if 'kflate' in EXP else 0})
  s_lshl_b32 s41, s38, 2
  s_lshr_b32 s42, s36, 2
  s_add_u32 s41, s41, s42
  s_lshl_b32 s41, s41, 7
  s_and_b32 s42, s36, 3
  s_add_u32 s41, s41, s42
  s_add_u32 s41, s41, {FL_KF}
  v_mov_b32 v2, s41
  v_mov_b32 v0, 1
  s_mov_b64 exec, 1
  buffer_store_byte v0, v2, {R(R_WS)}, 0 offen sc1
  s_mov_b64 exec, -1
{k.L('rf_x')}:""")
def pause1(k):
    for b in range(5):
        for s_ in range(3):
            for t in range(2):
                reg = wfrag(b*3 + s_) + 2*t; d0 = 8*s_ + 4*t
                if d0 < 20: k.ds(f"  ds_read_b64_tr_b16 v[{reg}:{reg+1}], v28 offset:{d0*40 + 8*b}", "xw")
                else: k(f"  v_mov_b32 v{reg}, 0\n  v_mov_b32 v{reg+1}, 0")
    k(f"  v_mov_b32 v{OQ+10}, 0\n  v_mov_b32 v{OQ+11}, 0")
    k("  s_waitcnt vmcnt(0)")
    k.wait_ds("xw")
    for s_ in range(3):
        for b in range(5):
            c = "0" if s_ == 0 else f"v[{OP+4*b}:{OP+4*b+3}]"
            w = wfrag(b*3 + s_)
            k(f"  v_mfma_f32_16x16x32_bf16 v[{OP+4*b}:{OP+4*b+3}], v[{w}:{w+3}], v[{OQ+4*s_}:{OQ+4*s_+3}], {c}")
    softmax_pair(k, [OP + i for i in range(20)], QR1, 112, OPH, T=52)
def pause2(k):
    FA_, FB_ = 180, 112
    rounds = ([0, 1], [2, 3], [4, 5])
    OOx = 220
    def rd(ri):
        base = FA_ if ri % 2 == 0 else FB_
        for s_ in range(5):
            for bi, beta in enumerate(rounds[ri]):
                for t in range(2):
                    reg = base + (bi*5 + s_)*4 + 2*t
                    k.ds(f"  ds_read_b64_tr_b16 v[{reg}:{reg+1}], v30 offset:{(8*s_ + 4*t)*KVP + 8*beta}", ("xk", ri, s_))
    def mm(ri, nxt):
        base = FA_ if ri % 2 == 0 else FB_
        for s_ in range(5):
            k.wait_ds(("xk", ri, s_))
            for bi, beta in enumerate(rounds[ri]):
                c = "0" if s_ == 0 else f"v[{OOx+4*beta}:{OOx+4*beta+3}]"
                w = base + (bi*5 + s_)*4
                k(f"  v_mfma_f32_16x16x32_bf16 v[{OOx+4*beta}:{OOx+4*beta+3}], v[{w}:{w+3}], v[{OPH+4*s_}:{OPH+4*s_+3}], {c}")
            for _ in range(4):
                if nxt: k.ds(*nxt.pop(0))
    def rdl(ri):
        r = kb.Rec(k); out = []
        base = FA_ if ri % 2 == 0 else FB_
        for s_ in range(5):
            for bi, beta in enumerate(rounds[ri]):
                for t in range(2):
                    reg = base + (bi*5 + s_)*4 + 2*t
                    out.append((f"  ds_read_b64_tr_b16 v[{reg}:{reg+1}], v30 offset:{(8*s_ + 4*t)*KVP + 8*beta}", ("xk", ri, s_)))
        return out
    rd(0)
    mm(0, rdl(1)); mm(1, rdl(2)); mm(2, [])
    k(f"  v_add_f32 v52, {fl(1e-6)}, v{OOx+20}\n  v_rcp_f32 v52, v52\n  s_nop 0\n  v_mov_b32 v53, v52")
    for i in range(10): k(f"  v_pk_mul_f32 v[{OOx+2*i}:{OOx+2*i+1}], v[{OOx+2*i}:{OOx+2*i+1}], v[52:53]")
    for i in range(10): k(f"  v_cvt_pk_bf16_f32 v{OB+i}, v{OOx+2*i}, v{OOx+2*i+1}")
    k(f"""
  s_mul_i32 s58, s{S_T16}, 74
  s_lshr_b32 s59, s{S_JB}, 1
  s_mul_i32 s59, s59, 5
  s_add_u32 s58, s58, s59
  s_add_u32 s58, s58, 54
  s_lshl_b32 s58, s58, 10
  s_add_u32 s58, s58, {L.WS_HO}
  s_bitcmp1_b32 s{S_JB}, 0
  s_cbranch_scc1 {k.L('o_odd')}
  buffer_store_dwordx4 v[{OB}:{OB+3}], v22, {R(R_WS)}, s58 offen sc1
  buffer_store_dwordx4 v[{OB+4}:{OB+7}], v22, {R(R_WS)}, s58 offen offset:1024 sc1
  buffer_store_dwordx2 v[{OB+8}:{OB+9}], v22, {R(R_WS)}, s58 offen offset:2048 sc1
  s_branch {k.L('o_done')}
{k.L('o_odd')}:
  buffer_store_dwordx2 v[{OB}:{OB+1}], v22, {R(R_WS)}, s58 offen offset:2056 sc1
  buffer_store_dwordx4 v[{OB+2}:{OB+5}], v22, {R(R_WS)}, s58 offen offset:3072 sc1
  s_add_u32 s58, s58, 4096
  buffer_store_dwordx4 v[{OB+6}:{OB+9}], v22, {R(R_WS)}, s58 offen sc1
{k.L('o_done')}:""")
def kv_dma(k):
    for r in range(2):
        k.begin()
        k(f"""
  s_lshl_b32 s58, s39, 1
  s_add_u32 s58, s58, {r}
  s_lshl_b32 s59, s58, 10
  v_add_u32 v60, s59, v4
  v_mov_b32 v61, 0x7fff0000
  v_cmp_gt_u32 vcc, 7680, v60
  v_cndmask_b32 v60, v61, v60, vcc
  s_add_u32 m0, s59, {KVB}
  s_mul_i32 s58, s{S_JB}, 7680
  s_add_u32 s58, s58, {L.WS_KV}""")
        k.vmem(f"  buffer_load_dwordx4 v60, {R(R_WS)}, s58 offen sc1 lds", "kvd")
        k.end()

def loader_b_setup(k):
    decode_b(k)
    k(f"""
  v_lshlrev_b32 v4, 4, v1
  s_mul_i32 s44, s{S_JB}, {74*5*1024}
  s_mul_i32 s45, s39, {5*1024}
  s_add_u32 s44, s44, s45
  s_add_u32 s44, s44, {L.WS_W2}
  s_mul_i32 s46, s{S_T16}, {74*1024}
  s_add_u32 s46, s46, {L.WS_HO}""")
def gWP(lst):
    def mk(s_, cb):
        def f(k):
            k(f"  s_add_u32 s87, s44, {4*s_*5*1024 + cb*1024}")
            k.vmem(f"  buffer_load_dwordx4 v[{wpreg(s_, cb)}:{wpreg(s_, cb)+3}], v4, {R(R_WS)}, s87 offen sc1", ("WP", s_))
        return f
    return [mk(s_, cb) for (s_, cb) in lst]
NPF1 = int(os.environ.get('NPF1', 20))
WPL = [(s_, cb) for s_ in range(WP0, WP1 + 1) for cb in range(5)]
def loader_b(k, role):
    P = SCHED[role]; KVJ = P['KVJ']
    if 'noprioB' not in EXP: k("  s_setprio 2")
    k(f"""
  s_mul_i32 s47, s39, {5*1024}
  s_lshl_b32 s48, s39, 12
  s_add_u32 s48, s48, 20480
  v_add_u32 v5, s47, v4""")
    def gDW(j):
        slot = (j % 4)*SLOT
        def mk(cb):
            def f(k):
                if j == 18:
                    k(f"""  s_add_u32 s87, s47, {slot + cb*1024}
  s_cmp_lt_u32 s39, 2
  s_cselect_b32 m0, s87, {ZB}
  s_cselect_b32 s26, {L.WS_END}, 0
  s_add_u32 s87, s44, {4*j*5*1024 + cb*1024}""")
                else:
                    k(f"  s_add_u32 m0, s47, {slot + cb*1024}\n  s_add_u32 s87, s44, {4*j*5*1024 + cb*1024}")
                k.vmem(f"  buffer_load_dwordx4 v4, {R(R_WS)}, s87 offen sc1 lds", ("D", j))
                if j == 18: k(f"  s_mov_b32 s26, {L.WS_END}")
            return f
        return [mk(cb) for cb in range(5)]
    def gDA(j):
        nks = 4 if j < 18 else 2
        slot = (j % 4)*SLOT
        def mk(ks):
            def f(k):
                k(f"  s_add_u32 m0, s48, {slot + ks*1024}\n  s_add_u32 s87, s46, {(4*j + ks)*1024}")
                k.vmem(f"  buffer_load_dwordx4 v4, {R(R_WS)}, s87 offen sc1 lds", ("D", j))
            return f
        return [mk(ks) for ks in range(nks)]
    def gWW(j):
        slot = (j % 4)*SLOT
        def mk(cb):
            def f(k):
                if cb == 0: k.wait_vm(("WP", j))
                k(f"  ds_write_b128 v5, v[{wpreg(j, cb)}:{wpreg(j, cb)+3}] offset:{cb*1024}" if slot == 0 else
                  f"  ds_write_b128 v{6 + (j % 4) - 1}, v[{wpreg(j, cb)}:{wpreg(j, cb)+3}] offset:{cb*1024}")
            return f
        return [mk(cb) for cb in range(5)]
    for q in (1, 2, 3): k(f"  v_add_u32 v{5+q}, {q*SLOT}, v5")
    gDW0 = gDW
    def gDW(j): return gWW(j) if WP0 <= j <= WP1 else gDW0(j)
    def DW(j):
        for f in gDW(j): f(k)
    def DA(j):
        for f in gDA(j): f(k)
    iB = f"  s_lshr_b32 s41, s{S_I64}, 1\n  s_lshl_b32 s41, s41, 8\n"
    DW(0); DW(1)
    if role == "g": DW(2); DW(3)
    rest = gWP(WPL[12:])
    for n, f in enumerate(rest[:NPF1]):
        f(k)
        if n % 4 == 3: k(f"  s_waitcnt vmcnt(6)")
    k("  s_barrier")
    wphi_dma(k, f"  s_lshl_b32 s58, s{S_JB}, 2\n  s_add_u32 s58, s58, s39", WPB, False)
    k(f"""
  s_mov_b32 s{R_T+2}, 0
  s_and_b32 s58, s39, 1
  s_lshl_b32 s58, s58, 10
  s_add_u32 m0, s58, {ZB}""")
    k.vmem(f"  buffer_load_dwordx4 v40, {R(R_T)}, 0 offen lds", "side")
    def h1():
        poll_issue(k, 50, lines(50, iB + f"  s_add_u32 s41, s41, {FL_H1}", 2), "ph1", only0=False)
        poll_check(k, 50, "ph1", "ph1", only0=False, slp=2)
        DA(0); DA(1)
        if role == "g": DA(2); DA(3)
    if role == "g": h1()
    for n, f in enumerate(rest[NPF1:]):
        f(k)
        if n % 4 == 3: k(f"  s_waitcnt vmcnt(6)")
    k.wait_vm("side")
    k("  s_barrier")
    kb.stamp(k, 9)
    if role == "kv": h1()
    k.wait_vm(("D", 0))
    k("  s_barrier")
    kb.stamp(k, 10)
    poll_issue(k, 50, lines(50, f"  s_lshl_b32 s41, s{S_I64}, 9\n  s_add_u32 s41, s41, {FL_Q}", 4), "pq")
    if role == "kv": DA(2); DW(2)
    def res_dma(k):
        for r in range(3):
            k.begin()
            k(f"""
  s_add_u32 s58, s39, {4*r}
  s_lshl_b32 s59, s58, 6
  v_add_u32 v60, s59, v1
  v_mul_u32_u24 v61, 6554, v60
  v_lshrrev_b32 v61, 16, v61
  v_mul_u32_u24 v62, 10, v61
  v_sub_u32 v62, v60, v62
  s_lshl_b32 s59, s{S_I64}, 6
  v_add_u32 v61, s59, v61
  v_mul_u32_u24 v61, 1280, v61
  v_lshl_add_u32 v61, v62, 4, v61
  s_mul_i32 s59, s{S_JB}, 160
  v_add_u32 v61, s59, v61
  s_lshl_b32 s59, s58, 10
  s_add_u32 s59, s59, {XT}
  s_cmp_lt_u32 s58, 10
  s_cselect_b32 s59, s59, {ZB}
  s_cselect_b32 s58, 0, 0x7fff0000
  v_or_b32 v61, s58, v61
  s_mov_b32 m0, s59""")
            k.vmem(f"  buffer_load_dwordx4 v61, {R(R_X)}, 0 offen lds", ("D", 18))
            k.end()
        k.begin()
        k(f"""
  s_mul_i32 s58, s{S_JB}, 160
  s_add_u32 s{R_T}, s{S_B2}, s58
  s_addc_u32 s{R_T+1}, s{S_B2+1}, 0
  s_and_b32 s{R_T+1}, s{R_T+1}, 0xffff
  s_mov_b32 s{R_T+2}, 160
  s_mov_b32 s{R_T+3}, 0x20000
  s_mov_b32 m0, {BT}""")
        k.vmem(f"  buffer_load_dwordx4 v4, {R(R_T)}, 0 offen lds", ("D", 18))
        k.end()
    for j in range(NSTB - 1):
        if j == 12:
            poll_issue(k, 50, lines(50, f"  s_lshl_b32 s41, s{S_T16}, 8\n  s_add_u32 s41, s41, {FL_O}", 2), "po", only0=False)
            if 'nochain' not in EXP: poll_check(k, 50, "po", "po", only0=False, slp=1)
            kb.stamp(k, 63)
            for q in (13, 14, 15): DA(q)
            k.wait_vm(("D", 13)) if False else None
            idx = [i for i, t in enumerate(k.vm) if t == ("D", 13)][-1]
            k(f"  s_waitcnt vmcnt({len(k.vm) - 1 - idx})"); k.vm = k.vm[idx + 1:]
        else:
            k.wait_vm(("D", j + 1))
        if j == 0: poll_check(k, 50, "pq", "pq", slp=1)
        if j == 3: poll_check(k, 50, "ph2", "ph2", slp=1)
        if j == KVJ:
            if 'nochain' not in EXP: poll_check(k, 56, "pkv", "pkv", slp=1)
        if j == KVJ + 1: k.wait_vm("kvd")
        k("  s_waitcnt lgkmcnt(0)")
        k("  s_barrier")
        groups = []; fns = []
        if 13 <= j + 4 <= 15: groups = gDW(j + 4)
        elif j + 4 < NSTB: groups = gDW(j + 4) + gDA(j + 4)
        if j == 0 and role == "kv": groups = gDW(3) + gDA(3) + groups
        if j == 2: fns.append(lambda k: poll_issue(k, 50, lines(50, iB + f"  s_add_u32 s41, s41, {FL_H2}", 2), "ph2"))
        if j == KVJ - 1: fns.append(lambda k: poll_issue(k, 56, lines(56, f"  s_lshl_b32 s41, s{S_JB}, 9\n  s_add_u32 s41, s41, {FL_KF}", 4), "pkv"))
        if j == 14: fns.append(res_dma)
        if j == KVJ: kv_dma(k)
        kb.interleave(k, groups, rec(k, fns))
        kb.stamp(k, 40 + j)
    kb.stamp(k, 6, rt=True)
    kb.dump(k, S_WS)
    k("  s_endpgm")

def build(name):
    k = K(name)
    k(f"""
  s_cmp_ge_u32 s2, 256
  s_cbranch_scc1 {k.L('end')}
  s_load_dwordx4 s[4:7], s[0:1], 0
  s_load_dwordx2 s[14:15], s[0:1], 88
  s_load_dwordx2 s[10:11], s[0:1], 40
  s_getpc_b64 s[58:59]
{k.L('pc0')}:
  v_lshrrev_b32 v2, 6, v0
  v_and_b32 v1, 63, v0
  v_lshlrev_b32 v4, 10, v2
  v_lshl_add_u32 v4, v1, 7, v4
  v_cmp_gt_u32 vcc, 8, v1
  v_readfirstlane_b32 s3, v2
  s_and_saveexec_b64 s[56:57], vcc
  {'s_nop 0' if 'nopf0' in EXP else 'global_load_dword v127, v4, s[58:59]'}
  s_mov_b64 exec, s[56:57]
  s_load_dwordx2 s[8:9], s[0:1], 16
  s_load_dwordx2 s[12:13], s[0:1], 48
  s_load_dwordx2 s[{S_WO}:{S_WO+1}], s[0:1], 24
  s_load_dwordx2 s[{S_W2}:{S_W2+1}], s[0:1], 56
  s_load_dwordx2 s[{S_B2}:{S_B2+1}], s[0:1], 64
  s_load_dwordx2 s[{S_OUT}:{S_OUT+1}], s[0:1], 72
  s_load_dwordx2 s[{S_DBG}:{S_DBG+1}], s[0:1], 80
  s_lshr_b32 s40, s2, 3
  s_lshr_b32 s36, s40, 2
  s_and_b32 s41, s2, 1
  s_lshl_b32 s41, s41, 3
  s_add_u32 s36, s36, s41
  s_and_b32 s41, s40, 3
  s_lshr_b32 s37, s41, 1
  s_and_b32 s41, s41, 1
  s_and_b32 s38, s2, 7
  s_lshr_b32 s38, s38, 1
  s_lshl_b32 s38, s38, 1
  s_add_u32 s38, s38, s41
  s_and_b32 s39, s3, 3
  s_waitcnt lgkmcnt(0)""")
    srd(k, R_X, S_X, 2621440)
    srd(k, R_WS, S_WS, L.WS_END)
    srd(k, R_WQ, S_WQ, 2457600)
    srd(k, R_W1, S_W1, 2211840)
    k(f"  s_cmp_lt_u32 s3, 4\n  s_cbranch_scc1 {k.L('compute')}")
    k.vm = []
    kb.stamp(k, 0, rt=True)
    loader_a_start(k)
    srd(k, R_B, S_B1, 3456)
    k(f"  s_branch {k.L('loader')}")
    vm_loader = list(k.vm)
    k.label("compute")
    srd(k, R_OUT, S_OUT, 2621440)
    k.vm = []
    compute_a(k)
    k(f"  s_cmp_eq_u32 s37, 0\n  s_cbranch_scc1 {k.L('cb_kv')}")
    base = k.name
    k.lname = base + "_g"; compute_b(k, "g")
    k.lname = base; k.label("cb_kv")
    k.lname = base + "_k"; compute_b(k, "kv")
    k.lname = base
    k.label("loader")
    k.vm = vm_loader
    loader_a(k)
    k(f"  s_cmp_eq_u32 s37, 0\n  s_cbranch_scc1 {k.L('lb_kv')}")
    vm0 = list(k.vm)
    k.lname = base + "_g"; loader_b(k, "g")
    k.lname = base; k.label("lb_kv")
    k.vm = list(vm0)
    k.lname = base + "_k"; loader_b(k, "kv")
    k.lname = base
    k(f"{k.L('end')}:\n  s_endpgm")
    k(f"{k.L('codeend')}:")
    rep = []
    t = k.text(rep)
    return dict(name=name, body=t, vgpr=256, sgpr=102, accum=256, maxwg=512), rep

if __name__ == "__main__":
    import asmlib, sys
    if len(sys.argv) > 1 and sys.argv[1] in ("prof", "coarse", "mini"): kb.PROF = True
    if len(sys.argv) > 1 and sys.argv[1] == "mini": kb.MINI = True
    if len(sys.argv) > 1 and sys.argv[1] == "coarse": kb.FINE = False
    kf, rep = build("kf_kernel")
    print("nops inserted:", len(rep))
    asmlib.build("kfp" if kb.PROF else "kft", [kf])
    print("ok")
```

```python
from kb import K
import kb, os
import layout as L

LOG2E = 1.4426950408889634
C0 = -2.0*0.7978845608028654*LOG2E
C1 = C0*0.044715
def fl(x):
    import struct
    return "0x%08x" % struct.unpack("<I", struct.pack("<f", x))[0]

XR = 0; WR = 49152; SCR = 114688; TT = 147456; ST = 151552; WP = 153600; ZR = 157696
PHI = 73728; PHI_P = 336; VV = PHI + 43008; VV_P = 208; KPS = 20480
SLOT = 36864; WPB = 147456; KVB = 151552; KVP = 48; ZB = 159232
LDS_BYTES = 163840
NSTB = 19
WP0, WP1 = 4, int(os.environ.get('WP1', 12))
def wpreg(s_, cb): return 64 + (s_ - WP0)*20 + 4*cb
SCHED = {
    "kv": dict(P1_J=1, RED_J=None, KVJ=int(os.environ.get("KVJ_KV", 4)), OFLAG_D=2),
    "g":  dict(P1_J=2, RED_J=int(os.environ.get("RED_J", 1)), KVJ=int(os.environ.get("KVJ_G", 6)), OFLAG_D=2),
}
FL = L.WS_FLAGS
FL_F2 = FL; FL_H1 = FL + 16*128; FL_H2 = FL + 48*128; FL_Q = FL + 80*128; FL_PF = FL + 208*128; FL_KF = FL + 336*128; FL_O = FL + 368*128
NFL = 624

S_X, S_WQ, S_WPHI, S_W1, S_B1, S_WS = 4, 6, 8, 10, 12, 14
S_WO, S_W2, S_B2, S_OUT, S_DBG = 76, 78, 80, 82, 84
R_X, R_W, R_WS, R_B, R_T, R_OUT, R_WQ, R_W1, R_W2, R_WO = 16, 20, 24, 28, 32, 60, 64, 88, 92, 96
S_I64, S_JB, S_T16 = 68, 69, 86

def srd(k, s, lo, size):
    k(f"""
  s_mov_b32 s{s}, s{lo}
  s_and_b32 s{s+1}, s{lo+1}, 0xffff
  s_mov_b32 s{s+2}, {size}
  s_mov_b32 s{s+3}, 0x20000""")
def R(s): return f"s[{s}:{s+3}]"

def job_ids(k):
    k(f"""
  s_lshl_b32 s40, s2, 2
  s_add_u32 s40, s40, s39                    ; gw
  s_lshl_b32 s41, s36, 3
  s_add_u32 s41, s41, s38
  s_lshl_b32 s41, s41, 2
  s_add_u32 s41, s41, s39                    ; u = 4 (8 i + role) + w
  s_add_u32 s42, s41, 512
  s_cmp_eq_u32 s37, 1
  s_cselect_b32 s50, s41, s42
  s_cselect_b32 s51, s41, -1
  s_cselect_b32 s49, s42, -1
  s_cmp_lt_u32 s50, 570
  s_cselect_b32 s50, s50, -1
  s_cmp_lt_u32 s49, 740
  s_cselect_b32 s49, s49, -1
  s_lshl_b32 s52, s39, 13
  s_add_u32 s52, s52, {SCR}
  s_lshl_b32 s87, s39, 12
  s_add_u32 s87, s87, {SCR2}
  s_add_u32 s48, s87, 16384""")

V_ST = 36
def stats_issue(k):
    v = V_ST
    k(f"""
  v_lshrrev_b32 v{v}, 5, v1                  ; hh
  v_and_b32 v{v+1}, 31, v1                   ; n
  s_lshl_b32 s41, s40, 1
  v_add_u32 v{v+2}, s41, v{v}                ; token
  v_mul_u32_u24 v{v+3}, 1280, v{v+2}
  v_lshl_add_u32 v{v+3}, v{v+1}, 3, v{v+3}""")
    for r in range(5):
        k.vmem(f"  buffer_load_dwordx2 v[{v+4+2*r}:{v+5+2*r}], v{v+3}, {R(R_X)}, 0 offen offset:{256*r}", "st")
def stats_a1(k):
    v = V_ST; U = v + 16
    k.wait_vm("st")
    for d in range(10):
        k(f"  v_lshlrev_b32 v{U+2*d}, 16, v{v+4+d}\n  v_and_b32 v{U+2*d+1}, 0xffff0000, v{v+4+d}")
def stats_a2(k):
    v = V_ST; U = v + 16; S = v + 36; T = v + 37
    k(f"  v_add_f32 v{S}, v{U}, v{U+1}\n  v_add_f32 v{T}, v{U+2}, v{U+3}")
    for i in range(4, 20, 2):
        k(f"  v_add_f32 v{S}, v{S}, v{U+i}\n  v_add_f32 v{T}, v{T}, v{U+i+1}")
    k(f"  v_add_f32 v{S}, v{S}, v{T}")
def red32(k, S, T):
    for r in (8, 4, 2, 1):
        k(f"  v_add_f32_dpp v{S}, v{S}, v{S} row_ror:{r} row_mask:0xf bank_mask:0xf")
    k(f"  ds_swizzle_b32 v{T}, v{S} offset:0x401F\n  s_waitcnt lgkmcnt(0)\n  v_add_f32 v{S}, v{S}, v{T}")
def stats_b(k):
    v = V_ST; U = v + 16; S = v + 36; T = v + 37; M = v + 38
    red32(k, S, T)
    k(f"  v_mul_f32 v{M}, {1.0/640.0!r}, v{S}")
    for i in range(20): k(f"  v_sub_f32 v{U+i}, v{U+i}, v{M}")
def stats_c(k):
    v = V_ST; U = v + 16; S = v + 36; T = v + 37
    k(f"  v_mul_f32 v{S}, v{U}, v{U}\n  v_mul_f32 v{T}, v{U+1}, v{U+1}")
    for i in range(2, 20, 2):
        k(f"  v_fmac_f32 v{S}, v{U+i}, v{U+i}\n  v_fmac_f32 v{T}, v{U+i+1}, v{U+i+1}")
    k(f"  v_add_f32 v{S}, v{S}, v{T}")
def stats_d(k):
    v = V_ST; U = v + 16; S = v + 36; T = v + 37; M = v + 38; O = v + 40
    red32(k, S, T)
    k(f"""
  v_mul_f32 v{S}, {1.0/640.0!r}, v{S}
  v_add_f32 v{T}, 0x3727c5ac, v{S}
  v_rsq_f32 v{O+1}, v{T}
  v_mov_b32 v{O}, v{M}
  v_mul_f32 v{T}, v{O+1}, v{O+1}
  v_mul_f32 v{T}, v{T}, v{S}
  v_add_f32 v{T}, 0x3727c5ac, v{T}
  v_rsq_f32 v{T}, v{T}
  v_mov_b32 v{O+3}, 0
  v_mul_f32 v{O+2}, v{O+1}, v{T}
  v_lshlrev_b32 v{v+3}, 4, v{v+2}
  v_add_u32 v{v+3}, {L.WS_STATS}, v{v+3}
  v_cmp_eq_u32 vcc, 0, v{v+1}
  v_mov_b32 v{T}, 0x7fff0000
  v_cndmask_b32 v{v+3}, v{T}, v{v+3}, vcc""")
    if 'nost' not in EXP: k.vmem(f"  buffer_store_dwordx4 v[{O}:{O+3}], v{v+3}, {R(R_WS)}, 0 offen sc1", "jst")

V_CS = 176
V_CSI = 100
def cs_issue(k):
    v = V_CSI; t = 41
    k(f"""
  s_cmp_eq_u32 s50, -1
  s_cselect_b32 s53, 0, s50
  s_mul_i32 s{t}, s53, 6554
  s_lshr_b32 s{t}, s{t}, 16                  ; u
  s_mul_i32 s{t+1}, s{t}, 10
  s_sub_u32 s{t+1}, s53, s{t+1}              ; kappa
  s_mov_b32 s54, s{t}
  s_mov_b32 s55, s{t+1}
  s_cmp_lt_u32 s{t}, 30
  s_cselect_b32 s{R_T}, s{R_WQ}, s{R_W1}
  s_cselect_b32 s{R_T+1}, s{R_WQ+1}, s{R_W1+1}
  s_cselect_b32 s{R_T+2}, s{R_WQ+2}, s{R_W1+2}
  s_mov_b32 s{R_T+3}, 0x20000
  s_mov_b32 s{t+2}, 3456
  s_cmov_b32 s{t+2}, 3840
  s_cselect_b32 s{t+3}, 0, 30
  s_sub_u32 s{t+3}, s{t}, s{t+3}
  s_lshl_b32 s{t+3}, s{t+3}, 7
  s_mul_i32 s{t+4}, s{t+1}, s{t+2}
  s_lshl_b32 s{t+4}, s{t+4}, 6
  s_add_u32 s{t+4}, s{t+4}, s{t+3}           ; soffset
  s_lshl_b32 s{t+5}, s{t+2}, 3
  s_cmp_eq_u32 s50, -1
  s_cselect_b32 s{R_T+2}, 0, s{R_T+2}
  v_lshrrev_b32 v{v}, 3, v1
  v_lshrrev_b32 v{v+1}, 1, v{v}
  v_and_b32 v{v+1}, 1, v{v+1}
  v_lshlrev_b32 v{v+1}, 2, v{v+1}
  v_and_b32 v{v+2}, 7, v1
  v_xor_b32 v{v+2}, v{v+2}, v{v+1}
  v_mul_lo_u32 v{v+3}, v{v}, s{t+2}
  v_lshl_add_u32 v{v+3}, v{v+2}, 4, v{v+3}""")
    for i in range(8):
        k.begin()
        k(f"  s_add_u32 m0, s52, {i*1024}")
        k.vmem(f"  buffer_load_dwordx4 v{v+3}, {R(R_T)}, s{t+4} offen lds", "cs")
        k.end()
        if i < 7: k(f"  s_add_u32 s{t+4}, s{t+4}, s{t+5}")
def cs_a(k):
    v = V_CS
    k(f"""
  v_lshrrev_b32 v{v}, 4, v1
  v_lshrrev_b32 v{v+1}, 2, v1
  v_and_b32 v{v+1}, 3, v{v+1}
  v_and_b32 v{v+2}, 3, v1
  v_lshrrev_b32 v{v+4}, 1, v{v}
  v_lshl_add_u32 v{v+4}, v{v+4}, 3, v{v+1}
  v_lshlrev_b32 v{v+4}, 7, v{v+4}
  v_and_b32 v{v+5}, 1, v{v}
  v_lshlrev_b32 v{v+5}, 1, v{v+5}
  v_lshrrev_b32 v{v+6}, 1, v{v+2}
  v_add_u32 v{v+5}, v{v+5}, v{v+6}
  v_lshrrev_b32 v{v+6}, 1, v{v+1}
  v_lshlrev_b32 v{v+6}, 2, v{v+6}
  v_and_b32 v{v+7}, 1, v{v+2}
  v_lshl_add_u32 v{v+4}, v{v+7}, 3, v{v+4}
  v_add_u32 v{v+4}, s52, v{v+4}
  v_xor_b32 v{v+7}, v{v+5}, v{v+6}
  v_lshl_add_u32 v{v+8}, v{v+7}, 4, v{v+4}
  v_xor_b32 v{v+7}, 4, v{v+7}
  v_lshl_add_u32 v{v+9}, v{v+7}, 4, v{v+4}""")
    ONE = v + 12; FRG = v + 16; ACC_ = v + 48
    for i in range(4): k(f"  v_mov_b32 v{ONE+i}, 0x3f803f80")
    k.wait_vm("cs")
    for ks in range(4):
        for b in range(2):
            for tt in range(2):
                d = FRG + (ks*2 + b)*4 + 2*tt
                k(f"  ds_read_b64_tr_b16 v[{d}:{d+1}], v{v+8+b} offset:{ks*2048 + tt*512}")
        if ks == 2: k("  s_waitcnt lgkmcnt(4)")
    k("  s_waitcnt lgkmcnt(0)")
def cs_b(k):
    v = V_CS; ONE = v + 12; FRG = v + 16; ACC_ = v + 48
    for ks in range(4):
        for b in range(2):
            d = FRG + (ks*2 + b)*4
            c = "0" if ks == 0 else f"v[{ACC_+16*b}:{ACC_+16*b+15}]"
            k(f"  v_mfma_f32_32x32x16_bf16 v[{ACC_+16*b}:{ACC_+16*b+15}], v[{ONE}:{ONE+3}], v[{d}:{d+3}], {c}")
    k(f"""
  s_mul_i32 s41, s55, {L.NCOL*4}
  s_lshl_b32 s42, s54, 8
  s_add_u32 s41, s41, s42
  s_add_u32 s41, s41, {L.WS_CSP}
  v_lshlrev_b32 v{v}, 2, v1
  v_cmp_gt_u32 vcc, 32, v1
  v_mov_b32 v{v+1}, 0x7fff0000
  v_cndmask_b32 v{v}, v{v+1}, v{v}, vcc
  s_cmp_eq_u32 s50, -1
  s_cselect_b32 s42, 0x7fff0000, 0
  v_add_u32 v{v}, s42, v{v}""")
    k(f"  v_mov_b32 v{v+1}, 0x7fff0000\n  v_min_u32 v{v}, v{v}, v{v+1}")
    for b in range(2):
        if 'nocs' not in EXP: k.vmem(f"  buffer_store_dword v{ACC_+16*b}, v{v}, {R(R_WS)}, s41 offen offset:{128*b} sc1", "jst")

V_SW = 36
V_SWI = 108
SCR2 = WR + 2*16384
def sw_addr(k, n=0):
    sid, sS, sL, v = [(51, 56, 57, V_SWI), (49, 100, 101, V_SWI + 10)][n]; t = 41
    k.begin()
    k(f"""
  s_cmp_eq_u32 s{sid}, -1
  s_cselect_b32 s53, 0, s{sid}
  s_mul_i32 s{t}, s53, 6554
  s_lshr_b32 s{t}, s{t}, 16
  s_mul_i32 s{t+1}, s{t}, 10
  s_sub_u32 s{t+1}, s53, s{t+1}              ; lambda
  s_mov_b32 s{sS}, s{t}
  s_mov_b32 s{sL}, s{t+1}
  s_cmp_lt_u32 s{t}, 54
  s_cselect_b32 s{R_T}, s{R_W2}, s{R_WO}
  s_cselect_b32 s{R_T+1}, s{R_W2+1}, s{R_WO+1}
  s_cselect_b32 s{R_T+2}, s{R_W2+2}, s{R_WO+2}
  s_mov_b32 s{R_T+3}, 0x20000
  s_cmp_eq_u32 s{sid}, -1
  s_cselect_b32 s{R_T+2}, 0, s{R_T+2}
  v_lshrrev_b32 v{v}, 3, v1                  ; e
  v_and_b32 v{v+1}, 7, v1
  s_lshl_b32 s{t+2}, s{t+1}, 7
  v_lshl_add_u32 v{v+1}, v{v+1}, 4, s{t+2}
  s_cmp_lt_u32 s{t}, 54
  s_cbranch_scc0 {k.L('sw_wo%d' % n)}
  s_cmp_lt_u32 s{t}, 28
  s_cselect_b32 s{t+3}, 0, 28
  s_cselect_b32 s{t+4}, 0, 2
  s_sub_u32 s{t+3}, s{t}, s{t+3}
  s_lshr_b32 s{t+5}, s{t+3}, 1
  s_lshl_b32 s{t+5}, s{t+5}, 2
  s_and_b32 s{t+3}, s{t+3}, 1
  s_add_u32 s{t+5}, s{t+5}, s{t+3}
  s_add_u32 s{t+5}, s{t+5}, s{t+4}           ; F block
  v_lshrrev_b32 v{v+2}, 2, v{v}
  v_lshlrev_b32 v{v+2}, 3, v{v+2}
  v_and_b32 v{v+3}, 3, v{v}
  v_add_u32 v{v+2}, v{v+2}, v{v+3}
  s_lshl_b32 s{t+5}, s{t+5}, 5
  v_add_u32 v{v+2}, s{t+5}, v{v+2}""")
    for i in range(4): k(f"  v_add_u32 v{v+4+i}, {16*(i&1) + 4*(i>>1)}, v{v+2}")
    k(f"""
  s_branch {k.L('sw_go%d' % n)}
{k.L('sw_wo%d' % n)}:
  s_sub_u32 s{t+3}, s{t}, 54
  s_mul_i32 s{t+4}, s{t+3}, 52
  s_lshr_b32 s{t+4}, s{t+4}, 8
  s_mul_i32 s{t+5}, s{t+4}, 5
  s_sub_u32 s{t+5}, s{t+3}, s{t+5}
  s_lshl_b32 s{t+5}, s{t+5}, 3
  v_add_u32 v{v+2}, s{t+5}, v{v}
  v_cmp_le_u32 vcc, 20, v{v+2}
  v_cndmask_b32 v{v+3}, 0, 1, vcc
  v_mul_u32_u24 v{v+8}, 20, v{v+3}
  v_sub_u32 v{v+2}, v{v+2}, v{v+8}
  s_lshl_b32 s{t+4}, s{t+4}, 1
  v_add_u32 v{v+3}, s{t+4}, v{v+3}
  v_mul_u32_u24 v{v+3}, 80, v{v+3}
  v_add_u32 v{v+2}, v{v+2}, v{v+3}""")
    for i in range(4): k(f"  v_add_u32 v{v+4+i}, {20*i}, v{v+2}")
    k(f"{k.L('sw_go%d' % n)}:")
    for i in range(4): k(f"  v_mul_u32_u24 v{v+4+i}, 1280, v{v+4+i}\n  v_add_u32 v{v+4+i}, v{v+4+i}, v{v+1}")
    k.end()
def sw_dma(k, n=0):
    v = V_SWI + 10*n; scr = [87, 48][n]
    for i in range(4):
        k.begin()
        k(f"  s_add_u32 m0, s{scr}, {i*1024}")
        k.vmem(f"  buffer_load_dwordx4 v{v+4+i}, {R(R_T)}, 0 offen lds", ("sw", n))
        k.end()
def sw_proc1(k, n=0):
    v = V_SW + 40*n; t = 41; FRG = v + 16; sid = [51, 49][n]; scr = [87, 48][n]
    k(f"""
  v_lshrrev_b32 v{v}, 4, v1
  v_lshrrev_b32 v{v+1}, 2, v1
  v_and_b32 v{v+1}, 3, v{v+1}
  v_lshl_add_u32 v{v}, v{v}, 3, v{v+1}
  v_lshlrev_b32 v{v}, 7, v{v}
  v_and_b32 v{v+1}, 3, v1
  v_lshl_add_u32 v{v}, v{v+1}, 3, v{v}
  v_add_u32 v{v}, s{scr}, v{v}
  v_lshlrev_b32 v{v+1}, 4, v1
  s_cmp_eq_u32 s{sid}, -1
  s_cselect_b32 s{t}, 0x7fff0000, 0
  v_add_u32 v{v+1}, s{t}, v{v+1}""")
    k.wait_vm(("sw", n))
    for b in range(4):
        for tt in range(2):
            d = FRG + 4*b + 2*tt
            k(f"  ds_read_b64_tr_b16 v[{d}:{d+1}], v{v} offset:{32*b + 512*tt}")
    k("  s_waitcnt lgkmcnt(0)")
def sw_proc2(k, n=0):
    v = V_SW + 40*n; t = 41; FRG = v + 16; sS, sL = [(56, 57), (100, 101)][n]
    for b in range(4):
        k.begin()
        k(f"""
  s_lshl_b32 s{t}, s{sL}, 2
  s_add_u32 s{t}, s{t}, {b}
  s_mul_i32 s{t+1}, s{t}, 13
  s_lshr_b32 s{t+1}, s{t+1}, 6
  s_mul_i32 s{t+2}, s{t+1}, 5
  s_sub_u32 s{t+2}, s{t}, s{t+2}
  s_mul_i32 s{t+1}, s{t+1}, 74
  s_add_u32 s{t+1}, s{t+1}, s{sS}
  s_mul_i32 s{t+1}, s{t+1}, 5
  s_add_u32 s{t+1}, s{t+1}, s{t+2}
  s_lshl_b32 s{t+1}, s{t+1}, 10
  s_add_u32 s{t+1}, s{t+1}, {L.WS_W2}""")
        if 'nosw' not in EXP: k.vmem(f"  buffer_store_dwordx4 v[{FRG+4*b}:{FRG+4*b+3}], v{v+1}, {R(R_WS)}, s{t+1} offen sc1", "jst")
        k.end()
def zero_job(k):
    k(f"""
  s_mul_i32 s41, s40, 160
  s_add_u32 s41, s41, {L.WS_KV}
  v_lshlrev_b32 v56, 4, v1
  v_cmp_gt_u32 vcc, 10, v1
  v_mov_b32 v57, 0x7fff0000
  v_cndmask_b32 v58, v57, v56, vcc
  v_mov_b32 v60, 0
  v_mov_b32 v61, 0
  v_mov_b32 v62, 0
  v_mov_b32 v63, 0""")
    if 'nozero' not in EXP: k.vmem(f"  buffer_store_dwordx4 v[60:63], v58, {R(R_WS)}, s41 offen sc1", "jst")

def store_flag(k, cond_s, cond_val, addr_code, lbl):
    k.begin()
    k(f"  s_cmp_eq_u32 s{cond_s}, {cond_val}\n  s_cbranch_scc0 {k.L(lbl)}")
    k(addr_code)
    k(f"""
  v_mov_b32 v2, s41
  v_mov_b32 v0, 1
  s_mov_b64 exec, 1
  buffer_store_byte v0, v2, {R(R_WS)}, 0 offen sc1
  s_mov_b64 exec, -1
{k.L(lbl)}:""")
    k.end()

def poll_issue(k, vdst, addr_code, tag, only0=True):
    k.begin()
    k(addr_code)
    if only0:
        k(f"  s_cmp_eq_u32 s39, 0\n  s_cselect_b32 s41, 0, 0x7fff0000\n  v_or_b32 v{vdst+1}, s41, v{vdst+1}")
    k.vmem(f"  buffer_load_dword v{vdst}, v{vdst+1}, {R(R_WS)}, 0 offen sc1", tag)
    k.end()
def poll_check(k, vdst, tag, lbl, only0=True, slp=6):
    k.wait_vm(tag)
    saved = list(k.vm)
    if only0: k(f"  s_cmp_eq_u32 s39, 0\n  s_cbranch_scc0 {k.L(lbl+'_ok')}")
    k(f"""
  v_cmp_ne_u32 vcc, 0x01010101, v{vdst}
  s_cmp_eq_u64 vcc, 0
  s_cbranch_scc1 {k.L(lbl+'_ok')}
{k.L(lbl+'_sp')}:
  s_sleep {slp}
  buffer_load_dword v{vdst}, v{vdst+1}, {R(R_WS)}, 0 offen sc1
  s_waitcnt vmcnt(0)
  v_cmp_ne_u32 vcc, 0x01010101, v{vdst}
  s_cmp_eq_u64 vcc, 0
  s_cbranch_scc0 {k.L(lbl+'_sp')}
{k.L(lbl+'_ok')}:""")
    k.vm = saved
def lines(vdst, scode, n):
    return scode + f"\n  v_min_u32 v{vdst+1}, {n-1}, v1\n  v_lshlrev_b32 v{vdst+1}, 7, v{vdst+1}\n  v_add_u32 v{vdst+1}, s41, v{vdst+1}"
def words(vdst, scode, n):
    return scode + f"\n  v_lshlrev_b32 v{vdst+1}, 2, v1\n  v_min_u32 v{vdst+1}, {4*(n-1)}, v{vdst+1}\n  v_add_u32 v{vdst+1}, s41, v{vdst+1}"

def unit_of_slot(k, sg, sslot, su, sty, lbl):
    k(f"""
  s_lshl_b32 s{su}, s{sg}, 2
  s_add_u32 s{su}, s{su}, s{sslot}
  s_cmp_lt_u32 s{su}, 27
  s_cbranch_scc0 {k.L(lbl+'a')}
  s_mov_b32 s{sty}, 0
  s_add_u32 s{su}, s{su}, 30
  s_branch {k.L(lbl+'b')}
{k.L(lbl+'a')}:
  s_mov_b32 s{sty}, 2
  s_cmp_eq_u32 s{su}, 28
  s_cmov_b32 s{sty}, 1
  s_cmp_eq_u32 s{su}, 30
  s_cmov_b32 s{sty}, 1
  s_lshr_b32 s{su}, s{su}, 1
  s_sub_u32 s{su}, s{su}, 6
{k.L(lbl+'b')}:""")

vDx, vDx2, vDw, vG = 10, 11, 12, 20
NWS = 4

def loader_a_setup(k):
    k(f"""
  v_lshrrev_b32 v4, 3, v1
  v_lshrrev_b32 v5, 1, v4
  v_and_b32 v6, 7, v1
  v_xor_b32 v7, v6, v5
  v_mul_u32_u24 v8, 1280, v4
  v_lshl_add_u32 v{vDx}, v7, 4, v8
  v_xor_b32 v7, 4, v7
  v_lshl_add_u32 v{vDx2}, v7, 4, v8
  s_mul_i32 s101, s36, {128*1280}
  s_mul_i32 s47, s39, {32*1280}
  s_add_u32 s101, s101, s47
  s_lshl_b32 s47, s39, 12                  ; lw*4096""")
def loader_a_setup_w(k):
    k(f"""
  v_and_b32 v5, 1, v5
  v_lshlrev_b32 v5, 2, v5
  v_xor_b32 v6, v6, v5
  s_cmp_eq_u32 s37, 0
  s_cbranch_scc1 {k.L('ld_kv')}""")
    unit_of_slot(k, 38, 39, 48, 49, "uos")
    k(f"""
  s_cmp_eq_u32 s49, 0
  s_cselect_b32 s20, s{R_W1}, s{R_WQ}
  s_cselect_b32 s21, s{R_W1+1}, s{R_WQ+1}
  s_mov_b32 s44, 3840
  s_cmov_b32 s44, 3456
  s_cselect_b32 s22, s{R_W1+2}, s{R_WQ+2}
  s_cselect_b32 s58, 30, 0
  s_sub_u32 s58, s48, s58
  s_lshl_b32 s100, s58, 7
  s_cmp_eq_u32 s49, 2
  s_cmov_b32 s22, 0
  v_lshlrev_b32 v7, 4, v6
  s_lshl_b32 s58, s48, 6
  v_add_u32 v{vG}, s58, v1
  s_branch {k.L('ld_go')}
{k.L('ld_kv')}:
  s_mov_b32 s20, s{R_WQ}
  s_mov_b32 s21, s{R_WQ+1}
  s_mov_b32 s22, s{R_WQ+2}
  s_mov_b32 s44, 3840
  s_mov_b32 s100, 0
  ; position p' = 8 lw + p  ->  chunk c' = (p' & ~3) | inv(p')  (bank-conflict-free placement, see kvmap2.py)
  s_lshl_b32 s58, s39, 3
  v_add_u32 v7, s58, v6                    ; p'
  v_mov_b32 v8, 0x9c1b39b4
  v_mov_b32 v9, 0xd8e1e472
  v_cmp_gt_u32 vcc, 16, v7
  v_cndmask_b32 v8, v9, v8, vcc
  v_and_b32 v9, 15, v7
  v_lshlrev_b32 v9, 1, v9
  v_lshrrev_b32 v8, v9, v8
  v_and_b32 v8, 3, v8
  v_and_b32 v7, 0xfc, v7
  v_or_b32 v7, v7, v8                      ; c'
  s_mul_i32 s58, s38, 160
  s_add_u32 s59, s58, 1280                 ; k: 1280 + 160 j + 16 c'
  v_mov_b32 v8, s59
  s_add_u32 s59, s58, {2560 - 160}         ; v: 2560 + 160 j + 16 (c' - 10)
  v_mov_b32 v9, s59
  v_cmp_gt_u32 vcc, 10, v7
  v_cndmask_b32 v8, v9, v8, vcc
  v_mov_b32 v9, 0x7fff0000
  v_cmp_gt_u32 vcc, 20, v7
  v_cndmask_b32 v8, v9, v8, vcc
  s_lshl_b32 s59, s38, 7
  s_sub_u32 s59, s59, {24*16}              ; q: 128 j + 16 (c' - 24)
  v_mov_b32 v9, s59
  v_cmp_gt_u32 vcc, 24, v7
  v_cndmask_b32 v8, v9, v8, vcc
  v_lshl_add_u32 v7, v7, 4, v8
{k.L('ld_kvgc')}:
  v_and_b32 v12, 31, v1
  v_lshrrev_b32 v13, 5, v1
  s_and_b32 s58, s39, 1
  s_lshl_b32 s58, s58, 1
  v_add_u32 v13, s58, v13
  v_lshrrev_b32 v14, 3, v12
  v_lshl_add_u32 v14, v13, 2, v14
  v_lshrrev_b32 v15, 2, v12
  v_and_b32 v15, 1, v15
  s_lshr_b32 s59, s39, 1
  s_lshl_b32 s58, s59, 1
  v_add_u32 v16, s58, v15
  v_and_b32 v17, 3, v12
  v_mul_u32_u24 v18, 20, v16
  v_lshl_add_u32 v18, v14, 2, v18
  v_add_u32 v18, v18, v17
  s_mul_i32 s58, s38, 80
  v_add_u32 v18, s58, v18
  v_add_u32 v19, 640, v18
  v_add_u32 v21, {1280 - 20}, v18
  v_cmp_gt_u32 vcc, 5, v14
  v_cndmask_b32 v{vG}, v21, v19, vcc
  s_lshl_b32 s58, s59, 3
  v_lshl_add_u32 v21, v15, 2, s58
  v_add_u32 v21, v21, v14
  v_subrev_u32 v21, 10, v21
  v_lshl_add_u32 v21, v21, 2, v17
  s_lshl_b32 s58, s38, 6
  v_add_u32 v21, s58, v21
  v_cmp_gt_u32 vcc, 10, v14
  v_cndmask_b32 v{vG}, v21, v{vG}, vcc
  v_cmp_gt_u32 vcc, 14, v14
  v_cndmask_b32 v{vG}, 0, v{vG}, vcc
{k.L('ld_go')}:
  s_mov_b32 s23, 0x20000
  v_mul_lo_u32 v8, v4, s44
  v_add_u32 v{vDw}, v8, v7
  s_add_u32 s48, s47, {WR}
  s_lshl_b32 s49, s44, 3                   ; 8*stride""")

def gW(j):
    def mk(i):
        def f(k):
            k(f"  s_add_u32 m0, s48, {(j % NWS)*16384 + i*1024}")
            k.vmem(f"  buffer_load_dwordx4 v{vDw}, {R(R_W)}, s100 offen lds", ("W", j))
            k("  s_add_u32 s100, s100, s49")
        return f
    return [mk(i) for i in range(4)]
def gX(m):
    def mk(i):
        def f(k):
            k(f"  s_add_u32 m0, s47, {XR + (m % 3)*16384 + i*1024}\n  s_add_u32 s87, s101, {m*128 + i*8*1280}")
            k.vmem(f"  buffer_load_dwordx4 v{vDx if i % 2 == 0 else vDx2}, {R(R_X)}, s87 offen lds", ("X", m))
        return f
    return [mk(i) for i in range(4)]
def dW(k, j):
    for f in gW(j): f(k)
def dX(k, m):
    for f in gX(m): f(k)
def rec(k, fns):
    r = kb.Rec(k)
    for f in fns: f(r)
    return r.items

def t_issue(k):
    k(f"""
  v_lshlrev_b32 v21, 2, v{vG}
  v_subrev_u32 v22, 1920, v{vG}
  v_lshlrev_b32 v22, 1, v22
  s_lshl_b32 s58, s36, 7
  s_lshl_b32 s59, s39, 6
  s_add_u32 s58, s58, s59
  v_add_u32 v23, s58, v1
  v_lshlrev_b32 v23, 4, v23
  s_cmp_lt_u32 s39, 2
  s_cselect_b32 s59, 0, 0x7fff0000
  v_add_u32 v23, s59, v23""")
    for p in range(10):
        k.begin()
        k(f"  s_mov_b32 s58, {L.WS_CSP + p*L.NCOL*4}")
        k.vmem(f"  buffer_load_dword v{24+p}, v21, {R(R_WS)}, s58 offen sc1", "side")
        k.end()
    k.vmem(f"  buffer_load_ushort v34, v22, {R(R_B)}, 0 offen", "side")
    k.vmem(f"  buffer_load_dwordx4 v[36:39], v23, {R(R_WS)}, 0 offen sc1", "side")
def wphi_dma(k, head_code, dst, enable_kv_only):
    k.begin()
    k(head_code)
    k(f"""
  s_mul_i32 s58, s58, 800
  s_add_u32 s{R_T}, s{S_WPHI}, s58
  s_addc_u32 s{R_T+1}, s{S_WPHI+1}, 0
  s_and_b32 s{R_T+1}, s{R_T+1}, 0xffff
  s_mov_b32 s{R_T+2}, 800
  s_mov_b32 s{R_T+3}, 0x20000""")
    if enable_kv_only:
        k(f"  s_cmp_eq_u32 s37, 0\n  s_cselect_b32 s{R_T+2}, s{R_T+2}, 0")
    k(f"""
  v_lshlrev_b32 v40, 4, v1
  s_lshl_b32 s58, s39, 10
  s_add_u32 m0, s58, {dst}""")
    k.vmem(f"  buffer_load_dwordx4 v40, {R(R_T)}, 0 offen lds", "side")
    k.end()
def t_build1(k):
    k.wait_vm("side")
    k("  v_add_f32 v24, v24, v25")
    for p in range(2, 10): k(f"  v_add_f32 v24, v24, v{24+p}")
    k(f"""
  v_cvt_pk_bf16_f32 v25, v24, v24
  v_and_b32 v26, 0xffff0000, v25
  v_sub_f32 v26, v24, v26
  v_cvt_pk_bf16_f32 v28, v24, v26
  v_and_b32 v29, 0xffff, v25
  v_lshl_or_b32 v29, v34, 16, v29
  v_mov_b32 v30, v34
  v_mov_b32 v31, 0""")
def t_build2(k):
    k(f"""
  v_lshlrev_b32 v27, 4, v1
  s_lshl_b32 s58, s39, 10
  s_add_u32 s58, s58, {TT}
  v_add_u32 v27, s58, v27
  ds_write_b128 v27, v[28:31]
  v_mov_b32 v44, 0
  v_mov_b32 v45, 0
  v_mov_b32 v46, 0
  v_mov_b32 v47, 0
  v_add_u32 v27, {ZR - TT}, v27
  s_cmp_lt_u32 s39, 2
  s_cbranch_scc0 {k.L('ld_nost')}
  ds_write_b128 v27, v[44:47]
  v_add_u32 v27, {ST - ZR + 2**32 if ST < ZR else ST - ZR}, v27
  ds_write_b128 v27, v[36:39]
{k.L('ld_nost')}:
  s_waitcnt lgkmcnt(0)""")

def tlb_touch(k):
    k(f"  s_cmp_eq_u32 s39, 2\n  s_cbranch_scc0 {k.L('notlb')}")
    items = [(S_X, 0), (S_X, 0x200000), (S_WQ, 0), (S_WQ, 0x200000), (S_W1, 0), (S_W1, 0x200000), (S_W2, 0), (S_W2, 0x200000), (S_WO, 0),
             (S_WPHI, 0), (S_B1, 0), (S_B2, 0), (S_OUT, 0), (S_OUT, 0x200000), (S_DBG, 0)] + [(S_WS, o) for o in range(0, L.WS_END, 0x200000)]
    for (p, o) in items:
        if o == 0: k(f"  s_load_dword s70, s[{p}:{p+1}], 0")
        else: k(f"  s_add_u32 s72, s{p}, {o}\n  s_addc_u32 s73, s{p+1}, 0\n  s_load_dword s70, s[72:73], 0\n  s_waitcnt lgkmcnt(0)" if False else
                f"  s_add_u32 s{{a}}, s{p}, {o}\n  s_addc_u32 s{{b}}, s{p+1}, 0\n  s_load_dword s70, s[{{a}}:{{b}}], 0".format(a=72, b=73))
    k(f"{k.L('notlb')}:")
def code_pf(k):
    if True:
        k(f"""
  s_cmp_eq_u32 s39, 3
  s_cbranch_scc0 {k.L('nopf')}
  s_getpc_b64 s[58:59]
{k.L('pc')}:
  s_sub_u32 s58, s58, {k.L('pc')}-{k.name}
  s_subb_u32 s59, s59, 0
  s_lshr_b32 s41, s2, 3
  s_and_b32 s41, s41, 7
  s_lshl_b32 s41, s41, 13
  v_lshl_add_u32 v50, v1, 7, s41
  v_min_u32 v50, {k.L('codeend')}-{k.name}-4, v50
  global_load_dword v51, v50, s[58:59]
{k.L('nopf')}:""")
def loader_a_start(k):
    if 'pfearly' in EXP: code_pf(k)
    if 'tlb' in EXP: tlb_touch(k)
    loader_a_setup(k)
    loader_a_setup_w(k)
    if 'noS0' not in EXP: k("  s_barrier")
    dX(k, 0); dW(k, 0); dW(k, 1)
    if 'pfearly' not in EXP and 'nocpf' not in EXP: code_pf(k)
    wphi_dma(k, "  s_lshl_b32 s58, s38, 2\n  s_add_u32 s58, s58, s39", WP, True)
    kb.stamp(k, 2)
    k.wait_vm(("W", 0))
    k("  s_barrier")
    kb.stamp(k, 3)
    dX(k, 1); dW(k, 2); dW(k, 3); dX(k, 2)
def loader_a(k):
    for j in range(20):
        if j + 1 <= 19:
            k.wait_vm(("W", j + 1))
            if (j + 1) % 2 == 0: k.wait_vm(("X", (j + 1)//2))
        if j == 16: poll_check(k, 52, "f2", "f2", slp=1)
        k("  s_barrier")
        groups = []
        if j + NWS <= 19: groups += gW(j + NWS)
        if j % 2 == 1 and (j + 1)//2 + 2 <= 9: groups += gX((j + 1)//2 + 2)
        fns = []
        if j == 14:
            fns.append(lambda k: poll_issue(k, 52, f"  v_lshrrev_b32 v53, 2, v1\n  v_lshlrev_b32 v53, 7, v53\n  v_and_b32 v54, 3, v1\n  v_lshl_add_u32 v53, v54, 2, v53\n  v_add_u32 v53, {FL_F2}, v53", "f2"))
        if j == 16: fns.append(t_issue)
        if j == 16: fns.append(loader_b_setup)
        if j == 18:
            fns.append(t_build1); fns.append(t_build2)
        if j in (17, 18, 19): groups += gWP(WPL[4*(j - 17):4*(j - 16)])
        kb.interleave(k, groups, rec(k, fns))
        kb.stamp(k, 16 + j)
CODE_PF = True
import os
EXP = os.environ.get('EXP', '')

VXA = [4, 5, 6, 7]; VXB = [8, 9, 10, 11]; VWA = [12, 13, 14, 15]
FX = [[80, 84], [104, 108]]
FW = [[88, 92, 96, 100], [112, 116, 120, 124]]
ACC = 128
WA_KV = 56
def acc(tb, b): return ACC + tb*64 + b*16

def a_reads(set_, st4, ks2):
    ksl = 2*(st4 & 1) + ks2
    r = []
    for tb in range(2):
        r.append(f"  ds_read_b128 v[{FX[set_][tb]}:{FX[set_][tb]+3}], v{VXA[ksl]} offset:{tb*4096}")
    for b in range(4):
        for t in range(2):
            d = FW[set_][b] + 2*t
            r.append(f"  ds_read_b64_tr_b16 v[{d}:{d+1}], v{VWA[b]} offset:{st4*16384 + ks2*2048 + t*512}")
    return r
def a_mfmas(cur, zero=False):
    return [f"  v_mfma_f32_32x32x16_bf16 v[{acc(tb,b)}:{acc(tb,b)+15}], v[{FW[cur][b]}:{FW[cur][b]+3}], v[{FX[cur][tb]}:{FX[cur][tb]+3}], " + ("0" if zero else f"v[{acc(tb,b)}:{acc(tb,b)+15}]")
            for b in range(4) for tb in range(2)]

def a_stage(k, st4, tail=None, pre_barrier=None, post_barrier=None, first=False):
    odd = st4 & 1
    mf = a_mfmas(0, zero=first); rd = a_reads(1, st4, 1)
    k("  s_waitcnt lgkmcnt(0)")
    sched = [2, 2, 2, 2, 1, 1, 0, 0]
    extra = []
    if odd:
        extra = [f"  v_add_u32 v{VXA[i]}, s47, v{VXB[i]}" for i in range(3)]
    for i, m in enumerate(mf):
        k(m)
        for _ in range(sched[i]): k(rd.pop(0))
        if i >= 5 and extra: k(extra.pop(0))
    mf = a_mfmas(1)
    k("  s_waitcnt lgkmcnt(0)")
    k(mf[0])
    if pre_barrier: k(pre_barrier)
    k("  s_barrier")
    if post_barrier: post_barrier(k)
    rd = a_reads(0, (st4 + 1) % 4, 0) if tail is None else list(tail)
    sched = [2, 2, 2, 2, 1, 1, 0]
    for i, m in enumerate(mf[1:]):
        for _ in range(sched[i]):
            if rd: k(rd.pop(0))
        k(m)
    while rd: k(rd.pop(0))
    if odd:
        k(f"  v_add_u32 v{VXA[3]}, s47, v{VXB[3]}")
        k("  s_add_u32 s47, s47, 16384\n  s_cmp_eq_u32 s47, 49152\n  s_cselect_b32 s47, 0, s47")

def compute_a(k):
    kb.stamp(k, 0, rt=True)
    k(f"""
  s_or_b32 s41, s2, s3
  s_cmp_eq_u32 s41, 0
  s_cbranch_scc0 {k.L('nog0')}
  v_lshlrev_b32 v4, 7, v1
  v_add_u32 v4, {FL}, v4
  v_mov_b32 v6, 0x7fff0000
  v_cmp_gt_u32 vcc, 16, v1
  v_cndmask_b32 v4, v6, v4, vcc
  v_mov_b32 v8, 0
  v_mov_b32 v9, 0
  v_mov_b32 v10, 0
  v_mov_b32 v11, 0
  buffer_store_dwordx4 v[8:11], v4, {R(R_WS)}, 0 offen sc1
  s_waitcnt vmcnt(0)
  v_mov_b32 v4, 0
  v_mov_b32 v5, 1
  s_mov_b64 exec, 1
  global_store_dword v4, v5, s[{S_DBG}:{S_DBG+1}] sc1
  s_mov_b64 exec, -1
{k.L('nog0')}:""")
    srd(k, R_W2, S_W2, 2211840)
    srd(k, R_WO, S_WO, 819200)
    job_ids(k)
    stats_issue(k); cs_issue(k)
    if 'noS0' not in EXP: k("  s_barrier")
    vm_kv = list(k.vm)
    k(f"  s_cmp_eq_u32 s37, 0\n  s_cbranch_scc1 {k.L('nosw')}")
    sw_addr(k, 0); sw_dma(k, 0); sw_addr(k, 1); sw_dma(k, 1)
    k.label("nosw")
    vm_g = list(k.vm)
    kb.stamp(k, 62)
    k(f"""
  s_lshr_b32 s43, s39, 1                   ; Th
  s_and_b32 s44, s39, 1                    ; Fh
  v_and_b32 v16, 31, v1                    ; n
  v_lshrrev_b32 v17, 5, v1                 ; hh
  v_lshrrev_b32 v18, 1, v16
  v_and_b32 v18, 7, v18
  v_xor_b32 v18, v17, v18
  v_lshlrev_b32 v18, 4, v18
  v_lshl_add_u32 v18, v16, 7, v18
  s_lshl_b32 s45, s43, 13
  v_add_u32 v{VXB[0]}, s45, v18
  v_xor_b32 v{VXB[1]}, 32, v{VXB[0]}
  v_xor_b32 v{VXB[2]}, 64, v{VXB[0]}
  v_xor_b32 v{VXB[3]}, 96, v{VXB[0]}
  v_mov_b32 v{VXA[0]}, v{VXB[0]}
  v_mov_b32 v{VXA[1]}, v{VXB[1]}
  v_mov_b32 v{VXA[2]}, v{VXB[2]}
  v_mov_b32 v{VXA[3]}, v{VXB[3]}
  s_mov_b32 s47, 16384
  v_lshrrev_b32 v18, 4, v1                 ; G
  v_lshrrev_b32 v19, 2, v1
  v_and_b32 v19, 3, v19                    ; r
  v_and_b32 v20, 3, v1                     ; c
  v_lshrrev_b32 v21, 1, v18
  v_lshl_add_u32 v21, v21, 3, v19
  v_lshlrev_b32 v21, 7, v21
  v_add_u32 v21, {WR}, v21
  v_lshrrev_b32 v22, 1, v19
  v_lshlrev_b32 v22, 2, v22
  v_and_b32 v23, 1, v18
  v_lshlrev_b32 v23, 1, v23
  v_lshrrev_b32 v24, 1, v20
  v_add_u32 v23, v23, v24                  ; j'
  v_and_b32 v24, 1, v20                    ; hh'
  s_cmp_eq_u32 s37, 0
  s_cbranch_scc1 {k.L('c_kv')}""")
    for b in range(4):
        k(f"""
  v_add_u32 v25, {4*(b&1)}, v23
  v_xor_b32 v25, v25, v22
  v_lshl_add_u32 v25, v25, 4, v21
  v_lshl_add_u32 v25, v24, 3, v25
  s_lshl_b32 s45, s44, 13
  s_add_u32 s45, s45, {(b>>1)*4096}
  v_add_u32 v{VWA[b]}, s45, v25""")
    k(f"  s_branch {k.L('c_go')}\n{k.L('c_kv')}:")
    k(f"  s_lshl_b32 s45, s44, 1\n  v_add_u32 v26, s45, v24\n  v_mul_u32_u24 v26, 5, v26")
    for b in range(4):
        k(f"""
  v_add_u32 v27, {4*b}, v23
  v_add_u32 v28, v26, v27
  v_add_u32 v29, 15, v28
  v_cmp_gt_u32 vcc, 5, v27
  v_cndmask_b32 v28, v29, v28, vcc
  s_lshl_b32 s45, s44, 3
  v_lshl_add_u32 v29, v24, 2, s45
  v_add_u32 v29, v29, v27
  v_add_u32 v29, {48 - 10}, v29
  v_cmp_gt_u32 vcc, 10, v27
  v_cndmask_b32 v28, v29, v28, vcc
  v_cmp_gt_u32 vcc, 14, v27
  v_add_u32 v29, 42, v24
  v_cndmask_b32 v28, v29, v28, vcc
  v_lshrrev_b32 v30, 1, v28                ; chunk c'
  v_mov_b32 v29, 0x781b93b4
  v_mov_b32 v31, 0xd8e1e48d
  v_cmp_gt_u32 vcc, 16, v30
  v_cndmask_b32 v29, v31, v29, vcc
  v_and_b32 v31, 15, v30
  v_lshlrev_b32 v31, 1, v31
  v_lshrrev_b32 v29, v31, v29
  v_and_b32 v29, 3, v29
  v_and_b32 v30, 0xfc, v30
  v_or_b32 v30, v30, v29                   ; position p'
  v_lshrrev_b32 v29, 3, v30                ; VU
  v_and_b32 v30, 7, v30
  v_xor_b32 v30, v30, v22
  v_and_b32 v31, 1, v28
  v_lshl_add_u32 v30, v30, 4, v21
  v_lshl_add_u32 v30, v31, 3, v30
  v_lshl_add_u32 v{VWA[b]}, v29, 12, v30""")
    k(f"{k.L('c_go')}:")
    k(f"""
  s_lshl_b32 s45, s43, 10
  s_add_u32 s45, s45, {ST}
  v_lshl_add_u32 v32, v16, 4, s45
  s_lshl_b32 s45, s44, 11
  s_add_u32 s45, s45, {TT}
  v_lshl_add_u32 v33, v16, 4, s45
  v_mov_b32 v34, {ZR}
  v_cmp_eq_u32 vcc, 0, v17
  v_cndmask_b32 v33, v34, v33, vcc
  v_lshrrev_b32 v25, 1, v18                ; hh_k
  s_lshl_b32 s45, s44, 1
  v_add_u32 v26, s45, v24
  v_lshlrev_b32 v26, 10, v26
  v_add_u32 v26, {WP}, v26
  v_mul_u32_u24 v27, 40, v19
  v_add_u32 v27, v27, v26
  v_lshl_add_u32 v27, v23, 3, v27
  v_mov_b32 v28, {ZR}
  v_cmp_eq_u32 vcc, v24, v25
  v_cndmask_b32 v35, v28, v27, vcc
  v_add_u32 v30, 32, v27
  v_cmp_eq_u32 s[58:59], 0, v23
  s_and_b64 vcc, vcc, s[58:59]
  v_cndmask_b32 v31, v28, v30, vcc""")
    kb.stamp(k, 15)
    def stats_cs():
        A_ = rec(k, [stats_a1, stats_a2, stats_b, stats_c, stats_d]); B_ = rec(k, [cs_a, cs_b])
        k.wait_vm("cs")
        na, nb = len(A_), len(B_); ia = ib = 0
        while ia < na or ib < nb:
            for _ in range(2):
                if ia < na: kb.replay(k, A_[ia]); ia += 1
            if ib < nb and (ib + 1)*na <= (ia + 2)*nb*1.0 + na: kb.replay(k, B_[ib]); ib += 1
            elif ia >= na and ib < nb: kb.replay(k, B_[ib]); ib += 1
    k(f"  s_cmp_eq_u32 s37, 0\n  s_cbranch_scc1 {k.L('jobs_kv')}")
    k.vm = vm_g
    stats_cs()
    kb.stamp(k, 59)
    sw_proc1(k, 0); sw_proc1(k, 1); kb.stamp(k, 61); sw_proc2(k, 0); sw_proc2(k, 1)
    k(f"  s_branch {k.L('jobs_done')}")
    k.label("jobs_kv")
    k.vm = vm_kv
    base_ = k.name
    k.lname = base_ + "_jk"
    stats_a1(k); stats_a2(k); stats_b(k); stats_c(k); stats_d(k)
    k(f"  s_cmp_eq_u32 s50, -1\n  s_cbranch_scc1 {k.L('nocs')}")
    cs_a(k); cs_b(k)
    k.label("nocs")
    k.lname = None
    k.label("jobs_done")
    k(f"""
  s_mul_i32 s41, s2, 3
  s_add_u32 s41, s41, 16
  v_add_u32 v36, s41, v1                   ; line
  v_cmp_gt_u32 vcc, {NFL}, v36
  s_mov_b64 s[58:59], vcc
  v_cmp_gt_u32 vcc, 3, v1
  s_and_b64 vcc, vcc, s[58:59]
  s_cmp_eq_u32 s39, 1
  s_cselect_b64 s[58:59], -1, 0
  s_and_b64 vcc, vcc, s[58:59]
  v_lshlrev_b32 v36, 7, v36
  v_add_u32 v36, {FL}, v36
  v_mov_b32 v37, 0x7fff0000
  v_cndmask_b32 v36, v37, v36, vcc
  v_mov_b32 v38, 0
  buffer_store_dword v38, v36, {R(R_WS)}, 0 offen sc1""")
    k("  v_mov_b32 v48, 0\n  s_lshr_b32 s43, s39, 1\n  s_and_b32 s44, s39, 1")
    k(f"  global_load_dword v49, v48, s[{S_DBG}:{S_DBG+1}] sc1")
    k.vm = []
    kb.stamp(k, 2)
    k("  s_barrier")
    kb.stamp(k, 3)
    kb.stamp(k, 40, rt=True)
    for l in a_reads(0, 0, 0): k(l)
    a_stage(k, 0, first=True)
    for st4 in (1, 2, 3): a_stage(k, st4)
    k("  s_mov_b32 s46, 1\n.p2align 3")
    k.label("kloop")
    pre = f"""  s_cmp_eq_u32 s46, 2
  s_cbranch_scc0 {k.L('f2n1')}
  s_waitcnt vmcnt(0)
{k.L('f2n1')}:"""
    def post(k):
        k(f"""
  s_lshl_b32 s41, s46, 2
  s_or_b32 s41, s41, s39
  s_cmp_eq_u32 s41, 8
  s_cbranch_scc0 {k.L('f2n2')}
  v_readfirstlane_b32 s53, v49
  s_cmp_eq_u32 s53, 1
  s_cbranch_scc1 {k.L('f2go')}
{k.L('f2g0')}:
  s_sleep 4
  global_load_dword v49, v48, s[{S_DBG}:{S_DBG+1}] sc1
  s_waitcnt vmcnt(0)
  v_readfirstlane_b32 s53, v49
  s_cmp_eq_u32 s53, 1
  s_cbranch_scc0 {k.L('f2g0')}
{k.L('f2go')}:
  s_lshr_b32 s41, s2, 4
  s_lshl_b32 s41, s41, 7
  s_and_b32 s42, s2, 15
  s_add_u32 s41, s41, s42
  s_add_u32 s41, s41, {FL_F2}
  v_mov_b32 v2, s41
  v_mov_b32 v0, 1
  s_mov_b64 exec, 1
  buffer_store_byte v0, v2, {R(R_WS)}, 0 offen sc1
  s_mov_b64 exec, -1
{k.L('f2n2')}:""")
    for st4 in range(4): a_stage(k, st4, pre_barrier=(pre if st4 == 0 else None), post_barrier=(post if st4 == 0 else None))
    k(f"  s_add_u32 s46, s46, 1\n  s_cmp_lt_u32 s46, 4\n  s_cbranch_scc1 {k.L('kloop')}")
    for st4 in range(3): a_stage(k, st4)
    tail = [f"  ds_read_b128 v[{36+4*tb}:{39+4*tb}], v32 offset:{tb*512}" for tb in range(2)] + \
           [f"  ds_read_b128 v[{FW[0][b]}:{FW[0][b]+3}], v33 offset:{b*512}" for b in range(4)]
    a_stage(k, 3, tail=tail)
    for beta in range(2):
        for st in range(3):
            for t in range(2):
                d0 = 8*st + 4*t; reg = WA_KV + (beta*3 + st)*4 + 2*t
                if d0 < 20: k(f"  ds_read_b64_tr_b16 v[{reg}:{reg+1}], v{35 if beta == 0 else 31} offset:{d0*40}")
                else: k(f"  v_mov_b32 v{reg}, 0\n  v_mov_b32 v{reg+1}, 0")
    k("  s_waitcnt lgkmcnt(10)")
    kb.stamp(k, 4)
    kb.stamp(k, 42, rt=True)
    for tb in range(2):
        s = 36 + 4*tb; d = FX[0][tb]
        k(f"""
  v_rcp_f32 v44, v{s+2}
  v_sub_f32 v45, 0, v{s}
  v_cvt_pk_bf16_f32 v{d}, v45, v45
  v_and_b32 v46, 0xffff0000, v{d}
  v_sub_f32 v46, v45, v46
  v_cvt_pk_bf16_f32 v47, v44, v44
  v_and_b32 v48, 0xffff0000, v47
  v_sub_f32 v48, v44, v48
  v_cvt_pk_bf16_f32 v{d+1}, v46, v44
  v_cvt_pk_bf16_f32 v{d+2}, v48, 0
  v_mov_b32 v{d+3}, 0
  v_mov_b32 v{s+3}, v44
  v_cmp_eq_u32 vcc, 0, v17
  v_cndmask_b32 v{d}, 0, v{d}, vcc
  v_cndmask_b32 v{d+1}, 0, v{d+1}, vcc
  v_cndmask_b32 v{d+2}, 0, v{d+2}, vcc""")
    for m in a_mfmas(0): k(m)
    k(f"  s_cmp_eq_u32 s37, 0\n  s_cbranch_scc1 {k.L('epi_kv')}")
    epi_g(k)
    k(f"  s_branch {k.L('phase_b')}")
    k.label("epi_kv")
    epi_kv(k)
    k.label("phase_b")

def gelu_block(k, a, dst):
    T = 60
    for p in range(0, 16, 8):
        prs = [(a + p + 2*i, T + 2*i) for i in range(4)]
        for (x, t) in prs: k(f"  v_pk_mul_f32 v[{t}:{t+1}], v[{x}:{x+1}], v[{x}:{x+1}]")
        for (x, t) in prs: k(f"  v_pk_fma_f32 v[{t}:{t+1}], v[{t}:{t+1}], v[52:53], v[50:51]")
        for (x, t) in prs: k(f"  v_pk_mul_f32 v[{t}:{t+1}], v[{t}:{t+1}], v[{x}:{x+1}]")
        for i in range(8): k(f"  v_exp_f32 v{T+i}, v{T+i}")
        for (x, t) in prs: k(f"  v_pk_fma_f32 v[{t}:{t+1}], v[{t}:{t+1}], v[54:55], v[54:55]")
        for i in range(8): k(f"  v_rcp_f32 v{T+i}, v{T+i}")
        for (x, t) in prs: k(f"  v_pk_mul_f32 v[{t}:{t+1}], v[{t}:{t+1}], v[{x}:{x+1}]")
        for n_, (x, t) in enumerate(prs): k(f"  v_cvt_pk_bf16_f32 v{dst + p//2 + n_}, v{t}, v{t+1}")

def epi_g_part(k, uu, tb, wait_older=False):
    n = f"{uu}{tb}"
    k(f"""
  s_lshl_b32 s50, s44, 1
  s_add_u32 s50, s50, {uu}
  s_lshl_b32 s51, s38, 2
  s_add_u32 s51, s51, s50                  ; u_lin
  s_cmp_lt_u32 s51, 27
  s_cbranch_scc1 {k.L('g_w1_' + n)}
  s_bitcmp1_b32 s51, 0
  s_cbranch_scc1 {k.L('g_none_' + n)}
  s_cmp_lt_u32 s51, 28
  s_cbranch_scc1 {k.L('g_none_' + n)}
  s_lshr_b32 s51, s51, 1
  s_sub_u32 s51, s51, 6
  s_add_u32 s52, s48, {2*tb}
  s_mul_i32 s52, s52, 160
  s_lshl_b32 s53, s51, 4
  s_add_u32 s52, s52, s53
  s_lshl_b32 s52, s52, 7
  s_add_u32 s52, s52, {L.WS_Q}""")
    for bb in range(2):
        a = acc(tb, 2*uu + bb)
        for jp in range(4):
            r = 60 + 2*(jp % 4)
            k(f"  v_cvt_pk_bf16_f32 v{r}, v{a+4*jp}, v{a+4*jp+1}\n  v_cvt_pk_bf16_f32 v{r+1}, v{a+4*jp+2}, v{a+4*jp+3}")
            k(f"  buffer_store_dwordx2 v[{r}:{r+1}], v59, {R(R_WS)}, s52 offen offset:{bb*1024 + jp*256} sc1")
    if wait_older: k("  s_waitcnt vmcnt(8)")
    k(f"  s_branch {k.L('g_done_' + n)}\n{k.L('g_none_' + n)}:")
    if wait_older: k("  s_waitcnt vmcnt(0)")
    k(f"  s_branch {k.L('g_done_' + n)}\n{k.L('g_w1_' + n)}:")
    s_ = 36 + 4*tb
    k(f"""
  s_and_b32 s53, s51, 1
  s_mul_i32 s53, s53, 27
  s_add_u32 s51, s51, s53
  v_mul_f32 v50, {fl(C0)}, v{s_+2}
  v_mul_f32 v52, v{s_+2}, v{s_+2}
  v_mul_f32 v52, v52, v{s_+2}
  v_mov_b32 v51, v50
  v_mul_f32 v52, {fl(C1)}, v52
  v_mov_b32 v54, v{s_+3}
  v_mov_b32 v55, v{s_+3}
  v_mov_b32 v53, v52
  s_add_u32 s52, s48, {2*tb}
  s_mul_i32 s52, s52, 74
  s_add_u32 s52, s52, s51
  s_lshl_b32 s52, s52, 10
  s_add_u32 s52, s52, {L.WS_HO}""")
    for bb in range(2):
        a = acc(tb, 2*uu + bb)
        d = 68 if bb == 0 else 20
        gelu_block(k, a, d)
        k(f"  buffer_store_dwordx4 v[{d}:{d+3}], v58, {R(R_WS)}, s52 offen offset:{bb*1024} sc1")
        k(f"  buffer_store_dwordx4 v[{d+4}:{d+7}], v58, {R(R_WS)}, s52 offen offset:{bb*1024 + 256} sc1")
    if wait_older: k("  s_waitcnt vmcnt(4)")
    k(f"{k.L('g_done_' + n)}:")

def epi_g(k):
    if 'delayG' in EXP: k("  s_sleep 39")
    k(f"""
  s_waitcnt lgkmcnt(0)
  v_lshrrev_b32 v56, 4, v16
  v_and_b32 v57, 15, v16
  v_mul_u32_u24 v58, {74*1024}, v56
  v_lshl_add_u32 v58, v17, 9, v58
  v_lshl_add_u32 v58, v57, 4, v58
  v_mul_u32_u24 v59, {160*128}, v56
  v_lshl_add_u32 v59, v17, 7, v59
  v_lshl_add_u32 v59, v57, 3, v59
  s_lshl_b32 s48, s36, 3
  s_lshl_b32 s49, s43, 2
  s_add_u32 s48, s48, s49""")
    decode_b(k)
    epi_g_part(k, 0, 0); epi_g_part(k, 0, 1)
    epi_g_part(k, 1, 0, wait_older=True)
    k("  s_barrier")
    kb.stamp(k, 5)
    store_flag(k, 39, 0, f"  s_lshl_b32 s41, s36, 1\n  s_lshr_b32 s42, s38, 2\n  s_add_u32 s41, s41, s42\n  s_lshl_b32 s41, s41, 7\n  s_and_b32 s42, s38, 3\n  s_add_u32 s41, s41, s42\n  s_add_u32 s41, s41, {FL_H1}", "fh1")
    epi_g_part(k, 1, 1)
    kb.stamp(k, 8)
    k("  s_barrier")

def epi_kv(k):
    if 'delayK' in EXP: k("  s_sleep 39")
    decode_b(k)
    WA = WA_KV; KB_ = 80
    k(f"""
  s_lshl_b32 s45, s43, 6
  v_add_u32 v32, s45, v16
  s_lshl_b32 s45, s44, 1
  v_add_u32 v33, s45, v17
  v_mul_u32_u24 v34, {PHI_P}, v32
  v_mul_u32_u24 v35, 80, v33
  v_add_u32 v34, v34, v35
  v_add_u32 v34, {PHI}, v34
  v_mul_u32_u24 v35, {VV_P}, v32
  v_mul_u32_u24 v33, 48, v33
  v_add_u32 v35, v35, v33
  v_add_u32 v35, {VV}, v35""")
    for tb in range(2):
        a = ACC + tb*64
        for i in range(10): k(f"  v_cvt_pk_bf16_f32 v{KB_+12*tb+i}, v{a+2*i}, v{a+2*i+1}")
        k(f"  v_mov_b32 v{KB_+12*tb+10}, 0\n  v_mov_b32 v{KB_+12*tb+11}, 0")
    k(f"""
  v_lshrrev_b32 v2, 4, v16
  v_and_b32 v0, 15, v16
  v_mul_u32_u24 v18, {160*128}, v2
  v_lshl_add_u32 v18, v17, 9, v18
  v_lshl_add_u32 v18, v0, 3, v18
  s_lshl_b32 s48, s36, 3
  s_lshl_b32 s49, s43, 2
  s_add_u32 s48, s48, s49""")
    for tb in range(2):
        k(f"""
  s_add_u32 s52, s48, {2*tb}
  s_mul_i32 s52, s52, 160
  s_lshl_b32 s53, s38, 4
  s_add_u32 s52, s52, s53
  s_lshl_b32 s53, s44, 3
  s_add_u32 s52, s52, s53
  s_lshl_b32 s52, s52, 7
  s_add_u32 s52, s52, {L.WS_Q}""")
        a = ACC + tb*64 + 40
        for g in range(4):
            r = 104 + 8*tb + 2*g
            k(f"  v_cvt_pk_bf16_f32 v{r}, v{a+4*g}, v{a+4*g+1}\n  v_cvt_pk_bf16_f32 v{r+1}, v{a+4*g+2}, v{a+4*g+3}")
            k(f"  buffer_store_dwordx2 v[{r}:{r+1}], v18, {R(R_WS)}, s52 offen offset:{g*128} sc1")
    k("  s_waitcnt lgkmcnt(0)")
    B1 = [112, 18]
    for st in range(3):
        for tb in range(2):
            for beta in range(2):
                d = (ACC + tb*64 + 40) if beta == 0 else B1[tb]
                c = "0" if st == 0 else f"v[{d}:{d+15}]"
                w = WA + (beta*3 + st)*4
                k(f"  v_mfma_f32_32x32x16_bf16 v[{d}:{d+15}], v[{w}:{w+3}], v[{KB_+12*tb+4*st}:{KB_+12*tb+4*st+3}], {c}")
    VB = 44
    for tb in range(2):
        a = ACC + tb*64; s_ = 36 + 4*tb
        k(f"  v_mov_b32 v4, v{s_+1}\n  v_mov_b32 v5, v{s_+1}")
        for i in range(10): k(f"  v_pk_mul_f32 v[{a+20+2*i}:{a+21+2*i}], v[{a+20+2*i}:{a+21+2*i}], v[4:5]")
        for i in range(10): k(f"  v_cvt_pk_bf16_f32 v{VB+i}, v{a+20+2*i}, v{a+21+2*i}")
        k(f"  v_mov_b32 v{VB+10}, 0x3f80\n  v_mov_b32 v{VB+11}, 0")
        for c in range(3): k(f"  ds_write_b128 v35, v[{VB+4*c}:{VB+4*c+3}] offset:{tb*32*VV_P + 16*c}")
    for tb in range(2):
        a = ACC + tb*64; s_ = 36 + 4*tb
        for i in range(4): k(f"  v_mov_b32 v{a+56+i}, v{B1[tb]+i}")
        PH = 80 + 0
        softmax_pair(k, [a + 40 + i for i in range(20)], s_ + 1, a, PH, T=44)
        for c in range(5): k(f"  ds_write_b128 v34, v[{PH+4*c}:{PH+4*c+3}] offset:{tb*32*PHI_P + 16*c}")
        if tb == 0:
            k(f"""
  s_waitcnt vmcnt(0)
  s_lshl_b32 s41, s36, 1
  s_add_u32 s41, s41, s43
  s_lshl_b32 s41, s41, 2
  s_lshr_b32 s42, s38, 1
  s_add_u32 s41, s41, s42
  s_lshl_b32 s41, s41, 7
  s_and_b32 s42, s38, 1
  s_lshl_b32 s42, s42, 1
  s_add_u32 s41, s41, s42
  s_add_u32 s41, s41, s44
  s_add_u32 s41, s41, {FL_Q}
  v_mov_b32 v2, s41
  v_mov_b32 v0, 1
  s_mov_b64 exec, 1
  buffer_store_byte v0, v2, {R(R_WS)}, 0 offen sc1
  s_mov_b64 exec, -1""")
    k("  s_waitcnt lgkmcnt(0)\n  s_barrier")
    kb.stamp(k, 5)
    k(f"""
  v_lshrrev_b32 v18, 4, v1
  v_lshrrev_b32 v19, 2, v1
  v_and_b32 v19, 3, v19
  v_and_b32 v20, 3, v1
  v_lshrrev_b32 v21, 1, v18
  v_lshl_add_u32 v21, v21, 3, v19
  v_and_b32 v22, 1, v18
  v_lshlrev_b32 v22, 2, v22
  v_add_u32 v22, v22, v20
  v_mul_u32_u24 v23, {PHI_P}, v21
  s_mul_i32 s45, s39, 80
  s_add_u32 s45, s45, {PHI}
  v_add_u32 v23, s45, v23
  v_lshl_add_u32 v24, v22, 3, v23
  v_and_b32 v25, 1, v22
  v_lshl_add_u32 v25, v25, 3, v23
  v_add_u32 v25, 64, v25
  v_mul_u32_u24 v26, {VV_P}, v21
  s_mul_i32 s45, s39, 48
  s_add_u32 s45, s45, {VV}
  v_add_u32 v26, s45, v26
  v_min_u32 v27, 5, v22
  v_lshl_add_u32 v26, v27, 3, v26""")
    KA = 48; FA = 128
    def rd(st):
        base = FA + st*12
        for t in range(2):
            tok = 16*st + 4*t
            k(f"  ds_read_b64_tr_b16 v[{base+2*t}:{base+2*t+1}], v24 offset:{tok*PHI_P}")
            k(f"  ds_read_b64_tr_b16 v[{base+4+2*t}:{base+5+2*t}], v25 offset:{tok*PHI_P}")
            k(f"  ds_read_b64_tr_b16 v[{base+8+2*t}:{base+9+2*t}], v26 offset:{tok*VV_P}")
    rd(0); rd(1)
    k(f"""
  v_lshlrev_b32 v28, 2, v16
  v_mul_u32_u24 v29, {4*96}, v17
  v_add_u32 v28, v28, v29
  s_mul_i32 s46, s39, 3840
  s_add_u32 s46, s46, {KPS}
  v_add_u32 v28, s46, v28
  v_lshlrev_b32 v30, 4, v1
  v_add_u32 v31, s46, v30
  s_lshl_b32 s45, s38, 4
  s_add_u32 s45, s45, s36                  ; j*16 + i
  s_mul_i32 s45, s45, 160
  s_mul_i32 s46, s39, 40
  s_add_u32 s45, s45, s46
  s_mul_i32 s45, s45, 96
  s_add_u32 s45, s45, {L.WS_KP}""")
    for st in range(8):
        k(f"  s_waitcnt lgkmcnt({6 if st < 7 else 0})")
        base = FA + st*12
        for beta in range(2):
            c = "0" if st == 0 else f"v[{KA+16*beta}:{KA+16*beta+15}]"
            k(f"  v_mfma_f32_32x32x16_bf16 v[{KA+16*beta}:{KA+16*beta+15}], v[{base+4*beta}:{base+4*beta+3}], v[{base+8}:{base+11}], {c}")
        if st + 2 < 8: rd(st + 2)
    k("  v_cmp_gt_u32 vcc, 24, v16\n  s_and_saveexec_b64 s[50:51], vcc")
    for jp in range(4):
        for i in range(4):
            k(f"  ds_write_b32 v28, v{KA+4*jp+i} offset:{(8*jp+i)*96}")
    for i in range(4):
        k(f"  ds_write_b32 v28, v{KA+16+i} offset:{(32+i)*96}")
    k("  s_mov_b64 exec, s[50:51]\n  s_waitcnt lgkmcnt(0)")
    for r in range(4): k(f"  ds_read_b128 v[{80+4*r}:{83+4*r}], v31 offset:{r*1024}")
    k("  v_mov_b32 v29, 0x7fff0000\n  v_cmp_gt_u32 vcc, 48, v1\n  v_cndmask_b32 v29, v29, v30, vcc")
    for r in range(4):
        k(f"  s_waitcnt lgkmcnt({3-r})")
        k(f"  buffer_store_dwordx4 v[{80+4*r}:{83+4*r}], v{30 if r < 3 else 29}, {R(R_WS)}, s45 offen offset:{r*1024} sc1")
    kb.stamp(k, 8)
    k("  s_barrier")

def softmax_1(k, P, vr1, E, T=44):
    k(f"  v_max3_f32 v{T+0}, v{P[0]}, v{P[1]}, v{P[2]}\n  v_min3_f32 v{T+1}, v{P[0]}, v{P[1]}, v{P[2]}")
    k(f"  v_max3_f32 v{T+2}, v{P[3]}, v{P[4]}, v{P[5]}\n  v_min3_f32 v{T+3}, v{P[3]}, v{P[4]}, v{P[5]}")
    for i in range(6, 18, 4):
        k(f"  v_max3_f32 v{T+0}, v{T+0}, v{P[i]}, v{P[i+1]}\n  v_min3_f32 v{T+1}, v{T+1}, v{P[i]}, v{P[i+1]}")
        k(f"  v_max3_f32 v{T+2}, v{T+2}, v{P[i+2]}, v{P[i+3]}\n  v_min3_f32 v{T+3}, v{T+3}, v{P[i+2]}, v{P[i+3]}")
    k(f"  v_max3_f32 v{T+0}, v{T+0}, v{P[18]}, v{P[19]}\n  v_min3_f32 v{T+1}, v{T+1}, v{P[18]}, v{P[19]}")
    k(f"  v_max_f32 v{T+0}, v{T+0}, v{T+2}\n  v_min_f32 v{T+1}, v{T+1}, v{T+3}")
    k(f"""
  v_mul_f32 v{T+2}, {fl(LOG2E)}, v{vr1}
  v_mov_b32 v{T+3}, v{T+2}
  v_mul_f32 v2, v{T+0}, v{T+2}
  v_mul_f32 v0, v{T+1}, v{T+2}
  v_sub_f32 v{T+0}, 0, v2
  v_sub_f32 v{T+1}, 0, v2""")
    for i in range(10):
        k(f"  v_pk_fma_f32 v[{E+2*i}:{E+2*i+1}], v[{P[2*i]}:{P[2*i]+1}], v[{T+2}:{T+3}], v[{T}:{T+1}]")
    k(f"  v_mov_b32 v{T+0}, v0\n  v_mov_b32 v{T+1}, v0")
    for i in range(10):
        k(f"  v_pk_fma_f32 v[{E+20+2*i}:{E+21+2*i}], v[{P[2*i]}:{P[2*i]+1}], v[{T+2}:{T+3}], v[{T}:{T+1}] neg_lo:[1,0,0] neg_hi:[1,0,0]")
    for i in range(20): k(f"  v_exp_f32 v{E+i}, v{E+i}")
def softmax_2(k, E, T=44):
    for i in range(20, 40): k(f"  v_exp_f32 v{E+i}, v{E+i}")
    for h_ in range(2):
        b0 = E + 20*h_; d = T + 2*h_
        k(f"  v_pk_add_f32 v[{d}:{d+1}], v[{b0}:{b0+1}], v[{b0+2}:{b0+3}]")
    for i in range(2, 10):
        for h_ in range(2):
            b0 = E + 20*h_; d = T + 2*h_
            k(f"  v_pk_add_f32 v[{d}:{d+1}], v[{d}:{d+1}], v[{b0+2*i}:{b0+2*i+1}]")
    k(f"  v_add_f32 v{T+0}, v{T+0}, v{T+1}\n  v_add_f32 v{T+2}, v{T+2}, v{T+3}\n  v_rcp_f32 v{T+0}, v{T+0}\n  v_rcp_f32 v{T+2}, v{T+2}")
    k(f"  v_mov_b32 v{T+1}, v{T+0}\n  v_mov_b32 v{T+3}, v{T+2}")
def softmax_3(k, E, PH, T=44):
    for i in range(10):
        for h_ in range(2):
            b0 = E + 20*h_; d = T + 2*h_
            k(f"  v_pk_mul_f32 v[{b0+2*i}:{b0+2*i+1}], v[{b0+2*i}:{b0+2*i+1}], v[{d}:{d+1}]")
    for h_ in range(2):
        for i in range(10):
            k(f"  v_cvt_pk_bf16_f32 v{PH+10*h_+i}, v{E+20*h_+2*i}, v{E+20*h_+2*i+1}")
def softmax_pair(k, P, vr1, E, PH, T=44):
    softmax_1(k, P, vr1, E, T); softmax_2(k, E, T); softmax_3(k, E, PH, T)

VS = [4, 5, 6, 7]; VA = [8, 9, 10, 11]
FR = [64 + 24*s for s in range(4)]
ACCB = 32
XT = 2*SLOT + 10240
BT = 161280

def decode_b(k):
    k(f"""
  s_lshr_b32 s40, s2, 3
  s_and_b32 s{S_I64}, s2, 3
  s_lshl_b32 s{S_I64}, s{S_I64}, 3
  s_lshr_b32 s41, s40, 2
  s_add_u32 s{S_I64}, s{S_I64}, s41
  s_lshr_b32 s{S_JB}, s2, 2
  s_and_b32 s{S_JB}, s{S_JB}, 1
  s_lshl_b32 s{S_JB}, s{S_JB}, 2
  s_and_b32 s41, s40, 3
  s_add_u32 s{S_JB}, s{S_JB}, s41
  s_lshl_b32 s{S_T16}, s{S_I64}, 2
  s_add_u32 s{S_T16}, s{S_T16}, s39""")

def breads(st4, ks):
    base = FR[ks]
    r = [f"  ds_read_b128 v[{base}:{base+3}], v{VA[st4]} offset:{ks*1024}"]
    for cb in range(5):
        r.append(f"  ds_read_b128 v[{base+4+4*cb}:{base+7+4*cb}], v{VS[st4]} offset:{(ks*5+cb)*1024}")
    return r
def bmfma(ks):
    base = FR[ks]
    return [f"  v_mfma_f32_16x16x32_bf16 v[{ACCB+4*cb}:{ACCB+4*cb+3}], v[{base+4+4*cb}:{base+7+4*cb}], v[{base}:{base+3}], v[{ACCB+4*cb}:{ACCB+4*cb+3}]" for cb in range(5)]
def bstage(k, j, next_nks=4, pre_barrier=None, post_barrier=None, extra=None):
    st4 = j % 4
    extra = list(extra or [])
    per = (len(extra) + 19)//20
    for ks in range(4):
        mf = bmfma(ks)
        if ks < 2:
            rd = [(l, ("r", j, ks + 2)) for l in breads(st4, ks + 2)]
            k.wait_ds(("r", j, ks))
        else:
            if ks == 2:
                k.wait_ds(("r", j, 3))
                if pre_barrier: k(pre_barrier)
                k("  s_barrier")
                if post_barrier: post_barrier(k)
            rd = [(l, ("r", j + 1, ks - 2)) for l in breads((st4 + 1) % 4, ks - 2)] if ks - 2 < next_nks else []
        for i, m in enumerate(mf):
            k(m)
            if rd: k.ds(*rd.pop(0))
            for _ in range(per):
                if extra: kb.replay(k, extra.pop(0))
        while rd: k.ds(*rd.pop(0))
    while extra: kb.replay(k, extra.pop(0))

def compute_b(k, role):
    P = SCHED[role]; P1_J = P['P1_J']; RED_J = P['RED_J']; P2_J = P['KVJ'] + 1; OFLAG_J = min(11, P2_J + P['OFLAG_D'])
    k(f"""
  v_and_b32 v16, 15, v1
  v_lshrrev_b32 v17, 4, v1
  s_lshl_b32 s45, s{S_T16}, 4
  v_add_u32 v19, s45, v16
  v_mul_u32_u24 v24, 1280, v19
  s_mul_i32 s45, s{S_JB}, 160
  v_lshl_add_u32 v25, v17, 3, s45
  v_add_u32 v24, v24, v25
  v_lshlrev_b32 v22, 4, v1
  s_lshl_b32 s44, s39, 12
  s_add_u32 s44, s44, 20480""")
    for s in range(4):
        k(f"  v_add_u32 v{VS[s]}, {s*SLOT}, v22\n  v_add_u32 v{VA[s]}, s44, v{VS[s]}")
    for i in range(20): k(f"  v_mov_b32 v{ACCB+i}, 0")
    op_addr(k)
    k(f"""
  s_cmp_eq_u32 s37, 0
  s_cbranch_scc0 {k.L('nopf2')}
  s_waitcnt vmcnt(0)
  s_lshl_b32 s41, s38, 4
  s_add_u32 s41, s41, s36
  s_lshl_b32 s41, s41, 7
  s_add_u32 s41, s41, s39
  s_add_u32 s41, s41, {FL_PF}
  v_mov_b32 v2, s41
  v_mov_b32 v0, 1
  s_mov_b64 exec, 1
  buffer_store_byte v0, v2, {R(R_WS)}, 0 offen sc1
  s_mov_b64 exec, -1
{k.L('nopf2')}:""")
    kb.stamp(k, 36)
    if role == "kv" and 'nored' not in EXP:
        red_poll(k); red_issue(k); red_sum(k)
        if 'kflate' not in EXP:
            red_flag(k); kb.stamp(k, 38)
    k("  s_barrier")
    kb.stamp(k, 9)
    kb.stamp(k, 44, rt=True)
    k.lg = []
    for ks in range(2):
        for l in breads(0, ks): k.ds(l, ("r", 0, ks))
    def flagH2(k):
        k(f"  s_cmp_eq_u32 s37, 0\n  s_cbranch_scc1 {k.L('fh2_b')}")
        store_flag(k, 39, 0, f"  s_lshl_b32 s41, s36, 1\n  s_lshr_b32 s42, s38, 2\n  s_add_u32 s41, s41, s42\n  s_lshl_b32 s41, s41, 7\n  s_and_b32 s42, s38, 3\n  s_add_u32 s41, s41, s42\n  s_add_u32 s41, s41, {FL_H2}", "fh2")
        k(f"{k.L('fh2_b')}:")
    def flagO(k):
        k(f"""
  s_waitcnt vmcnt(0)
  s_lshl_b32 s41, s{S_T16}, 1
  s_lshr_b32 s42, s{S_JB}, 2
  s_add_u32 s41, s41, s42
  s_lshl_b32 s41, s41, 7
  s_and_b32 s42, s{S_JB}, 3
  s_add_u32 s41, s41, s42
  s_add_u32 s41, s41, {FL_O}
  v_mov_b32 v2, s41
  v_mov_b32 v0, 1
  s_mov_b64 exec, 1
  buffer_store_byte v0, v2, {R(R_WS)}, 0 offen sc1
  s_mov_b64 exec, -1""")
    for j in range(17):
        kw = {}
        if j == 0: kw = dict(post_barrier=op_q_issue)
        if j == 1:
            kw = dict(pre_barrier=f"  s_cmp_eq_u32 s37, 0\n  s_cbranch_scc1 {k.L('h2w')}\n  s_waitcnt vmcnt(6)\n{k.L('h2w')}:", post_barrier=flagH2)
        bstage(k, j, **kw)
        if j == P1_J:
            kb.stamp(k, 11); pause1(k); kb.stamp(k, 12)
        if j == P2_J:
            kb.stamp(k, 13); pause2(k); kb.stamp(k, 14)
        if role == "kv" and j == 0 and 'kflate' in EXP:
            red_flag(k); kb.stamp(k, 38)
        if j == OFLAG_J:
            flagO(k); kb.stamp(k, 39)
    bstage(k, 17, next_nks=2)
    k("  s_waitcnt lgkmcnt(0)")
    for ks in range(2):
        for m in bmfma(ks): k(m)
    kb.stamp(k, 10)
    k(f"""
  s_lshl_b32 s44, s39, 4
  v_add_u32 v52, s44, v16
  v_mul_u32_u24 v52, 160, v52
  v_lshl_add_u32 v52, v17, 3, v52
  v_add_u32 v52, {XT}, v52
  v_lshlrev_b32 v53, 3, v17
  v_add_u32 v53, {BT}, v53""")
    for cb in range(5):
        k(f"  ds_read_b64 v[{64+2*cb}:{65+2*cb}], v52 offset:{32*cb}\n  ds_read_b64 v[{76+2*cb}:{77+2*cb}], v53 offset:{32*cb}")
    for i in range(3):
        k(f"""
  v_add_u32 v{88+i}, {64*i}, v1
  v_mul_u32_u24 v91, 6554, v{88+i}
  v_lshrrev_b32 v91, 16, v91               ; row
  v_mul_u32_u24 v92, 10, v91
  v_sub_u32 v92, v{88+i}, v92              ; c
  s_lshl_b32 s44, s39, 4
  v_add_u32 v93, s44, v91
  v_mul_u32_u24 v{94+i}, 160, v93
  v_lshl_add_u32 v{94+i}, v92, 4, v{94+i}
  v_add_u32 v{94+i}, {XT}, v{94+i}
  s_lshl_b32 s44, s{S_T16}, 4
  v_add_u32 v91, s44, v91
  v_mul_u32_u24 v91, 1280, v91
  v_lshl_add_u32 v91, v92, 4, v91
  s_mul_i32 s44, s{S_JB}, 160
  v_add_u32 v{97+i}, s44, v91""")
    k(f"  v_mov_b32 v91, 0x7fff0000\n  v_cmp_gt_u32 vcc, 160, v90\n  v_cndmask_b32 v99, v91, v99, vcc\n  v_mov_b32 v91, {XT}\n  v_cndmask_b32 v96, v91, v96, vcc")
    k("  s_waitcnt lgkmcnt(0)")
    for cb in range(5):
        a = ACCB + 4*cb; x = 64 + 2*cb; b = 76 + 2*cb
        k(f"""
  v_lshlrev_b32 v52+0, 16, v{x}
  v_and_b32 v55, 0xffff0000, v{x}
  v_lshlrev_b32 v56, 16, v{x+1}
  v_and_b32 v57, 0xffff0000, v{x+1}
  v_lshlrev_b32 v58, 16, v{b}
  v_and_b32 v59, 0xffff0000, v{b}
  v_lshlrev_b32 v60, 16, v{b+1}
  v_and_b32 v61, 0xffff0000, v{b+1}
  v_pk_add_f32 v[54:55], v[54:55], v[58:59]
  v_pk_add_f32 v[56:57], v[56:57], v[60:61]
  v_pk_add_f32 v[{a}:{a+1}], v[{a}:{a+1}], v[54:55]
  v_pk_add_f32 v[{a+2}:{a+3}], v[{a+2}:{a+3}], v[56:57]
  v_cvt_pk_bf16_f32 v62, v{a}, v{a+1}
  v_cvt_pk_bf16_f32 v63, v{a+2}, v{a+3}
  ds_write_b64 v52, v[62:63] offset:{32*cb}""".replace("v52+0", "v54"))
    k("  s_waitcnt lgkmcnt(0)")
    for i in range(3): k(f"  ds_read_b128 v[{100+4*i}:{103+4*i}], v{94+i}")
    for i in range(3):
        k(f"  s_waitcnt lgkmcnt({2-i})\n  buffer_store_dwordx4 v[{100+4*i}:{103+4*i}], v{97+i}, {R(R_OUT)}, 0 offen {'nt' if 'outnt' in EXP else 'sc1' if 'outsc1' in EXP else ''}")
    if kb.PROF:
        k("  s_waitcnt vmcnt(0)")
        kb.stamp(k, 6, rt=True); kb.dump(k, S_WS)
    k("  s_endpgm")

def wfrag(i): return 112 + 4*i
OQ = 172; OP = 184; OPH = 160; OB = 244
def op_addr(k):
    k(f"""
  v_lshrrev_b32 v26, 2, v1
  v_and_b32 v26, 3, v26
  v_and_b32 v27, 3, v1
  v_lshlrev_b32 v28, 10, v17
  v_mul_u32_u24 v29, 40, v26
  v_add_u32 v28, v28, v29
  v_add_u32 v28, {WPB}, v28
  v_mov_b32 v29, {ZB}
  v_cmp_eq_u32 vcc, v27, v17
  v_cndmask_b32 v28, v29, v28, vcc
  v_mul_u32_u24 v30, {40*KVP}, v17
  v_mul_u32_u24 v31, {KVP}, v26
  v_add_u32 v30, v30, v31
  v_add_u32 v30, {KVB}, v30
  v_cndmask_b32 v30, v29, v30, vcc""")
QR1 = 21
def q_poll_issue(k):
    k(f"""
  s_lshr_b32 s41, s{S_I64}, 1
  s_lshl_b32 s41, s41, 7
  s_and_b32 s42, s{S_I64}, 1
  s_lshl_b32 s42, s42, 4
  s_add_u32 s41, s41, s42
  v_lshlrev_b32 v77, 2, v1
  v_min_u32 v77, 16, v77
  v_add_u32 v77, s41, v77
  v_add_u32 v78, {FL_Q}, v77
  s_lshr_b32 s41, s{S_I64}, 1
  s_lshl_b32 s41, s41, 7
  s_add_u32 s41, s41, {FL_H1 + 4}
  v_mov_b32 v77, s41
  v_cmp_gt_u32 vcc, 4, v1
  v_cndmask_b32 v77, v77, v78, vcc
  buffer_load_dword v76, v77, {R(R_WS)}, 0 offen sc1""")
def q_poll_check(k, lbl):
    k(f"""
  v_mov_b32 v78, 0x01000000
  v_mov_b32 v79, 0x01010101
  v_cmp_gt_u32 vcc, 4, v1
  v_cndmask_b32 v78, v78, v79, vcc
{k.L(lbl + '_t')}:
  v_and_b32 v79, v76, v78
  v_cmp_ne_u32 vcc, v79, v78
  s_cmp_eq_u64 vcc, 0
  s_cbranch_scc1 {k.L(lbl + '_ok')}
  s_sleep 2
  buffer_load_dword v76, v77, {R(R_WS)}, 0 offen sc1
  s_waitcnt vmcnt(0)
  s_branch {k.L(lbl + '_t')}
{k.L(lbl + '_ok')}:""")
def op_q_issue(k):
    k(f"""
  v_and_b32 v12, 15, v1                    ; n'
  v_lshrrev_b32 v13, 4, v1                 ; g
  v_mul_u32_u24 v14, 640, v13
  v_lshl_add_u32 v14, v12, 3, v14
  s_mul_i32 s58, s{S_T16}, 160
  s_mul_i32 s59, s{S_JB}, 20
  s_add_u32 s58, s58, s59
  s_lshl_b32 s58, s58, 7
  s_add_u32 s58, s58, {L.WS_Q}
  s_lshl_b32 s59, s{S_T16}, 4
  v_add_u32 v15, s59, v12
  v_lshlrev_b32 v15, 4, v15""")
    for g in range(5):
        k(f"  buffer_load_dwordx2 v[{OQ+2*g}:{OQ+2*g+1}], v14, {R(R_WS)}, s58 offen offset:{128*g} sc1")
    k(f"  buffer_load_dword v{QR1}, v15, {R(R_WS)}, 0 offen offset:{L.WS_STATS + 4} sc1")
def red_cond(k, lbl):
    k(f"  s_lshl_b32 s41, s37, 2\n  s_or_b32 s41, s41, s39\n  s_cmp_eq_u32 s41, 0\n  s_cbranch_scc0 {k.L(lbl)}")
def red_poll(k):
    red_cond(k, "rp_x")
    k(f"""
  s_lshl_b32 s41, s38, 11
  s_add_u32 s41, s41, {FL_PF}
  v_min_u32 v57, 15, v1
  v_lshlrev_b32 v57, 7, v57
  v_add_u32 v57, s41, v57
  buffer_load_dword v56, v57, {R(R_WS)}, 0 offen sc1
{k.L('rp_x')}:""")
RDR = [204 + 4*p for p in range(13)] + [12, 56, 60]
def red_issue(k):
    red_cond(k, "ri_x")
    k(f"""
  s_waitcnt vmcnt(0)
{k.L('ri_t')}:
  v_cmp_ne_u32 vcc, 0x01010101, v56
  s_cmp_eq_u64 vcc, 0
  s_cbranch_scc1 {k.L('ri_ok')}
  s_sleep 1
  buffer_load_dword v56, v57, {R(R_WS)}, 0 offen sc1
  s_waitcnt vmcnt(0)
  s_branch {k.L('ri_t')}
{k.L('ri_ok')}:""")
    kb.stamp(k, 37)
    k(f"""
  v_lshlrev_b32 v18, 4, v1
  v_mov_b32 v19, 0x7fff0000
  v_cmp_gt_u32 vcc, 60, v1
  v_cndmask_b32 v18, v19, v18, vcc
  s_lshl_b32 s41, s38, 4
  s_mul_i32 s41, s41, 15360
  s_mul_i32 s42, s36, 960
  s_add_u32 s41, s41, s42
  s_add_u32 s41, s41, {L.WS_KP}""")
    for p in range(16):
        k(f"  buffer_load_dwordx4 v[{RDR[p]}:{RDR[p]+3}], v18, {R(R_WS)}, s41 offen sc1\n  s_add_u32 s41, s41, 15360")
    k(f"{k.L('ri_x')}:")
def red_sum(k):
    red_cond(k, "rs_x")
    k("  s_waitcnt vmcnt(0)")
    step = 1
    while step < 16:
        for p in range(0, 16, 2*step):
            a, b = RDR[p], RDR[p + step]
            k(f"  v_pk_add_f32 v[{a}:{a+1}], v[{a}:{a+1}], v[{b}:{b+1}]\n  v_pk_add_f32 v[{a+2}:{a+3}], v[{a+2}:{a+3}], v[{b+2}:{b+3}]")
        step *= 2
    a = RDR[0]
    k(f"""
  v_cvt_pk_bf16_f32 v{a}, v{a}, v{a+1}
  v_cvt_pk_bf16_f32 v{a+1}, v{a+2}, v{a+3}
  v_lshlrev_b32 v18, 3, v1
  v_mov_b32 v19, 0x7fff0000
  v_cmp_gt_u32 vcc, 60, v1
  v_cndmask_b32 v18, v19, v18, vcc
  s_mul_i32 s41, s38, 7680
  s_mul_i32 s42, s36, 480
  s_add_u32 s41, s41, s42
  s_add_u32 s41, s41, {L.WS_KV}
  buffer_store_dwordx2 v[{a}:{a+1}], v18, {R(R_WS)}, s41 offen sc1
{k.L('rs_x')}:""")
def red_flag(k):
    red_cond(k, "rf_x")
    k(f"""
  s_waitcnt vmcnt({6 if 'kflate' in EXP else 0})
  s_lshl_b32 s41, s38, 2
  s_lshr_b32 s42, s36, 2
  s_add_u32 s41, s41, s42
  s_lshl_b32 s41, s41, 7
  s_and_b32 s42, s36, 3
  s_add_u32 s41, s41, s42
  s_add_u32 s41, s41, {FL_KF}
  v_mov_b32 v2, s41
  v_mov_b32 v0, 1
  s_mov_b64 exec, 1
  buffer_store_byte v0, v2, {R(R_WS)}, 0 offen sc1
  s_mov_b64 exec, -1
{k.L('rf_x')}:""")
def pause1(k):
    for b in range(5):
        for s_ in range(3):
            for t in range(2):
                reg = wfrag(b*3 + s_) + 2*t; d0 = 8*s_ + 4*t
                if d0 < 20: k.ds(f"  ds_read_b64_tr_b16 v[{reg}:{reg+1}], v28 offset:{d0*40 + 8*b}", "xw")
                else: k(f"  v_mov_b32 v{reg}, 0\n  v_mov_b32 v{reg+1}, 0")
    k(f"  v_mov_b32 v{OQ+10}, 0\n  v_mov_b32 v{OQ+11}, 0")
    k("  s_waitcnt vmcnt(0)")
    k.wait_ds("xw")
    for s_ in range(3):
        for b in range(5):
            c = "0" if s_ == 0 else f"v[{OP+4*b}:{OP+4*b+3}]"
            w = wfrag(b*3 + s_)
            k(f"  v_mfma_f32_16x16x32_bf16 v[{OP+4*b}:{OP+4*b+3}], v[{w}:{w+3}], v[{OQ+4*s_}:{OQ+4*s_+3}], {c}")
    softmax_pair(k, [OP + i for i in range(20)], QR1, 112, OPH, T=52)
def pause2(k):
    FA_, FB_ = 180, 112
    rounds = ([0, 1], [2, 3], [4, 5])
    OOx = 220
    def rd(ri):
        base = FA_ if ri % 2 == 0 else FB_
        for s_ in range(5):
            for bi, beta in enumerate(rounds[ri]):
                for t in range(2):
                    reg = base + (bi*5 + s_)*4 + 2*t
                    k.ds(f"  ds_read_b64_tr_b16 v[{reg}:{reg+1}], v30 offset:{(8*s_ + 4*t)*KVP + 8*beta}", ("xk", ri, s_))
    def mm(ri, nxt):
        base = FA_ if ri % 2 == 0 else FB_
        for s_ in range(5):
            k.wait_ds(("xk", ri, s_))
            for bi, beta in enumerate(rounds[ri]):
                c = "0" if s_ == 0 else f"v[{OOx+4*beta}:{OOx+4*beta+3}]"
                w = base + (bi*5 + s_)*4
                k(f"  v_mfma_f32_16x16x32_bf16 v[{OOx+4*beta}:{OOx+4*beta+3}], v[{w}:{w+3}], v[{OPH+4*s_}:{OPH+4*s_+3}], {c}")
            for _ in range(4):
                if nxt: k.ds(*nxt.pop(0))
    def rdl(ri):
        r = kb.Rec(k); out = []
        base = FA_ if ri % 2 == 0 else FB_
        for s_ in range(5):
            for bi, beta in enumerate(rounds[ri]):
                for t in range(2):
                    reg = base + (bi*5 + s_)*4 + 2*t
                    out.append((f"  ds_read_b64_tr_b16 v[{reg}:{reg+1}], v30 offset:{(8*s_ + 4*t)*KVP + 8*beta}", ("xk", ri, s_)))
        return out
    rd(0)
    mm(0, rdl(1)); mm(1, rdl(2)); mm(2, [])
    k(f"  v_add_f32 v52, {fl(1e-6)}, v{OOx+20}\n  v_rcp_f32 v52, v52\n  s_nop 0\n  v_mov_b32 v53, v52")
    for i in range(10): k(f"  v_pk_mul_f32 v[{OOx+2*i}:{OOx+2*i+1}], v[{OOx+2*i}:{OOx+2*i+1}], v[52:53]")
    for i in range(10): k(f"  v_cvt_pk_bf16_f32 v{OB+i}, v{OOx+2*i}, v{OOx+2*i+1}")
    k(f"""
  s_mul_i32 s58, s{S_T16}, 74
  s_lshr_b32 s59, s{S_JB}, 1
  s_mul_i32 s59, s59, 5
  s_add_u32 s58, s58, s59
  s_add_u32 s58, s58, 54
  s_lshl_b32 s58, s58, 10
  s_add_u32 s58, s58, {L.WS_HO}
  s_bitcmp1_b32 s{S_JB}, 0
  s_cbranch_scc1 {k.L('o_odd')}
  buffer_store_dwordx4 v[{OB}:{OB+3}], v22, {R(R_WS)}, s58 offen sc1
  buffer_store_dwordx4 v[{OB+4}:{OB+7}], v22, {R(R_WS)}, s58 offen offset:1024 sc1
  buffer_store_dwordx2 v[{OB+8}:{OB+9}], v22, {R(R_WS)}, s58 offen offset:2048 sc1
  s_branch {k.L('o_done')}
{k.L('o_odd')}:
  buffer_store_dwordx2 v[{OB}:{OB+1}], v22, {R(R_WS)}, s58 offen offset:2056 sc1
  buffer_store_dwordx4 v[{OB+2}:{OB+5}], v22, {R(R_WS)}, s58 offen offset:3072 sc1
  s_add_u32 s58, s58, 4096
  buffer_store_dwordx4 v[{OB+6}:{OB+9}], v22, {R(R_WS)}, s58 offen sc1
{k.L('o_done')}:""")
def kv_dma(k):
    for r in range(2):
        k.begin()
        k(f"""
  s_lshl_b32 s58, s39, 1
  s_add_u32 s58, s58, {r}
  s_lshl_b32 s59, s58, 10
  v_add_u32 v60, s59, v4
  v_mov_b32 v61, 0x7fff0000
  v_cmp_gt_u32 vcc, 7680, v60
  v_cndmask_b32 v60, v61, v60, vcc
  s_add_u32 m0, s59, {KVB}
  s_mul_i32 s58, s{S_JB}, 7680
  s_add_u32 s58, s58, {L.WS_KV}""")
        k.vmem(f"  buffer_load_dwordx4 v60, {R(R_WS)}, s58 offen sc1 lds", "kvd")
        k.end()

def loader_b_setup(k):
    decode_b(k)
    k(f"""
  v_lshlrev_b32 v4, 4, v1
  s_mul_i32 s44, s{S_JB}, {74*5*1024}
  s_mul_i32 s45, s39, {5*1024}
  s_add_u32 s44, s44, s45
  s_add_u32 s44, s44, {L.WS_W2}
  s_mul_i32 s46, s{S_T16}, {74*1024}
  s_add_u32 s46, s46, {L.WS_HO}""")
def gWP(lst):
    def mk(s_, cb):
        def f(k):
            k(f"  s_add_u32 s87, s44, {4*s_*5*1024 + cb*1024}")
            k.vmem(f"  buffer_load_dwordx4 v[{wpreg(s_, cb)}:{wpreg(s_, cb)+3}], v4, {R(R_WS)}, s87 offen sc1", ("WP", s_))
        return f
    return [mk(s_, cb) for (s_, cb) in lst]
NPF1 = int(os.environ.get('NPF1', 20))
WPL = [(s_, cb) for s_ in range(WP0, WP1 + 1) for cb in range(5)]
def loader_b(k, role):
    P = SCHED[role]; KVJ = P['KVJ']
    if 'noprioB' not in EXP: k("  s_setprio 2")
    k(f"""
  s_mul_i32 s47, s39, {5*1024}
  s_lshl_b32 s48, s39, 12
  s_add_u32 s48, s48, 20480
  v_add_u32 v5, s47, v4""")
    def gDW(j):
        slot = (j % 4)*SLOT
        def mk(cb):
            def f(k):
                if j == 18:
                    k(f"""  s_add_u32 s87, s47, {slot + cb*1024}
  s_cmp_lt_u32 s39, 2
  s_cselect_b32 m0, s87, {ZB}
  s_cselect_b32 s26, {L.WS_END}, 0
  s_add_u32 s87, s44, {4*j*5*1024 + cb*1024}""")
                else:
                    k(f"  s_add_u32 m0, s47, {slot + cb*1024}\n  s_add_u32 s87, s44, {4*j*5*1024 + cb*1024}")
                k.vmem(f"  buffer_load_dwordx4 v4, {R(R_WS)}, s87 offen sc1 lds", ("D", j))
                if j == 18: k(f"  s_mov_b32 s26, {L.WS_END}")
            return f
        return [mk(cb) for cb in range(5)]
    def gDA(j):
        nks = 4 if j < 18 else 2
        slot = (j % 4)*SLOT
        def mk(ks):
            def f(k):
                k(f"  s_add_u32 m0, s48, {slot + ks*1024}\n  s_add_u32 s87, s46, {(4*j + ks)*1024}")
                k.vmem(f"  buffer_load_dwordx4 v4, {R(R_WS)}, s87 offen sc1 lds", ("D", j))
            return f
        return [mk(ks) for ks in range(nks)]
    def gWW(j):
        slot = (j % 4)*SLOT
        def mk(cb):
            def f(k):
                if cb == 0: k.wait_vm(("WP", j))
                k(f"  ds_write_b128 v5, v[{wpreg(j, cb)}:{wpreg(j, cb)+3}] offset:{cb*1024}" if slot == 0 else
                  f"  ds_write_b128 v{6 + (j % 4) - 1}, v[{wpreg(j, cb)}:{wpreg(j, cb)+3}] offset:{cb*1024}")
            return f
        return [mk(cb) for cb in range(5)]
    for q in (1, 2, 3): k(f"  v_add_u32 v{5+q}, {q*SLOT}, v5")
    gDW0 = gDW
    def gDW(j): return gWW(j) if WP0 <= j <= WP1 else gDW0(j)
    def DW(j):
        for f in gDW(j): f(k)
    def DA(j):
        for f in gDA(j): f(k)
    iB = f"  s_lshr_b32 s41, s{S_I64}, 1\n  s_lshl_b32 s41, s41, 8\n"
    DW(0); DW(1)
    if role == "g": DW(2); DW(3)
    rest = gWP(WPL[12:])
    for n, f in enumerate(rest[:NPF1]):
        f(k)
        if n % 4 == 3: k(f"  s_waitcnt vmcnt(6)")
    k("  s_barrier")
    wphi_dma(k, f"  s_lshl_b32 s58, s{S_JB}, 2\n  s_add_u32 s58, s58, s39", WPB, False)
    k(f"""
  s_mov_b32 s{R_T+2}, 0
  s_and_b32 s58, s39, 1
  s_lshl_b32 s58, s58, 10
  s_add_u32 m0, s58, {ZB}""")
    k.vmem(f"  buffer_load_dwordx4 v40, {R(R_T)}, 0 offen lds", "side")
    def h1():
        poll_issue(k, 50, lines(50, iB + f"  s_add_u32 s41, s41, {FL_H1}", 2), "ph1", only0=False)
        poll_check(k, 50, "ph1", "ph1", only0=False, slp=2)
        DA(0); DA(1)
        if role == "g": DA(2); DA(3)
    if role == "g": h1()
    for n, f in enumerate(rest[NPF1:]):
        f(k)
        if n % 4 == 3: k(f"  s_waitcnt vmcnt(6)")
    k.wait_vm("side")
    k("  s_barrier")
    kb.stamp(k, 9)
    if role == "kv": h1()
    k.wait_vm(("D", 0))
    k("  s_barrier")
    kb.stamp(k, 10)
    poll_issue(k, 50, lines(50, f"  s_lshl_b32 s41, s{S_I64}, 9\n  s_add_u32 s41, s41, {FL_Q}", 4), "pq")
    if role == "kv": DA(2); DW(2)
    def res_dma(k):
        for r in range(3):
            k.begin()
            k(f"""
  s_add_u32 s58, s39, {4*r}
  s_lshl_b32 s59, s58, 6
  v_add_u32 v60, s59, v1
  v_mul_u32_u24 v61, 6554, v60
  v_lshrrev_b32 v61, 16, v61
  v_mul_u32_u24 v62, 10, v61
  v_sub_u32 v62, v60, v62
  s_lshl_b32 s59, s{S_I64}, 6
  v_add_u32 v61, s59, v61
  v_mul_u32_u24 v61, 1280, v61
  v_lshl_add_u32 v61, v62, 4, v61
  s_mul_i32 s59, s{S_JB}, 160
  v_add_u32 v61, s59, v61
  s_lshl_b32 s59, s58, 10
  s_add_u32 s59, s59, {XT}
  s_cmp_lt_u32 s58, 10
  s_cselect_b32 s59, s59, {ZB}
  s_cselect_b32 s58, 0, 0x7fff0000
  v_or_b32 v61, s58, v61
  s_mov_b32 m0, s59""")
            k.vmem(f"  buffer_load_dwordx4 v61, {R(R_X)}, 0 offen lds", ("D", 18))
            k.end()
        k.begin()
        k(f"""
  s_mul_i32 s58, s{S_JB}, 160
  s_add_u32 s{R_T}, s{S_B2}, s58
  s_addc_u32 s{R_T+1}, s{S_B2+1}, 0
  s_and_b32 s{R_T+1}, s{R_T+1}, 0xffff
  s_mov_b32 s{R_T+2}, 160
  s_mov_b32 s{R_T+3}, 0x20000
  s_mov_b32 m0, {BT}""")
        k.vmem(f"  buffer_load_dwordx4 v4, {R(R_T)}, 0 offen lds", ("D", 18))
        k.end()
    for j in range(NSTB - 1):
        if j == 12:
            poll_issue(k, 50, lines(50, f"  s_lshl_b32 s41, s{S_T16}, 8\n  s_add_u32 s41, s41, {FL_O}", 2), "po", only0=False)
            if 'nochain' not in EXP: poll_check(k, 50, "po", "po", only0=False, slp=1)
            kb.stamp(k, 63)
            for q in (13, 14, 15): DA(q)
            k.wait_vm(("D", 13)) if False else None
            idx = [i for i, t in enumerate(k.vm) if t == ("D", 13)][-1]
            k(f"  s_waitcnt vmcnt({len(k.vm) - 1 - idx})"); k.vm = k.vm[idx + 1:]
        else:
            k.wait_vm(("D", j + 1))
        if j == 0: poll_check(k, 50, "pq", "pq", slp=1)
        if j == 3: poll_check(k, 50, "ph2", "ph2", slp=1)
        if j == KVJ:
            if 'nochain' not in EXP: poll_check(k, 56, "pkv", "pkv", slp=1)
        if j == KVJ + 1: k.wait_vm("kvd")
        k("  s_waitcnt lgkmcnt(0)")
        k("  s_barrier")
        groups = []; fns = []
        if 13 <= j + 4 <= 15: groups = gDW(j + 4)
        elif j + 4 < NSTB: groups = gDW(j + 4) + gDA(j + 4)
        if j == 0 and role == "kv": groups = gDW(3) + gDA(3) + groups
        if j == 2: fns.append(lambda k: poll_issue(k, 50, lines(50, iB + f"  s_add_u32 s41, s41, {FL_H2}", 2), "ph2"))
        if j == KVJ - 1: fns.append(lambda k: poll_issue(k, 56, lines(56, f"  s_lshl_b32 s41, s{S_JB}, 9\n  s_add_u32 s41, s41, {FL_KF}", 4), "pkv"))
        if j == 14: fns.append(res_dma)
        if j == KVJ: kv_dma(k)
        kb.interleave(k, groups, rec(k, fns))
        kb.stamp(k, 40 + j)
    kb.stamp(k, 6, rt=True)
    kb.dump(k, S_WS)
    k("  s_endpgm")

def build(name):
    k = K(name)
    k(f"""
  s_cmp_ge_u32 s2, 256
  s_cbranch_scc1 {k.L('end')}
  s_load_dwordx4 s[4:7], s[0:1], 0
  s_load_dwordx2 s[14:15], s[0:1], 88
  s_load_dwordx2 s[10:11], s[0:1], 40
  s_getpc_b64 s[58:59]
{k.L('pc0')}:
  v_lshrrev_b32 v2, 6, v0
  v_and_b32 v1, 63, v0
  v_lshlrev_b32 v4, {11 if 'pf16' in EXP else 10}, v2
  v_lshl_add_u32 v4, v1, 7, v4
  v_cmp_gt_u32 vcc, {16 if 'pf16' in EXP else 8}, v1
  v_readfirstlane_b32 s3, v2
  s_and_saveexec_b64 s[56:57], vcc
  {'s_nop 0' if 'nopf0' in EXP else 'global_load_dword v127, v4, s[58:59]'}
  s_mov_b64 exec, s[56:57]
  s_load_dwordx2 s[8:9], s[0:1], 16
  s_load_dwordx2 s[12:13], s[0:1], 48
  s_load_dwordx2 s[{S_WO}:{S_WO+1}], s[0:1], 24
  s_load_dwordx2 s[{S_W2}:{S_W2+1}], s[0:1], 56
  s_load_dwordx2 s[{S_B2}:{S_B2+1}], s[0:1], 64
  s_load_dwordx2 s[{S_OUT}:{S_OUT+1}], s[0:1], 72
  s_load_dwordx2 s[{S_DBG}:{S_DBG+1}], s[0:1], 80
  s_lshr_b32 s40, s2, 3
  s_lshr_b32 s36, s40, 2
  s_and_b32 s41, s2, 1
  s_lshl_b32 s41, s41, 3
  s_add_u32 s36, s36, s41
  s_and_b32 s41, s40, 3
  s_lshr_b32 s37, s41, 1
  s_and_b32 s41, s41, 1
  s_and_b32 s38, s2, 7
  s_lshr_b32 s38, s38, 1
  s_lshl_b32 s38, s38, 1
  s_add_u32 s38, s38, s41
  s_and_b32 s39, s3, 3
  s_waitcnt lgkmcnt(0)""")
    srd(k, R_X, S_X, 2621440)
    srd(k, R_WS, S_WS, L.WS_END)
    srd(k, R_WQ, S_WQ, 2457600)
    srd(k, R_W1, S_W1, 2211840)
    k(f"  s_cmp_lt_u32 s3, 4\n  s_cbranch_scc1 {k.L('compute')}")
    k.vm = []
    kb.stamp(k, 0, rt=True)
    loader_a_start(k)
    srd(k, R_B, S_B1, 3456)
    k(f"  s_branch {k.L('loader')}")
    vm_loader = list(k.vm)
    k.label("compute")
    srd(k, R_OUT, S_OUT, 2621440)
    k.vm = []
    compute_a(k)
    k(f"  s_cmp_eq_u32 s37, 0\n  s_cbranch_scc1 {k.L('cb_kv')}")
    base = k.name
    k.lname = base + "_g"; compute_b(k, "g")
    k.lname = base; k.label("cb_kv")
    k.lname = base + "_k"; compute_b(k, "kv")
    k.lname = base
    k.label("loader")
    k.vm = vm_loader
    loader_a(k)
    k(f"  s_cmp_eq_u32 s37, 0\n  s_cbranch_scc1 {k.L('lb_kv')}")
    vm0 = list(k.vm)
    k.lname = base + "_g"; loader_b(k, "g")
    k.lname = base; k.label("lb_kv")
    k.vm = list(vm0)
    k.lname = base + "_k"; loader_b(k, "kv")
    k.lname = base
    k(f"{k.L('end')}:\n  s_endpgm")
    k(f"{k.L('codeend')}:")
    rep = []
    t = k.text(rep)
    return dict(name=name, body=t, vgpr=256, sgpr=102, accum=256, maxwg=512), rep

if __name__ == "__main__":
    import asmlib, sys
    if len(sys.argv) > 1 and sys.argv[1] in ("prof", "coarse", "mini"): kb.PROF = True
    if len(sys.argv) > 1 and sys.argv[1] == "mini": kb.MINI = True
    if len(sys.argv) > 1 and sys.argv[1] == "coarse": kb.FINE = False
    kf, rep = build("kf_kernel")
    print("nops inserted:", len(rep))
    asmlib.build("kfp" if kb.PROF else "kft", [kf])
    print("ok")
```

```python
import re

TRANS = ("v_exp_f32", "v_log_f32", "v_rcp_f32", "v_rsq_f32", "v_sqrt_f32", "v_sin_f32", "v_cos_f32")

def regs_of(tok):
    tok = tok.strip()
    neg = tok.lstrip("-")
    if neg.startswith("abs(") or neg.startswith("|"):
        neg = neg.replace("abs(", "").replace(")", "").replace("|", "")
    tok = neg
    m = re.fullmatch(r"([vas])\[(\d+):(\d+)\]", tok)
    if m:
        return [(m.group(1), i) for i in range(int(m.group(2)), int(m.group(3)) + 1)]
    m = re.fullmatch(r"([vas])(\d+)", tok)
    if m:
        return [(m.group(1), int(m.group(2)))]
    if tok == "vcc":
        return [("s", "vcc")]
    if tok in ("vcc_lo", "vcc_hi"):
        return [("s", "vcc")]
    if tok == "exec":
        return [("s", "exec")]
    if tok == "m0":
        return [("s", "m0")]
    return []

class Ins:
    __slots__ = ("text", "op", "defs", "uses", "cls", "srcC", "passes", "ab", "stdata", "dpp")
    def __init__(self, text):
        self.text = text
        t = text.split(";")[0].strip()
        self.op = None; self.defs = []; self.uses = []; self.cls = "other"; self.srcC = []; self.passes = 0; self.ab = []
        self.stdata = []; self.dpp = False
        if not t or t.endswith(":") or t.startswith("."):
            self.cls = "meta"; return
        parts = t.split(None, 1)
        op = parts[0]; self.op = op
        rest = parts[1] if len(parts) > 1 else ""
        ops = []; cur = ""; depth = 0
        for ch in rest:
            if ch == "[": depth += 1
            if ch == "]": depth -= 1
            if ch == "," and depth == 0:
                ops.append(cur); cur = ""
            else:
                cur += ch
        if cur.strip(): ops.append(cur)
        mods = ""
        if ops:
            l = ops[-1].strip().split(None, 1)
            ops[-1] = l[0]
            if len(l) > 1: mods = l[1]
        ops = [o.strip() for o in ops]
        R = [regs_of(o) for o in ops]
        if op.startswith("v_mfma"):
            self.cls = "mfma"
            self.defs = R[0]; self.ab = R[1] + R[2]; self.srcC = R[3]; self.uses = self.ab + self.srcC
            self.passes = 8 if "32x32" in op else 4
        elif op.startswith("v_"):
            self.cls = "trans" if op.replace("_e32", "").replace("_e64", "") in TRANS else "valu"
            self.dpp = ("_dpp" in op) or ("row_" in mods) or ("quad_perm" in mods)
            if op.startswith("v_cmp"):
                self.defs = R[0]; self.uses = sum(R[1:], [])
            elif op.startswith("v_readfirstlane") or op.startswith("v_readlane"):
                self.cls = "valu"; self.defs = R[0]; self.uses = sum(R[1:], [])
            elif op.startswith("v_permlane"):
                self.defs = R[0] + R[1]; self.uses = R[0] + R[1]
            elif "_co_" in op or op.startswith("v_div_scale") or op.startswith("v_mad_u64"):
                self.defs = R[0] + R[1]; self.uses = sum(R[2:], [])
            else:
                self.defs = R[0]; self.uses = sum(R[1:], [])
                if op.startswith("v_fmac") or op.startswith("v_writelane") or op.startswith("v_dot2c") or op.startswith("v_pk_fmac"):
                    self.uses = self.uses + R[0]
                if op.startswith("v_cndmask") and len(ops) == 3:
                    self.uses = self.uses + [("s", "vcc")]
        elif op.startswith("ds_"):
            self.cls = "ds"
            if op.startswith("ds_read") or op.startswith("ds_swizzle") or op.startswith("ds_bpermute") or op.startswith("ds_permute"):
                self.defs = R[0]; self.uses = sum(R[1:], [])
            else:
                self.uses = sum(R, [])
        elif op.startswith("buffer_") or op.startswith("global_") or op.startswith("flat_"):
            self.cls = "vmem"
            islds = " lds" in (" " + mods) or "_lds_" in op
            if op in ("buffer_wbl2", "buffer_inv"):
                pass
            elif "load" in op and not islds:
                self.defs = R[0]; self.uses = sum(R[1:], [])
            elif "load" in op:
                self.uses = sum(R, []) + [("s", "m0")]
            elif op.startswith("buffer_store") or op.startswith("buffer_atomic"):
                self.uses = sum(R, [])
                if "x4" in op or "x3" in op: self.stdata = R[0]
            else:
                self.uses = sum(R, [])
                if "x4" in op or "x3" in op: self.stdata = R[1]
        elif op.startswith("s_"):
            self.cls = "salu"
            if op in ("s_nop", "s_waitcnt", "s_barrier", "s_endpgm", "s_sleep", "s_setprio", "s_branch") or op.startswith("s_cbranch"):
                self.cls = "sctl"
            elif op.startswith("s_cmp") or op.startswith("s_bitcmp"):
                self.uses = sum(R, [])
            elif op.startswith("s_load") or op.startswith("s_memtime") or op.startswith("s_memrealtime"):
                self.cls = "smem"; self.defs = R[0]; self.uses = sum(R[1:], [])
            else:
                self.defs = R[0]; self.uses = sum(R[1:], [])
                if "saveexec" in op:
                    self.defs = self.defs + [("s", "exec")]
    def states(self):
        if self.cls == "meta": return 0
        if self.op == "s_nop":
            return int(self.text.split(";")[0].split()[1], 0) + 1
        return 1

def isv(r): return r[0] in ("v", "a")

def need(prev, cur):
    n = 0
    pd = set(prev.defs); cu = set(cur.uses); cd = set(cur.defs)
    pv = {r for r in pd if isv(r)}; ps = {r for r in pd if r[0] == "s"}
    if prev.cls in ("valu", "trans"):
        if cur.cls == "mfma" and pv & cu: n = max(n, 2)
        if prev.cls == "trans" and cur.cls in ("valu", "mfma") and pv & cu: n = max(n, 1)
        if prev.cls == "trans" and cur.cls in ("ds", "vmem") and pv & cu: n = max(n, 1)
        if cur.cls in ("valu", "trans"):
            if cur.op.startswith("v_readlane") or cur.op.startswith("v_readfirstlane"):
                if pv & cu: n = max(n, 1)
            if cur.op.startswith("v_permlane") and pv & cu: n = max(n, 2)
            if cur.dpp and pv & cu: n = max(n, 2)
            if ps & cu:
                n = max(n, 4 if (cur.op.startswith("v_readlane") or cur.op.startswith("v_writelane")) else 2)
        if cur.cls == "vmem" and ps & cu: n = max(n, 5)
        if cur.cls in ("salu", "smem", "sctl") and ps & cu: n = max(n, 1)
    if prev.cls == "mfma":
        big = prev.passes == 8
        if cur.cls == "mfma":
            if pv & set(cur.ab): n = max(n, 12 if big else 8)
            if pv & set(cur.srcC):
                if not (set(prev.defs) == set(cur.srcC) and prev.passes == cur.passes):
                    n = max(n, 10 if big else 6)
            if (pv & cd) and not (pv & set(cur.srcC)): n = max(n, 10 if big else 6)
        elif cur.cls in ("valu", "trans", "ds", "vmem"):
            if pv & (cu | cd): n = max(n, 12 if big else 8)
        if cur.cls in ("valu", "trans") and set(prev.srcC) & cd: n = max(n, 7 if big else 3)
    if prev.cls == "vmem" and prev.stdata and cur.cls in ("valu", "trans", "mfma") and set(prev.stdata) & cd:
        n = max(n, 2)
    if prev.cls == "salu" and ("s", "m0") in pd and cur.cls == "vmem" and ("s", "m0") in cu: n = max(n, 1)
    return n

def fix_hazards(lines, window=24, report=None):
    out = []
    added = 0
    for l in lines:
        for sub in l.split("\n"):
            cur = Ins(sub)
            if cur.cls != "meta":
                reqd = 0
                dist = 0
                for p in reversed(out):
                    if p.cls == "meta": continue
                    nd = need(p, cur)
                    if nd > dist: reqd = max(reqd, nd - dist)
                    dist += p.states()
                    if dist >= window: break
                while reqd > 0:
                    k = min(reqd, 16)
                    out.append(Ins(f"  s_nop {k-1}")); added += 1
                    if report is not None: report.append((k, sub))
                    reqd -= k
            out.append(cur)
    return [i.text for i in out], added

class K:
    def __init__(self, name):
        self.name = name
        self.lines = []
        self.vm = []
        self.lg = []
    def __call__(self, s):
        for l in s.strip("\n").split("\n"):
            self.lines.append(l)
    def L(self, n): return f"L_{getattr(self, 'lname', None) or self.name}_{n}"
    def label(self, n): self.lines.append(self.L(n) + ":")
    def vmem(self, s, tag=None):
        self(s); self.vm.append(tag)
    def wait_vm(self, tag, extra=""):
        idx = [i for i, t in enumerate(self.vm) if t == tag]
        if not idx: return
        n = len(self.vm) - 1 - idx[-1]
        n = min(n, 63)
        self(f"  s_waitcnt vmcnt({n}){extra}")
        self.vm = self.vm[len(self.vm) - n:] if n else []
    def note_vm(self, tags): self.vm += list(tags)
    def ds(self, s, tag=None):
        self(s); self.lg.append(tag)
    def wait_ds(self, tag):
        idx = [i for i, t in enumerate(self.lg) if t == tag]
        if not idx: return
        n = min(15, len(self.lg) - 1 - idx[-1])
        self(f"  s_waitcnt lgkmcnt({n})")
        self.lg = self.lg[len(self.lg) - n:] if n else []
    def wait_ds_all(self):
        self("  s_waitcnt lgkmcnt(0)"); self.lg = []
    def begin(self): pass
    def end(self): pass
    def wait_vm_all(self):
        self("  s_waitcnt vmcnt(0)"); self.vm = []
    def text(self, report=None):
        ls, added = fix_hazards(self.lines, report=report)
        return "\n".join(ls) + "\n"

PROF = False
PROF_OFF = 0x2000000
FINE = True
MINI = False
def stamp(k, i, rt=False):
    if not PROF: return
    if MINI and i not in (0, 6): return
    if not FINE and i >= 11 and i not in (11, 12, 13, 14, 15, 58, 59, 60, 61, 62, 36, 37, 38, 39, 63, 57, 56, 40, 42, 44): return
    if i == 0: k("  v_mov_b32 v3, 0")
    k(f"""
  s_memtime s[70:71]
  s_waitcnt lgkmcnt(0)
  v_writelane_b32 v3, s70, {i}""")
    if rt:
        k(f"""
  s_memrealtime s[70:71]
  s_waitcnt lgkmcnt(0)
  v_writelane_b32 v3, s70, {i+1}""")
DBGDUMP = False
def dump(k, wsptr_lo, kidx=0):
    if PROF and DBGDUMP:
        global _DD
        _DD = globals().get("_DD", 0) + 1
        ddx = "dd_x%d" % _DD
        k(f"""
  s_cmp_eq_u32 s3, 0
  s_cbranch_scc0 {k.L(ddx)}
  s_cmp_eq_u32 s2, 1
  s_cselect_b32 s74, 1, 0
  s_cmp_eq_u32 s2, 17
  s_cselect_b32 s74, 8, s74
  s_cmp_eq_u32 s74, 0
  s_cbranch_scc1 {k.L(ddx)}
  v_readlane_b32 s72, v3, 0""")
        for n, lane in enumerate((3, 4, 5, 8, 9, 10, 6)):
            k(f"""
  v_readlane_b32 s73, v3, {lane}
  s_sub_u32 s73, s73, s72
  s_add_u32 s75, s74, {n}
  s_lshl_b32 s75, s75, 2
  v_mov_b32 v4, s75
  v_mov_b32 v5, s73
  s_mov_b64 exec, 1
  global_store_dword v4, v5, s[84:85]
  s_mov_b64 exec, -1""")
        k(f"{k.L(ddx)}:")
        return
    if not PROF: return
    k(f"""
  s_add_u32 s72, s{wsptr_lo}, {PROF_OFF + kidx*256*8*256}
  s_addc_u32 s73, s{wsptr_lo+1}, 0
  s_lshl_b32 s74, s2, 3
  s_add_u32 s74, s74, s3
  s_lshl_b32 s74, s74, 8
  v_lshlrev_b32 v2, 2, v1
  v_add_u32 v2, s74, v2
  global_store_dword v2, v3, s[72:73]""")

class Rec:
    def __init__(self, k):
        self.k = k; self.name = k.name; self.items = []; self.grp = None; self.vm = []
    def L(self, n): return self.k.L(n)
    def _add(self, it):
        if self.grp is not None: self.grp.append(it)
        else: self.items.append([it])
    def __call__(self, s):
        ls = [l for l in s.strip("\n").split("\n")]
        if self.grp is None and not any(l.strip().endswith(":") or "branch" in l or "exec" in l or "vcc" in l or "s_cmp" in l or "s_csel" in l or "s_cmov" in l or "m0" in l or "s_addc" in l or "s_bitcmp" in l for l in ls):
            for l in ls: self.items.append([("t", l)])
        else:
            self._add(("t", s))
    def label(self, n): self._add(("t", self.L(n) + ":"))
    def vmem(self, s, tag=None): self._add(("v", s, tag))
    def wait_vm(self, tag, extra=""): self._add(("w", tag, extra))
    def note_vm(self, tags): self._add(("n", tags))
    def ds(self, s, tag=None): self._add(("d", s, tag))
    def wait_ds(self, tag): self._add(("wd", tag))
    def begin(self): self.grp = []
    def end(self):
        g = self.grp; self.grp = None; self.items.append(g)
def replay(k, grp):
    for it in grp:
        if it[0] == "t": k(it[1])
        elif it[0] == "v": k.vmem(it[1], it[2])
        elif it[0] == "n": k.note_vm(it[1])
        elif it[0] == "d": k.ds(it[1], it[2])
        elif it[0] == "wd": k.wait_ds(it[1])
        else: k.wait_vm(it[1], it[2])
def interleave(k, main_groups, rec_items, lead=0):
    n = len(main_groups)
    items = list(rec_items)
    if n == 0:
        for g in items: replay(k, g)
        return
    per = (len(items) + n - 1)//n
    for i, m in enumerate(main_groups):
        m(k)
        for g in items[i*per:(i+1)*per]: replay(k, g)
```

```python
from kb import K
import kb, os
import layout as L

LOG2E = 1.4426950408889634
C0 = -2.0*0.7978845608028654*LOG2E
C1 = C0*0.044715
def fl(x):
    import struct
    return "0x%08x" % struct.unpack("<I", struct.pack("<f", x))[0]

XR = 0; WR = 49152; SCR = 114688; TT = 147456; ST = 151552; WP = 153600; ZR = 157696
PHI = 73728; PHI_P = 336; VV = PHI + 43008; VV_P = 208; KPS = (32768 if int(os.environ.get('TP', 0)) else 20480)
SLOT = 36864; WPB = 147456; KVB = 151552; KVP = 48; ZB = 159232
LDS_BYTES = 163840
NSTB = 19
WP0, WP1 = 4, int(os.environ.get('WP1', 12))
def wpreg(s_, cb): return 64 + (s_ - WP0)*20 + 4*cb
SCHED = {
    "kv": dict(P1_J=1, RED_J=None, KVJ=int(os.environ.get("KVJ_KV", 4)), OFLAG_D=2),
    "g":  dict(P1_J=2, RED_J=int(os.environ.get("RED_J", 1)), KVJ=int(os.environ.get("KVJ_G", 6)), OFLAG_D=2),
}
FL = L.WS_FLAGS
FL_F2 = FL; FL_H1 = FL + 16*128; FL_H2 = FL + 48*128; FL_Q = FL + 80*128; FL_PF = FL + 208*128; FL_KF = FL + 336*128; FL_O = FL + 368*128
NFL = 624

S_X, S_WQ, S_WPHI, S_W1, S_B1, S_WS = 4, 6, 8, 10, 12, 14
S_WO, S_W2, S_B2, S_OUT, S_DBG = 76, 78, 80, 82, 84
R_X, R_W, R_WS, R_B, R_T, R_OUT, R_WQ, R_W1, R_W2, R_WO = 16, 20, 24, 28, 32, 60, 64, 88, 92, 96
S_I64, S_JB, S_T16 = 68, 69, 86

def srd(k, s, lo, size):
    k(f"""
  s_mov_b32 s{s}, s{lo}
  s_and_b32 s{s+1}, s{lo+1}, 0xffff
  s_mov_b32 s{s+2}, {size}
  s_mov_b32 s{s+3}, 0x20000""")
def R(s): return f"s[{s}:{s+3}]"

def job_ids(k):
    k(f"""
  s_lshl_b32 s40, s2, 2
  s_add_u32 s40, s40, s39                    ; gw
  s_lshl_b32 s41, s36, 3
  s_add_u32 s41, s41, s38
  s_lshl_b32 s41, s41, 2
  s_add_u32 s41, s41, s39                    ; u = 4 (8 i + role) + w
  s_add_u32 s42, s41, 512
  s_cmp_eq_u32 s37, 1
  s_cselect_b32 s50, s41, s42
  s_cselect_b32 s51, s41, -1
  s_cselect_b32 s49, s42, -1
  s_cmp_lt_u32 s50, 570
  s_cselect_b32 s50, s50, -1
  s_cmp_lt_u32 s49, 740
  s_cselect_b32 s49, s49, -1
  s_lshl_b32 s52, s39, 13
  s_add_u32 s52, s52, {SCR}
  s_lshl_b32 s87, s39, 12
  s_add_u32 s87, s87, {SCR2}
  s_add_u32 s48, s87, 16384""")

V_ST = 36
def stats_issue(k):
    v = V_ST
    k(f"""
  v_lshrrev_b32 v{v}, 5, v1                  ; hh
  v_and_b32 v{v+1}, 31, v1                   ; n
  s_lshl_b32 s41, s40, 1
  v_add_u32 v{v+2}, s41, v{v}                ; token
  v_mul_u32_u24 v{v+3}, 1280, v{v+2}
  v_lshl_add_u32 v{v+3}, v{v+1}, 3, v{v+3}""")
    for r in range(5):
        k.vmem(f"  buffer_load_dwordx2 v[{v+4+2*r}:{v+5+2*r}], v{v+3}, {R(R_X)}, 0 offen offset:{256*r}", "st")
def stats_a1(k):
    v = V_ST; U = v + 16
    k.wait_vm("st")
    for d in range(10):
        k(f"  v_lshlrev_b32 v{U+2*d}, 16, v{v+4+d}\n  v_and_b32 v{U+2*d+1}, 0xffff0000, v{v+4+d}")
def stats_a2(k):
    v = V_ST; U = v + 16; S = v + 36; T = v + 37
    k(f"  v_add_f32 v{S}, v{U}, v{U+1}\n  v_add_f32 v{T}, v{U+2}, v{U+3}")
    for i in range(4, 20, 2):
        k(f"  v_add_f32 v{S}, v{S}, v{U+i}\n  v_add_f32 v{T}, v{T}, v{U+i+1}")
    k(f"  v_add_f32 v{S}, v{S}, v{T}")
def red32(k, S, T):
    for r in (8, 4, 2, 1):
        k(f"  v_add_f32_dpp v{S}, v{S}, v{S} row_ror:{r} row_mask:0xf bank_mask:0xf")
    k(f"  ds_swizzle_b32 v{T}, v{S} offset:0x401F\n  s_waitcnt lgkmcnt(0)\n  v_add_f32 v{S}, v{S}, v{T}")
def stats_b(k):
    v = V_ST; U = v + 16; S = v + 36; T = v + 37; M = v + 38
    red32(k, S, T)
    k(f"  v_mul_f32 v{M}, {1.0/640.0!r}, v{S}")
    for i in range(20): k(f"  v_sub_f32 v{U+i}, v{U+i}, v{M}")
def stats_c(k):
    v = V_ST; U = v + 16; S = v + 36; T = v + 37
    k(f"  v_mul_f32 v{S}, v{U}, v{U}\n  v_mul_f32 v{T}, v{U+1}, v{U+1}")
    for i in range(2, 20, 2):
        k(f"  v_fmac_f32 v{S}, v{U+i}, v{U+i}\n  v_fmac_f32 v{T}, v{U+i+1}, v{U+i+1}")
    k(f"  v_add_f32 v{S}, v{S}, v{T}")
def stats_d(k):
    v = V_ST; U = v + 16; S = v + 36; T = v + 37; M = v + 38; O = v + 40
    red32(k, S, T)
    k(f"""
  v_mul_f32 v{S}, {1.0/640.0!r}, v{S}
  v_add_f32 v{T}, 0x3727c5ac, v{S}
  v_rsq_f32 v{O+1}, v{T}
  v_mov_b32 v{O}, v{M}
  v_mul_f32 v{T}, v{O+1}, v{O+1}
  v_mul_f32 v{T}, v{T}, v{S}
  v_add_f32 v{T}, 0x3727c5ac, v{T}
  v_rsq_f32 v{T}, v{T}
  v_mov_b32 v{O+3}, 0
  v_mul_f32 v{O+2}, v{O+1}, v{T}
  v_lshlrev_b32 v{v+3}, 4, v{v+2}
  v_add_u32 v{v+3}, {L.WS_STATS}, v{v+3}
  v_cmp_eq_u32 vcc, 0, v{v+1}
  v_mov_b32 v{T}, 0x7fff0000
  v_cndmask_b32 v{v+3}, v{T}, v{v+3}, vcc""")
    if 'nost' not in EXP: k.vmem(f"  buffer_store_dwordx4 v[{O}:{O+3}], v{v+3}, {R(R_WS)}, 0 offen sc1", "jst")

V_CS = 176
V_CSI = 100
def cs_issue(k):
    v = V_CSI; t = 41
    k(f"""
  s_cmp_eq_u32 s50, -1
  s_cselect_b32 s53, 0, s50
  s_mul_i32 s{t}, s53, 6554
  s_lshr_b32 s{t}, s{t}, 16                  ; u
  s_mul_i32 s{t+1}, s{t}, 10
  s_sub_u32 s{t+1}, s53, s{t+1}              ; kappa
  s_mov_b32 s54, s{t}
  s_mov_b32 s55, s{t+1}
  s_cmp_lt_u32 s{t}, 30
  s_cselect_b32 s{R_T}, s{R_WQ}, s{R_W1}
  s_cselect_b32 s{R_T+1}, s{R_WQ+1}, s{R_W1+1}
  s_cselect_b32 s{R_T+2}, s{R_WQ+2}, s{R_W1+2}
  s_mov_b32 s{R_T+3}, 0x20000
  s_mov_b32 s{t+2}, 3456
  s_cmov_b32 s{t+2}, 3840
  s_cselect_b32 s{t+3}, 0, 30
  s_sub_u32 s{t+3}, s{t}, s{t+3}
  s_lshl_b32 s{t+3}, s{t+3}, 7
  s_mul_i32 s{t+4}, s{t+1}, s{t+2}
  s_lshl_b32 s{t+4}, s{t+4}, 6
  s_add_u32 s{t+4}, s{t+4}, s{t+3}           ; soffset
  s_lshl_b32 s{t+5}, s{t+2}, 3
  s_cmp_eq_u32 s50, -1
  s_cselect_b32 s{R_T+2}, 0, s{R_T+2}
  v_lshrrev_b32 v{v}, 3, v1
  v_lshrrev_b32 v{v+1}, 1, v{v}
  v_and_b32 v{v+1}, 1, v{v+1}
  v_lshlrev_b32 v{v+1}, 2, v{v+1}
  v_and_b32 v{v+2}, 7, v1
  v_xor_b32 v{v+2}, v{v+2}, v{v+1}
  v_mul_lo_u32 v{v+3}, v{v}, s{t+2}
  v_lshl_add_u32 v{v+3}, v{v+2}, 4, v{v+3}""")
    for i in range(8):
        k.begin()
        k(f"  s_add_u32 m0, s52, {i*1024}")
        k.vmem(f"  buffer_load_dwordx4 v{v+3}, {R(R_T)}, s{t+4} offen lds", "cs")
        k.end()
        if i < 7: k(f"  s_add_u32 s{t+4}, s{t+4}, s{t+5}")
def cs_a(k):
    v = V_CS
    k(f"""
  v_lshrrev_b32 v{v}, 4, v1
  v_lshrrev_b32 v{v+1}, 2, v1
  v_and_b32 v{v+1}, 3, v{v+1}
  v_and_b32 v{v+2}, 3, v1
  v_lshrrev_b32 v{v+4}, 1, v{v}
  v_lshl_add_u32 v{v+4}, v{v+4}, 3, v{v+1}
  v_lshlrev_b32 v{v+4}, 7, v{v+4}
  v_and_b32 v{v+5}, 1, v{v}
  v_lshlrev_b32 v{v+5}, 1, v{v+5}
  v_lshrrev_b32 v{v+6}, 1, v{v+2}
  v_add_u32 v{v+5}, v{v+5}, v{v+6}
  v_lshrrev_b32 v{v+6}, 1, v{v+1}
  v_lshlrev_b32 v{v+6}, 2, v{v+6}
  v_and_b32 v{v+7}, 1, v{v+2}
  v_lshl_add_u32 v{v+4}, v{v+7}, 3, v{v+4}
  v_add_u32 v{v+4}, s52, v{v+4}
  v_xor_b32 v{v+7}, v{v+5}, v{v+6}
  v_lshl_add_u32 v{v+8}, v{v+7}, 4, v{v+4}
  v_xor_b32 v{v+7}, 4, v{v+7}
  v_lshl_add_u32 v{v+9}, v{v+7}, 4, v{v+4}""")
    ONE = v + 12; FRG = v + 16; ACC_ = v + 48
    for i in range(4): k(f"  v_mov_b32 v{ONE+i}, 0x3f803f80")
    k.wait_vm("cs")
    for ks in range(4):
        for b in range(2):
            for tt in range(2):
                d = FRG + (ks*2 + b)*4 + 2*tt
                k(f"  ds_read_b64_tr_b16 v[{d}:{d+1}], v{v+8+b} offset:{ks*2048 + tt*512}")
        if ks == 2: k("  s_waitcnt lgkmcnt(4)")
    k("  s_waitcnt lgkmcnt(0)")
def cs_b(k):
    v = V_CS; ONE = v + 12; FRG = v + 16; ACC_ = v + 48
    for ks in range(4):
        for b in range(2):
            d = FRG + (ks*2 + b)*4
            c = "0" if ks == 0 else f"v[{ACC_+16*b}:{ACC_+16*b+15}]"
            k(f"  v_mfma_f32_32x32x16_bf16 v[{ACC_+16*b}:{ACC_+16*b+15}], v[{ONE}:{ONE+3}], v[{d}:{d+3}], {c}")
    k(f"""
  s_mul_i32 s41, s55, {L.NCOL*4}
  s_lshl_b32 s42, s54, 8
  s_add_u32 s41, s41, s42
  s_add_u32 s41, s41, {L.WS_CSP}
  v_lshlrev_b32 v{v}, 2, v1
  v_cmp_gt_u32 vcc, 32, v1
  v_mov_b32 v{v+1}, 0x7fff0000
  v_cndmask_b32 v{v}, v{v+1}, v{v}, vcc
  s_cmp_eq_u32 s50, -1
  s_cselect_b32 s42, 0x7fff0000, 0
  v_add_u32 v{v}, s42, v{v}""")
    k(f"  v_mov_b32 v{v+1}, 0x7fff0000\n  v_min_u32 v{v}, v{v}, v{v+1}")
    for b in range(2):
        if 'nocs' not in EXP: k.vmem(f"  buffer_store_dword v{ACC_+16*b}, v{v}, {R(R_WS)}, s41 offen offset:{128*b} sc1", "jst")

V_SW = 36
V_SWI = 108
SCR2 = WR + 2*16384
def sw_addr(k, n=0):
    sid, sS, sL, v = [(51, 56, 57, V_SWI), (49, 100, 101, V_SWI + 10)][n]; t = 41
    k.begin()
    k(f"""
  s_cmp_eq_u32 s{sid}, -1
  s_cselect_b32 s53, 0, s{sid}
  s_mul_i32 s{t}, s53, 6554
  s_lshr_b32 s{t}, s{t}, 16
  s_mul_i32 s{t+1}, s{t}, 10
  s_sub_u32 s{t+1}, s53, s{t+1}              ; lambda
  s_mov_b32 s{sS}, s{t}
  s_mov_b32 s{sL}, s{t+1}
  s_cmp_lt_u32 s{t}, 54
  s_cselect_b32 s{R_T}, s{R_W2}, s{R_WO}
  s_cselect_b32 s{R_T+1}, s{R_W2+1}, s{R_WO+1}
  s_cselect_b32 s{R_T+2}, s{R_W2+2}, s{R_WO+2}
  s_mov_b32 s{R_T+3}, 0x20000
  s_cmp_eq_u32 s{sid}, -1
  s_cselect_b32 s{R_T+2}, 0, s{R_T+2}
  v_lshrrev_b32 v{v}, 3, v1                  ; e
  v_and_b32 v{v+1}, 7, v1
  s_lshl_b32 s{t+2}, s{t+1}, 7
  v_lshl_add_u32 v{v+1}, v{v+1}, 4, s{t+2}
  s_cmp_lt_u32 s{t}, 54
  s_cbranch_scc0 {k.L('sw_wo%d' % n)}
  s_cmp_lt_u32 s{t}, 28
  s_cselect_b32 s{t+3}, 0, 28
  s_cselect_b32 s{t+4}, 0, 2
  s_sub_u32 s{t+3}, s{t}, s{t+3}
  s_lshr_b32 s{t+5}, s{t+3}, 1
  s_lshl_b32 s{t+5}, s{t+5}, 2
  s_and_b32 s{t+3}, s{t+3}, 1
  s_add_u32 s{t+5}, s{t+5}, s{t+3}
  s_add_u32 s{t+5}, s{t+5}, s{t+4}           ; F block
  v_lshrrev_b32 v{v+2}, 2, v{v}
  v_lshlrev_b32 v{v+2}, 3, v{v+2}
  v_and_b32 v{v+3}, 3, v{v}
  v_add_u32 v{v+2}, v{v+2}, v{v+3}
  s_lshl_b32 s{t+5}, s{t+5}, 5
  v_add_u32 v{v+2}, s{t+5}, v{v+2}""")
    for i in range(4): k(f"  v_add_u32 v{v+4+i}, {16*(i&1) + 4*(i>>1)}, v{v+2}")
    k(f"""
  s_branch {k.L('sw_go%d' % n)}
{k.L('sw_wo%d' % n)}:
  s_sub_u32 s{t+3}, s{t}, 54
  s_mul_i32 s{t+4}, s{t+3}, 52
  s_lshr_b32 s{t+4}, s{t+4}, 8
  s_mul_i32 s{t+5}, s{t+4}, 5
  s_sub_u32 s{t+5}, s{t+3}, s{t+5}
  s_lshl_b32 s{t+5}, s{t+5}, 3
  v_add_u32 v{v+2}, s{t+5}, v{v}
  v_cmp_le_u32 vcc, 20, v{v+2}
  v_cndmask_b32 v{v+3}, 0, 1, vcc
  v_mul_u32_u24 v{v+8}, 20, v{v+3}
  v_sub_u32 v{v+2}, v{v+2}, v{v+8}
  s_lshl_b32 s{t+4}, s{t+4}, 1
  v_add_u32 v{v+3}, s{t+4}, v{v+3}
  v_mul_u32_u24 v{v+3}, 80, v{v+3}
  v_add_u32 v{v+2}, v{v+2}, v{v+3}""")
    for i in range(4): k(f"  v_add_u32 v{v+4+i}, {20*i}, v{v+2}")
    k(f"{k.L('sw_go%d' % n)}:")
    for i in range(4): k(f"  v_mul_u32_u24 v{v+4+i}, 1280, v{v+4+i}\n  v_add_u32 v{v+4+i}, v{v+4+i}, v{v+1}")
    k.end()
def sw_dma(k, n=0):
    v = V_SWI + 10*n; scr = [87, 48][n]
    for i in range(4):
        k.begin()
        k(f"  s_add_u32 m0, s{scr}, {i*1024}")
        k.vmem(f"  buffer_load_dwordx4 v{v+4+i}, {R(R_T)}, 0 offen lds", ("sw", n))
        k.end()
def sw_proc1(k, n=0):
    v = V_SW + 40*n; t = 41; FRG = v + 16; sid = [51, 49][n]; scr = [87, 48][n]
    k(f"""
  v_lshrrev_b32 v{v}, 4, v1
  v_lshrrev_b32 v{v+1}, 2, v1
  v_and_b32 v{v+1}, 3, v{v+1}
  v_lshl_add_u32 v{v}, v{v}, 3, v{v+1}
  v_lshlrev_b32 v{v}, 7, v{v}
  v_and_b32 v{v+1}, 3, v1
  v_lshl_add_u32 v{v}, v{v+1}, 3, v{v}
  v_add_u32 v{v}, s{scr}, v{v}
  v_lshlrev_b32 v{v+1}, 4, v1
  s_cmp_eq_u32 s{sid}, -1
  s_cselect_b32 s{t}, 0x7fff0000, 0
  v_add_u32 v{v+1}, s{t}, v{v+1}""")
    k.wait_vm(("sw", n))
    for b in range(4):
        for tt in range(2):
            d = FRG + 4*b + 2*tt
            k(f"  ds_read_b64_tr_b16 v[{d}:{d+1}], v{v} offset:{32*b + 512*tt}")
    k("  s_waitcnt lgkmcnt(0)")
def sw_proc2(k, n=0):
    v = V_SW + 40*n; t = 41; FRG = v + 16; sS, sL = [(56, 57), (100, 101)][n]
    for b in range(4):
        k.begin()
        k(f"""
  s_lshl_b32 s{t}, s{sL}, 2
  s_add_u32 s{t}, s{t}, {b}
  s_mul_i32 s{t+1}, s{t}, 13
  s_lshr_b32 s{t+1}, s{t+1}, 6
  s_mul_i32 s{t+2}, s{t+1}, 5
  s_sub_u32 s{t+2}, s{t}, s{t+2}
  s_mul_i32 s{t+1}, s{t+1}, 74
  s_add_u32 s{t+1}, s{t+1}, s{sS}
  s_mul_i32 s{t+1}, s{t+1}, 5
  s_add_u32 s{t+1}, s{t+1}, s{t+2}
  s_lshl_b32 s{t+1}, s{t+1}, 10
  s_add_u32 s{t+1}, s{t+1}, {L.WS_W2}""")
        if 'nosw' not in EXP: k.vmem(f"  buffer_store_dwordx4 v[{FRG+4*b}:{FRG+4*b+3}], v{v+1}, {R(R_WS)}, s{t+1} offen sc1", "jst")
        k.end()
def zero_job(k):
    k(f"""
  s_mul_i32 s41, s40, 160
  s_add_u32 s41, s41, {L.WS_KV}
  v_lshlrev_b32 v56, 4, v1
  v_cmp_gt_u32 vcc, 10, v1
  v_mov_b32 v57, 0x7fff0000
  v_cndmask_b32 v58, v57, v56, vcc
  v_mov_b32 v60, 0
  v_mov_b32 v61, 0
  v_mov_b32 v62, 0
  v_mov_b32 v63, 0""")
    if 'nozero' not in EXP: k.vmem(f"  buffer_store_dwordx4 v[60:63], v58, {R(R_WS)}, s41 offen sc1", "jst")

def store_flag(k, cond_s, cond_val, addr_code, lbl):
    k.begin()
    k(f"  s_cmp_eq_u32 s{cond_s}, {cond_val}\n  s_cbranch_scc0 {k.L(lbl)}")
    k(addr_code)
    k(f"""
  v_mov_b32 v2, s41
  v_mov_b32 v0, 1
  s_mov_b64 exec, 1
  buffer_store_byte v0, v2, {R(R_WS)}, 0 offen sc1
  s_mov_b64 exec, -1
{k.L(lbl)}:""")
    k.end()

def poll_issue(k, vdst, addr_code, tag, only0=True):
    k.begin()
    k(addr_code)
    if only0:
        k(f"  s_cmp_eq_u32 s39, 0\n  s_cselect_b32 s41, 0, 0x7fff0000\n  v_or_b32 v{vdst+1}, s41, v{vdst+1}")
    k.vmem(f"  buffer_load_dword v{vdst}, v{vdst+1}, {R(R_WS)}, 0 offen sc1", tag)
    k.end()
_BID = {}
def bound(k, lbl):
    if 'bound' not in EXP: return ""
    i = _BID.setdefault(lbl, len(_BID) + 1)
    return f"  s_add_u32 s75, s75, 1\n  s_cmp_gt_u32 s75, 3000\n  s_cbranch_scc0 {k.L(lbl+'_nb')}\n  s_mov_b32 s75, 0\n  s_mov_b32 s74, {1000 + i}\n  v_writelane_b32 v3, s74, 35\n  s_branch {k.L(lbl+'_ok')}\n{k.L(lbl+'_nb')}:"
def poll_check(k, vdst, tag, lbl, only0=True, slp=6):
    k.wait_vm(tag)
    saved = list(k.vm)
    if only0: k(f"  s_cmp_eq_u32 s39, 0\n  s_cbranch_scc0 {k.L(lbl+'_ok')}")
    k(f"""
  v_cmp_ne_u32 vcc, 0x01010101, v{vdst}
  s_cmp_eq_u64 vcc, 0
  s_cbranch_scc1 {k.L(lbl+'_ok')}
{k.L(lbl+'_sp')}:
{bound(k, lbl)}
  s_sleep {slp}
  buffer_load_dword v{vdst}, v{vdst+1}, {R(R_WS)}, 0 offen sc1
  s_waitcnt vmcnt(0)
  v_cmp_ne_u32 vcc, 0x01010101, v{vdst}
  s_cmp_eq_u64 vcc, 0
  s_cbranch_scc0 {k.L(lbl+'_sp')}
{k.L(lbl+'_ok')}:""")
    k.vm = saved
def lines(vdst, scode, n):
    return scode + f"\n  v_min_u32 v{vdst+1}, {n-1}, v1\n  v_lshlrev_b32 v{vdst+1}, 7, v{vdst+1}\n  v_add_u32 v{vdst+1}, s41, v{vdst+1}"
def words(vdst, scode, n):
    return scode + f"\n  v_lshlrev_b32 v{vdst+1}, 2, v1\n  v_min_u32 v{vdst+1}, {4*(n-1)}, v{vdst+1}\n  v_add_u32 v{vdst+1}, s41, v{vdst+1}"

def unit_of_slot(k, sg, sslot, su, sty, lbl):
    k(f"""
  s_lshl_b32 s{su}, s{sg}, 2
  s_add_u32 s{su}, s{su}, s{sslot}
  s_cmp_lt_u32 s{su}, 27
  s_cbranch_scc0 {k.L(lbl+'a')}
  s_mov_b32 s{sty}, 0
  s_add_u32 s{su}, s{su}, 30
  s_branch {k.L(lbl+'b')}
{k.L(lbl+'a')}:
  s_mov_b32 s{sty}, 2
  s_cmp_eq_u32 s{su}, 28
  s_cmov_b32 s{sty}, 1
  s_cmp_eq_u32 s{su}, 30
  s_cmov_b32 s{sty}, 1
  s_lshr_b32 s{su}, s{su}, 1
  s_sub_u32 s{su}, s{su}, 6
{k.L(lbl+'b')}:""")

vDx, vDx2, vDw, vG = 10, 11, 12, 20
NWS = 4

def loader_a_setup(k):
    k(f"""
  v_lshrrev_b32 v4, 3, v1
  v_lshrrev_b32 v5, 1, v4
  v_and_b32 v6, 7, v1
  v_xor_b32 v7, v6, v5
  v_mul_u32_u24 v8, 1280, v4
  v_lshl_add_u32 v{vDx}, v7, 4, v8
  v_xor_b32 v7, 4, v7
  v_lshl_add_u32 v{vDx2}, v7, 4, v8
  s_mul_i32 s101, s36, {128*1280}
  s_mul_i32 s47, s39, {32*1280}
  s_add_u32 s101, s101, s47
  s_lshl_b32 s47, s39, 12                  ; lw*4096""")
def loader_a_setup_w(k):
    k(f"""
  v_and_b32 v5, 1, v5
  v_lshlrev_b32 v5, 2, v5
  v_xor_b32 v6, v6, v5
  s_cmp_eq_u32 s37, 0
  s_cbranch_scc1 {k.L('ld_kv')}""")
    unit_of_slot(k, 38, 39, 48, 49, "uos")
    k(f"""
  s_cmp_eq_u32 s49, 0
  s_cselect_b32 s20, s{R_W1}, s{R_WQ}
  s_cselect_b32 s21, s{R_W1+1}, s{R_WQ+1}
  s_mov_b32 s44, 3840
  s_cmov_b32 s44, 3456
  s_cselect_b32 s22, s{R_W1+2}, s{R_WQ+2}
  s_cselect_b32 s58, 30, 0
  s_sub_u32 s58, s48, s58
  s_lshl_b32 s100, s58, 7
  s_cmp_eq_u32 s49, 2
  s_cmov_b32 s22, 0
  v_lshlrev_b32 v7, 4, v6
  s_lshl_b32 s58, s48, 6
  v_add_u32 v{vG}, s58, v1
  s_branch {k.L('ld_go')}
{k.L('ld_kv')}:
  s_mov_b32 s20, s{R_WQ}
  s_mov_b32 s21, s{R_WQ+1}
  s_mov_b32 s22, s{R_WQ+2}
  s_mov_b32 s44, 3840
  s_mov_b32 s100, 0
  ; position p' = 8 lw + p  ->  chunk c' = (p' & ~3) | inv(p')  (bank-conflict-free placement, see kvmap2.py)
  s_lshl_b32 s58, s39, 3
  v_add_u32 v7, s58, v6                    ; p'
  v_mov_b32 v8, 0x9c1b39b4
  v_mov_b32 v9, 0xd8e1e472
  v_cmp_gt_u32 vcc, 16, v7
  v_cndmask_b32 v8, v9, v8, vcc
  v_and_b32 v9, 15, v7
  v_lshlrev_b32 v9, 1, v9
  v_lshrrev_b32 v8, v9, v8
  v_and_b32 v8, 3, v8
  v_and_b32 v7, 0xfc, v7
  v_or_b32 v7, v7, v8                      ; c'
  s_mul_i32 s58, s38, 160
  s_add_u32 s59, s58, 1280                 ; k: 1280 + 160 j + 16 c'
  v_mov_b32 v8, s59
  s_add_u32 s59, s58, {2560 - 160}         ; v: 2560 + 160 j + 16 (c' - 10)
  v_mov_b32 v9, s59
  v_cmp_gt_u32 vcc, 10, v7
  v_cndmask_b32 v8, v9, v8, vcc
  v_mov_b32 v9, 0x7fff0000
  v_cmp_gt_u32 vcc, 20, v7
  v_cndmask_b32 v8, v9, v8, vcc
  s_lshl_b32 s59, s38, 7
  s_sub_u32 s59, s59, {24*16}              ; q: 128 j + 16 (c' - 24)
  v_mov_b32 v9, s59
  v_cmp_gt_u32 vcc, 24, v7
  v_cndmask_b32 v8, v9, v8, vcc
  v_lshl_add_u32 v7, v7, 4, v8
{k.L('ld_kvgc')}:
  v_and_b32 v12, 31, v1
  v_lshrrev_b32 v13, 5, v1
  s_and_b32 s58, s39, 1
  s_lshl_b32 s58, s58, 1
  v_add_u32 v13, s58, v13
  v_lshrrev_b32 v14, 3, v12
  v_lshl_add_u32 v14, v13, 2, v14
  v_lshrrev_b32 v15, 2, v12
  v_and_b32 v15, 1, v15
  s_lshr_b32 s59, s39, 1
  s_lshl_b32 s58, s59, 1
  v_add_u32 v16, s58, v15
  v_and_b32 v17, 3, v12
  v_mul_u32_u24 v18, 20, v16
  v_lshl_add_u32 v18, v14, 2, v18
  v_add_u32 v18, v18, v17
  s_mul_i32 s58, s38, 80
  v_add_u32 v18, s58, v18
  v_add_u32 v19, 640, v18
  v_add_u32 v21, {1280 - 20}, v18
  v_cmp_gt_u32 vcc, 5, v14
  v_cndmask_b32 v{vG}, v21, v19, vcc
  s_lshl_b32 s58, s59, 3
  v_lshl_add_u32 v21, v15, 2, s58
  v_add_u32 v21, v21, v14
  v_subrev_u32 v21, 10, v21
  v_lshl_add_u32 v21, v21, 2, v17
  s_lshl_b32 s58, s38, 6
  v_add_u32 v21, s58, v21
  v_cmp_gt_u32 vcc, 10, v14
  v_cndmask_b32 v{vG}, v21, v{vG}, vcc
  v_cmp_gt_u32 vcc, 14, v14
  v_cndmask_b32 v{vG}, 0, v{vG}, vcc
{k.L('ld_go')}:
  s_mov_b32 s23, 0x20000""")
    if TP:
        k(f"""
  s_lshl_b32 s58, s37, 2
  s_or_b32 s58, s58, s39
  s_cmp_eq_u32 s58, 3
  s_cmov_b32 s22, 0""")
    k(f"""
  v_mul_lo_u32 v8, v4, s44
  v_add_u32 v{vDw}, v8, v7
  s_add_u32 s48, s47, {WR}
  s_lshl_b32 s49, s44, 3                   ; 8*stride""")

def gW(j):
    def mk(i):
        def f(k):
            k(f"  s_add_u32 m0, s48, {(j % NWS)*16384 + i*1024}")
            k.vmem(f"  buffer_load_dwordx4 v{vDw}, {R(R_W)}, s100 offen lds", ("W", j))
            k("  s_add_u32 s100, s100, s49")
        return f
    return [mk(i) for i in range(4)]
def gX(m):
    def mk(i):
        def f(k):
            k(f"  s_add_u32 m0, s47, {XR + (m % 3)*16384 + i*1024}\n  s_add_u32 s87, s101, {m*128 + i*8*1280}")
            k.vmem(f"  buffer_load_dwordx4 v{vDx if i % 2 == 0 else vDx2}, {R(R_X)}, s87 offen lds", ("X", m))
        return f
    return [mk(i) for i in range(4)]
def dW(k, j):
    for f in gW(j): f(k)
def dX(k, m):
    for f in gX(m): f(k)
def rec(k, fns):
    r = kb.Rec(k)
    for f in fns: f(r)
    return r.items

def t_issue(k):
    k(f"""
  v_lshlrev_b32 v21, 2, v{vG}
  v_subrev_u32 v22, 1920, v{vG}
  v_lshlrev_b32 v22, 1, v22
  s_lshl_b32 s58, s36, 7
  s_lshl_b32 s59, s39, 6
  s_add_u32 s58, s58, s59
  v_add_u32 v23, s58, v1
  v_lshlrev_b32 v23, 4, v23
  s_cmp_lt_u32 s39, 2
  s_cselect_b32 s59, 0, 0x7fff0000
  v_add_u32 v23, s59, v23""")
    for p in range(10):
        k.begin()
        k(f"  s_mov_b32 s58, {L.WS_CSP + p*L.NCOL*4}")
        k.vmem(f"  buffer_load_dword v{24+p}, v21, {R(R_WS)}, s58 offen sc1", "side")
        k.end()
    k.vmem(f"  buffer_load_ushort v34, v22, {R(R_B)}, 0 offen", "side")
    k.vmem(f"  buffer_load_dwordx4 v[36:39], v23, {R(R_WS)}, 0 offen sc1", "side")
def wphi_dma(k, head_code, dst, enable_kv_only):
    k.begin()
    k(head_code)
    k(f"""
  s_mul_i32 s58, s58, 800
  s_add_u32 s{R_T}, s{S_WPHI}, s58
  s_addc_u32 s{R_T+1}, s{S_WPHI+1}, 0
  s_and_b32 s{R_T+1}, s{R_T+1}, 0xffff
  s_mov_b32 s{R_T+2}, 800
  s_mov_b32 s{R_T+3}, 0x20000""")
    if enable_kv_only:
        k(f"  s_cmp_eq_u32 s37, 0\n  s_cselect_b32 s{R_T+2}, s{R_T+2}, 0")
    k(f"""
  v_lshlrev_b32 v40, 4, v1
  s_lshl_b32 s58, s39, 10
  s_add_u32 m0, s58, {dst}""")
    k.vmem(f"  buffer_load_dwordx4 v40, {R(R_T)}, 0 offen lds", "side")
    k.end()
def t_build1(k):
    k.wait_vm("side")
    k("  v_add_f32 v24, v24, v25")
    for p in range(2, 10): k(f"  v_add_f32 v24, v24, v{24+p}")
    k(f"""
  v_cvt_pk_bf16_f32 v25, v24, v24
  v_and_b32 v26, 0xffff0000, v25
  v_sub_f32 v26, v24, v26
  v_cvt_pk_bf16_f32 v28, v24, v26
  v_and_b32 v29, 0xffff, v25
  v_lshl_or_b32 v29, v34, 16, v29
  v_mov_b32 v30, v34
  v_mov_b32 v31, 0""")
def t_build2(k):
    k(f"""
  v_lshlrev_b32 v27, 4, v1
  s_lshl_b32 s58, s39, 10
  s_add_u32 s58, s58, {TT}
  v_add_u32 v27, s58, v27
  ds_write_b128 v27, v[28:31]
  v_mov_b32 v44, 0
  v_mov_b32 v45, 0
  v_mov_b32 v46, 0
  v_mov_b32 v47, 0
  v_add_u32 v27, {ZR - TT}, v27
  s_cmp_lt_u32 s39, 2
  s_cbranch_scc0 {k.L('ld_nost')}
  ds_write_b128 v27, v[44:47]
  v_add_u32 v27, {ST - ZR + 2**32 if ST < ZR else ST - ZR}, v27
  ds_write_b128 v27, v[36:39]
{k.L('ld_nost')}:
  s_waitcnt lgkmcnt(0)""")

def tlb_touch(k):
    k(f"  s_cmp_eq_u32 s39, 2\n  s_cbranch_scc0 {k.L('notlb')}")
    items = [(S_X, 0), (S_X, 0x200000), (S_WQ, 0), (S_WQ, 0x200000), (S_W1, 0), (S_W1, 0x200000), (S_W2, 0), (S_W2, 0x200000), (S_WO, 0),
             (S_WPHI, 0), (S_B1, 0), (S_B2, 0), (S_OUT, 0), (S_OUT, 0x200000), (S_DBG, 0)] + [(S_WS, o) for o in range(0, L.WS_END, 0x200000)]
    for (p, o) in items:
        if o == 0: k(f"  s_load_dword s70, s[{p}:{p+1}], 0")
        else: k(f"  s_add_u32 s72, s{p}, {o}\n  s_addc_u32 s73, s{p+1}, 0\n  s_load_dword s70, s[72:73], 0\n  s_waitcnt lgkmcnt(0)" if False else
                f"  s_add_u32 s{{a}}, s{p}, {o}\n  s_addc_u32 s{{b}}, s{p+1}, 0\n  s_load_dword s70, s[{{a}}:{{b}}], 0".format(a=72, b=73))
    k(f"{k.L('notlb')}:")
def code_pf(k):
    if True:
        k(f"""
  s_cmp_eq_u32 s39, 3
  s_cbranch_scc0 {k.L('nopf')}
  s_getpc_b64 s[58:59]
{k.L('pc')}:
  s_sub_u32 s58, s58, {k.L('pc')}-{k.name}
  s_subb_u32 s59, s59, 0
  s_lshr_b32 s41, s2, 3
  s_and_b32 s41, s41, 7
  s_lshl_b32 s41, s41, 13
  v_lshl_add_u32 v50, v1, 7, s41
  v_min_u32 v50, {k.L('codeend')}-{k.name}-4, v50
  global_load_dword v51, v50, s[58:59]
{k.L('nopf')}:""")
def loader_a_start(k):
    if 'pfearly' in EXP: code_pf(k)
    if 'tlb' in EXP: tlb_touch(k)
    loader_a_setup(k)
    loader_a_setup_w(k)
    if 'noS0' not in EXP: k("  s_barrier")
    dX(k, 0); dW(k, 0); dW(k, 1)
    if 'pfearly' not in EXP and 'nocpf' not in EXP: code_pf(k)
    wphi_dma(k, "  s_lshl_b32 s58, s38, 2\n  s_add_u32 s58, s58, s39", WP, True)
    kb.stamp(k, 2)
    k.wait_vm(("W", 0))
    k("  s_barrier")
    kb.stamp(k, 3)
    dX(k, 1); dW(k, 2); dW(k, 3); dX(k, 2)
def loader_a(k):
    for j in range(20):
        if j + 1 <= 19:
            k.wait_vm(("W", j + 1))
            if (j + 1) % 2 == 0: k.wait_vm(("X", (j + 1)//2))
        if j == 16: poll_check(k, 52, "f2", "f2", slp=1)
        k("  s_barrier")
        groups = []
        if j + NWS <= 19: groups += gW(j + NWS)
        if j % 2 == 1 and (j + 1)//2 + 2 <= 9: groups += gX((j + 1)//2 + 2)
        fns = []
        if j == 14:
            fns.append(lambda k: poll_issue(k, 52, f"  v_lshrrev_b32 v53, 2, v1\n  v_lshlrev_b32 v53, 7, v53\n  v_and_b32 v54, 3, v1\n  v_lshl_add_u32 v53, v54, 2, v53\n  v_add_u32 v53, {FL_F2}, v53", "f2"))
        if j == 16: fns.append(t_issue)
        if j == 16: fns.append(loader_b_setup)
        if j == 18:
            fns.append(t_build1); fns.append(t_build2)
        if j in (17, 18, 19): groups += gWP(WPL[4*(j - 17):4*(j - 16)])
        kb.interleave(k, groups, rec(k, fns))
        kb.stamp(k, 16 + j)
CODE_PF = True
TP = int(os.environ.get('TP', 0))
X2S = [0, 16384, 32768, 98304, 114688]
W2S = [65536, 49152, 57344, 73728, 81920]; W2B = 49152
import os
EXP = os.environ.get('EXP', '')

VXA = [4, 5, 6, 7]; VXB = [8, 9, 10, 11]; VWA = [12, 13, 14, 15]
FX = [[80, 84], [104, 108]]
FW = [[88, 92, 96, 100], [112, 116, 120, 124]]
ACC = 128
WA_KV = 56
def acc(tb, b): return ACC + tb*64 + b*16

def a_reads(set_, st4, ks2):
    ksl = 2*(st4 & 1) + ks2
    r = []
    for tb in range(2):
        r.append(f"  ds_read_b128 v[{FX[set_][tb]}:{FX[set_][tb]+3}], v{VXA[ksl]} offset:{tb*4096}")
    for b in range(4):
        for t in range(2):
            d = FW[set_][b] + 2*t
            r.append(f"  ds_read_b64_tr_b16 v[{d}:{d+1}], v{VWA[b]} offset:{st4*16384 + ks2*2048 + t*512}")
    return r
def a_mfmas(cur, zero=False):
    return [f"  v_mfma_f32_32x32x16_bf16 v[{acc(tb,b)}:{acc(tb,b)+15}], v[{FW[cur][b]}:{FW[cur][b]+3}], v[{FX[cur][tb]}:{FX[cur][tb]+3}], " + ("0" if zero else f"v[{acc(tb,b)}:{acc(tb,b)+15}]")
            for b in range(4) for tb in range(2)]

def a_stage(k, st4, tail=None, pre_barrier=None, post_barrier=None, first=False):
    odd = st4 & 1
    mf = a_mfmas(0, zero=first); rd = a_reads(1, st4, 1)
    k("  s_waitcnt lgkmcnt(0)")
    sched = [2, 2, 2, 2, 1, 1, 0, 0]
    extra = []
    if odd:
        extra = [f"  v_add_u32 v{VXA[i]}, s47, v{VXB[i]}" for i in range(3)]
    for i, m in enumerate(mf):
        k(m)
        for _ in range(sched[i]): k(rd.pop(0))
        if i >= 5 and extra: k(extra.pop(0))
    mf = a_mfmas(1)
    k("  s_waitcnt lgkmcnt(0)")
    k(mf[0])
    if pre_barrier: k(pre_barrier)
    k("  s_barrier")
    if post_barrier: post_barrier(k)
    rd = a_reads(0, (st4 + 1) % 4, 0) if tail is None else list(tail)
    sched = [2, 2, 2, 2, 1, 1, 0]
    for i, m in enumerate(mf[1:]):
        for _ in range(sched[i]):
            if rd: k(rd.pop(0))
        k(m)
    while rd: k(rd.pop(0))
    if odd:
        k(f"  v_add_u32 v{VXA[3]}, s47, v{VXB[3]}")
        k("  s_add_u32 s47, s47, 16384\n  s_cmp_eq_u32 s47, 49152\n  s_cselect_b32 s47, 0, s47")

def compute_a(k):
    kb.stamp(k, 0, rt=True)
    k(f"""
  s_or_b32 s41, s2, s3
  s_cmp_eq_u32 s41, 0
  s_cbranch_scc0 {k.L('nog0')}
  v_lshlrev_b32 v4, 7, v1
  v_add_u32 v4, {FL}, v4
  v_mov_b32 v6, 0x7fff0000
  v_cmp_gt_u32 vcc, 16, v1
  v_cndmask_b32 v4, v6, v4, vcc
  v_mov_b32 v8, 0
  v_mov_b32 v9, 0
  v_mov_b32 v10, 0
  v_mov_b32 v11, 0
  buffer_store_dwordx4 v[8:11], v4, {R(R_WS)}, 0 offen sc1
  s_waitcnt vmcnt(0)
  v_mov_b32 v4, 0
  v_mov_b32 v5, 1
  s_mov_b64 exec, 1
  global_store_dword v4, v5, s[{S_DBG}:{S_DBG+1}] sc1
  s_mov_b64 exec, -1
{k.L('nog0')}:""")
    srd(k, R_W2, S_W2, 2211840)
    srd(k, R_WO, S_WO, 819200)
    job_ids(k)
    stats_issue(k); cs_issue(k)
    if 'noS0' not in EXP: k("  s_barrier")
    vm_kv = list(k.vm)
    k(f"  s_cmp_eq_u32 s37, 0\n  s_cbranch_scc1 {k.L('nosw')}")
    sw_addr(k, 0); sw_dma(k, 0); sw_addr(k, 1); sw_dma(k, 1)
    k.label("nosw")
    vm_g = list(k.vm)
    kb.stamp(k, 62)
    k(f"""
  s_lshr_b32 s43, s39, 1                   ; Th
  s_and_b32 s44, s39, 1                    ; Fh
  v_and_b32 v16, 31, v1                    ; n
  v_lshrrev_b32 v17, 5, v1                 ; hh
  v_lshrrev_b32 v18, 1, v16
  v_and_b32 v18, 7, v18
  v_xor_b32 v18, v17, v18
  v_lshlrev_b32 v18, 4, v18
  v_lshl_add_u32 v18, v16, 7, v18
  s_lshl_b32 s45, s43, 13
  v_add_u32 v{VXB[0]}, s45, v18
  v_xor_b32 v{VXB[1]}, 32, v{VXB[0]}
  v_xor_b32 v{VXB[2]}, 64, v{VXB[0]}
  v_xor_b32 v{VXB[3]}, 96, v{VXB[0]}
  v_mov_b32 v{VXA[0]}, v{VXB[0]}
  v_mov_b32 v{VXA[1]}, v{VXB[1]}
  v_mov_b32 v{VXA[2]}, v{VXB[2]}
  v_mov_b32 v{VXA[3]}, v{VXB[3]}
  s_mov_b32 s47, 16384
  v_lshrrev_b32 v18, 4, v1                 ; G
  v_lshrrev_b32 v19, 2, v1
  v_and_b32 v19, 3, v19                    ; r
  v_and_b32 v20, 3, v1                     ; c
  v_lshrrev_b32 v21, 1, v18
  v_lshl_add_u32 v21, v21, 3, v19
  v_lshlrev_b32 v21, 7, v21
  v_add_u32 v21, {WR}, v21
  v_lshrrev_b32 v22, 1, v19
  v_lshlrev_b32 v22, 2, v22
  v_and_b32 v23, 1, v18
  v_lshlrev_b32 v23, 1, v23
  v_lshrrev_b32 v24, 1, v20
  v_add_u32 v23, v23, v24                  ; j'
  v_and_b32 v24, 1, v20                    ; hh'
  s_cmp_eq_u32 s37, 0
  s_cbranch_scc1 {k.L('c_kv')}""")
    for b in range(4):
        k(f"""
  v_add_u32 v25, {4*(b&1)}, v23
  v_xor_b32 v25, v25, v22
  v_lshl_add_u32 v25, v25, 4, v21
  v_lshl_add_u32 v25, v24, 3, v25
  s_lshl_b32 s45, s44, 13
  s_add_u32 s45, s45, {(b>>1)*4096}
  v_add_u32 v{VWA[b]}, s45, v25""")
    k(f"  s_branch {k.L('c_go')}\n{k.L('c_kv')}:")
    k(f"  s_lshl_b32 s45, s44, 1\n  v_add_u32 v26, s45, v24\n  v_mul_u32_u24 v26, 5, v26")
    for b in range(4):
        k(f"""
  v_add_u32 v27, {4*b}, v23
  v_add_u32 v28, v26, v27
  v_add_u32 v29, 15, v28
  v_cmp_gt_u32 vcc, 5, v27
  v_cndmask_b32 v28, v29, v28, vcc
  s_lshl_b32 s45, s44, 3
  v_lshl_add_u32 v29, v24, 2, s45
  v_add_u32 v29, v29, v27
  v_add_u32 v29, {48 - 10}, v29
  v_cmp_gt_u32 vcc, 10, v27
  v_cndmask_b32 v28, v29, v28, vcc
  v_cmp_gt_u32 vcc, 14, v27
  v_add_u32 v29, 42, v24
  v_cndmask_b32 v28, v29, v28, vcc
  v_lshrrev_b32 v30, 1, v28                ; chunk c'
  v_mov_b32 v29, 0x781b93b4
  v_mov_b32 v31, 0xd8e1e48d
  v_cmp_gt_u32 vcc, 16, v30
  v_cndmask_b32 v29, v31, v29, vcc
  v_and_b32 v31, 15, v30
  v_lshlrev_b32 v31, 1, v31
  v_lshrrev_b32 v29, v31, v29
  v_and_b32 v29, 3, v29
  v_and_b32 v30, 0xfc, v30
  v_or_b32 v30, v30, v29                   ; position p'
  v_lshrrev_b32 v29, 3, v30                ; VU
  v_and_b32 v30, 7, v30
  v_xor_b32 v30, v30, v22
  v_and_b32 v31, 1, v28
  v_lshl_add_u32 v30, v30, 4, v21
  v_lshl_add_u32 v30, v31, 3, v30
  v_lshl_add_u32 v{VWA[b]}, v29, 12, v30""")
    k(f"{k.L('c_go')}:")
    k(f"""
  s_lshl_b32 s45, s43, 10
  s_add_u32 s45, s45, {ST}
  v_lshl_add_u32 v32, v16, 4, s45
  s_lshl_b32 s45, s44, 11
  s_add_u32 s45, s45, {TT}
  v_lshl_add_u32 v33, v16, 4, s45
  v_mov_b32 v34, {ZR}
  v_cmp_eq_u32 vcc, 0, v17
  v_cndmask_b32 v33, v34, v33, vcc
  v_lshrrev_b32 v25, 1, v18                ; hh_k
  s_lshl_b32 s45, s44, 1
  v_add_u32 v26, s45, v24
  v_lshlrev_b32 v26, 10, v26
  v_add_u32 v26, {WP}, v26
  v_mul_u32_u24 v27, 40, v19
  v_add_u32 v27, v27, v26
  v_lshl_add_u32 v27, v23, 3, v27
  v_mov_b32 v28, {ZR}
  v_cmp_eq_u32 vcc, v24, v25
  v_cndmask_b32 v35, v28, v27, vcc
  v_add_u32 v30, 32, v27
  v_cmp_eq_u32 s[58:59], 0, v23
  s_and_b64 vcc, vcc, s[58:59]
  v_cndmask_b32 v31, v28, v30, vcc""")
    kb.stamp(k, 15)
    def stats_cs():
        A_ = rec(k, [stats_a1, stats_a2, stats_b, stats_c, stats_d]); B_ = rec(k, [cs_a, cs_b])
        k.wait_vm("cs")
        na, nb = len(A_), len(B_); ia = ib = 0
        while ia < na or ib < nb:
            for _ in range(2):
                if ia < na: kb.replay(k, A_[ia]); ia += 1
            if ib < nb and (ib + 1)*na <= (ia + 2)*nb*1.0 + na: kb.replay(k, B_[ib]); ib += 1
            elif ia >= na and ib < nb: kb.replay(k, B_[ib]); ib += 1
    k(f"  s_cmp_eq_u32 s37, 0\n  s_cbranch_scc1 {k.L('jobs_kv')}")
    k.vm = vm_g
    stats_cs()
    kb.stamp(k, 59)
    sw_proc1(k, 0); sw_proc1(k, 1); kb.stamp(k, 61); sw_proc2(k, 0); sw_proc2(k, 1)
    k(f"  s_branch {k.L('jobs_done')}")
    k.label("jobs_kv")
    k.vm = vm_kv
    base_ = k.name
    k.lname = base_ + "_jk"
    stats_a1(k); stats_a2(k); stats_b(k); stats_c(k); stats_d(k)
    k(f"  s_cmp_eq_u32 s50, -1\n  s_cbranch_scc1 {k.L('nocs')}")
    cs_a(k); cs_b(k)
    k.label("nocs")
    k.lname = None
    k.label("jobs_done")
    k(f"""
  s_mul_i32 s41, s2, 3
  s_add_u32 s41, s41, 16
  v_add_u32 v36, s41, v1                   ; line
  v_cmp_gt_u32 vcc, {NFL}, v36
  s_mov_b64 s[58:59], vcc
  v_cmp_gt_u32 vcc, 3, v1
  s_and_b64 vcc, vcc, s[58:59]
  s_cmp_eq_u32 s39, 1
  s_cselect_b64 s[58:59], -1, 0
  s_and_b64 vcc, vcc, s[58:59]
  v_lshlrev_b32 v36, 7, v36
  v_add_u32 v36, {FL}, v36
  v_mov_b32 v37, 0x7fff0000
  v_cndmask_b32 v36, v37, v36, vcc
  v_mov_b32 v38, 0
  buffer_store_dword v38, v36, {R(R_WS)}, 0 offen sc1""")
    k("  v_mov_b32 v48, 0\n  s_lshr_b32 s43, s39, 1\n  s_and_b32 s44, s39, 1")
    k(f"  global_load_dword v49, v48, s[{S_DBG}:{S_DBG+1}] sc1")
    k.vm = []
    kb.stamp(k, 2)
    k("  s_barrier")
    kb.stamp(k, 3)
    kb.stamp(k, 40, rt=True)
    for l in a_reads(0, 0, 0): k(l)
    a_stage(k, 0, first=True)
    for st4 in (1, 2, 3): a_stage(k, st4)
    k("  s_mov_b32 s46, 1\n.p2align 3")
    k.label("kloop")
    F2T, F2S = {4: (1, 0), 5: (1, 1), 6: (1, 2), 8: (2, 0)}[int(os.environ.get("F2J", 5))]
    pre = f"""  s_cmp_eq_u32 s46, {F2T}
  s_cbranch_scc0 {k.L('f2n1')}
  s_waitcnt vmcnt(0)
{k.L('f2n1')}:"""
    def post(k):
        k(f"""
  s_lshl_b32 s41, s46, 2
  s_or_b32 s41, s41, s39
  s_cmp_eq_u32 s41, {4*F2T}
  s_cbranch_scc0 {k.L('f2n2')}
  v_readfirstlane_b32 s53, v49
  s_cmp_eq_u32 s53, 1
  s_cbranch_scc1 {k.L('f2go')}
{k.L('f2g0')}:
  s_sleep 4
  global_load_dword v49, v48, s[{S_DBG}:{S_DBG+1}] sc1
  s_waitcnt vmcnt(0)
  v_readfirstlane_b32 s53, v49
  s_cmp_eq_u32 s53, 1
  s_cbranch_scc0 {k.L('f2g0')}
{k.L('f2go')}:
  s_lshr_b32 s41, s2, 4
  s_lshl_b32 s41, s41, 7
  s_and_b32 s42, s2, 15
  s_add_u32 s41, s41, s42
  s_add_u32 s41, s41, {FL_F2}
  v_mov_b32 v2, s41
  v_mov_b32 v0, 1
  s_mov_b64 exec, 1
  buffer_store_byte v0, v2, {R(R_WS)}, 0 offen sc1
  s_mov_b64 exec, -1
{k.L('f2n2')}:""")
    for st4 in range(4): a_stage(k, st4, pre_barrier=(pre if st4 == F2S else None), post_barrier=(post if st4 == F2S else None))
    k(f"  s_add_u32 s46, s46, 1\n  s_cmp_lt_u32 s46, 4\n  s_cbranch_scc1 {k.L('kloop')}")
    for st4 in range(3): a_stage(k, st4)
    tail = [f"  ds_read_b128 v[{36+4*tb}:{39+4*tb}], v32 offset:{tb*512}" for tb in range(2)] + \
           [f"  ds_read_b128 v[{FW[0][b]}:{FW[0][b]+3}], v33 offset:{b*512}" for b in range(4)]
    a_stage(k, 3, tail=tail)
    for beta in range(2):
        for st in range(3):
            for t in range(2):
                d0 = 8*st + 4*t; reg = WA_KV + (beta*3 + st)*4 + 2*t
                if d0 < 20: k(f"  ds_read_b64_tr_b16 v[{reg}:{reg+1}], v{35 if beta == 0 else 31} offset:{d0*40}")
                else: k(f"  v_mov_b32 v{reg}, 0\n  v_mov_b32 v{reg+1}, 0")
    k("  s_waitcnt lgkmcnt(10)")
    kb.stamp(k, 4)
    kb.stamp(k, 42, rt=True)
    for tb in range(2):
        s = 36 + 4*tb; d = FX[0][tb]
        k(f"""
  v_rcp_f32 v44, v{s+2}
  v_sub_f32 v45, 0, v{s}
  v_cvt_pk_bf16_f32 v{d}, v45, v45
  v_and_b32 v46, 0xffff0000, v{d}
  v_sub_f32 v46, v45, v46
  v_cvt_pk_bf16_f32 v47, v44, v44
  v_and_b32 v48, 0xffff0000, v47
  v_sub_f32 v48, v44, v48
  v_cvt_pk_bf16_f32 v{d+1}, v46, v44
  v_cvt_pk_bf16_f32 v{d+2}, v48, 0
  v_mov_b32 v{d+3}, 0
  v_mov_b32 v{s+3}, v44
  v_cmp_eq_u32 vcc, 0, v17
  v_cndmask_b32 v{d}, 0, v{d}, vcc
  v_cndmask_b32 v{d+1}, 0, v{d+1}, vcc
  v_cndmask_b32 v{d+2}, 0, v{d+2}, vcc""")
    for m in a_mfmas(0): k(m)
    k(f"  s_cmp_eq_u32 s37, 0\n  s_cbranch_scc1 {k.L('epi_kv')}")
    epi_g(k)
    k(f"  s_branch {k.L('phase_b')}")
    k.label("epi_kv")
    epi_kv(k)
    k.label("phase_b")

def gelu_block(k, a, dst):
    T = 60
    for p in range(0, 16, 8):
        prs = [(a + p + 2*i, T + 2*i) for i in range(4)]
        for (x, t) in prs: k(f"  v_pk_mul_f32 v[{t}:{t+1}], v[{x}:{x+1}], v[{x}:{x+1}]")
        for (x, t) in prs: k(f"  v_pk_fma_f32 v[{t}:{t+1}], v[{t}:{t+1}], v[52:53], v[50:51]")
        for (x, t) in prs: k(f"  v_pk_mul_f32 v[{t}:{t+1}], v[{t}:{t+1}], v[{x}:{x+1}]")
        for i in range(8): k(f"  v_exp_f32 v{T+i}, v{T+i}")
        for (x, t) in prs: k(f"  v_pk_fma_f32 v[{t}:{t+1}], v[{t}:{t+1}], v[54:55], v[54:55]")
        for i in range(8): k(f"  v_rcp_f32 v{T+i}, v{T+i}")
        for (x, t) in prs: k(f"  v_pk_mul_f32 v[{t}:{t+1}], v[{t}:{t+1}], v[{x}:{x+1}]")
        for n_, (x, t) in enumerate(prs): k(f"  v_cvt_pk_bf16_f32 v{dst + p//2 + n_}, v{t}, v{t+1}")

def epi_g_part(k, uu, tb, wait_older=False):
    n = f"{uu}{tb}"
    k(f"""
  s_lshl_b32 s50, s44, 1
  s_add_u32 s50, s50, {uu}
  s_lshl_b32 s51, s38, 2
  s_add_u32 s51, s51, s50                  ; u_lin
  s_cmp_lt_u32 s51, 27
  s_cbranch_scc1 {k.L('g_w1_' + n)}
  s_bitcmp1_b32 s51, 0
  s_cbranch_scc1 {k.L('g_none_' + n)}
  s_cmp_lt_u32 s51, 28
  s_cbranch_scc1 {k.L('g_none_' + n)}
  s_lshr_b32 s51, s51, 1
  s_sub_u32 s51, s51, 6
  s_add_u32 s52, s48, {2*tb}
  s_mul_i32 s52, s52, 160
  s_lshl_b32 s53, s51, 4
  s_add_u32 s52, s52, s53
  s_lshl_b32 s52, s52, 7
  s_add_u32 s52, s52, {L.WS_Q}""")
    for bb in range(2):
        a = acc(tb, 2*uu + bb)
        for jp in range(4):
            r = 60 + 2*(jp % 4)
            k(f"  v_cvt_pk_bf16_f32 v{r}, v{a+4*jp}, v{a+4*jp+1}\n  v_cvt_pk_bf16_f32 v{r+1}, v{a+4*jp+2}, v{a+4*jp+3}")
            k(f"  buffer_store_dwordx2 v[{r}:{r+1}], v59, {R(R_WS)}, s52 offen offset:{bb*1024 + jp*256} sc1")
    if wait_older: k("  s_waitcnt vmcnt(8)")
    k(f"  s_branch {k.L('g_done_' + n)}\n{k.L('g_none_' + n)}:")
    if wait_older: k("  s_waitcnt vmcnt(0)")
    k(f"  s_branch {k.L('g_done_' + n)}\n{k.L('g_w1_' + n)}:")
    s_ = 36 + 4*tb
    k(f"""
  s_and_b32 s53, s51, 1
  s_mul_i32 s53, s53, 27
  s_add_u32 s51, s51, s53
  v_mul_f32 v50, {fl(C0)}, v{s_+2}
  v_mul_f32 v52, v{s_+2}, v{s_+2}
  v_mul_f32 v52, v52, v{s_+2}
  v_mov_b32 v51, v50
  v_mul_f32 v52, {fl(C1)}, v52
  v_mov_b32 v54, v{s_+3}
  v_mov_b32 v55, v{s_+3}
  v_mov_b32 v53, v52
  s_add_u32 s52, s48, {2*tb}
  s_mul_i32 s52, s52, 74
  s_add_u32 s52, s52, s51
  s_lshl_b32 s52, s52, 10
  s_add_u32 s52, s52, {L.WS_HO}""")
    for bb in range(2):
        a = acc(tb, 2*uu + bb)
        d = 68 if bb == 0 else 20
        gelu_block(k, a, d)
        k(f"  buffer_store_dwordx4 v[{d}:{d+3}], v58, {R(R_WS)}, s52 offen offset:{bb*1024} sc1")
        k(f"  buffer_store_dwordx4 v[{d+4}:{d+7}], v58, {R(R_WS)}, s52 offen offset:{bb*1024 + 256} sc1")
    if wait_older: k("  s_waitcnt vmcnt(4)")
    k(f"{k.L('g_done_' + n)}:")

def epi_g(k):
    if 'delayG' in EXP: k("  s_sleep 39")
    k(f"""
  s_waitcnt lgkmcnt(0)
  v_lshrrev_b32 v56, 4, v16
  v_and_b32 v57, 15, v16
  v_mul_u32_u24 v58, {74*1024}, v56
  v_lshl_add_u32 v58, v17, 9, v58
  v_lshl_add_u32 v58, v57, 4, v58
  v_mul_u32_u24 v59, {160*128}, v56
  v_lshl_add_u32 v59, v17, 7, v59
  v_lshl_add_u32 v59, v57, 3, v59
  s_lshl_b32 s48, s36, 3
  s_lshl_b32 s49, s43, 2
  s_add_u32 s48, s48, s49""")
    decode_b(k)
    epi_g_part(k, 0, 0); epi_g_part(k, 0, 1)
    epi_g_part(k, 1, 0, wait_older=True)
    k("  s_barrier")
    kb.stamp(k, 5)
    store_flag(k, 39, 0, f"  s_lshl_b32 s41, s36, 1\n  s_lshr_b32 s42, s38, 2\n  s_add_u32 s41, s41, s42\n  s_lshl_b32 s41, s41, 7\n  s_and_b32 s42, s38, 3\n  s_add_u32 s41, s41, s42\n  s_add_u32 s41, s41, {FL_H1}", "fh1")
    epi_g_part(k, 1, 1)
    kb.stamp(k, 8)
    k("  s_barrier")

def kv_q_store(k, accs):
    k(f"""
  v_lshrrev_b32 v2, 4, v16
  v_and_b32 v0, 15, v16
  v_mul_u32_u24 v18, {160*128}, v2
  v_lshl_add_u32 v18, v17, 9, v18
  v_lshl_add_u32 v18, v0, 3, v18
  s_lshl_b32 s48, s36, 3
  s_lshl_b32 s49, s43, 2
  s_add_u32 s48, s48, s49""")
    for tb in range(2):
        k(f"""
  s_add_u32 s52, s48, {2*tb}
  s_mul_i32 s52, s52, 160
  s_lshl_b32 s53, s38, 4
  s_add_u32 s52, s52, s53
  s_lshl_b32 s53, s44, 3
  s_add_u32 s52, s52, s53
  s_lshl_b32 s52, s52, 7
  s_add_u32 s52, s52, {L.WS_Q}""")
        a = accs[tb]
        for g in range(4):
            r = 104 + 8*tb + 2*g
            k(f"  v_cvt_pk_bf16_f32 v{r}, v{a+4*g}, v{a+4*g+1}\n  v_cvt_pk_bf16_f32 v{r+1}, v{a+4*g+2}, v{a+4*g+3}")
            k(f"  buffer_store_dwordx2 v[{r}:{r+1}], v18, {R(R_WS)}, s52 offen offset:{g*128} sc1")
def q_flag(k):
    k(f"""
  s_lshl_b32 s41, s36, 1
  s_lshr_b32 s42, s39, 1                   ; Th
  s_add_u32 s41, s41, s42
  s_lshl_b32 s41, s41, 2
  s_lshr_b32 s42, s38, 1
  s_add_u32 s41, s41, s42
  s_lshl_b32 s41, s41, 7
  s_and_b32 s42, s38, 1
  s_lshl_b32 s42, s42, 1
  s_add_u32 s41, s41, s42
  s_and_b32 s42, s39, 1                    ; Fh
  s_add_u32 s41, s41, s42
  s_add_u32 s41, s41, {FL_Q}
  v_mov_b32 v2, s41
  v_mov_b32 v0, 1
  s_mov_b64 exec, 1
  buffer_store_byte v0, v2, {R(R_WS)}, 0 offen sc1
  s_mov_b64 exec, -1""")
def pf_flag(k):
    k(f"""
  s_lshl_b32 s41, s38, 4
  s_add_u32 s41, s41, s36
  s_lshl_b32 s41, s41, 7
  s_add_u32 s41, s41, s39
  s_add_u32 s41, s41, {FL_PF}
  v_mov_b32 v2, s41
  v_mov_b32 v0, 1
  s_mov_b64 exec, 1
  buffer_store_byte v0, v2, {R(R_WS)}, 0 offen sc1
  s_mov_b64 exec, -1""")
def kv_pass2(k):
    F_FWD_HI = 0xd8e1e48d
    A2 = [128, 144]
    k(f"""
  v_and_b32 v16, 31, v1
  v_lshrrev_b32 v17, 5, v1
  v_lshrrev_b32 v18, 1, v16
  v_and_b32 v18, 7, v18
  v_xor_b32 v18, v17, v18
  v_lshlrev_b32 v18, 4, v18
  v_lshl_add_u32 v18, v16, 7, v18
  s_lshl_b32 s45, s43, 13
  v_add_u32 v{VXB[0]}, s45, v18
  v_xor_b32 v{VXB[1]}, 32, v{VXB[0]}
  v_xor_b32 v{VXB[2]}, 64, v{VXB[0]}
  v_xor_b32 v{VXB[3]}, 96, v{VXB[0]}
  v_mov_b32 v{VXA[0]}, v{VXB[0]}
  v_mov_b32 v{VXA[1]}, v{VXB[1]}
  v_mov_b32 v{VXA[2]}, v{VXB[2]}
  v_mov_b32 v{VXA[3]}, v{VXB[3]}
  s_mov_b32 s47, 16384
  v_lshrrev_b32 v18, 4, v1                 ; G
  v_lshrrev_b32 v19, 2, v1
  v_and_b32 v19, 3, v19                    ; r
  v_and_b32 v20, 3, v1                     ; c
  v_lshrrev_b32 v21, 1, v18
  v_lshl_add_u32 v21, v21, 3, v19
  v_lshlrev_b32 v21, 7, v21
  v_add_u32 v21, {W2B}, v21
  v_lshrrev_b32 v22, 1, v19
  v_lshlrev_b32 v22, 2, v22                ; swizzle
  v_and_b32 v23, 1, v18
  v_lshlrev_b32 v23, 1, v23
  v_lshrrev_b32 v24, 1, v20
  v_add_u32 v23, v23, v24                  ; j'
  v_and_b32 v24, 1, v20                    ; hh'
  s_lshl_b32 s45, s44, 3
  v_lshl_add_u32 v25, v24, 2, s45
  v_add_u32 v25, v25, v23
  v_lshrrev_b32 v26, 1, v25                ; chunk
  v_add_u32 v27, 8, v26
  v_lshlrev_b32 v27, 1, v27
  v_mov_b32 v28, {hex(F_FWD_HI)}
  v_lshrrev_b32 v28, v27, v28
  v_and_b32 v28, 3, v28
  v_and_b32 v26, 4, v26
  v_or_b32 v26, v26, v28                   ; position
  v_xor_b32 v26, v26, v22
  v_and_b32 v25, 1, v25
  v_lshl_add_u32 v26, v26, 4, v21
  v_lshl_add_u32 v12, v25, 3, v26
  v_lshrrev_b32 v23, 3, v16
  v_add_u32 v23, 10, v23                   ; q
  v_lshrrev_b32 v24, 2, v23                ; b
  v_and_b32 v23, 3, v23                    ; slot
  v_and_b32 v25, 7, v16                    ; 4 hq + i
  v_lshl_add_u32 v25, v23, 3, v25
  v_lshl_add_u32 v25, v24, 5, v25
  s_lshl_b32 s45, s44, 7
  v_add_u32 v25, s45, v25
  v_lshlrev_b32 v25, 4, v25
  v_add_u32 v25, {TT}, v25
  v_mov_b32 v26, {ZR}
  v_cmp_eq_u32 vcc, 0, v17
  v_cndmask_b32 v13, v26, v25, vcc""")
    for i in range(32): k(f"  v_mov_b32 v{128+i}, 0")
    XS = [80, 44]; WS_ = [112, 18]
    def rd(m):
        st = m % 2; out = []
        for ks in range(4):
            out += [f"  ds_read_b128 v[{XS[st]+8*ks+4*tb}:{XS[st]+8*ks+4*tb+3}], v{VXA[ks]} offset:{tb*4096}" for tb in range(2)]
            out += [f"  ds_read_b64_tr_b16 v[{WS_[st]+4*ks+2*t}:{WS_[st]+4*ks+2*t+1}], v12 offset:{W2S[m % 5] - W2B + ks*2048 + t*512}" for t in range(2)]
        return out
    def mm(m):
        st = m % 2
        return [f"  v_mfma_f32_32x32x16_bf16 v[{A2[tb]}:{A2[tb]+15}], v[{WS_[st]+4*ks}:{WS_[st]+4*ks+3}], v[{XS[st]+8*ks+4*tb}:{XS[st]+8*ks+4*tb+3}], v[{A2[tb]}:{A2[tb]+15}]"
                for ks in range(4) for tb in range(2)]
    k("  s_barrier")
    for l in rd(0): k(l)
    for m in range(10):
        if m < 9:
            for i in range(4): k(f"  v_add_u32 v{VXA[i]}, {X2S[(m + 1) % 5]}, v{VXB[i]}")
        k("  s_waitcnt lgkmcnt(0)\n  s_barrier")
        nxt = rd(m + 1) if m < 9 else [f"  ds_read_b128 v[{FW[0][0]}:{FW[0][0]+3}], v13"]
        for x in mm(m):
            k(x)
            for _ in range(2):
                if nxt: k(nxt.pop(0))
        if m == 2:
            k("  s_waitcnt vmcnt(0)"); pf_flag(k); kb.stamp(k, 36)
        if m == 4: red_poll(k)
        if m == 6: red_issue(k)
        if m == 9: red_sum(k)
    k("  s_waitcnt lgkmcnt(0)\n  s_barrier")
    for tb in range(2):
        s_ = 36 + 4*tb; d = FX[0][tb]
        k(f"""
  v_sub_f32 v45, 0, v{s_}
  v_cvt_pk_bf16_f32 v{d}, v45, v45
  v_and_b32 v46, 0xffff0000, v{d}
  v_sub_f32 v46, v45, v46
  v_cvt_pk_bf16_f32 v{d+1}, v46, 0
  v_mov_b32 v{d+2}, 0
  v_mov_b32 v{d+3}, 0
  v_cmp_eq_u32 vcc, 0, v17
  v_cndmask_b32 v{d}, 0, v{d}, vcc
  v_cndmask_b32 v{d+1}, 0, v{d+1}, vcc""")
    for tb in range(2):
        k(f"  v_mfma_f32_32x32x16_bf16 v[{A2[tb]}:{A2[tb]+15}], v[{FW[0][0]}:{FW[0][0]+3}], v[{FX[0][tb]}:{FX[0][tb]+3}], v[{A2[tb]}:{A2[tb]+15}]")
    kv_q_store(k, A2)
    k("  s_waitcnt vmcnt(0)")
    q_flag(k)
    red_flag(k, 1); kb.stamp(k, 38)
    k("  s_barrier")
def epi_kv(k):
    if 'delayK' in EXP: k("  s_sleep 39")
    decode_b(k)
    WA = WA_KV; KB_ = 80
    k(f"""
  s_lshl_b32 s45, s43, 6
  v_add_u32 v32, s45, v16
  s_lshl_b32 s45, s44, 1
  v_add_u32 v33, s45, v17
  v_mul_u32_u24 v34, {PHI_P}, v32
  v_mul_u32_u24 v35, 80, v33
  v_add_u32 v34, v34, v35
  v_add_u32 v34, {PHI}, v34
  v_mul_u32_u24 v35, {VV_P}, v32
  v_mul_u32_u24 v33, 48, v33
  v_add_u32 v35, v35, v33
  v_add_u32 v35, {VV}, v35""")
    for tb in range(2):
        a = ACC + tb*64
        for i in range(10): k(f"  v_cvt_pk_bf16_f32 v{KB_+12*tb+i}, v{a+2*i}, v{a+2*i+1}")
        k(f"  v_mov_b32 v{KB_+12*tb+10}, 0\n  v_mov_b32 v{KB_+12*tb+11}, 0")
    if not TP: kv_q_store(k, [ACC + 40, ACC + 64 + 40])
    k("  s_waitcnt lgkmcnt(0)")
    B1 = [112, 18]
    for st in range(3):
        for tb in range(2):
            for beta in range(2):
                d = (ACC + tb*64 + 40) if beta == 0 else B1[tb]
                c = "0" if st == 0 else f"v[{d}:{d+15}]"
                w = WA + (beta*3 + st)*4
                k(f"  v_mfma_f32_32x32x16_bf16 v[{d}:{d+15}], v[{w}:{w+3}], v[{KB_+12*tb+4*st}:{KB_+12*tb+4*st+3}], {c}")
    VB = 44
    for tb in range(2):
        a = ACC + tb*64; s_ = 36 + 4*tb
        k(f"  v_mov_b32 v4, v{s_+1}\n  v_mov_b32 v5, v{s_+1}")
        for i in range(10): k(f"  v_pk_mul_f32 v[{a+20+2*i}:{a+21+2*i}], v[{a+20+2*i}:{a+21+2*i}], v[4:5]")
        for i in range(10): k(f"  v_cvt_pk_bf16_f32 v{VB+i}, v{a+20+2*i}, v{a+21+2*i}")
        k(f"  v_mov_b32 v{VB+10}, 0x3f80\n  v_mov_b32 v{VB+11}, 0")
        for c in range(3): k(f"  ds_write_b128 v35, v[{VB+4*c}:{VB+4*c+3}] offset:{tb*32*VV_P + 16*c}")
    for tb in range(2):
        a = ACC + tb*64; s_ = 36 + 4*tb
        for i in range(4): k(f"  v_mov_b32 v{a+56+i}, v{B1[tb]+i}")
        PH = 80 + 0
        softmax_pair(k, [a + 40 + i for i in range(20)], s_ + 1, a, PH, T=44)
        for c in range(5): k(f"  ds_write_b128 v34, v[{PH+4*c}:{PH+4*c+3}] offset:{tb*32*PHI_P + 16*c}")
        if tb == 0 and not TP:
            k("  s_waitcnt vmcnt(0)"); q_flag(k)
    k("  s_waitcnt lgkmcnt(0)\n  s_barrier")
    kb.stamp(k, 5)
    k(f"""
  v_lshrrev_b32 v18, 4, v1
  v_lshrrev_b32 v19, 2, v1
  v_and_b32 v19, 3, v19
  v_and_b32 v20, 3, v1
  v_lshrrev_b32 v21, 1, v18
  v_lshl_add_u32 v21, v21, 3, v19
  v_and_b32 v22, 1, v18
  v_lshlrev_b32 v22, 2, v22
  v_add_u32 v22, v22, v20
  v_mul_u32_u24 v23, {PHI_P}, v21
  s_mul_i32 s45, s39, 80
  s_add_u32 s45, s45, {PHI}
  v_add_u32 v23, s45, v23
  v_lshl_add_u32 v24, v22, 3, v23
  v_and_b32 v25, 1, v22
  v_lshl_add_u32 v25, v25, 3, v23
  v_add_u32 v25, 64, v25
  v_mul_u32_u24 v26, {VV_P}, v21
  s_mul_i32 s45, s39, 48
  s_add_u32 s45, s45, {VV}
  v_add_u32 v26, s45, v26
  v_min_u32 v27, 5, v22
  v_lshl_add_u32 v26, v27, 3, v26""")
    KA = 48; FA = 128
    def rd(st):
        base = FA + st*12
        for t in range(2):
            tok = 16*st + 4*t
            k(f"  ds_read_b64_tr_b16 v[{base+2*t}:{base+2*t+1}], v24 offset:{tok*PHI_P}")
            k(f"  ds_read_b64_tr_b16 v[{base+4+2*t}:{base+5+2*t}], v25 offset:{tok*PHI_P}")
            k(f"  ds_read_b64_tr_b16 v[{base+8+2*t}:{base+9+2*t}], v26 offset:{tok*VV_P}")
    rd(0); rd(1)
    k(f"""
  v_lshlrev_b32 v28, 2, v16
  v_mul_u32_u24 v29, {4*96}, v17
  v_add_u32 v28, v28, v29
  s_mul_i32 s46, s39, 3840
  s_add_u32 s46, s46, {KPS}
  v_add_u32 v28, s46, v28
  v_lshlrev_b32 v30, 4, v1
  v_add_u32 v31, s46, v30
  s_lshl_b32 s45, s38, 4
  s_add_u32 s45, s45, s36                  ; j*16 + i
  s_mul_i32 s45, s45, 160
  s_mul_i32 s46, s39, 40
  s_add_u32 s45, s45, s46
  s_mul_i32 s45, s45, 96
  s_add_u32 s45, s45, {L.WS_KP}""")
    for st in range(8):
        k(f"  s_waitcnt lgkmcnt({6 if st < 7 else 0})")
        base = FA + st*12
        for beta in range(2):
            c = "0" if st == 0 else f"v[{KA+16*beta}:{KA+16*beta+15}]"
            k(f"  v_mfma_f32_32x32x16_bf16 v[{KA+16*beta}:{KA+16*beta+15}], v[{base+4*beta}:{base+4*beta+3}], v[{base+8}:{base+11}], {c}")
        if st + 2 < 8: rd(st + 2)
    k("  v_cmp_gt_u32 vcc, 24, v16\n  s_and_saveexec_b64 s[50:51], vcc")
    for jp in range(4):
        for i in range(4):
            k(f"  ds_write_b32 v28, v{KA+4*jp+i} offset:{(8*jp+i)*96}")
    for i in range(4):
        k(f"  ds_write_b32 v28, v{KA+16+i} offset:{(32+i)*96}")
    k("  s_mov_b64 exec, s[50:51]\n  s_waitcnt lgkmcnt(0)")
    for r in range(4): k(f"  ds_read_b128 v[{80+4*r}:{83+4*r}], v31 offset:{r*1024}")
    k("  v_mov_b32 v29, 0x7fff0000\n  v_cmp_gt_u32 vcc, 48, v1\n  v_cndmask_b32 v29, v29, v30, vcc")
    for r in range(4):
        k(f"  s_waitcnt lgkmcnt({3-r})")
        k(f"  buffer_store_dwordx4 v[{80+4*r}:{83+4*r}], v{30 if r < 3 else 29}, {R(R_WS)}, s45 offen offset:{r*1024} sc1")
    kb.stamp(k, 8)
    if TP: kv_pass2(k)
    else: k("  s_barrier")

def softmax_1(k, P, vr1, E, T=44):
    k(f"  v_max3_f32 v{T+0}, v{P[0]}, v{P[1]}, v{P[2]}\n  v_min3_f32 v{T+1}, v{P[0]}, v{P[1]}, v{P[2]}")
    k(f"  v_max3_f32 v{T+2}, v{P[3]}, v{P[4]}, v{P[5]}\n  v_min3_f32 v{T+3}, v{P[3]}, v{P[4]}, v{P[5]}")
    for i in range(6, 18, 4):
        k(f"  v_max3_f32 v{T+0}, v{T+0}, v{P[i]}, v{P[i+1]}\n  v_min3_f32 v{T+1}, v{T+1}, v{P[i]}, v{P[i+1]}")
        k(f"  v_max3_f32 v{T+2}, v{T+2}, v{P[i+2]}, v{P[i+3]}\n  v_min3_f32 v{T+3}, v{T+3}, v{P[i+2]}, v{P[i+3]}")
    k(f"  v_max3_f32 v{T+0}, v{T+0}, v{P[18]}, v{P[19]}\n  v_min3_f32 v{T+1}, v{T+1}, v{P[18]}, v{P[19]}")
    k(f"  v_max_f32 v{T+0}, v{T+0}, v{T+2}\n  v_min_f32 v{T+1}, v{T+1}, v{T+3}")
    k(f"""
  v_mul_f32 v{T+2}, {fl(LOG2E)}, v{vr1}
  v_mov_b32 v{T+3}, v{T+2}
  v_mul_f32 v2, v{T+0}, v{T+2}
  v_mul_f32 v0, v{T+1}, v{T+2}
  v_sub_f32 v{T+0}, 0, v2
  v_sub_f32 v{T+1}, 0, v2""")
    for i in range(10):
        k(f"  v_pk_fma_f32 v[{E+2*i}:{E+2*i+1}], v[{P[2*i]}:{P[2*i]+1}], v[{T+2}:{T+3}], v[{T}:{T+1}]")
    k(f"  v_mov_b32 v{T+0}, v0\n  v_mov_b32 v{T+1}, v0")
    for i in range(10):
        k(f"  v_pk_fma_f32 v[{E+20+2*i}:{E+21+2*i}], v[{P[2*i]}:{P[2*i]+1}], v[{T+2}:{T+3}], v[{T}:{T+1}] neg_lo:[1,0,0] neg_hi:[1,0,0]")
    for i in range(20): k(f"  v_exp_f32 v{E+i}, v{E+i}")
def softmax_2(k, E, T=44):
    for i in range(20, 40): k(f"  v_exp_f32 v{E+i}, v{E+i}")
    for h_ in range(2):
        b0 = E + 20*h_; d = T + 2*h_
        k(f"  v_pk_add_f32 v[{d}:{d+1}], v[{b0}:{b0+1}], v[{b0+2}:{b0+3}]")
    for i in range(2, 10):
        for h_ in range(2):
            b0 = E + 20*h_; d = T + 2*h_
            k(f"  v_pk_add_f32 v[{d}:{d+1}], v[{d}:{d+1}], v[{b0+2*i}:{b0+2*i+1}]")
    k(f"  v_add_f32 v{T+0}, v{T+0}, v{T+1}\n  v_add_f32 v{T+2}, v{T+2}, v{T+3}\n  v_rcp_f32 v{T+0}, v{T+0}\n  v_rcp_f32 v{T+2}, v{T+2}")
    k(f"  v_mov_b32 v{T+1}, v{T+0}\n  v_mov_b32 v{T+3}, v{T+2}")
def softmax_3(k, E, PH, T=44):
    for i in range(10):
        for h_ in range(2):
            b0 = E + 20*h_; d = T + 2*h_
            k(f"  v_pk_mul_f32 v[{b0+2*i}:{b0+2*i+1}], v[{b0+2*i}:{b0+2*i+1}], v[{d}:{d+1}]")
    for h_ in range(2):
        for i in range(10):
            k(f"  v_cvt_pk_bf16_f32 v{PH+10*h_+i}, v{E+20*h_+2*i}, v{E+20*h_+2*i+1}")
def softmax_pair(k, P, vr1, E, PH, T=44):
    softmax_1(k, P, vr1, E, T); softmax_2(k, E, T); softmax_3(k, E, PH, T)

VS = [4, 5, 6, 7]; VA = [8, 9, 10, 11]
FR = [64 + 24*s for s in range(4)]
ACCB = 32
XT = 2*SLOT + 10240
BT = 161280

def decode_b(k):
    k(f"""
  s_lshr_b32 s40, s2, 3
  s_and_b32 s{S_I64}, s2, 3
  s_lshl_b32 s{S_I64}, s{S_I64}, 3
  s_lshr_b32 s41, s40, 2
  s_add_u32 s{S_I64}, s{S_I64}, s41
  s_lshr_b32 s{S_JB}, s2, 2
  s_and_b32 s{S_JB}, s{S_JB}, 1
  s_lshl_b32 s{S_JB}, s{S_JB}, 2
  s_and_b32 s41, s40, 3
  s_add_u32 s{S_JB}, s{S_JB}, s41
  s_lshl_b32 s{S_T16}, s{S_I64}, 2
  s_add_u32 s{S_T16}, s{S_T16}, s39""")

def breads(st4, ks):
    base = FR[ks]
    r = [f"  ds_read_b128 v[{base}:{base+3}], v{VA[st4]} offset:{ks*1024}"]
    for cb in range(5):
        r.append(f"  ds_read_b128 v[{base+4+4*cb}:{base+7+4*cb}], v{VS[st4]} offset:{(ks*5+cb)*1024}")
    return r
def bmfma(ks):
    base = FR[ks]
    return [f"  v_mfma_f32_16x16x32_bf16 v[{ACCB+4*cb}:{ACCB+4*cb+3}], v[{base+4+4*cb}:{base+7+4*cb}], v[{base}:{base+3}], v[{ACCB+4*cb}:{ACCB+4*cb+3}]" for cb in range(5)]
def bstage(k, j, next_nks=4, pre_barrier=None, post_barrier=None, extra=None):
    st4 = j % 4
    extra = list(extra or [])
    per = (len(extra) + 19)//20
    for ks in range(4):
        mf = bmfma(ks)
        if ks < 2:
            rd = [(l, ("r", j, ks + 2)) for l in breads(st4, ks + 2)]
            k.wait_ds(("r", j, ks))
        else:
            if ks == 2:
                k.wait_ds(("r", j, 3))
                if pre_barrier: k(pre_barrier)
                k("  s_barrier")
                if post_barrier: post_barrier(k)
            rd = [(l, ("r", j + 1, ks - 2)) for l in breads((st4 + 1) % 4, ks - 2)] if ks - 2 < next_nks else []
        for i, m in enumerate(mf):
            k(m)
            if rd: k.ds(*rd.pop(0))
            for _ in range(per):
                if extra: kb.replay(k, extra.pop(0))
        while rd: k.ds(*rd.pop(0))
    while extra: kb.replay(k, extra.pop(0))

def compute_b(k, role):
    P = SCHED[role]; P1_J = P['P1_J']; RED_J = P['RED_J']; P2_J = P['KVJ'] + 1; OFLAG_J = min(11, P2_J + P['OFLAG_D'])
    k(f"""
  v_and_b32 v16, 15, v1
  v_lshrrev_b32 v17, 4, v1
  s_lshl_b32 s45, s{S_T16}, 4
  v_add_u32 v19, s45, v16
  v_mul_u32_u24 v24, 1280, v19
  s_mul_i32 s45, s{S_JB}, 160
  v_lshl_add_u32 v25, v17, 3, s45
  v_add_u32 v24, v24, v25
  v_lshlrev_b32 v22, 4, v1
  s_lshl_b32 s44, s39, 12
  s_add_u32 s44, s44, 20480""")
    for s in range(4):
        k(f"  v_add_u32 v{VS[s]}, {s*SLOT}, v22\n  v_add_u32 v{VA[s]}, s44, v{VS[s]}")
    for i in range(20): k(f"  v_mov_b32 v{ACCB+i}, 0")
    op_addr(k)
    if role == "kv" and TP: pass
    elif role == "kv":
        k("  s_waitcnt vmcnt(0)"); pf_flag(k)
        kb.stamp(k, 36)
        red_poll(k); red_issue(k); red_sum(k)
        if 'kflate' not in EXP:
            red_flag(k); kb.stamp(k, 38)
    k("  s_barrier")
    kb.stamp(k, 9)
    kb.stamp(k, 44, rt=True)
    k.lg = []
    for ks in range(2):
        for l in breads(0, ks): k.ds(l, ("r", 0, ks))
    def flagH2(k):
        k(f"  s_cmp_eq_u32 s37, 0\n  s_cbranch_scc1 {k.L('fh2_b')}")
        store_flag(k, 39, 0, f"  s_lshl_b32 s41, s36, 1\n  s_lshr_b32 s42, s38, 2\n  s_add_u32 s41, s41, s42\n  s_lshl_b32 s41, s41, 7\n  s_and_b32 s42, s38, 3\n  s_add_u32 s41, s41, s42\n  s_add_u32 s41, s41, {FL_H2}", "fh2")
        k(f"{k.L('fh2_b')}:")
    def flagO(k):
        k(f"""
  s_waitcnt vmcnt(0)
  s_lshl_b32 s41, s{S_T16}, 1
  s_lshr_b32 s42, s{S_JB}, 2
  s_add_u32 s41, s41, s42
  s_lshl_b32 s41, s41, 7
  s_and_b32 s42, s{S_JB}, 3
  s_add_u32 s41, s41, s42
  s_add_u32 s41, s41, {FL_O}
  v_mov_b32 v2, s41
  v_mov_b32 v0, 1
  s_mov_b64 exec, 1
  buffer_store_byte v0, v2, {R(R_WS)}, 0 offen sc1
  s_mov_b64 exec, -1""")
    for j in range(17):
        kw = {}
        if j == 0: kw = dict(post_barrier=op_q_issue)
        if j == 1:
            kw = dict(pre_barrier=f"  s_cmp_eq_u32 s37, 0\n  s_cbranch_scc1 {k.L('h2w')}\n  s_waitcnt vmcnt(6)\n{k.L('h2w')}:", post_barrier=flagH2)
        bstage(k, j, **kw)
        if j == P1_J:
            kb.stamp(k, 11); pause1(k); kb.stamp(k, 12)
        if j == P2_J:
            kb.stamp(k, 13); pause2(k); kb.stamp(k, 14)
        if role == "kv" and j == 0 and 'kflate' in EXP and not TP:
            red_flag(k); kb.stamp(k, 38)
        if j == OFLAG_J:
            flagO(k); kb.stamp(k, 39)
    bstage(k, 17, next_nks=2)
    k("  s_waitcnt lgkmcnt(0)")
    for ks in range(2):
        for m in bmfma(ks): k(m)
    kb.stamp(k, 10)
    k(f"""
  s_lshl_b32 s44, s39, 4
  v_add_u32 v52, s44, v16
  v_mul_u32_u24 v52, 160, v52
  v_lshl_add_u32 v52, v17, 3, v52
  v_add_u32 v52, {XT}, v52
  v_lshlrev_b32 v53, 3, v17
  v_add_u32 v53, {BT}, v53""")
    for cb in range(5):
        k(f"  ds_read_b64 v[{64+2*cb}:{65+2*cb}], v52 offset:{32*cb}\n  ds_read_b64 v[{76+2*cb}:{77+2*cb}], v53 offset:{32*cb}")
    for i in range(3):
        k(f"""
  v_add_u32 v{88+i}, {64*i}, v1
  v_mul_u32_u24 v91, 6554, v{88+i}
  v_lshrrev_b32 v91, 16, v91               ; row
  v_mul_u32_u24 v92, 10, v91
  v_sub_u32 v92, v{88+i}, v92              ; c
  s_lshl_b32 s44, s39, 4
  v_add_u32 v93, s44, v91
  v_mul_u32_u24 v{94+i}, 160, v93
  v_lshl_add_u32 v{94+i}, v92, 4, v{94+i}
  v_add_u32 v{94+i}, {XT}, v{94+i}
  s_lshl_b32 s44, s{S_T16}, 4
  v_add_u32 v91, s44, v91
  v_mul_u32_u24 v91, 1280, v91
  v_lshl_add_u32 v91, v92, 4, v91
  s_mul_i32 s44, s{S_JB}, 160
  v_add_u32 v{97+i}, s44, v91""")
    k(f"  v_mov_b32 v91, 0x7fff0000\n  v_cmp_gt_u32 vcc, 160, v90\n  v_cndmask_b32 v99, v91, v99, vcc\n  v_mov_b32 v91, {XT}\n  v_cndmask_b32 v96, v91, v96, vcc")
    k("  s_waitcnt lgkmcnt(0)")
    for cb in range(5):
        a = ACCB + 4*cb; x = 64 + 2*cb; b = 76 + 2*cb
        k(f"""
  v_lshlrev_b32 v52+0, 16, v{x}
  v_and_b32 v55, 0xffff0000, v{x}
  v_lshlrev_b32 v56, 16, v{x+1}
  v_and_b32 v57, 0xffff0000, v{x+1}
  v_lshlrev_b32 v58, 16, v{b}
  v_and_b32 v59, 0xffff0000, v{b}
  v_lshlrev_b32 v60, 16, v{b+1}
  v_and_b32 v61, 0xffff0000, v{b+1}
  v_pk_add_f32 v[54:55], v[54:55], v[58:59]
  v_pk_add_f32 v[56:57], v[56:57], v[60:61]
  v_pk_add_f32 v[{a}:{a+1}], v[{a}:{a+1}], v[54:55]
  v_pk_add_f32 v[{a+2}:{a+3}], v[{a+2}:{a+3}], v[56:57]
  v_cvt_pk_bf16_f32 v62, v{a}, v{a+1}
  v_cvt_pk_bf16_f32 v63, v{a+2}, v{a+3}
  ds_write_b64 v52, v[62:63] offset:{32*cb}""".replace("v52+0", "v54"))
    k("  s_waitcnt lgkmcnt(0)")
    for i in range(3): k(f"  ds_read_b128 v[{100+4*i}:{103+4*i}], v{94+i}")
    for i in range(3):
        k(f"  s_waitcnt lgkmcnt({2-i})\n  buffer_store_dwordx4 v[{100+4*i}:{103+4*i}], v{97+i}, {R(R_OUT)}, 0 offen {'nt' if 'outnt' in EXP else 'sc1' if 'outsc1' in EXP else ''}")
    if kb.PROF:
        k("  s_waitcnt vmcnt(0)")
        kb.stamp(k, 6, rt=True); kb.dump(k, S_WS)
    k("  s_endpgm")

def wfrag(i): return 112 + 4*i
OQ = 172; OP = 184; OPH = 160; OB = 244
def op_addr(k):
    k(f"""
  v_lshrrev_b32 v26, 2, v1
  v_and_b32 v26, 3, v26
  v_and_b32 v27, 3, v1
  v_lshlrev_b32 v28, 10, v17
  v_mul_u32_u24 v29, 40, v26
  v_add_u32 v28, v28, v29
  v_add_u32 v28, {WPB}, v28
  v_mov_b32 v29, {ZB}
  v_cmp_eq_u32 vcc, v27, v17
  v_cndmask_b32 v28, v29, v28, vcc
  v_mul_u32_u24 v30, {40*KVP}, v17
  v_mul_u32_u24 v31, {KVP}, v26
  v_add_u32 v30, v30, v31
  v_add_u32 v30, {KVB}, v30
  v_cndmask_b32 v30, v29, v30, vcc""")
QR1 = 21
def q_poll_issue(k):
    k(f"""
  s_lshr_b32 s41, s{S_I64}, 1
  s_lshl_b32 s41, s41, 7
  s_and_b32 s42, s{S_I64}, 1
  s_lshl_b32 s42, s42, 4
  s_add_u32 s41, s41, s42
  v_lshlrev_b32 v77, 2, v1
  v_min_u32 v77, 16, v77
  v_add_u32 v77, s41, v77
  v_add_u32 v78, {FL_Q}, v77
  s_lshr_b32 s41, s{S_I64}, 1
  s_lshl_b32 s41, s41, 7
  s_add_u32 s41, s41, {FL_H1 + 4}
  v_mov_b32 v77, s41
  v_cmp_gt_u32 vcc, 4, v1
  v_cndmask_b32 v77, v77, v78, vcc
  buffer_load_dword v76, v77, {R(R_WS)}, 0 offen sc1""")
def q_poll_check(k, lbl):
    k(f"""
  v_mov_b32 v78, 0x01000000
  v_mov_b32 v79, 0x01010101
  v_cmp_gt_u32 vcc, 4, v1
  v_cndmask_b32 v78, v78, v79, vcc
{k.L(lbl + '_t')}:
  v_and_b32 v79, v76, v78
  v_cmp_ne_u32 vcc, v79, v78
  s_cmp_eq_u64 vcc, 0
  s_cbranch_scc1 {k.L(lbl + '_ok')}
  s_sleep 2
  buffer_load_dword v76, v77, {R(R_WS)}, 0 offen sc1
  s_waitcnt vmcnt(0)
  s_branch {k.L(lbl + '_t')}
{k.L(lbl + '_ok')}:""")
def op_q_issue(k):
    k(f"""
  v_and_b32 v12, 15, v1                    ; n'
  v_lshrrev_b32 v13, 4, v1                 ; g
  v_mul_u32_u24 v14, 640, v13
  v_lshl_add_u32 v14, v12, 3, v14
  s_mul_i32 s58, s{S_T16}, 160
  s_mul_i32 s59, s{S_JB}, 20
  s_add_u32 s58, s58, s59
  s_lshl_b32 s58, s58, 7
  s_add_u32 s58, s58, {L.WS_Q}
  s_lshl_b32 s59, s{S_T16}, 4
  v_add_u32 v15, s59, v12
  v_lshlrev_b32 v15, 4, v15""")
    for g in range(5):
        k(f"  buffer_load_dwordx2 v[{OQ+2*g}:{OQ+2*g+1}], v14, {R(R_WS)}, s58 offen offset:{128*g} sc1")
    k(f"  buffer_load_dword v{QR1}, v15, {R(R_WS)}, 0 offen offset:{L.WS_STATS + 4} sc1")
def red_cond(k, lbl):
    k(f"  s_lshl_b32 s41, s37, 2\n  s_or_b32 s41, s41, s39\n  s_cmp_eq_u32 s41, 0\n  s_cbranch_scc0 {k.L(lbl)}")
RT0 = 34 if int(os.environ.get('TP', 0)) else 18
def red_poll(k):
    red_cond(k, "rp_x")
    k(f"""
  s_lshl_b32 s41, s38, 11
  s_add_u32 s41, s41, {FL_PF}
  v_min_u32 v15, 15, v1
  v_lshlrev_b32 v15, 7, v15
  v_add_u32 v15, s41, v15
  buffer_load_dword v14, v15, {R(R_WS)}, 0 offen sc1
{k.L('rp_x')}:""")
RDR = [160 + 4*p for p in range(16)]
def red_issue(k):
    red_cond(k, "ri_x")
    k(f"""
  s_waitcnt vmcnt(0)
{k.L('ri_t')}:
  v_cmp_ne_u32 vcc, 0x01010101, v14
  s_cmp_eq_u64 vcc, 0
  s_cbranch_scc1 {k.L('ri_ok')}
{bound(k, 'ri')}
  s_sleep 1
  buffer_load_dword v14, v15, {R(R_WS)}, 0 offen sc1
  s_waitcnt vmcnt(0)
  s_branch {k.L('ri_t')}
{k.L('ri_ok')}:""")
    kb.stamp(k, 37)
    k(f"""
  v_lshlrev_b32 v{RT0}, 4, v1
  v_mov_b32 v{RT0+1}, 0x7fff0000
  v_cmp_gt_u32 vcc, 60, v1
  v_cndmask_b32 v{RT0}, v{RT0+1}, v{RT0}, vcc
  s_lshl_b32 s41, s38, 4
  s_mul_i32 s41, s41, 15360
  s_mul_i32 s42, s36, 960
  s_add_u32 s41, s41, s42
  s_add_u32 s41, s41, {L.WS_KP}""")
    for p in range(16):
        k(f"  buffer_load_dwordx4 v[{RDR[p]}:{RDR[p]+3}], v{RT0}, {R(R_WS)}, s41 offen sc1\n  s_add_u32 s41, s41, 15360")
    k(f"{k.L('ri_x')}:")
def red_sum(k):
    red_cond(k, "rs_x")
    k("  s_waitcnt vmcnt(0)")
    step = 1
    while step < 16:
        for p in range(0, 16, 2*step):
            a, b = RDR[p], RDR[p + step]
            k(f"  v_pk_add_f32 v[{a}:{a+1}], v[{a}:{a+1}], v[{b}:{b+1}]\n  v_pk_add_f32 v[{a+2}:{a+3}], v[{a+2}:{a+3}], v[{b+2}:{b+3}]")
        step *= 2
    a = RDR[0]
    k(f"""
  v_cvt_pk_bf16_f32 v{a}, v{a}, v{a+1}
  v_cvt_pk_bf16_f32 v{a+1}, v{a+2}, v{a+3}
  v_lshlrev_b32 v{RT0}, 3, v1
  v_mov_b32 v{RT0+1}, 0x7fff0000
  v_cmp_gt_u32 vcc, 60, v1
  v_cndmask_b32 v{RT0}, v{RT0+1}, v{RT0}, vcc
  s_mul_i32 s41, s38, 7680
  s_mul_i32 s42, s36, 480
  s_add_u32 s41, s41, s42
  s_add_u32 s41, s41, {L.WS_KV}
  buffer_store_dwordx2 v[{a}:{a+1}], v{RT0}, {R(R_WS)}, s41 offen sc1
{k.L('rs_x')}:""")
def red_flag(k, n=None):
    red_cond(k, "rf_x")
    k(f"""
  s_waitcnt vmcnt({n if n is not None else 6 if 'kflate' in EXP else 0})
  s_lshl_b32 s41, s38, 2
  s_lshr_b32 s42, s36, 2
  s_add_u32 s41, s41, s42
  s_lshl_b32 s41, s41, 7
  s_and_b32 s42, s36, 3
  s_add_u32 s41, s41, s42
  s_add_u32 s41, s41, {FL_KF}
  v_mov_b32 v2, s41
  v_mov_b32 v0, 1
  s_mov_b64 exec, 1
  buffer_store_byte v0, v2, {R(R_WS)}, 0 offen sc1
  s_mov_b64 exec, -1
{k.L('rf_x')}:""")
def pause1(k):
    for b in range(5):
        for s_ in range(3):
            for t in range(2):
                reg = wfrag(b*3 + s_) + 2*t; d0 = 8*s_ + 4*t
                if d0 < 20: k.ds(f"  ds_read_b64_tr_b16 v[{reg}:{reg+1}], v28 offset:{d0*40 + 8*b}", "xw")
                else: k(f"  v_mov_b32 v{reg}, 0\n  v_mov_b32 v{reg+1}, 0")
    k(f"  v_mov_b32 v{OQ+10}, 0\n  v_mov_b32 v{OQ+11}, 0")
    k("  s_waitcnt vmcnt(0)")
    k.wait_ds("xw")
    for s_ in range(3):
        for b in range(5):
            c = "0" if s_ == 0 else f"v[{OP+4*b}:{OP+4*b+3}]"
            w = wfrag(b*3 + s_)
            k(f"  v_mfma_f32_16x16x32_bf16 v[{OP+4*b}:{OP+4*b+3}], v[{w}:{w+3}], v[{OQ+4*s_}:{OQ+4*s_+3}], {c}")
    softmax_pair(k, [OP + i for i in range(20)], QR1, 112, OPH, T=52)
def pause2(k):
    FA_, FB_ = 180, 112
    rounds = ([0, 1], [2, 3], [4, 5])
    OOx = 220
    def rd(ri):
        base = FA_ if ri % 2 == 0 else FB_
        for s_ in range(5):
            for bi, beta in enumerate(rounds[ri]):
                for t in range(2):
                    reg = base + (bi*5 + s_)*4 + 2*t
                    k.ds(f"  ds_read_b64_tr_b16 v[{reg}:{reg+1}], v30 offset:{(8*s_ + 4*t)*KVP + 8*beta}", ("xk", ri, s_))
    def mm(ri, nxt):
        base = FA_ if ri % 2 == 0 else FB_
        for s_ in range(5):
            k.wait_ds(("xk", ri, s_))
            for bi, beta in enumerate(rounds[ri]):
                c = "0" if s_ == 0 else f"v[{OOx+4*beta}:{OOx+4*beta+3}]"
                w = base + (bi*5 + s_)*4
                k(f"  v_mfma_f32_16x16x32_bf16 v[{OOx+4*beta}:{OOx+4*beta+3}], v[{w}:{w+3}], v[{OPH+4*s_}:{OPH+4*s_+3}], {c}")
            for _ in range(4):
                if nxt: k.ds(*nxt.pop(0))
    def rdl(ri):
        r = kb.Rec(k); out = []
        base = FA_ if ri % 2 == 0 else FB_
        for s_ in range(5):
            for bi, beta in enumerate(rounds[ri]):
                for t in range(2):
                    reg = base + (bi*5 + s_)*4 + 2*t
                    out.append((f"  ds_read_b64_tr_b16 v[{reg}:{reg+1}], v30 offset:{(8*s_ + 4*t)*KVP + 8*beta}", ("xk", ri, s_)))
        return out
    rd(0)
    mm(0, rdl(1)); mm(1, rdl(2)); mm(2, [])
    k(f"  v_add_f32 v52, {fl(1e-6)}, v{OOx+20}\n  v_rcp_f32 v52, v52\n  s_nop 0\n  v_mov_b32 v53, v52")
    for i in range(10): k(f"  v_pk_mul_f32 v[{OOx+2*i}:{OOx+2*i+1}], v[{OOx+2*i}:{OOx+2*i+1}], v[52:53]")
    for i in range(10): k(f"  v_cvt_pk_bf16_f32 v{OB+i}, v{OOx+2*i}, v{OOx+2*i+1}")
    k(f"""
  s_mul_i32 s58, s{S_T16}, 74
  s_lshr_b32 s59, s{S_JB}, 1
  s_mul_i32 s59, s59, 5
  s_add_u32 s58, s58, s59
  s_add_u32 s58, s58, 54
  s_lshl_b32 s58, s58, 10
  s_add_u32 s58, s58, {L.WS_HO}
  s_bitcmp1_b32 s{S_JB}, 0
  s_cbranch_scc1 {k.L('o_odd')}
  buffer_store_dwordx4 v[{OB}:{OB+3}], v22, {R(R_WS)}, s58 offen sc1
  buffer_store_dwordx4 v[{OB+4}:{OB+7}], v22, {R(R_WS)}, s58 offen offset:1024 sc1
  buffer_store_dwordx2 v[{OB+8}:{OB+9}], v22, {R(R_WS)}, s58 offen offset:2048 sc1
  s_branch {k.L('o_done')}
{k.L('o_odd')}:
  buffer_store_dwordx2 v[{OB}:{OB+1}], v22, {R(R_WS)}, s58 offen offset:2056 sc1
  buffer_store_dwordx4 v[{OB+2}:{OB+5}], v22, {R(R_WS)}, s58 offen offset:3072 sc1
  s_add_u32 s58, s58, 4096
  buffer_store_dwordx4 v[{OB+6}:{OB+9}], v22, {R(R_WS)}, s58 offen sc1
{k.L('o_done')}:""")
def kv_dma(k):
    for r in range(2):
        k.begin()
        k(f"""
  s_lshl_b32 s58, s39, 1
  s_add_u32 s58, s58, {r}
  s_lshl_b32 s59, s58, 10
  v_add_u32 v60, s59, v4
  v_mov_b32 v61, 0x7fff0000
  v_cmp_gt_u32 vcc, 7680, v60
  v_cndmask_b32 v60, v61, v60, vcc
  s_add_u32 m0, s59, {KVB}
  s_mul_i32 s58, s{S_JB}, 7680
  s_add_u32 s58, s58, {L.WS_KV}""")
        k.vmem(f"  buffer_load_dwordx4 v60, {R(R_WS)}, s58 offen sc1 lds", "kvd")
        k.end()

def loader_kv2(k):
    F_INV = (0x9c1b39b4, 0xd8e1e472)
    k(f"""
  s_mov_b32 s20, s{R_WQ}
  s_mov_b32 s21, s{R_WQ+1}
  s_mov_b32 s22, s{R_WQ+2}
  v_lshrrev_b32 v13, 3, v1
  v_lshrrev_b32 v14, 1, v13
  v_and_b32 v14, 1, v14
  v_lshlrev_b32 v14, 2, v14
  v_and_b32 v15, 7, v1
  v_xor_b32 v15, v15, v14
  v_add_u32 v14, 8, v15                    ; (24 + p) & 15
  v_lshlrev_b32 v14, 1, v14
  v_mov_b32 v16, {hex(F_INV[1])}
  v_lshrrev_b32 v16, v14, v16
  v_and_b32 v16, 3, v16
  v_and_b32 v15, 4, v15
  v_or_b32 v15, v15, v16                   ; q chunk
  v_mul_u32_u24 v13, 3840, v13
  v_lshl_add_u32 v13, v15, 4, v13
  s_lshl_b32 s58, s38, 7
  v_add_u32 v{vDw}, s58, v13
  s_mul_i32 s100, s39, {16*3840}
  s_lshl_b32 s48, s39, 11""")
    def gW2(m):
        def mk(i):
            def f(k):
                k(f"  s_add_u32 m0, s48, {W2S[m % 5] + i*1024}\n  s_add_u32 s87, s100, {(64*m + 8*i)*3840}")
                k.vmem(f"  buffer_load_dwordx4 v{vDw}, {R(R_W)}, s87 offen lds", ("S2", m))
            return f
        return [mk(i) for i in range(2)]
    def gX2(m):
        def mk(i):
            def f(k):
                k(f"  s_add_u32 m0, s47, {X2S[m % 5] + i*1024}\n  s_add_u32 s87, s101, {m*128 + i*8*1280}")
                k.vmem(f"  buffer_load_dwordx4 v{vDx if i % 2 == 0 else vDx2}, {R(R_X)}, s87 offen lds", ("S2", m))
            return f
        return [mk(i) for i in range(4)]
    for f in gW2(0) + gX2(0) + gW2(1) + gX2(1) + gW2(2): f(k)
    k("  s_barrier")
    k.wait_vm(("S2", 0)) if False else None
    idx = [i for i, t in enumerate(k.vm) if t == ("S2", 0)][-1]
    k(f"  s_waitcnt vmcnt({len(k.vm) - 1 - idx})"); k.vm = k.vm[idx + 1:]
    k("  s_barrier")
    for f in gX2(2): f(k)
    plan = {0: [3], 1: [4, 5], 2: [6], 3: [7], 4: [8], 5: [9]}
    for m in range(10):
        if m + 1 <= 9: k.wait_vm(("S2", m + 1))
        k("  s_barrier")
        for q in plan.get(m, []):
            for f in gW2(q) + gX2(q): f(k)
    k("  s_barrier")

def loader_b_setup(k):
    decode_b(k)
    k(f"""
  v_lshlrev_b32 v4, 4, v1
  s_mul_i32 s44, s{S_JB}, {74*5*1024}
  s_mul_i32 s45, s39, {5*1024}
  s_add_u32 s44, s44, s45
  s_add_u32 s44, s44, {L.WS_W2}
  s_mul_i32 s46, s{S_T16}, {74*1024}
  s_add_u32 s46, s46, {L.WS_HO}""")
def gWP(lst):
    def mk(s_, cb):
        def f(k):
            k(f"  s_add_u32 s87, s44, {4*s_*5*1024 + cb*1024}")
            k.vmem(f"  buffer_load_dwordx4 v[{wpreg(s_, cb)}:{wpreg(s_, cb)+3}], v4, {R(R_WS)}, s87 offen sc1", ("WP", s_))
        return f
    return [mk(s_, cb) for (s_, cb) in lst]
NPF1 = int(os.environ.get('NPF1', 20))
WPL = [(s_, cb) for s_ in range(WP0, WP1 + 1) for cb in range(5)]
def loader_b(k, role):
    P = SCHED[role]; KVJ = P['KVJ']
    e1_done = False
    if TP and role == "kv":
        loader_kv2(k); role = "g"; e1_done = True
    if 'noprioB' not in EXP: k("  s_setprio 2")
    k(f"""
  s_mul_i32 s47, s39, {5*1024}
  s_lshl_b32 s48, s39, 12
  s_add_u32 s48, s48, 20480
  v_add_u32 v5, s47, v4""")
    def gDW(j):
        slot = (j % 4)*SLOT
        def mk(cb):
            def f(k):
                if j == 18:
                    k(f"""  s_add_u32 s87, s47, {slot + cb*1024}
  s_cmp_lt_u32 s39, 2
  s_cselect_b32 m0, s87, {ZB}
  s_cselect_b32 s26, {L.WS_END}, 0
  s_add_u32 s87, s44, {4*j*5*1024 + cb*1024}""")
                else:
                    k(f"  s_add_u32 m0, s47, {slot + cb*1024}\n  s_add_u32 s87, s44, {4*j*5*1024 + cb*1024}")
                k.vmem(f"  buffer_load_dwordx4 v4, {R(R_WS)}, s87 offen sc1 lds", ("D", j))
                if j == 18: k(f"  s_mov_b32 s26, {L.WS_END}")
            return f
        return [mk(cb) for cb in range(5)]
    def gDA(j):
        nks = 4 if j < 18 else 2
        slot = (j % 4)*SLOT
        def mk(ks):
            def f(k):
                k(f"  s_add_u32 m0, s48, {slot + ks*1024}\n  s_add_u32 s87, s46, {(4*j + ks)*1024}")
                k.vmem(f"  buffer_load_dwordx4 v4, {R(R_WS)}, s87 offen sc1 lds", ("D", j))
            return f
        return [mk(ks) for ks in range(nks)]
    def gWW(j):
        slot = (j % 4)*SLOT
        def mk(cb):
            def f(k):
                if cb == 0: k.wait_vm(("WP", j))
                k(f"  ds_write_b128 v5, v[{wpreg(j, cb)}:{wpreg(j, cb)+3}] offset:{cb*1024}" if slot == 0 else
                  f"  ds_write_b128 v{6 + (j % 4) - 1}, v[{wpreg(j, cb)}:{wpreg(j, cb)+3}] offset:{cb*1024}")
            return f
        return [mk(cb) for cb in range(5)]
    for q in (1, 2, 3): k(f"  v_add_u32 v{5+q}, {q*SLOT}, v5")
    gDW0 = gDW
    def gDW(j): return gWW(j) if WP0 <= j <= WP1 else gDW0(j)
    def DW(j):
        for f in gDW(j): f(k)
    def DA(j):
        for f in gDA(j): f(k)
    iB = f"  s_lshr_b32 s41, s{S_I64}, 1\n  s_lshl_b32 s41, s41, 8\n"
    DW(0); DW(1)
    if role == "g": DW(2); DW(3)
    rest = gWP(WPL[12:])
    for n, f in enumerate(rest[:NPF1]):
        f(k)
        if n % 4 == 3: k(f"  s_waitcnt vmcnt(6)")
    if not e1_done: k("  s_barrier")
    wphi_dma(k, f"  s_lshl_b32 s58, s{S_JB}, 2\n  s_add_u32 s58, s58, s39", WPB, False)
    k(f"""
  s_mov_b32 s{R_T+2}, 0
  s_and_b32 s58, s39, 1
  s_lshl_b32 s58, s58, 10
  s_add_u32 m0, s58, {ZB}""")
    k.vmem(f"  buffer_load_dwordx4 v40, {R(R_T)}, 0 offen lds", "side")
    def h1():
        poll_issue(k, 50, lines(50, iB + f"  s_add_u32 s41, s41, {FL_H1}", 2), "ph1", only0=False)
        poll_check(k, 50, "ph1", "ph1", only0=False, slp=2)
        DA(0); DA(1)
        if role == "g": DA(2); DA(3)
    if role == "g": h1()
    for n, f in enumerate(rest[NPF1:]):
        f(k)
        if n % 4 == 3: k(f"  s_waitcnt vmcnt(6)")
    k.wait_vm("side")
    k("  s_barrier")
    kb.stamp(k, 9)
    if role == "kv": h1()
    k.wait_vm(("D", 0))
    k("  s_barrier")
    kb.stamp(k, 10)
    poll_issue(k, 50, lines(50, f"  s_lshl_b32 s41, s{S_I64}, 9\n  s_add_u32 s41, s41, {FL_Q}", 4), "pq")
    if role == "kv": DA(2); DW(2)
    def res_dma(k):
        for r in range(3):
            k.begin()
            k(f"""
  s_add_u32 s58, s39, {4*r}
  s_lshl_b32 s59, s58, 6
  v_add_u32 v60, s59, v1
  v_mul_u32_u24 v61, 6554, v60
  v_lshrrev_b32 v61, 16, v61
  v_mul_u32_u24 v62, 10, v61
  v_sub_u32 v62, v60, v62
  s_lshl_b32 s59, s{S_I64}, 6
  v_add_u32 v61, s59, v61
  v_mul_u32_u24 v61, 1280, v61
  v_lshl_add_u32 v61, v62, 4, v61
  s_mul_i32 s59, s{S_JB}, 160
  v_add_u32 v61, s59, v61
  s_lshl_b32 s59, s58, 10
  s_add_u32 s59, s59, {XT}
  s_cmp_lt_u32 s58, 10
  s_cselect_b32 s59, s59, {ZB}
  s_cselect_b32 s58, 0, 0x7fff0000
  v_or_b32 v61, s58, v61
  s_mov_b32 m0, s59""")
            k.vmem(f"  buffer_load_dwordx4 v61, {R(R_X)}, 0 offen lds", ("D", 18))
            k.end()
        k.begin()
        k(f"""
  s_mul_i32 s58, s{S_JB}, 160
  s_add_u32 s{R_T}, s{S_B2}, s58
  s_addc_u32 s{R_T+1}, s{S_B2+1}, 0
  s_and_b32 s{R_T+1}, s{R_T+1}, 0xffff
  s_mov_b32 s{R_T+2}, 160
  s_mov_b32 s{R_T+3}, 0x20000
  s_mov_b32 m0, {BT}""")
        k.vmem(f"  buffer_load_dwordx4 v4, {R(R_T)}, 0 offen lds", ("D", 18))
        k.end()
    for j in range(NSTB - 1):
        if j == 12:
            poll_issue(k, 50, lines(50, f"  s_lshl_b32 s41, s{S_T16}, 8\n  s_add_u32 s41, s41, {FL_O}", 2), "po", only0=False)
            if 'nochain' not in EXP: poll_check(k, 50, "po", "po", only0=False, slp=1)
            kb.stamp(k, 63)
            for q in (13, 14, 15): DA(q)
            k.wait_vm(("D", 13)) if False else None
            idx = [i for i, t in enumerate(k.vm) if t == ("D", 13)][-1]
            k(f"  s_waitcnt vmcnt({len(k.vm) - 1 - idx})"); k.vm = k.vm[idx + 1:]
        else:
            k.wait_vm(("D", j + 1))
        if j == 0: poll_check(k, 50, "pq", "pq", slp=1)
        if j == 3: poll_check(k, 50, "ph2", "ph2", slp=1)
        if j == KVJ:
            if 'nochain' not in EXP: poll_check(k, 56, "pkv", "pkv", slp=1)
        if j == KVJ + 1: k.wait_vm("kvd")
        k("  s_waitcnt lgkmcnt(0)")
        k("  s_barrier")
        groups = []; fns = []
        if 13 <= j + 4 <= 15: groups = gDW(j + 4)
        elif j + 4 < NSTB: groups = gDW(j + 4) + gDA(j + 4)
        if j == 0 and role == "kv": groups = gDW(3) + gDA(3) + groups
        if j == 2: fns.append(lambda k: poll_issue(k, 50, lines(50, iB + f"  s_add_u32 s41, s41, {FL_H2}", 2), "ph2"))
        if j == KVJ - 1: fns.append(lambda k: poll_issue(k, 56, lines(56, f"  s_lshl_b32 s41, s{S_JB}, 9\n  s_add_u32 s41, s41, {FL_KF}", 4), "pkv"))
        if j == 14: fns.append(res_dma)
        if j == KVJ: kv_dma(k)
        kb.interleave(k, groups, rec(k, fns))
        kb.stamp(k, 40 + j)
    kb.stamp(k, 6, rt=True)
    kb.dump(k, S_WS)
    k("  s_endpgm")

def build(name):
    k = K(name)
    k(f"""
  s_cmp_ge_u32 s2, 256
  s_cbranch_scc1 {k.L('end')}
  s_load_dwordx4 s[4:7], s[0:1], 0
  s_load_dwordx2 s[14:15], s[0:1], 88
  s_load_dwordx2 s[10:11], s[0:1], 40
  s_getpc_b64 s[58:59]
{k.L('pc0')}:
  v_lshrrev_b32 v2, 6, v0
  v_and_b32 v1, 63, v0
  v_lshlrev_b32 v4, {11 if 'pf16' in EXP else 10}, v2
  v_lshl_add_u32 v4, v1, 7, v4
  v_cmp_gt_u32 vcc, {16 if 'pf16' in EXP else 8}, v1
  v_readfirstlane_b32 s3, v2
  s_and_saveexec_b64 s[56:57], vcc
  {'s_nop 0' if 'nopf0' in EXP else 'global_load_dword v127, v4, s[58:59]'}
  s_mov_b64 exec, s[56:57]
  s_load_dwordx2 s[8:9], s[0:1], 16
  s_load_dwordx2 s[12:13], s[0:1], 48
  s_load_dwordx2 s[{S_WO}:{S_WO+1}], s[0:1], 24
  s_load_dwordx2 s[{S_W2}:{S_W2+1}], s[0:1], 56
  s_load_dwordx2 s[{S_B2}:{S_B2+1}], s[0:1], 64
  s_load_dwordx2 s[{S_OUT}:{S_OUT+1}], s[0:1], 72
  s_load_dwordx2 s[{S_DBG}:{S_DBG+1}], s[0:1], 80
  s_lshr_b32 s40, s2, 3
  s_lshr_b32 s36, s40, 2
  s_and_b32 s41, s2, 1
  s_lshl_b32 s41, s41, 3
  s_add_u32 s36, s36, s41
  s_and_b32 s41, s40, 3
  s_lshr_b32 s37, s41, 1
  s_and_b32 s41, s41, 1
  s_and_b32 s38, s2, 7
  s_lshr_b32 s38, s38, 1
  s_lshl_b32 s38, s38, 1
  s_add_u32 s38, s38, s41
  s_and_b32 s39, s3, 3
  s_mov_b32 s75, 0
  s_waitcnt lgkmcnt(0)""")
    srd(k, R_X, S_X, 2621440)
    srd(k, R_WS, S_WS, L.WS_END)
    srd(k, R_WQ, S_WQ, 2457600)
    srd(k, R_W1, S_W1, 2211840)
    k(f"  s_cmp_lt_u32 s3, 4\n  s_cbranch_scc1 {k.L('compute')}")
    k.vm = []
    kb.stamp(k, 0, rt=True)
    loader_a_start(k)
    srd(k, R_B, S_B1, 3456)
    k(f"  s_branch {k.L('loader')}")
    vm_loader = list(k.vm)
    k.label("compute")
    srd(k, R_OUT, S_OUT, 2621440)
    k.vm = []
    compute_a(k)
    k(f"  s_cmp_eq_u32 s37, 0\n  s_cbranch_scc1 {k.L('cb_kv')}")
    base = k.name
    k.lname = base + "_g"; compute_b(k, "g")
    k.lname = base; k.label("cb_kv")
    k.lname = base + "_k"; compute_b(k, "kv")
    k.lname = base
    k.label("loader")
    k.vm = vm_loader
    loader_a(k)
    k(f"  s_cmp_eq_u32 s37, 0\n  s_cbranch_scc1 {k.L('lb_kv')}")
    vm0 = list(k.vm)
    k.lname = base + "_g"; loader_b(k, "g")
    k.lname = base; k.label("lb_kv")
    k.vm = list(vm0)
    k.lname = base + "_k"; loader_b(k, "kv")
    k.lname = base
    k(f"{k.L('end')}:\n  s_endpgm")
    k(f"{k.L('codeend')}:")
    rep = []
    t = k.text(rep)
    return dict(name=name, body=t, vgpr=256, sgpr=102, accum=256, maxwg=512), rep

def _print_bids(): print(_BID)
if __name__ == "__main__":
    import asmlib, sys
    if len(sys.argv) > 1 and sys.argv[1] in ("prof", "coarse", "mini"): kb.PROF = True
    if len(sys.argv) > 1 and sys.argv[1] == "mini": kb.MINI = True
    if len(sys.argv) > 1 and sys.argv[1] == "coarse": kb.FINE = False
    kf, rep = build("kf_kernel")
    print("nops inserted:", len(rep), _BID)
    asmlib.build("kfp" if kb.PROF else "kft", [kf])
    print("ok")
```

```python
from kb import K
import kb, os
import layout as L

LOG2E = 1.4426950408889634
C0 = -2.0*0.7978845608028654*LOG2E
C1 = C0*0.044715
def fl(x):
    import struct
    return "0x%08x" % struct.unpack("<I", struct.pack("<f", x))[0]

XR = 0; WR = 49152; SCR = 114688; TT = 147456; ST = 151552; WP = 153600; ZR = 157696
PHI = 73728; PHI_P = 336; VV = PHI + 43008; VV_P = 208; KPS = (32768 if int(os.environ.get('TP', 0)) else 20480)
SLOT = 36864; WPB = 147456; KVB = 151552; KVP = 48; ZB = 159232
LDS_BYTES = 163840
NSTB = 19
WP0, WP1 = 4, int(os.environ.get('WP1', 12))
def wpreg(s_, cb): return 64 + (s_ - WP0)*20 + 4*cb
SCHED = {
    "kv": dict(P1_J=1, RED_J=None, KVJ=int(os.environ.get("KVJ_KV", 4)), OFLAG_D=2),
    "g":  dict(P1_J=2, RED_J=int(os.environ.get("RED_J", 1)), KVJ=int(os.environ.get("KVJ_G", 6)), OFLAG_D=2),
}
FL = L.WS_FLAGS
FL_F2 = FL; FL_H1 = FL + 16*128; FL_H2 = FL + 48*128; FL_Q = FL + 80*128; FL_PF = FL + 208*128; FL_KF = FL + 336*128; FL_O = FL + 368*128
NFL = 624

S_X, S_WQ, S_WPHI, S_W1, S_B1, S_WS = 4, 6, 8, 10, 12, 14
S_WO, S_W2, S_B2, S_OUT, S_DBG = 76, 78, 80, 82, 84
R_X, R_W, R_WS, R_B, R_T, R_OUT, R_WQ, R_W1, R_W2, R_WO = 16, 20, 24, 28, 32, 60, 64, 88, 92, 96
S_I64, S_JB, S_T16 = 68, 69, 86

def srd(k, s, lo, size):
    k(f"""
  s_mov_b32 s{s}, s{lo}
  s_and_b32 s{s+1}, s{lo+1}, 0xffff
  s_mov_b32 s{s+2}, {size}
  s_mov_b32 s{s+3}, 0x20000""")
def R(s): return f"s[{s}:{s+3}]"

def job_ids(k):
    k(f"""
  s_lshl_b32 s40, s2, 2
  s_add_u32 s40, s40, s39                    ; gw
  s_lshl_b32 s41, s36, 3
  s_add_u32 s41, s41, s38
  s_lshl_b32 s41, s41, 2
  s_add_u32 s41, s41, s39                    ; u = 4 (8 i + role) + w
  s_add_u32 s42, s41, 512
  s_cmp_eq_u32 s37, 1
  s_cselect_b32 s50, s41, s42
  s_cselect_b32 s51, s41, -1
  s_cselect_b32 s49, s42, -1
  s_cmp_lt_u32 s50, 570
  s_cselect_b32 s50, s50, -1
  s_cmp_lt_u32 s49, 740
  s_cselect_b32 s49, s49, -1
  s_lshl_b32 s52, s39, 13
  s_add_u32 s52, s52, {SCR}
  s_lshl_b32 s87, s39, 12
  s_add_u32 s87, s87, {SCR2}
  s_add_u32 s48, s87, 16384""")

V_ST = 36
def stats_issue(k):
    v = V_ST
    k(f"""
  v_lshrrev_b32 v{v}, 5, v1                  ; hh
  v_and_b32 v{v+1}, 31, v1                   ; n
  s_lshl_b32 s41, s40, 1
  v_add_u32 v{v+2}, s41, v{v}                ; token
  v_mul_u32_u24 v{v+3}, 1280, v{v+2}
  v_lshl_add_u32 v{v+3}, v{v+1}, 3, v{v+3}""")
    for r in range(5):
        k.vmem(f"  buffer_load_dwordx2 v[{v+4+2*r}:{v+5+2*r}], v{v+3}, {R(R_X)}, 0 offen offset:{256*r}", "st")
def stats_a1(k):
    v = V_ST; U = v + 16
    k.wait_vm("st")
    for d in range(10):
        k(f"  v_lshlrev_b32 v{U+2*d}, 16, v{v+4+d}\n  v_and_b32 v{U+2*d+1}, 0xffff0000, v{v+4+d}")
def stats_a2(k):
    v = V_ST; U = v + 16; S = v + 36; T = v + 37
    k(f"  v_add_f32 v{S}, v{U}, v{U+1}\n  v_add_f32 v{T}, v{U+2}, v{U+3}")
    for i in range(4, 20, 2):
        k(f"  v_add_f32 v{S}, v{S}, v{U+i}\n  v_add_f32 v{T}, v{T}, v{U+i+1}")
    k(f"  v_add_f32 v{S}, v{S}, v{T}")
def red32(k, S, T):
    for r in (8, 4, 2, 1):
        k(f"  v_add_f32_dpp v{S}, v{S}, v{S} row_ror:{r} row_mask:0xf bank_mask:0xf")
    k(f"  ds_swizzle_b32 v{T}, v{S} offset:0x401F\n  s_waitcnt lgkmcnt(0)\n  v_add_f32 v{S}, v{S}, v{T}")
def stats_b(k):
    v = V_ST; U = v + 16; S = v + 36; T = v + 37; M = v + 38
    red32(k, S, T)
    k(f"  v_mul_f32 v{M}, {1.0/640.0!r}, v{S}")
    for i in range(20): k(f"  v_sub_f32 v{U+i}, v{U+i}, v{M}")
def stats_c(k):
    v = V_ST; U = v + 16; S = v + 36; T = v + 37
    k(f"  v_mul_f32 v{S}, v{U}, v{U}\n  v_mul_f32 v{T}, v{U+1}, v{U+1}")
    for i in range(2, 20, 2):
        k(f"  v_fmac_f32 v{S}, v{U+i}, v{U+i}\n  v_fmac_f32 v{T}, v{U+i+1}, v{U+i+1}")
    k(f"  v_add_f32 v{S}, v{S}, v{T}")
def stats_d(k):
    v = V_ST; U = v + 16; S = v + 36; T = v + 37; M = v + 38; O = v + 40
    red32(k, S, T)
    k(f"""
  v_mul_f32 v{S}, {1.0/640.0!r}, v{S}
  v_add_f32 v{T}, 0x3727c5ac, v{S}
  v_rsq_f32 v{O+1}, v{T}
  v_mov_b32 v{O}, v{M}
  v_mul_f32 v{T}, v{O+1}, v{O+1}
  v_mul_f32 v{T}, v{T}, v{S}
  v_add_f32 v{T}, 0x3727c5ac, v{T}
  v_rsq_f32 v{T}, v{T}
  v_mov_b32 v{O+3}, 0
  v_mul_f32 v{O+2}, v{O+1}, v{T}
  v_lshlrev_b32 v{v+3}, 4, v{v+2}
  v_add_u32 v{v+3}, {L.WS_STATS}, v{v+3}
  v_cmp_eq_u32 vcc, 0, v{v+1}
  v_mov_b32 v{T}, 0x7fff0000
  v_cndmask_b32 v{v+3}, v{T}, v{v+3}, vcc""")
    if 'nost' not in EXP: k.vmem(f"  buffer_store_dwordx4 v[{O}:{O+3}], v{v+3}, {R(R_WS)}, 0 offen sc1", "jst")

V_CS = 176
V_CSI = 100
def cs_issue(k):
    v = V_CSI; t = 41
    k(f"""
  s_cmp_eq_u32 s50, -1
  s_cselect_b32 s53, 0, s50
  s_mul_i32 s{t}, s53, 6554
  s_lshr_b32 s{t}, s{t}, 16                  ; u
  s_mul_i32 s{t+1}, s{t}, 10
  s_sub_u32 s{t+1}, s53, s{t+1}              ; kappa
  s_mov_b32 s54, s{t}
  s_mov_b32 s55, s{t+1}
  s_cmp_lt_u32 s{t}, 30
  s_cselect_b32 s{R_T}, s{R_WQ}, s{R_W1}
  s_cselect_b32 s{R_T+1}, s{R_WQ+1}, s{R_W1+1}
  s_cselect_b32 s{R_T+2}, s{R_WQ+2}, s{R_W1+2}
  s_mov_b32 s{R_T+3}, 0x20000
  s_mov_b32 s{t+2}, 3456
  s_cmov_b32 s{t+2}, 3840
  s_cselect_b32 s{t+3}, 0, 30
  s_sub_u32 s{t+3}, s{t}, s{t+3}
  s_lshl_b32 s{t+3}, s{t+3}, 7
  s_mul_i32 s{t+4}, s{t+1}, s{t+2}
  s_lshl_b32 s{t+4}, s{t+4}, 6
  s_add_u32 s{t+4}, s{t+4}, s{t+3}           ; soffset
  s_lshl_b32 s{t+5}, s{t+2}, 3
  s_cmp_eq_u32 s50, -1
  s_cselect_b32 s{R_T+2}, 0, s{R_T+2}
  v_lshrrev_b32 v{v}, 3, v1
  v_lshrrev_b32 v{v+1}, 1, v{v}
  v_and_b32 v{v+1}, 1, v{v+1}
  v_lshlrev_b32 v{v+1}, 2, v{v+1}
  v_and_b32 v{v+2}, 7, v1
  v_xor_b32 v{v+2}, v{v+2}, v{v+1}
  v_mul_lo_u32 v{v+3}, v{v}, s{t+2}
  v_lshl_add_u32 v{v+3}, v{v+2}, 4, v{v+3}""")
    for i in range(8):
        k.begin()
        k(f"  s_add_u32 m0, s52, {i*1024}")
        k.vmem(f"  buffer_load_dwordx4 v{v+3}, {R(R_T)}, s{t+4} offen lds", "cs")
        k.end()
        if i < 7: k(f"  s_add_u32 s{t+4}, s{t+4}, s{t+5}")
def cs_a(k):
    v = V_CS
    k(f"""
  v_lshrrev_b32 v{v}, 4, v1
  v_lshrrev_b32 v{v+1}, 2, v1
  v_and_b32 v{v+1}, 3, v{v+1}
  v_and_b32 v{v+2}, 3, v1
  v_lshrrev_b32 v{v+4}, 1, v{v}
  v_lshl_add_u32 v{v+4}, v{v+4}, 3, v{v+1}
  v_lshlrev_b32 v{v+4}, 7, v{v+4}
  v_and_b32 v{v+5}, 1, v{v}
  v_lshlrev_b32 v{v+5}, 1, v{v+5}
  v_lshrrev_b32 v{v+6}, 1, v{v+2}
  v_add_u32 v{v+5}, v{v+5}, v{v+6}
  v_lshrrev_b32 v{v+6}, 1, v{v+1}
  v_lshlrev_b32 v{v+6}, 2, v{v+6}
  v_and_b32 v{v+7}, 1, v{v+2}
  v_lshl_add_u32 v{v+4}, v{v+7}, 3, v{v+4}
  v_add_u32 v{v+4}, s52, v{v+4}
  v_xor_b32 v{v+7}, v{v+5}, v{v+6}
  v_lshl_add_u32 v{v+8}, v{v+7}, 4, v{v+4}
  v_xor_b32 v{v+7}, 4, v{v+7}
  v_lshl_add_u32 v{v+9}, v{v+7}, 4, v{v+4}""")
    ONE = v + 12; FRG = v + 16; ACC_ = v + 48
    for i in range(4): k(f"  v_mov_b32 v{ONE+i}, 0x3f803f80")
    k.wait_vm("cs")
    for ks in range(4):
        for b in range(2):
            for tt in range(2):
                d = FRG + (ks*2 + b)*4 + 2*tt
                k(f"  ds_read_b64_tr_b16 v[{d}:{d+1}], v{v+8+b} offset:{ks*2048 + tt*512}")
        if ks == 2: k("  s_waitcnt lgkmcnt(4)")
    k("  s_waitcnt lgkmcnt(0)")
def cs_b(k):
    v = V_CS; ONE = v + 12; FRG = v + 16; ACC_ = v + 48
    for ks in range(4):
        for b in range(2):
            d = FRG + (ks*2 + b)*4
            c = "0" if ks == 0 else f"v[{ACC_+16*b}:{ACC_+16*b+15}]"
            k(f"  v_mfma_f32_32x32x16_bf16 v[{ACC_+16*b}:{ACC_+16*b+15}], v[{ONE}:{ONE+3}], v[{d}:{d+3}], {c}")
    k(f"""
  s_mul_i32 s41, s55, {L.NCOL*4}
  s_lshl_b32 s42, s54, 8
  s_add_u32 s41, s41, s42
  s_add_u32 s41, s41, {L.WS_CSP}
  v_lshlrev_b32 v{v}, 2, v1
  v_cmp_gt_u32 vcc, 32, v1
  v_mov_b32 v{v+1}, 0x7fff0000
  v_cndmask_b32 v{v}, v{v+1}, v{v}, vcc
  s_cmp_eq_u32 s50, -1
  s_cselect_b32 s42, 0x7fff0000, 0
  v_add_u32 v{v}, s42, v{v}""")
    k(f"  v_mov_b32 v{v+1}, 0x7fff0000\n  v_min_u32 v{v}, v{v}, v{v+1}")
    for b in range(2):
        if 'nocs' not in EXP: k.vmem(f"  buffer_store_dword v{ACC_+16*b}, v{v}, {R(R_WS)}, s41 offen offset:{128*b} sc1", "jst")

V_SW = 36
V_SWI = 108
SCR2 = WR + 2*16384
def sw_addr(k, n=0):
    sid, sS, sL, v = [(51, 56, 57, V_SWI), (49, 100, 101, V_SWI + 10)][n]; t = 41
    k.begin()
    k(f"""
  s_cmp_eq_u32 s{sid}, -1
  s_cselect_b32 s53, 0, s{sid}
  s_mul_i32 s{t}, s53, 6554
  s_lshr_b32 s{t}, s{t}, 16
  s_mul_i32 s{t+1}, s{t}, 10
  s_sub_u32 s{t+1}, s53, s{t+1}              ; lambda
  s_mov_b32 s{sS}, s{t}
  s_mov_b32 s{sL}, s{t+1}
  s_cmp_lt_u32 s{t}, 54
  s_cselect_b32 s{R_T}, s{R_W2}, s{R_WO}
  s_cselect_b32 s{R_T+1}, s{R_W2+1}, s{R_WO+1}
  s_cselect_b32 s{R_T+2}, s{R_W2+2}, s{R_WO+2}
  s_mov_b32 s{R_T+3}, 0x20000
  s_cmp_eq_u32 s{sid}, -1
  s_cselect_b32 s{R_T+2}, 0, s{R_T+2}
  v_lshrrev_b32 v{v}, 3, v1                  ; e
  v_and_b32 v{v+1}, 7, v1
  s_lshl_b32 s{t+2}, s{t+1}, 7
  v_lshl_add_u32 v{v+1}, v{v+1}, 4, s{t+2}
  s_cmp_lt_u32 s{t}, 54
  s_cbranch_scc0 {k.L('sw_wo%d' % n)}
  s_cmp_lt_u32 s{t}, 28
  s_cselect_b32 s{t+3}, 0, 28
  s_cselect_b32 s{t+4}, 0, 2
  s_sub_u32 s{t+3}, s{t}, s{t+3}
  s_lshr_b32 s{t+5}, s{t+3}, 1
  s_lshl_b32 s{t+5}, s{t+5}, 2
  s_and_b32 s{t+3}, s{t+3}, 1
  s_add_u32 s{t+5}, s{t+5}, s{t+3}
  s_add_u32 s{t+5}, s{t+5}, s{t+4}           ; F block
  v_lshrrev_b32 v{v+2}, 2, v{v}
  v_lshlrev_b32 v{v+2}, 3, v{v+2}
  v_and_b32 v{v+3}, 3, v{v}
  v_add_u32 v{v+2}, v{v+2}, v{v+3}
  s_lshl_b32 s{t+5}, s{t+5}, 5
  v_add_u32 v{v+2}, s{t+5}, v{v+2}""")
    for i in range(4): k(f"  v_add_u32 v{v+4+i}, {16*(i&1) + 4*(i>>1)}, v{v+2}")
    k(f"""
  s_branch {k.L('sw_go%d' % n)}
{k.L('sw_wo%d' % n)}:
  s_sub_u32 s{t+3}, s{t}, 54
  s_mul_i32 s{t+4}, s{t+3}, 52
  s_lshr_b32 s{t+4}, s{t+4}, 8
  s_mul_i32 s{t+5}, s{t+4}, 5
  s_sub_u32 s{t+5}, s{t+3}, s{t+5}
  s_lshl_b32 s{t+5}, s{t+5}, 3
  v_add_u32 v{v+2}, s{t+5}, v{v}
  v_cmp_le_u32 vcc, 20, v{v+2}
  v_cndmask_b32 v{v+3}, 0, 1, vcc
  v_mul_u32_u24 v{v+8}, 20, v{v+3}
  v_sub_u32 v{v+2}, v{v+2}, v{v+8}
  s_lshl_b32 s{t+4}, s{t+4}, 1
  v_add_u32 v{v+3}, s{t+4}, v{v+3}
  v_mul_u32_u24 v{v+3}, 80, v{v+3}
  v_add_u32 v{v+2}, v{v+2}, v{v+3}""")
    for i in range(4): k(f"  v_add_u32 v{v+4+i}, {20*i}, v{v+2}")
    k(f"{k.L('sw_go%d' % n)}:")
    for i in range(4): k(f"  v_mul_u32_u24 v{v+4+i}, 1280, v{v+4+i}\n  v_add_u32 v{v+4+i}, v{v+4+i}, v{v+1}")
    k.end()
def sw_dma(k, n=0):
    v = V_SWI + 10*n; scr = [87, 48][n]
    for i in range(4):
        k.begin()
        k(f"  s_add_u32 m0, s{scr}, {i*1024}")
        k.vmem(f"  buffer_load_dwordx4 v{v+4+i}, {R(R_T)}, 0 offen lds", ("sw", n))
        k.end()
def sw_proc1(k, n=0):
    v = V_SW + 40*n; t = 41; FRG = v + 16; sid = [51, 49][n]; scr = [87, 48][n]
    k(f"""
  v_lshrrev_b32 v{v}, 4, v1
  v_lshrrev_b32 v{v+1}, 2, v1
  v_and_b32 v{v+1}, 3, v{v+1}
  v_lshl_add_u32 v{v}, v{v}, 3, v{v+1}
  v_lshlrev_b32 v{v}, 7, v{v}
  v_and_b32 v{v+1}, 3, v1
  v_lshl_add_u32 v{v}, v{v+1}, 3, v{v}
  v_add_u32 v{v}, s{scr}, v{v}
  v_lshlrev_b32 v{v+1}, 4, v1
  s_cmp_eq_u32 s{sid}, -1
  s_cselect_b32 s{t}, 0x7fff0000, 0
  v_add_u32 v{v+1}, s{t}, v{v+1}""")
    k.wait_vm(("sw", n))
    for b in range(4):
        for tt in range(2):
            d = FRG + 4*b + 2*tt
            k(f"  ds_read_b64_tr_b16 v[{d}:{d+1}], v{v} offset:{32*b + 512*tt}")
    k("  s_waitcnt lgkmcnt(0)")
def sw_proc2(k, n=0):
    v = V_SW + 40*n; t = 41; FRG = v + 16; sS, sL = [(56, 57), (100, 101)][n]
    for b in range(4):
        k.begin()
        k(f"""
  s_lshl_b32 s{t}, s{sL}, 2
  s_add_u32 s{t}, s{t}, {b}
  s_mul_i32 s{t+1}, s{t}, 13
  s_lshr_b32 s{t+1}, s{t+1}, 6
  s_mul_i32 s{t+2}, s{t+1}, 5
  s_sub_u32 s{t+2}, s{t}, s{t+2}
  s_mul_i32 s{t+1}, s{t+1}, 74
  s_add_u32 s{t+1}, s{t+1}, s{sS}
  s_mul_i32 s{t+1}, s{t+1}, 5
  s_add_u32 s{t+1}, s{t+1}, s{t+2}
  s_lshl_b32 s{t+1}, s{t+1}, 10
  s_add_u32 s{t+1}, s{t+1}, {L.WS_W2}""")
        if 'nosw' not in EXP: k.vmem(f"  buffer_store_dwordx4 v[{FRG+4*b}:{FRG+4*b+3}], v{v+1}, {R(R_WS)}, s{t+1} offen sc1", "jst")
        k.end()
def zero_job(k):
    k(f"""
  s_mul_i32 s41, s40, 160
  s_add_u32 s41, s41, {L.WS_KV}
  v_lshlrev_b32 v56, 4, v1
  v_cmp_gt_u32 vcc, 10, v1
  v_mov_b32 v57, 0x7fff0000
  v_cndmask_b32 v58, v57, v56, vcc
  v_mov_b32 v60, 0
  v_mov_b32 v61, 0
  v_mov_b32 v62, 0
  v_mov_b32 v63, 0""")
    if 'nozero' not in EXP: k.vmem(f"  buffer_store_dwordx4 v[60:63], v58, {R(R_WS)}, s41 offen sc1", "jst")

def store_flag(k, cond_s, cond_val, addr_code, lbl):
    k.begin()
    k(f"  s_cmp_eq_u32 s{cond_s}, {cond_val}\n  s_cbranch_scc0 {k.L(lbl)}")
    k(addr_code)
    k(f"""
  v_mov_b32 v2, s41
  v_mov_b32 v0, 1
  s_mov_b64 exec, 1
  buffer_store_byte v0, v2, {R(R_WS)}, 0 offen sc1
  s_mov_b64 exec, -1
{k.L(lbl)}:""")
    k.end()

def poll_issue(k, vdst, addr_code, tag, only0=True):
    k.begin()
    k(addr_code)
    if only0:
        k(f"  s_cmp_eq_u32 s39, 0\n  s_cselect_b32 s41, 0, 0x7fff0000\n  v_or_b32 v{vdst+1}, s41, v{vdst+1}")
    k.vmem(f"  buffer_load_dword v{vdst}, v{vdst+1}, {R(R_WS)}, 0 offen sc1", tag)
    k.end()
_BID = {}
def bound(k, lbl):
    if 'bound' not in EXP: return ""
    i = _BID.setdefault(lbl, len(_BID) + 1)
    return f"  s_add_u32 s75, s75, 1\n  s_cmp_gt_u32 s75, 3000\n  s_cbranch_scc0 {k.L(lbl+'_nb')}\n  s_mov_b32 s75, 0\n  s_mov_b32 s74, {1000 + i}\n  v_writelane_b32 v3, s74, 35\n  s_branch {k.L(lbl+'_ok')}\n{k.L(lbl+'_nb')}:"
def poll_check(k, vdst, tag, lbl, only0=True, slp=6):
    k.wait_vm(tag)
    saved = list(k.vm)
    if only0: k(f"  s_cmp_eq_u32 s39, 0\n  s_cbranch_scc0 {k.L(lbl+'_ok')}")
    k(f"""
  v_cmp_ne_u32 vcc, 0x01010101, v{vdst}
  s_cmp_eq_u64 vcc, 0
  s_cbranch_scc1 {k.L(lbl+'_ok')}
{k.L(lbl+'_sp')}:
{bound(k, lbl)}
  s_sleep {slp}
  buffer_load_dword v{vdst}, v{vdst+1}, {R(R_WS)}, 0 offen sc1
  s_waitcnt vmcnt(0)
  v_cmp_ne_u32 vcc, 0x01010101, v{vdst}
  s_cmp_eq_u64 vcc, 0
  s_cbranch_scc0 {k.L(lbl+'_sp')}
{k.L(lbl+'_ok')}:""")
    k.vm = saved
def lines(vdst, scode, n):
    return scode + f"\n  v_min_u32 v{vdst+1}, {n-1}, v1\n  v_lshlrev_b32 v{vdst+1}, 7, v{vdst+1}\n  v_add_u32 v{vdst+1}, s41, v{vdst+1}"
def words(vdst, scode, n):
    return scode + f"\n  v_lshlrev_b32 v{vdst+1}, 2, v1\n  v_min_u32 v{vdst+1}, {4*(n-1)}, v{vdst+1}\n  v_add_u32 v{vdst+1}, s41, v{vdst+1}"

def unit_of_slot(k, sg, sslot, su, sty, lbl):
    k(f"""
  s_lshl_b32 s{su}, s{sg}, 2
  s_add_u32 s{su}, s{su}, s{sslot}
  s_cmp_lt_u32 s{su}, 27
  s_cbranch_scc0 {k.L(lbl+'a')}
  s_mov_b32 s{sty}, 0
  s_add_u32 s{su}, s{su}, 30
  s_branch {k.L(lbl+'b')}
{k.L(lbl+'a')}:
  s_mov_b32 s{sty}, 2
  s_cmp_eq_u32 s{su}, 28
  s_cmov_b32 s{sty}, 1
  s_cmp_eq_u32 s{su}, 30
  s_cmov_b32 s{sty}, 1
  s_lshr_b32 s{su}, s{su}, 1
  s_sub_u32 s{su}, s{su}, 6
{k.L(lbl+'b')}:""")

vDx, vDx2, vDw, vG = 10, 11, 12, 20
NWS = 4

def loader_a_setup(k):
    k(f"""
  v_lshrrev_b32 v4, 3, v1
  v_lshrrev_b32 v5, 1, v4
  v_and_b32 v6, 7, v1
  v_xor_b32 v7, v6, v5
  v_mul_u32_u24 v8, 1280, v4
  v_lshl_add_u32 v{vDx}, v7, 4, v8
  v_xor_b32 v7, 4, v7
  v_lshl_add_u32 v{vDx2}, v7, 4, v8
  s_mul_i32 s101, s36, {128*1280}
  s_mul_i32 s47, s39, {32*1280}
  s_add_u32 s101, s101, s47
  s_lshl_b32 s47, s39, 12                  ; lw*4096""")
def loader_a_setup_w(k):
    k(f"""
  v_and_b32 v5, 1, v5
  v_lshlrev_b32 v5, 2, v5
  v_xor_b32 v6, v6, v5
  s_cmp_eq_u32 s37, 0
  s_cbranch_scc1 {k.L('ld_kv')}""")
    unit_of_slot(k, 38, 39, 48, 49, "uos")
    k(f"""
  s_cmp_eq_u32 s49, 0
  s_cselect_b32 s20, s{R_W1}, s{R_WQ}
  s_cselect_b32 s21, s{R_W1+1}, s{R_WQ+1}
  s_mov_b32 s44, 3840
  s_cmov_b32 s44, 3456
  s_cselect_b32 s22, s{R_W1+2}, s{R_WQ+2}
  s_cselect_b32 s58, 30, 0
  s_sub_u32 s58, s48, s58
  s_lshl_b32 s100, s58, 7
  s_cmp_eq_u32 s49, 2
  s_cmov_b32 s22, 0
  v_lshlrev_b32 v7, 4, v6
  s_lshl_b32 s58, s48, 6
  v_add_u32 v{vG}, s58, v1
  s_branch {k.L('ld_go')}
{k.L('ld_kv')}:
  s_mov_b32 s20, s{R_WQ}
  s_mov_b32 s21, s{R_WQ+1}
  s_mov_b32 s22, s{R_WQ+2}
  s_mov_b32 s44, 3840
  s_mov_b32 s100, 0
  ; position p' = 8 lw + p  ->  chunk c' = (p' & ~3) | inv(p')  (bank-conflict-free placement, see kvmap2.py)
  s_lshl_b32 s58, s39, 3
  v_add_u32 v7, s58, v6                    ; p'
  v_mov_b32 v8, 0x9c1b39b4
  v_mov_b32 v9, 0xd8e1e472
  v_cmp_gt_u32 vcc, 16, v7
  v_cndmask_b32 v8, v9, v8, vcc
  v_and_b32 v9, 15, v7
  v_lshlrev_b32 v9, 1, v9
  v_lshrrev_b32 v8, v9, v8
  v_and_b32 v8, 3, v8
  v_and_b32 v7, 0xfc, v7
  v_or_b32 v7, v7, v8                      ; c'
  s_mul_i32 s58, s38, 160
  s_add_u32 s59, s58, 1280                 ; k: 1280 + 160 j + 16 c'
  v_mov_b32 v8, s59
  s_add_u32 s59, s58, {2560 - 160}         ; v: 2560 + 160 j + 16 (c' - 10)
  v_mov_b32 v9, s59
  v_cmp_gt_u32 vcc, 10, v7
  v_cndmask_b32 v8, v9, v8, vcc
  v_mov_b32 v9, 0x7fff0000
  v_cmp_gt_u32 vcc, 20, v7
  v_cndmask_b32 v8, v9, v8, vcc
  s_lshl_b32 s59, s38, 7
  s_sub_u32 s59, s59, {24*16}              ; q: 128 j + 16 (c' - 24)
  v_mov_b32 v9, s59
  v_cmp_gt_u32 vcc, 24, v7
  v_cndmask_b32 v8, v9, v8, vcc
  v_lshl_add_u32 v7, v7, 4, v8
{k.L('ld_kvgc')}:
  v_and_b32 v12, 31, v1
  v_lshrrev_b32 v13, 5, v1
  s_and_b32 s58, s39, 1
  s_lshl_b32 s58, s58, 1
  v_add_u32 v13, s58, v13
  v_lshrrev_b32 v14, 3, v12
  v_lshl_add_u32 v14, v13, 2, v14
  v_lshrrev_b32 v15, 2, v12
  v_and_b32 v15, 1, v15
  s_lshr_b32 s59, s39, 1
  s_lshl_b32 s58, s59, 1
  v_add_u32 v16, s58, v15
  v_and_b32 v17, 3, v12
  v_mul_u32_u24 v18, 20, v16
  v_lshl_add_u32 v18, v14, 2, v18
  v_add_u32 v18, v18, v17
  s_mul_i32 s58, s38, 80
  v_add_u32 v18, s58, v18
  v_add_u32 v19, 640, v18
  v_add_u32 v21, {1280 - 20}, v18
  v_cmp_gt_u32 vcc, 5, v14
  v_cndmask_b32 v{vG}, v21, v19, vcc
  s_lshl_b32 s58, s59, 3
  v_lshl_add_u32 v21, v15, 2, s58
  v_add_u32 v21, v21, v14
  v_subrev_u32 v21, 10, v21
  v_lshl_add_u32 v21, v21, 2, v17
  s_lshl_b32 s58, s38, 6
  v_add_u32 v21, s58, v21
  v_cmp_gt_u32 vcc, 10, v14
  v_cndmask_b32 v{vG}, v21, v{vG}, vcc
  v_cmp_gt_u32 vcc, 14, v14
  v_cndmask_b32 v{vG}, 0, v{vG}, vcc
{k.L('ld_go')}:
  s_mov_b32 s23, 0x20000""")
    if TP:
        k(f"""
  s_lshl_b32 s58, s37, 2
  s_or_b32 s58, s58, s39
  s_cmp_eq_u32 s58, 3
  s_cmov_b32 s22, 0""")
    k(f"""
  v_mul_lo_u32 v8, v4, s44
  v_add_u32 v{vDw}, v8, v7
  s_add_u32 s48, s47, {WR}
  s_lshl_b32 s49, s44, 3                   ; 8*stride""")

def gW(j):
    def mk(i):
        def f(k):
            k(f"  s_add_u32 m0, s48, {(j % NWS)*16384 + i*1024}")
            k.vmem(f"  buffer_load_dwordx4 v{vDw}, {R(R_W)}, s100 offen lds", ("W", j))
            k("  s_add_u32 s100, s100, s49")
        return f
    return [mk(i) for i in range(4)]
def gX(m):
    def mk(i):
        def f(k):
            k(f"  s_add_u32 m0, s47, {XR + (m % 3)*16384 + i*1024}\n  s_add_u32 s87, s101, {m*128 + i*8*1280}")
            k.vmem(f"  buffer_load_dwordx4 v{vDx if i % 2 == 0 else vDx2}, {R(R_X)}, s87 offen lds", ("X", m))
        return f
    return [mk(i) for i in range(4)]
def dW(k, j):
    for f in gW(j): f(k)
def dX(k, m):
    for f in gX(m): f(k)
def rec(k, fns):
    r = kb.Rec(k)
    for f in fns: f(r)
    return r.items

def t_issue(k):
    k(f"""
  v_lshlrev_b32 v21, 2, v{vG}
  v_subrev_u32 v22, 1920, v{vG}
  v_lshlrev_b32 v22, 1, v22
  s_lshl_b32 s58, s36, 7
  s_lshl_b32 s59, s39, 6
  s_add_u32 s58, s58, s59
  v_add_u32 v23, s58, v1
  v_lshlrev_b32 v23, 4, v23
  s_cmp_lt_u32 s39, 2
  s_cselect_b32 s59, 0, 0x7fff0000
  v_add_u32 v23, s59, v23""")
    for p in range(10):
        k.begin()
        k(f"  s_mov_b32 s58, {L.WS_CSP + p*L.NCOL*4}")
        k.vmem(f"  buffer_load_dword v{24+p}, v21, {R(R_WS)}, s58 offen sc1", "side")
        k.end()
    k.vmem(f"  buffer_load_ushort v34, v22, {R(R_B)}, 0 offen", "side")
    k.vmem(f"  buffer_load_dwordx4 v[36:39], v23, {R(R_WS)}, 0 offen sc1", "side")
def wphi_dma(k, head_code, dst, enable_kv_only):
    k.begin()
    k(head_code)
    k(f"""
  s_mul_i32 s58, s58, 800
  s_add_u32 s{R_T}, s{S_WPHI}, s58
  s_addc_u32 s{R_T+1}, s{S_WPHI+1}, 0
  s_and_b32 s{R_T+1}, s{R_T+1}, 0xffff
  s_mov_b32 s{R_T+2}, 800
  s_mov_b32 s{R_T+3}, 0x20000""")
    if enable_kv_only:
        k(f"  s_cmp_eq_u32 s37, 0\n  s_cselect_b32 s{R_T+2}, s{R_T+2}, 0")
    k(f"""
  v_lshlrev_b32 v40, 4, v1
  s_lshl_b32 s58, s39, 10
  s_add_u32 m0, s58, {dst}""")
    k.vmem(f"  buffer_load_dwordx4 v40, {R(R_T)}, 0 offen lds", "side")
    k.end()
def t_build1(k):
    k.wait_vm("side")
    k("  v_add_f32 v24, v24, v25")
    for p in range(2, 10): k(f"  v_add_f32 v24, v24, v{24+p}")
    k(f"""
  v_cvt_pk_bf16_f32 v25, v24, v24
  v_and_b32 v26, 0xffff0000, v25
  v_sub_f32 v26, v24, v26
  v_cvt_pk_bf16_f32 v28, v24, v26
  v_and_b32 v29, 0xffff, v25
  v_lshl_or_b32 v29, v34, 16, v29
  v_mov_b32 v30, v34
  v_mov_b32 v31, 0""")
def t_build2(k):
    k(f"""
  v_lshlrev_b32 v27, 4, v1
  s_lshl_b32 s58, s39, 10
  s_add_u32 s58, s58, {TT}
  v_add_u32 v27, s58, v27
  ds_write_b128 v27, v[28:31]
  v_mov_b32 v44, 0
  v_mov_b32 v45, 0
  v_mov_b32 v46, 0
  v_mov_b32 v47, 0
  v_add_u32 v27, {ZR - TT}, v27
  s_cmp_lt_u32 s39, 2
  s_cbranch_scc0 {k.L('ld_nost')}
  ds_write_b128 v27, v[44:47]
  v_add_u32 v27, {ST - ZR + 2**32 if ST < ZR else ST - ZR}, v27
  ds_write_b128 v27, v[36:39]
{k.L('ld_nost')}:
  s_waitcnt lgkmcnt(0)""")

def tlb_touch(k):
    k(f"  s_cmp_eq_u32 s39, 2\n  s_cbranch_scc0 {k.L('notlb')}")
    items = [(S_X, 0), (S_X, 0x200000), (S_WQ, 0), (S_WQ, 0x200000), (S_W1, 0), (S_W1, 0x200000), (S_W2, 0), (S_W2, 0x200000), (S_WO, 0),
             (S_WPHI, 0), (S_B1, 0), (S_B2, 0), (S_OUT, 0), (S_OUT, 0x200000), (S_DBG, 0)] + [(S_WS, o) for o in range(0, L.WS_END, 0x200000)]
    for (p, o) in items:
        if o == 0: k(f"  s_load_dword s70, s[{p}:{p+1}], 0")
        else: k(f"  s_add_u32 s72, s{p}, {o}\n  s_addc_u32 s73, s{p+1}, 0\n  s_load_dword s70, s[72:73], 0\n  s_waitcnt lgkmcnt(0)" if False else
                f"  s_add_u32 s{{a}}, s{p}, {o}\n  s_addc_u32 s{{b}}, s{p+1}, 0\n  s_load_dword s70, s[{{a}}:{{b}}], 0".format(a=72, b=73))
    k(f"{k.L('notlb')}:")
def code_pf(k):
    if True:
        k(f"""
  s_cmp_eq_u32 s39, 3
  s_cbranch_scc0 {k.L('nopf')}
  s_getpc_b64 s[58:59]
{k.L('pc')}:
  s_sub_u32 s58, s58, {k.L('pc')}-{k.name}
  s_subb_u32 s59, s59, 0
  s_lshr_b32 s41, s2, 3
  s_and_b32 s41, s41, 7
  s_lshl_b32 s41, s41, 13
  v_lshl_add_u32 v50, v1, 7, s41
  v_min_u32 v50, {k.L('codeend')}-{k.name}-4, v50
  global_load_dword v51, v50, s[58:59]
{k.L('nopf')}:""")
def loader_a_start(k):
    if 'pfearly' in EXP: code_pf(k)
    if 'tlb' in EXP: tlb_touch(k)
    loader_a_setup(k)
    loader_a_setup_w(k)
    if 'noS0' not in EXP: k("  s_barrier")
    dX(k, 0); dW(k, 0); dW(k, 1)
    if 'pfearly' not in EXP and 'nocpf' not in EXP: code_pf(k)
    wphi_dma(k, "  s_lshl_b32 s58, s38, 2\n  s_add_u32 s58, s58, s39", WP, True)
    kb.stamp(k, 2)
    k.wait_vm(("W", 0))
    k("  s_barrier")
    kb.stamp(k, 3)
    dX(k, 1); dW(k, 2); dW(k, 3); dX(k, 2)
def loader_a(k):
    for j in range(20):
        if j + 1 <= 19:
            k.wait_vm(("W", j + 1))
            if (j + 1) % 2 == 0: k.wait_vm(("X", (j + 1)//2))
        if j == 16: poll_check(k, 52, "f2", "f2", slp=1)
        k("  s_barrier")
        groups = []
        if j + NWS <= 19: groups += gW(j + NWS)
        if j % 2 == 1 and (j + 1)//2 + 2 <= 9: groups += gX((j + 1)//2 + 2)
        fns = []
        if j == 14:
            fns.append(lambda k: poll_issue(k, 52, f"  v_lshrrev_b32 v53, 2, v1\n  v_lshlrev_b32 v53, 7, v53\n  v_and_b32 v54, 3, v1\n  v_lshl_add_u32 v53, v54, 2, v53\n  v_add_u32 v53, {FL_F2}, v53", "f2"))
        if j == 12 and 'cpf2' in EXP:
            def cpf2(k):
                k.begin()
                k(f"""
  s_cmp_eq_u32 s39, 3
  s_cbranch_scc0 {k.L('nopf2nd')}
  s_getpc_b64 s[58:59]
{k.L('pc2')}:
  s_sub_u32 s58, s58, {k.L('pc2')}-{k.name}
  s_subb_u32 s59, s59, 0
  s_lshr_b32 s41, s2, 3
  s_and_b32 s41, s41, 7
  s_lshl_b32 s41, s41, 13
  v_lshl_add_u32 v50, v1, 7, s41
  v_min_u32 v50, {k.L('codeend')}-{k.name}-4, v50
  global_load_dword v51, v50, s[58:59]
{k.L('nopf2nd')}:""")
                k.end()
            fns.append(cpf2)
        if j == 16: fns.append(t_issue)
        if j == 16: fns.append(loader_b_setup)
        if j == 18:
            fns.append(t_build1); fns.append(t_build2)
        if j in (17, 18, 19): groups += gWP(WPL[4*(j - 17):4*(j - 16)])
        kb.interleave(k, groups, rec(k, fns))
        kb.stamp(k, 16 + j)
CODE_PF = True
TP = int(os.environ.get('TP', 0))
X2S = [0, 16384, 32768, 98304, 114688]
W2S = [65536, 49152, 57344, 73728, 81920]; W2B = 49152
import os
EXP = os.environ.get('EXP', '')

VXA = [4, 5, 6, 7]; VXB = [8, 9, 10, 11]; VWA = [12, 13, 14, 15]
FX = [[80, 84], [104, 108]]
FW = [[88, 92, 96, 100], [112, 116, 120, 124]]
ACC = 128
WA_KV = 56
def acc(tb, b): return ACC + tb*64 + b*16

def a_reads(set_, st4, ks2):
    ksl = 2*(st4 & 1) + ks2
    r = []
    for tb in range(2):
        r.append(f"  ds_read_b128 v[{FX[set_][tb]}:{FX[set_][tb]+3}], v{VXA[ksl]} offset:{tb*4096}")
    for b in range(4):
        for t in range(2):
            d = FW[set_][b] + 2*t
            r.append(f"  ds_read_b64_tr_b16 v[{d}:{d+1}], v{VWA[b]} offset:{st4*16384 + ks2*2048 + t*512}")
    return r
def a_mfmas(cur, zero=False):
    return [f"  v_mfma_f32_32x32x16_bf16 v[{acc(tb,b)}:{acc(tb,b)+15}], v[{FW[cur][b]}:{FW[cur][b]+3}], v[{FX[cur][tb]}:{FX[cur][tb]+3}], " + ("0" if zero else f"v[{acc(tb,b)}:{acc(tb,b)+15}]")
            for b in range(4) for tb in range(2)]

def a_stage(k, st4, tail=None, pre_barrier=None, post_barrier=None, first=False):
    odd = st4 & 1
    mf = a_mfmas(0, zero=first); rd = a_reads(1, st4, 1)
    k("  s_waitcnt lgkmcnt(0)")
    sched = [2, 2, 2, 2, 1, 1, 0, 0]
    extra = []
    if odd:
        extra = [f"  v_add_u32 v{VXA[i]}, s47, v{VXB[i]}" for i in range(3)]
    for i, m in enumerate(mf):
        k(m)
        for _ in range(sched[i]): k(rd.pop(0))
        if i >= 5 and extra: k(extra.pop(0))
    mf = a_mfmas(1)
    k("  s_waitcnt lgkmcnt(0)")
    k(mf[0])
    if pre_barrier: k(pre_barrier)
    k("  s_barrier")
    if post_barrier: post_barrier(k)
    rd = a_reads(0, (st4 + 1) % 4, 0) if tail is None else list(tail)
    sched = [2, 2, 2, 2, 1, 1, 0]
    for i, m in enumerate(mf[1:]):
        for _ in range(sched[i]):
            if rd: k(rd.pop(0))
        k(m)
    while rd: k(rd.pop(0))
    if odd:
        k(f"  v_add_u32 v{VXA[3]}, s47, v{VXB[3]}")
        k("  s_add_u32 s47, s47, 16384\n  s_cmp_eq_u32 s47, 49152\n  s_cselect_b32 s47, 0, s47")

def compute_a(k):
    kb.stamp(k, 0, rt=True)
    k(f"""
  s_or_b32 s41, s2, s3
  s_cmp_eq_u32 s41, 0
  s_cbranch_scc0 {k.L('nog0')}
  v_lshlrev_b32 v4, 7, v1
  v_add_u32 v4, {FL}, v4
  v_mov_b32 v6, 0x7fff0000
  v_cmp_gt_u32 vcc, 16, v1
  v_cndmask_b32 v4, v6, v4, vcc
  v_mov_b32 v8, 0
  v_mov_b32 v9, 0
  v_mov_b32 v10, 0
  v_mov_b32 v11, 0
  buffer_store_dwordx4 v[8:11], v4, {R(R_WS)}, 0 offen sc1
  s_waitcnt vmcnt(0)
  v_mov_b32 v4, 0
  v_mov_b32 v5, 1
  s_mov_b64 exec, 1
  global_store_dword v4, v5, s[{S_DBG}:{S_DBG+1}] sc1
  s_mov_b64 exec, -1
{k.L('nog0')}:""")
    srd(k, R_W2, S_W2, 2211840)
    srd(k, R_WO, S_WO, 819200)
    job_ids(k)
    stats_issue(k); cs_issue(k)
    if 'noS0' not in EXP: k("  s_barrier")
    vm_kv = list(k.vm)
    k(f"  s_cmp_eq_u32 s37, 0\n  s_cbranch_scc1 {k.L('nosw')}")
    sw_addr(k, 0); sw_dma(k, 0); sw_addr(k, 1); sw_dma(k, 1)
    k.label("nosw")
    vm_g = list(k.vm)
    kb.stamp(k, 62)
    k(f"""
  s_lshr_b32 s43, s39, 1                   ; Th
  s_and_b32 s44, s39, 1                    ; Fh
  v_and_b32 v16, 31, v1                    ; n
  v_lshrrev_b32 v17, 5, v1                 ; hh
  v_lshrrev_b32 v18, 1, v16
  v_and_b32 v18, 7, v18
  v_xor_b32 v18, v17, v18
  v_lshlrev_b32 v18, 4, v18
  v_lshl_add_u32 v18, v16, 7, v18
  s_lshl_b32 s45, s43, 13
  v_add_u32 v{VXB[0]}, s45, v18
  v_xor_b32 v{VXB[1]}, 32, v{VXB[0]}
  v_xor_b32 v{VXB[2]}, 64, v{VXB[0]}
  v_xor_b32 v{VXB[3]}, 96, v{VXB[0]}
  v_mov_b32 v{VXA[0]}, v{VXB[0]}
  v_mov_b32 v{VXA[1]}, v{VXB[1]}
  v_mov_b32 v{VXA[2]}, v{VXB[2]}
  v_mov_b32 v{VXA[3]}, v{VXB[3]}
  s_mov_b32 s47, 16384
  v_lshrrev_b32 v18, 4, v1                 ; G
  v_lshrrev_b32 v19, 2, v1
  v_and_b32 v19, 3, v19                    ; r
  v_and_b32 v20, 3, v1                     ; c
  v_lshrrev_b32 v21, 1, v18
  v_lshl_add_u32 v21, v21, 3, v19
  v_lshlrev_b32 v21, 7, v21
  v_add_u32 v21, {WR}, v21
  v_lshrrev_b32 v22, 1, v19
  v_lshlrev_b32 v22, 2, v22
  v_and_b32 v23, 1, v18
  v_lshlrev_b32 v23, 1, v23
  v_lshrrev_b32 v24, 1, v20
  v_add_u32 v23, v23, v24                  ; j'
  v_and_b32 v24, 1, v20                    ; hh'
  s_cmp_eq_u32 s37, 0
  s_cbranch_scc1 {k.L('c_kv')}""")
    for b in range(4):
        k(f"""
  v_add_u32 v25, {4*(b&1)}, v23
  v_xor_b32 v25, v25, v22
  v_lshl_add_u32 v25, v25, 4, v21
  v_lshl_add_u32 v25, v24, 3, v25
  s_lshl_b32 s45, s44, 13
  s_add_u32 s45, s45, {(b>>1)*4096}
  v_add_u32 v{VWA[b]}, s45, v25""")
    k(f"  s_branch {k.L('c_go')}\n{k.L('c_kv')}:")
    k(f"  s_lshl_b32 s45, s44, 1\n  v_add_u32 v26, s45, v24\n  v_mul_u32_u24 v26, 5, v26")
    for b in range(4):
        k(f"""
  v_add_u32 v27, {4*b}, v23
  v_add_u32 v28, v26, v27
  v_add_u32 v29, 15, v28
  v_cmp_gt_u32 vcc, 5, v27
  v_cndmask_b32 v28, v29, v28, vcc
  s_lshl_b32 s45, s44, 3
  v_lshl_add_u32 v29, v24, 2, s45
  v_add_u32 v29, v29, v27
  v_add_u32 v29, {48 - 10}, v29
  v_cmp_gt_u32 vcc, 10, v27
  v_cndmask_b32 v28, v29, v28, vcc
  v_cmp_gt_u32 vcc, 14, v27
  v_add_u32 v29, 42, v24
  v_cndmask_b32 v28, v29, v28, vcc
  v_lshrrev_b32 v30, 1, v28                ; chunk c'
  v_mov_b32 v29, 0x781b93b4
  v_mov_b32 v31, 0xd8e1e48d
  v_cmp_gt_u32 vcc, 16, v30
  v_cndmask_b32 v29, v31, v29, vcc
  v_and_b32 v31, 15, v30
  v_lshlrev_b32 v31, 1, v31
  v_lshrrev_b32 v29, v31, v29
  v_and_b32 v29, 3, v29
  v_and_b32 v30, 0xfc, v30
  v_or_b32 v30, v30, v29                   ; position p'
  v_lshrrev_b32 v29, 3, v30                ; VU
  v_and_b32 v30, 7, v30
  v_xor_b32 v30, v30, v22
  v_and_b32 v31, 1, v28
  v_lshl_add_u32 v30, v30, 4, v21
  v_lshl_add_u32 v30, v31, 3, v30
  v_lshl_add_u32 v{VWA[b]}, v29, 12, v30""")
    k(f"{k.L('c_go')}:")
    k(f"""
  s_lshl_b32 s45, s43, 10
  s_add_u32 s45, s45, {ST}
  v_lshl_add_u32 v32, v16, 4, s45
  s_lshl_b32 s45, s44, 11
  s_add_u32 s45, s45, {TT}
  v_lshl_add_u32 v33, v16, 4, s45
  v_mov_b32 v34, {ZR}
  v_cmp_eq_u32 vcc, 0, v17
  v_cndmask_b32 v33, v34, v33, vcc
  v_lshrrev_b32 v25, 1, v18                ; hh_k
  s_lshl_b32 s45, s44, 1
  v_add_u32 v26, s45, v24
  v_lshlrev_b32 v26, 10, v26
  v_add_u32 v26, {WP}, v26
  v_mul_u32_u24 v27, 40, v19
  v_add_u32 v27, v27, v26
  v_lshl_add_u32 v27, v23, 3, v27
  v_mov_b32 v28, {ZR}
  v_cmp_eq_u32 vcc, v24, v25
  v_cndmask_b32 v35, v28, v27, vcc
  v_add_u32 v30, 32, v27
  v_cmp_eq_u32 s[58:59], 0, v23
  s_and_b64 vcc, vcc, s[58:59]
  v_cndmask_b32 v31, v28, v30, vcc""")
    kb.stamp(k, 15)
    def stats_cs():
        A_ = rec(k, [stats_a1, stats_a2, stats_b, stats_c, stats_d]); B_ = rec(k, [cs_a, cs_b])
        k.wait_vm("cs")
        na, nb = len(A_), len(B_); ia = ib = 0
        while ia < na or ib < nb:
            for _ in range(2):
                if ia < na: kb.replay(k, A_[ia]); ia += 1
            if ib < nb and (ib + 1)*na <= (ia + 2)*nb*1.0 + na: kb.replay(k, B_[ib]); ib += 1
            elif ia >= na and ib < nb: kb.replay(k, B_[ib]); ib += 1
    k(f"  s_cmp_eq_u32 s37, 0\n  s_cbranch_scc1 {k.L('jobs_kv')}")
    k.vm = vm_g
    stats_cs()
    kb.stamp(k, 59)
    sw_proc1(k, 0); sw_proc1(k, 1); kb.stamp(k, 61); sw_proc2(k, 0); sw_proc2(k, 1)
    k(f"  s_branch {k.L('jobs_done')}")
    k.label("jobs_kv")
    k.vm = vm_kv
    base_ = k.name
    k.lname = base_ + "_jk"
    stats_a1(k); stats_a2(k); stats_b(k); stats_c(k); stats_d(k)
    k(f"  s_cmp_eq_u32 s50, -1\n  s_cbranch_scc1 {k.L('nocs')}")
    cs_a(k); cs_b(k)
    k.label("nocs")
    k.lname = None
    k.label("jobs_done")
    k(f"""
  s_mul_i32 s41, s2, 3
  s_add_u32 s41, s41, 16
  v_add_u32 v36, s41, v1                   ; line
  v_cmp_gt_u32 vcc, {NFL}, v36
  s_mov_b64 s[58:59], vcc
  v_cmp_gt_u32 vcc, 3, v1
  s_and_b64 vcc, vcc, s[58:59]
  s_cmp_eq_u32 s39, 1
  s_cselect_b64 s[58:59], -1, 0
  s_and_b64 vcc, vcc, s[58:59]
  v_lshlrev_b32 v36, 7, v36
  v_add_u32 v36, {FL}, v36
  v_mov_b32 v37, 0x7fff0000
  v_cndmask_b32 v36, v37, v36, vcc
  v_mov_b32 v38, 0
  buffer_store_dword v38, v36, {R(R_WS)}, 0 offen sc1""")
    k("  v_mov_b32 v48, 0\n  s_lshr_b32 s43, s39, 1\n  s_and_b32 s44, s39, 1")
    k(f"  global_load_dword v49, v48, s[{S_DBG}:{S_DBG+1}] sc1")
    k.vm = []
    kb.stamp(k, 2)
    k("  s_barrier")
    kb.stamp(k, 3)
    kb.stamp(k, 40, rt=True)
    if 'prioC' in EXP: k("  s_setprio 1")
    for l in a_reads(0, 0, 0): k(l)
    a_stage(k, 0, first=True)
    for st4 in (1, 2, 3): a_stage(k, st4)
    k("  s_mov_b32 s46, 1\n.p2align 3")
    k.label("kloop")
    F2T, F2S = {4: (1, 0), 5: (1, 1), 6: (1, 2), 8: (2, 0)}[int(os.environ.get("F2J", 5))]
    pre = f"""  s_cmp_eq_u32 s46, {F2T}
  s_cbranch_scc0 {k.L('f2n1')}
  s_waitcnt vmcnt(0)
{k.L('f2n1')}:"""
    def post(k):
        k(f"""
  s_lshl_b32 s41, s46, 2
  s_or_b32 s41, s41, s39
  s_cmp_eq_u32 s41, {4*F2T}
  s_cbranch_scc0 {k.L('f2n2')}
  v_readfirstlane_b32 s53, v49
  s_cmp_eq_u32 s53, 1
  s_cbranch_scc1 {k.L('f2go')}
{k.L('f2g0')}:
  s_sleep 4
  global_load_dword v49, v48, s[{S_DBG}:{S_DBG+1}] sc1
  s_waitcnt vmcnt(0)
  v_readfirstlane_b32 s53, v49
  s_cmp_eq_u32 s53, 1
  s_cbranch_scc0 {k.L('f2g0')}
{k.L('f2go')}:
  s_lshr_b32 s41, s2, 4
  s_lshl_b32 s41, s41, 7
  s_and_b32 s42, s2, 15
  s_add_u32 s41, s41, s42
  s_add_u32 s41, s41, {FL_F2}
  v_mov_b32 v2, s41
  v_mov_b32 v0, 1
  s_mov_b64 exec, 1
  buffer_store_byte v0, v2, {R(R_WS)}, 0 offen sc1
  s_mov_b64 exec, -1
{k.L('f2n2')}:""")
    for st4 in range(4): a_stage(k, st4, pre_barrier=(pre if st4 == F2S else None), post_barrier=(post if st4 == F2S else None))
    k(f"  s_add_u32 s46, s46, 1\n  s_cmp_lt_u32 s46, 4\n  s_cbranch_scc1 {k.L('kloop')}")
    for st4 in range(3): a_stage(k, st4)
    tail = [f"  ds_read_b128 v[{36+4*tb}:{39+4*tb}], v32 offset:{tb*512}" for tb in range(2)] + \
           [f"  ds_read_b128 v[{FW[0][b]}:{FW[0][b]+3}], v33 offset:{b*512}" for b in range(4)]
    a_stage(k, 3, tail=tail)
    for beta in range(2):
        for st in range(3):
            for t in range(2):
                d0 = 8*st + 4*t; reg = WA_KV + (beta*3 + st)*4 + 2*t
                if d0 < 20: k(f"  ds_read_b64_tr_b16 v[{reg}:{reg+1}], v{35 if beta == 0 else 31} offset:{d0*40}")
                else: k(f"  v_mov_b32 v{reg}, 0\n  v_mov_b32 v{reg+1}, 0")
    k("  s_waitcnt lgkmcnt(10)")
    kb.stamp(k, 4)
    kb.stamp(k, 42, rt=True)
    for tb in range(2):
        s = 36 + 4*tb; d = FX[0][tb]
        k(f"""
  v_rcp_f32 v44, v{s+2}
  v_sub_f32 v45, 0, v{s}
  v_cvt_pk_bf16_f32 v{d}, v45, v45
  v_and_b32 v46, 0xffff0000, v{d}
  v_sub_f32 v46, v45, v46
  v_cvt_pk_bf16_f32 v47, v44, v44
  v_and_b32 v48, 0xffff0000, v47
  v_sub_f32 v48, v44, v48
  v_cvt_pk_bf16_f32 v{d+1}, v46, v44
  v_cvt_pk_bf16_f32 v{d+2}, v48, 0
  v_mov_b32 v{d+3}, 0
  v_mov_b32 v{s+3}, v44
  v_cmp_eq_u32 vcc, 0, v17
  v_cndmask_b32 v{d}, 0, v{d}, vcc
  v_cndmask_b32 v{d+1}, 0, v{d+1}, vcc
  v_cndmask_b32 v{d+2}, 0, v{d+2}, vcc""")
    for m in a_mfmas(0): k(m)
    k(f"  s_cmp_eq_u32 s37, 0\n  s_cbranch_scc1 {k.L('epi_kv')}")
    epi_g(k)
    k(f"  s_branch {k.L('phase_b')}")
    k.label("epi_kv")
    epi_kv(k)
    k.label("phase_b")

def gelu_block(k, a, dst):
    T = 60
    for p in range(0, 16, 8):
        prs = [(a + p + 2*i, T + 2*i) for i in range(4)]
        for (x, t) in prs: k(f"  v_pk_mul_f32 v[{t}:{t+1}], v[{x}:{x+1}], v[{x}:{x+1}]")
        for (x, t) in prs: k(f"  v_pk_fma_f32 v[{t}:{t+1}], v[{t}:{t+1}], v[52:53], v[50:51]")
        for (x, t) in prs: k(f"  v_pk_mul_f32 v[{t}:{t+1}], v[{t}:{t+1}], v[{x}:{x+1}]")
        for i in range(8): k(f"  v_exp_f32 v{T+i}, v{T+i}")
        for (x, t) in prs: k(f"  v_pk_fma_f32 v[{t}:{t+1}], v[{t}:{t+1}], v[54:55], v[54:55]")
        for i in range(8): k(f"  v_rcp_f32 v{T+i}, v{T+i}")
        for (x, t) in prs: k(f"  v_pk_mul_f32 v[{t}:{t+1}], v[{t}:{t+1}], v[{x}:{x+1}]")
        for n_, (x, t) in enumerate(prs): k(f"  v_cvt_pk_bf16_f32 v{dst + p//2 + n_}, v{t}, v{t+1}")

def epi_g_part(k, uu, tb, wait_older=False):
    n = f"{uu}{tb}"
    k(f"""
  s_lshl_b32 s50, s44, 1
  s_add_u32 s50, s50, {uu}
  s_lshl_b32 s51, s38, 2
  s_add_u32 s51, s51, s50                  ; u_lin
  s_cmp_lt_u32 s51, 27
  s_cbranch_scc1 {k.L('g_w1_' + n)}
  s_bitcmp1_b32 s51, 0
  s_cbranch_scc1 {k.L('g_none_' + n)}
  s_cmp_lt_u32 s51, 28
  s_cbranch_scc1 {k.L('g_none_' + n)}
  s_lshr_b32 s51, s51, 1
  s_sub_u32 s51, s51, 6
  s_add_u32 s52, s48, {2*tb}
  s_mul_i32 s52, s52, 160
  s_lshl_b32 s53, s51, 4
  s_add_u32 s52, s52, s53
  s_lshl_b32 s52, s52, 7
  s_add_u32 s52, s52, {L.WS_Q}""")
    for bb in range(2):
        a = acc(tb, 2*uu + bb)
        for jp in range(4):
            r = 60 + 2*(jp % 4)
            k(f"  v_cvt_pk_bf16_f32 v{r}, v{a+4*jp}, v{a+4*jp+1}\n  v_cvt_pk_bf16_f32 v{r+1}, v{a+4*jp+2}, v{a+4*jp+3}")
            k(f"  buffer_store_dwordx2 v[{r}:{r+1}], v59, {R(R_WS)}, s52 offen offset:{bb*1024 + jp*256} sc1")
    if wait_older: k("  s_waitcnt vmcnt(8)")
    k(f"  s_branch {k.L('g_done_' + n)}\n{k.L('g_none_' + n)}:")
    if wait_older: k("  s_waitcnt vmcnt(0)")
    k(f"  s_branch {k.L('g_done_' + n)}\n{k.L('g_w1_' + n)}:")
    s_ = 36 + 4*tb
    k(f"""
  s_and_b32 s53, s51, 1
  s_mul_i32 s53, s53, 27
  s_add_u32 s51, s51, s53
  v_mul_f32 v50, {fl(C0)}, v{s_+2}
  v_mul_f32 v52, v{s_+2}, v{s_+2}
  v_mul_f32 v52, v52, v{s_+2}
  v_mov_b32 v51, v50
  v_mul_f32 v52, {fl(C1)}, v52
  v_mov_b32 v54, v{s_+3}
  v_mov_b32 v55, v{s_+3}
  v_mov_b32 v53, v52
  s_add_u32 s52, s48, {2*tb}
  s_mul_i32 s52, s52, 74
  s_add_u32 s52, s52, s51
  s_lshl_b32 s52, s52, 10
  s_add_u32 s52, s52, {L.WS_HO}""")
    for bb in range(2):
        a = acc(tb, 2*uu + bb)
        d = 68 if bb == 0 else 20
        gelu_block(k, a, d)
        k(f"  buffer_store_dwordx4 v[{d}:{d+3}], v58, {R(R_WS)}, s52 offen offset:{bb*1024} sc1")
        k(f"  buffer_store_dwordx4 v[{d+4}:{d+7}], v58, {R(R_WS)}, s52 offen offset:{bb*1024 + 256} sc1")
    if wait_older: k("  s_waitcnt vmcnt(4)")
    k(f"{k.L('g_done_' + n)}:")

def epi_g(k):
    if 'delayG' in EXP: k("  s_sleep 39")
    k(f"""
  s_waitcnt lgkmcnt(0)
  v_lshrrev_b32 v56, 4, v16
  v_and_b32 v57, 15, v16
  v_mul_u32_u24 v58, {74*1024}, v56
  v_lshl_add_u32 v58, v17, 9, v58
  v_lshl_add_u32 v58, v57, 4, v58
  v_mul_u32_u24 v59, {160*128}, v56
  v_lshl_add_u32 v59, v17, 7, v59
  v_lshl_add_u32 v59, v57, 3, v59
  s_lshl_b32 s48, s36, 3
  s_lshl_b32 s49, s43, 2
  s_add_u32 s48, s48, s49""")
    decode_b(k)
    epi_g_part(k, 0, 0); epi_g_part(k, 0, 1)
    epi_g_part(k, 1, 0, wait_older=True)
    k("  s_barrier")
    kb.stamp(k, 5)
    store_flag(k, 39, 0, f"  s_lshl_b32 s41, s36, 1\n  s_lshr_b32 s42, s38, 2\n  s_add_u32 s41, s41, s42\n  s_lshl_b32 s41, s41, 7\n  s_and_b32 s42, s38, 3\n  s_add_u32 s41, s41, s42\n  s_add_u32 s41, s41, {FL_H1}", "fh1")
    epi_g_part(k, 1, 1)
    kb.stamp(k, 8)
    k("  s_barrier")

def kv_q_store(k, accs):
    k(f"""
  v_lshrrev_b32 v2, 4, v16
  v_and_b32 v0, 15, v16
  v_mul_u32_u24 v18, {160*128}, v2
  v_lshl_add_u32 v18, v17, 9, v18
  v_lshl_add_u32 v18, v0, 3, v18
  s_lshl_b32 s48, s36, 3
  s_lshl_b32 s49, s43, 2
  s_add_u32 s48, s48, s49""")
    for tb in range(2):
        k(f"""
  s_add_u32 s52, s48, {2*tb}
  s_mul_i32 s52, s52, 160
  s_lshl_b32 s53, s38, 4
  s_add_u32 s52, s52, s53
  s_lshl_b32 s53, s44, 3
  s_add_u32 s52, s52, s53
  s_lshl_b32 s52, s52, 7
  s_add_u32 s52, s52, {L.WS_Q}""")
        a = accs[tb]
        for g in range(4):
            r = 104 + 8*tb + 2*g
            k(f"  v_cvt_pk_bf16_f32 v{r}, v{a+4*g}, v{a+4*g+1}\n  v_cvt_pk_bf16_f32 v{r+1}, v{a+4*g+2}, v{a+4*g+3}")
            k(f"  buffer_store_dwordx2 v[{r}:{r+1}], v18, {R(R_WS)}, s52 offen offset:{g*128} sc1")
def q_flag(k):
    k(f"""
  s_lshl_b32 s41, s36, 1
  s_lshr_b32 s42, s39, 1                   ; Th
  s_add_u32 s41, s41, s42
  s_lshl_b32 s41, s41, 2
  s_lshr_b32 s42, s38, 1
  s_add_u32 s41, s41, s42
  s_lshl_b32 s41, s41, 7
  s_and_b32 s42, s38, 1
  s_lshl_b32 s42, s42, 1
  s_add_u32 s41, s41, s42
  s_and_b32 s42, s39, 1                    ; Fh
  s_add_u32 s41, s41, s42
  s_add_u32 s41, s41, {FL_Q}
  v_mov_b32 v2, s41
  v_mov_b32 v0, 1
  s_mov_b64 exec, 1
  buffer_store_byte v0, v2, {R(R_WS)}, 0 offen sc1
  s_mov_b64 exec, -1""")
def pf_flag(k):
    k(f"""
  s_lshl_b32 s41, s38, 4
  s_add_u32 s41, s41, s36
  s_lshl_b32 s41, s41, 7
  s_add_u32 s41, s41, s39
  s_add_u32 s41, s41, {FL_PF}
  v_mov_b32 v2, s41
  v_mov_b32 v0, 1
  s_mov_b64 exec, 1
  buffer_store_byte v0, v2, {R(R_WS)}, 0 offen sc1
  s_mov_b64 exec, -1""")
def kv_pass2(k):
    F_FWD_HI = 0xd8e1e48d
    A2 = [128, 144]
    k(f"""
  v_and_b32 v16, 31, v1
  v_lshrrev_b32 v17, 5, v1
  v_lshrrev_b32 v18, 1, v16
  v_and_b32 v18, 7, v18
  v_xor_b32 v18, v17, v18
  v_lshlrev_b32 v18, 4, v18
  v_lshl_add_u32 v18, v16, 7, v18
  s_lshl_b32 s45, s43, 13
  v_add_u32 v{VXB[0]}, s45, v18
  v_xor_b32 v{VXB[1]}, 32, v{VXB[0]}
  v_xor_b32 v{VXB[2]}, 64, v{VXB[0]}
  v_xor_b32 v{VXB[3]}, 96, v{VXB[0]}
  v_mov_b32 v{VXA[0]}, v{VXB[0]}
  v_mov_b32 v{VXA[1]}, v{VXB[1]}
  v_mov_b32 v{VXA[2]}, v{VXB[2]}
  v_mov_b32 v{VXA[3]}, v{VXB[3]}
  s_mov_b32 s47, 16384
  v_lshrrev_b32 v18, 4, v1                 ; G
  v_lshrrev_b32 v19, 2, v1
  v_and_b32 v19, 3, v19                    ; r
  v_and_b32 v20, 3, v1                     ; c
  v_lshrrev_b32 v21, 1, v18
  v_lshl_add_u32 v21, v21, 3, v19
  v_lshlrev_b32 v21, 7, v21
  v_add_u32 v21, {W2B}, v21
  v_lshrrev_b32 v22, 1, v19
  v_lshlrev_b32 v22, 2, v22                ; swizzle
  v_and_b32 v23, 1, v18
  v_lshlrev_b32 v23, 1, v23
  v_lshrrev_b32 v24, 1, v20
  v_add_u32 v23, v23, v24                  ; j'
  v_and_b32 v24, 1, v20                    ; hh'
  s_lshl_b32 s45, s44, 3
  v_lshl_add_u32 v25, v24, 2, s45
  v_add_u32 v25, v25, v23
  v_lshrrev_b32 v26, 1, v25                ; chunk
  v_add_u32 v27, 8, v26
  v_lshlrev_b32 v27, 1, v27
  v_mov_b32 v28, {hex(F_FWD_HI)}
  v_lshrrev_b32 v28, v27, v28
  v_and_b32 v28, 3, v28
  v_and_b32 v26, 4, v26
  v_or_b32 v26, v26, v28                   ; position
  v_xor_b32 v26, v26, v22
  v_and_b32 v25, 1, v25
  v_lshl_add_u32 v26, v26, 4, v21
  v_lshl_add_u32 v12, v25, 3, v26
  v_lshrrev_b32 v23, 3, v16
  v_add_u32 v23, 10, v23                   ; q
  v_lshrrev_b32 v24, 2, v23                ; b
  v_and_b32 v23, 3, v23                    ; slot
  v_and_b32 v25, 7, v16                    ; 4 hq + i
  v_lshl_add_u32 v25, v23, 3, v25
  v_lshl_add_u32 v25, v24, 5, v25
  s_lshl_b32 s45, s44, 7
  v_add_u32 v25, s45, v25
  v_lshlrev_b32 v25, 4, v25
  v_add_u32 v25, {TT}, v25
  v_mov_b32 v26, {ZR}
  v_cmp_eq_u32 vcc, 0, v17
  v_cndmask_b32 v13, v26, v25, vcc""")
    for i in range(32): k(f"  v_mov_b32 v{128+i}, 0")
    XS = [80, 44]; WS_ = [112, 18]
    def rd(m):
        st = m % 2; out = []
        for ks in range(4):
            out += [f"  ds_read_b128 v[{XS[st]+8*ks+4*tb}:{XS[st]+8*ks+4*tb+3}], v{VXA[ks]} offset:{tb*4096}" for tb in range(2)]
            out += [f"  ds_read_b64_tr_b16 v[{WS_[st]+4*ks+2*t}:{WS_[st]+4*ks+2*t+1}], v12 offset:{W2S[m % 5] - W2B + ks*2048 + t*512}" for t in range(2)]
        return out
    def mm(m):
        st = m % 2
        return [f"  v_mfma_f32_32x32x16_bf16 v[{A2[tb]}:{A2[tb]+15}], v[{WS_[st]+4*ks}:{WS_[st]+4*ks+3}], v[{XS[st]+8*ks+4*tb}:{XS[st]+8*ks+4*tb+3}], v[{A2[tb]}:{A2[tb]+15}]"
                for ks in range(4) for tb in range(2)]
    k("  s_barrier")
    for l in rd(0): k(l)
    for m in range(10):
        if m < 9:
            for i in range(4): k(f"  v_add_u32 v{VXA[i]}, {X2S[(m + 1) % 5]}, v{VXB[i]}")
        k("  s_waitcnt lgkmcnt(0)\n  s_barrier")
        nxt = rd(m + 1) if m < 9 else [f"  ds_read_b128 v[{FW[0][0]}:{FW[0][0]+3}], v13"]
        for x in mm(m):
            k(x)
            for _ in range(2):
                if nxt: k(nxt.pop(0))
        if m == 2:
            k("  s_waitcnt vmcnt(0)"); pf_flag(k); kb.stamp(k, 36)
        if m == 4: red_poll(k)
        if m == 6: red_issue(k)
        if m == 9: red_sum(k)
    k("  s_waitcnt lgkmcnt(0)\n  s_barrier")
    for tb in range(2):
        s_ = 36 + 4*tb; d = FX[0][tb]
        k(f"""
  v_sub_f32 v45, 0, v{s_}
  v_cvt_pk_bf16_f32 v{d}, v45, v45
  v_and_b32 v46, 0xffff0000, v{d}
  v_sub_f32 v46, v45, v46
  v_cvt_pk_bf16_f32 v{d+1}, v46, 0
  v_mov_b32 v{d+2}, 0
  v_mov_b32 v{d+3}, 0
  v_cmp_eq_u32 vcc, 0, v17
  v_cndmask_b32 v{d}, 0, v{d}, vcc
  v_cndmask_b32 v{d+1}, 0, v{d+1}, vcc""")
    for tb in range(2):
        k(f"  v_mfma_f32_32x32x16_bf16 v[{A2[tb]}:{A2[tb]+15}], v[{FW[0][0]}:{FW[0][0]+3}], v[{FX[0][tb]}:{FX[0][tb]+3}], v[{A2[tb]}:{A2[tb]+15}]")
    kv_q_store(k, A2)
    k("  s_waitcnt vmcnt(0)")
    q_flag(k)
    red_flag(k, 1); kb.stamp(k, 38)
    k("  s_barrier")
def epi_kv(k):
    if 'delayK' in EXP: k("  s_sleep 39")
    decode_b(k)
    WA = WA_KV; KB_ = 80
    k(f"""
  s_lshl_b32 s45, s43, 6
  v_add_u32 v32, s45, v16
  s_lshl_b32 s45, s44, 1
  v_add_u32 v33, s45, v17
  v_mul_u32_u24 v34, {PHI_P}, v32
  v_mul_u32_u24 v35, 80, v33
  v_add_u32 v34, v34, v35
  v_add_u32 v34, {PHI}, v34
  v_mul_u32_u24 v35, {VV_P}, v32
  v_mul_u32_u24 v33, 48, v33
  v_add_u32 v35, v35, v33
  v_add_u32 v35, {VV}, v35""")
    for tb in range(2):
        a = ACC + tb*64
        for i in range(10): k(f"  v_cvt_pk_bf16_f32 v{KB_+12*tb+i}, v{a+2*i}, v{a+2*i+1}")
        k(f"  v_mov_b32 v{KB_+12*tb+10}, 0\n  v_mov_b32 v{KB_+12*tb+11}, 0")
    if not TP: kv_q_store(k, [ACC + 40, ACC + 64 + 40])
    k("  s_waitcnt lgkmcnt(0)")
    B1 = [112, 18]
    for st in range(3):
        for tb in range(2):
            for beta in range(2):
                d = (ACC + tb*64 + 40) if beta == 0 else B1[tb]
                c = "0" if st == 0 else f"v[{d}:{d+15}]"
                w = WA + (beta*3 + st)*4
                k(f"  v_mfma_f32_32x32x16_bf16 v[{d}:{d+15}], v[{w}:{w+3}], v[{KB_+12*tb+4*st}:{KB_+12*tb+4*st+3}], {c}")
    VB = 44
    for tb in range(2):
        a = ACC + tb*64; s_ = 36 + 4*tb
        k(f"  v_mov_b32 v4, v{s_+1}\n  v_mov_b32 v5, v{s_+1}")
        for i in range(10): k(f"  v_pk_mul_f32 v[{a+20+2*i}:{a+21+2*i}], v[{a+20+2*i}:{a+21+2*i}], v[4:5]")
        for i in range(10): k(f"  v_cvt_pk_bf16_f32 v{VB+i}, v{a+20+2*i}, v{a+21+2*i}")
        k(f"  v_mov_b32 v{VB+10}, 0x3f80\n  v_mov_b32 v{VB+11}, 0")
        for c in range(3): k(f"  ds_write_b128 v35, v[{VB+4*c}:{VB+4*c+3}] offset:{tb*32*VV_P + 16*c}")
    for tb in range(2):
        a = ACC + tb*64; s_ = 36 + 4*tb
        for i in range(4): k(f"  v_mov_b32 v{a+56+i}, v{B1[tb]+i}")
        PH = 80 + 0
        softmax_pair(k, [a + 40 + i for i in range(20)], s_ + 1, a, PH, T=44)
        for c in range(5): k(f"  ds_write_b128 v34, v[{PH+4*c}:{PH+4*c+3}] offset:{tb*32*PHI_P + 16*c}")
        if tb == 0 and not TP:
            k("  s_waitcnt vmcnt(0)"); q_flag(k)
    k("  s_waitcnt lgkmcnt(0)\n  s_barrier")
    kb.stamp(k, 5)
    k(f"""
  v_lshrrev_b32 v18, 4, v1
  v_lshrrev_b32 v19, 2, v1
  v_and_b32 v19, 3, v19
  v_and_b32 v20, 3, v1
  v_lshrrev_b32 v21, 1, v18
  v_lshl_add_u32 v21, v21, 3, v19
  v_and_b32 v22, 1, v18
  v_lshlrev_b32 v22, 2, v22
  v_add_u32 v22, v22, v20
  v_mul_u32_u24 v23, {PHI_P}, v21
  s_mul_i32 s45, s39, 80
  s_add_u32 s45, s45, {PHI}
  v_add_u32 v23, s45, v23
  v_lshl_add_u32 v24, v22, 3, v23
  v_and_b32 v25, 1, v22
  v_lshl_add_u32 v25, v25, 3, v23
  v_add_u32 v25, 64, v25
  v_mul_u32_u24 v26, {VV_P}, v21
  s_mul_i32 s45, s39, 48
  s_add_u32 s45, s45, {VV}
  v_add_u32 v26, s45, v26
  v_min_u32 v27, 5, v22
  v_lshl_add_u32 v26, v27, 3, v26""")
    KA = 48; FA = 128
    def rd(st):
        base = FA + st*12
        for t in range(2):
            tok = 16*st + 4*t
            k(f"  ds_read_b64_tr_b16 v[{base+2*t}:{base+2*t+1}], v24 offset:{tok*PHI_P}")
            k(f"  ds_read_b64_tr_b16 v[{base+4+2*t}:{base+5+2*t}], v25 offset:{tok*PHI_P}")
            k(f"  ds_read_b64_tr_b16 v[{base+8+2*t}:{base+9+2*t}], v26 offset:{tok*VV_P}")
    rd(0); rd(1)
    k(f"""
  v_lshlrev_b32 v28, 2, v16
  v_mul_u32_u24 v29, {4*96}, v17
  v_add_u32 v28, v28, v29
  s_mul_i32 s46, s39, 3840
  s_add_u32 s46, s46, {KPS}
  v_add_u32 v28, s46, v28
  v_lshlrev_b32 v30, 4, v1
  v_add_u32 v31, s46, v30
  s_lshl_b32 s45, s38, 4
  s_add_u32 s45, s45, s36                  ; j*16 + i
  s_mul_i32 s45, s45, 160
  s_mul_i32 s46, s39, 40
  s_add_u32 s45, s45, s46
  s_mul_i32 s45, s45, 96
  s_add_u32 s45, s45, {L.WS_KP}""")
    for st in range(8):
        k(f"  s_waitcnt lgkmcnt({6 if st < 7 else 0})")
        base = FA + st*12
        for beta in range(2):
            c = "0" if st == 0 else f"v[{KA+16*beta}:{KA+16*beta+15}]"
            k(f"  v_mfma_f32_32x32x16_bf16 v[{KA+16*beta}:{KA+16*beta+15}], v[{base+4*beta}:{base+4*beta+3}], v[{base+8}:{base+11}], {c}")
        if st + 2 < 8: rd(st + 2)
    k("  v_cmp_gt_u32 vcc, 24, v16\n  s_and_saveexec_b64 s[50:51], vcc")
    for jp in range(4):
        for i in range(4):
            k(f"  ds_write_b32 v28, v{KA+4*jp+i} offset:{(8*jp+i)*96}")
    for i in range(4):
        k(f"  ds_write_b32 v28, v{KA+16+i} offset:{(32+i)*96}")
    k("  s_mov_b64 exec, s[50:51]\n  s_waitcnt lgkmcnt(0)")
    for r in range(4): k(f"  ds_read_b128 v[{80+4*r}:{83+4*r}], v31 offset:{r*1024}")
    k("  v_mov_b32 v29, 0x7fff0000\n  v_cmp_gt_u32 vcc, 48, v1\n  v_cndmask_b32 v29, v29, v30, vcc")
    for r in range(4):
        k(f"  s_waitcnt lgkmcnt({3-r})")
        k(f"  buffer_store_dwordx4 v[{80+4*r}:{83+4*r}], v{30 if r < 3 else 29}, {R(R_WS)}, s45 offen offset:{r*1024} sc1")
    kb.stamp(k, 8)
    if TP: kv_pass2(k)
    else: k("  s_barrier")

def softmax_1(k, P, vr1, E, T=44):
    k(f"  v_max3_f32 v{T+0}, v{P[0]}, v{P[1]}, v{P[2]}\n  v_min3_f32 v{T+1}, v{P[0]}, v{P[1]}, v{P[2]}")
    k(f"  v_max3_f32 v{T+2}, v{P[3]}, v{P[4]}, v{P[5]}\n  v_min3_f32 v{T+3}, v{P[3]}, v{P[4]}, v{P[5]}")
    for i in range(6, 18, 4):
        k(f"  v_max3_f32 v{T+0}, v{T+0}, v{P[i]}, v{P[i+1]}\n  v_min3_f32 v{T+1}, v{T+1}, v{P[i]}, v{P[i+1]}")
        k(f"  v_max3_f32 v{T+2}, v{T+2}, v{P[i+2]}, v{P[i+3]}\n  v_min3_f32 v{T+3}, v{T+3}, v{P[i+2]}, v{P[i+3]}")
    k(f"  v_max3_f32 v{T+0}, v{T+0}, v{P[18]}, v{P[19]}\n  v_min3_f32 v{T+1}, v{T+1}, v{P[18]}, v{P[19]}")
    k(f"  v_max_f32 v{T+0}, v{T+0}, v{T+2}\n  v_min_f32 v{T+1}, v{T+1}, v{T+3}")
    k(f"""
  v_mul_f32 v{T+2}, {fl(LOG2E)}, v{vr1}
  v_mov_b32 v{T+3}, v{T+2}
  v_mul_f32 v2, v{T+0}, v{T+2}
  v_mul_f32 v0, v{T+1}, v{T+2}
  v_sub_f32 v{T+0}, 0, v2
  v_sub_f32 v{T+1}, 0, v2""")
    for i in range(10):
        k(f"  v_pk_fma_f32 v[{E+2*i}:{E+2*i+1}], v[{P[2*i]}:{P[2*i]+1}], v[{T+2}:{T+3}], v[{T}:{T+1}]")
    k(f"  v_mov_b32 v{T+0}, v0\n  v_mov_b32 v{T+1}, v0")
    for i in range(10):
        k(f"  v_pk_fma_f32 v[{E+20+2*i}:{E+21+2*i}], v[{P[2*i]}:{P[2*i]+1}], v[{T+2}:{T+3}], v[{T}:{T+1}] neg_lo:[1,0,0] neg_hi:[1,0,0]")
    for i in range(20): k(f"  v_exp_f32 v{E+i}, v{E+i}")
def softmax_2(k, E, T=44):
    for i in range(20, 40): k(f"  v_exp_f32 v{E+i}, v{E+i}")
    for h_ in range(2):
        b0 = E + 20*h_; d = T + 2*h_
        k(f"  v_pk_add_f32 v[{d}:{d+1}], v[{b0}:{b0+1}], v[{b0+2}:{b0+3}]")
    for i in range(2, 10):
        for h_ in range(2):
            b0 = E + 20*h_; d = T + 2*h_
            k(f"  v_pk_add_f32 v[{d}:{d+1}], v[{d}:{d+1}], v[{b0+2*i}:{b0+2*i+1}]")
    k(f"  v_add_f32 v{T+0}, v{T+0}, v{T+1}\n  v_add_f32 v{T+2}, v{T+2}, v{T+3}\n  v_rcp_f32 v{T+0}, v{T+0}\n  v_rcp_f32 v{T+2}, v{T+2}")
    k(f"  v_mov_b32 v{T+1}, v{T+0}\n  v_mov_b32 v{T+3}, v{T+2}")
def softmax_3(k, E, PH, T=44):
    for i in range(10):
        for h_ in range(2):
            b0 = E + 20*h_; d = T + 2*h_
            k(f"  v_pk_mul_f32 v[{b0+2*i}:{b0+2*i+1}], v[{b0+2*i}:{b0+2*i+1}], v[{d}:{d+1}]")
    for h_ in range(2):
        for i in range(10):
            k(f"  v_cvt_pk_bf16_f32 v{PH+10*h_+i}, v{E+20*h_+2*i}, v{E+20*h_+2*i+1}")
def softmax_pair(k, P, vr1, E, PH, T=44):
    softmax_1(k, P, vr1, E, T); softmax_2(k, E, T); softmax_3(k, E, PH, T)

VS = [4, 5, 6, 7]; VA = [8, 9, 10, 11]
FR = [64 + 24*s for s in range(4)]
ACCB = 32
XT = 2*SLOT + 10240
BT = 161280

def decode_b(k):
    k(f"""
  s_lshr_b32 s40, s2, 3
  s_and_b32 s{S_I64}, s2, 3
  s_lshl_b32 s{S_I64}, s{S_I64}, 3
  s_lshr_b32 s41, s40, 2
  s_add_u32 s{S_I64}, s{S_I64}, s41
  s_lshr_b32 s{S_JB}, s2, 2
  s_and_b32 s{S_JB}, s{S_JB}, 1
  s_lshl_b32 s{S_JB}, s{S_JB}, 2
  s_and_b32 s41, s40, 3
  s_add_u32 s{S_JB}, s{S_JB}, s41
  s_lshl_b32 s{S_T16}, s{S_I64}, 2
  s_add_u32 s{S_T16}, s{S_T16}, s39""")

def breads(st4, ks):
    base = FR[ks]
    r = [f"  ds_read_b128 v[{base}:{base+3}], v{VA[st4]} offset:{ks*1024}"]
    for cb in range(5):
        r.append(f"  ds_read_b128 v[{base+4+4*cb}:{base+7+4*cb}], v{VS[st4]} offset:{(ks*5+cb)*1024}")
    return r
def bmfma(ks):
    base = FR[ks]
    return [f"  v_mfma_f32_16x16x32_bf16 v[{ACCB+4*cb}:{ACCB+4*cb+3}], v[{base+4+4*cb}:{base+7+4*cb}], v[{base}:{base+3}], v[{ACCB+4*cb}:{ACCB+4*cb+3}]" for cb in range(5)]
def bstage(k, j, next_nks=4, pre_barrier=None, post_barrier=None, extra=None):
    st4 = j % 4
    extra = list(extra or [])
    per = (len(extra) + 19)//20
    for ks in range(4):
        mf = bmfma(ks)
        if ks < 2:
            rd = [(l, ("r", j, ks + 2)) for l in breads(st4, ks + 2)]
            k.wait_ds(("r", j, ks))
        else:
            if ks == 2:
                k.wait_ds(("r", j, 3))
                if pre_barrier: k(pre_barrier)
                k("  s_barrier")
                if post_barrier: post_barrier(k)
            rd = [(l, ("r", j + 1, ks - 2)) for l in breads((st4 + 1) % 4, ks - 2)] if ks - 2 < next_nks else []
        for i, m in enumerate(mf):
            k(m)
            if rd: k.ds(*rd.pop(0))
            for _ in range(per):
                if extra: kb.replay(k, extra.pop(0))
        while rd: k.ds(*rd.pop(0))
    while extra: kb.replay(k, extra.pop(0))

def compute_b(k, role):
    P = SCHED[role]; P1_J = P['P1_J']; RED_J = P['RED_J']; P2_J = P['KVJ'] + 1; OFLAG_J = min(11, P2_J + P['OFLAG_D'])
    k(f"""
  v_and_b32 v16, 15, v1
  v_lshrrev_b32 v17, 4, v1
  s_lshl_b32 s45, s{S_T16}, 4
  v_add_u32 v19, s45, v16
  v_mul_u32_u24 v24, 1280, v19
  s_mul_i32 s45, s{S_JB}, 160
  v_lshl_add_u32 v25, v17, 3, s45
  v_add_u32 v24, v24, v25
  v_lshlrev_b32 v22, 4, v1
  s_lshl_b32 s44, s39, 12
  s_add_u32 s44, s44, 20480""")
    for s in range(4):
        k(f"  v_add_u32 v{VS[s]}, {s*SLOT}, v22\n  v_add_u32 v{VA[s]}, s44, v{VS[s]}")
    for i in range(20): k(f"  v_mov_b32 v{ACCB+i}, 0")
    op_addr(k)
    if role == "kv" and TP: pass
    elif role == "kv":
        k("  s_waitcnt vmcnt(0)"); pf_flag(k)
        kb.stamp(k, 36)
        red_poll(k); red_issue(k); red_sum(k)
        if 'kflate' not in EXP:
            red_flag(k); kb.stamp(k, 38)
    k("  s_barrier")
    kb.stamp(k, 9)
    kb.stamp(k, 44, rt=True)
    k.lg = []
    for ks in range(2):
        for l in breads(0, ks): k.ds(l, ("r", 0, ks))
    def flagH2(k):
        k(f"  s_cmp_eq_u32 s37, 0\n  s_cbranch_scc1 {k.L('fh2_b')}")
        store_flag(k, 39, 0, f"  s_lshl_b32 s41, s36, 1\n  s_lshr_b32 s42, s38, 2\n  s_add_u32 s41, s41, s42\n  s_lshl_b32 s41, s41, 7\n  s_and_b32 s42, s38, 3\n  s_add_u32 s41, s41, s42\n  s_add_u32 s41, s41, {FL_H2}", "fh2")
        k(f"{k.L('fh2_b')}:")
    def flagO(k):
        k(f"""
  s_waitcnt vmcnt(0)
  s_lshl_b32 s41, s{S_T16}, 1
  s_lshr_b32 s42, s{S_JB}, 2
  s_add_u32 s41, s41, s42
  s_lshl_b32 s41, s41, 7
  s_and_b32 s42, s{S_JB}, 3
  s_add_u32 s41, s41, s42
  s_add_u32 s41, s41, {FL_O}
  v_mov_b32 v2, s41
  v_mov_b32 v0, 1
  s_mov_b64 exec, 1
  buffer_store_byte v0, v2, {R(R_WS)}, 0 offen sc1
  s_mov_b64 exec, -1""")
    for j in range(17):
        kw = {}
        if j == 0: kw = dict(post_barrier=op_q_issue)
        if j == 1:
            kw = dict(pre_barrier=f"  s_cmp_eq_u32 s37, 0\n  s_cbranch_scc1 {k.L('h2w')}\n  s_waitcnt vmcnt(6)\n{k.L('h2w')}:", post_barrier=flagH2)
        bstage(k, j, **kw)
        if j == P1_J:
            kb.stamp(k, 11); pause1(k); kb.stamp(k, 12)
        if j == P2_J:
            kb.stamp(k, 13); pause2(k); kb.stamp(k, 14)
        if role == "kv" and j == 0 and 'kflate' in EXP and not TP:
            red_flag(k); kb.stamp(k, 38)
        if j == OFLAG_J:
            flagO(k); kb.stamp(k, 39)
    bstage(k, 17, next_nks=2)
    k("  s_waitcnt lgkmcnt(0)")
    for ks in range(2):
        for m in bmfma(ks): k(m)
    kb.stamp(k, 10)
    k(f"""
  s_lshl_b32 s44, s39, 4
  v_add_u32 v52, s44, v16
  v_mul_u32_u24 v52, 160, v52
  v_lshl_add_u32 v52, v17, 3, v52
  v_add_u32 v52, {XT}, v52
  v_lshlrev_b32 v53, 3, v17
  v_add_u32 v53, {BT}, v53""")
    for cb in range(5):
        k(f"  ds_read_b64 v[{64+2*cb}:{65+2*cb}], v52 offset:{32*cb}\n  ds_read_b64 v[{76+2*cb}:{77+2*cb}], v53 offset:{32*cb}")
    for i in range(3):
        k(f"""
  v_add_u32 v{88+i}, {64*i}, v1
  v_mul_u32_u24 v91, 6554, v{88+i}
  v_lshrrev_b32 v91, 16, v91               ; row
  v_mul_u32_u24 v92, 10, v91
  v_sub_u32 v92, v{88+i}, v92              ; c
  s_lshl_b32 s44, s39, 4
  v_add_u32 v93, s44, v91
  v_mul_u32_u24 v{94+i}, 160, v93
  v_lshl_add_u32 v{94+i}, v92, 4, v{94+i}
  v_add_u32 v{94+i}, {XT}, v{94+i}
  s_lshl_b32 s44, s{S_T16}, 4
  v_add_u32 v91, s44, v91
  v_mul_u32_u24 v91, 1280, v91
  v_lshl_add_u32 v91, v92, 4, v91
  s_mul_i32 s44, s{S_JB}, 160
  v_add_u32 v{97+i}, s44, v91""")
    k(f"  v_mov_b32 v91, 0x7fff0000\n  v_cmp_gt_u32 vcc, 160, v90\n  v_cndmask_b32 v99, v91, v99, vcc\n  v_mov_b32 v91, {XT}\n  v_cndmask_b32 v96, v91, v96, vcc")
    k("  s_waitcnt lgkmcnt(0)")
    for cb in range(5):
        a = ACCB + 4*cb; x = 64 + 2*cb; b = 76 + 2*cb
        k(f"""
  v_lshlrev_b32 v52+0, 16, v{x}
  v_and_b32 v55, 0xffff0000, v{x}
  v_lshlrev_b32 v56, 16, v{x+1}
  v_and_b32 v57, 0xffff0000, v{x+1}
  v_lshlrev_b32 v58, 16, v{b}
  v_and_b32 v59, 0xffff0000, v{b}
  v_lshlrev_b32 v60, 16, v{b+1}
  v_and_b32 v61, 0xffff0000, v{b+1}
  v_pk_add_f32 v[54:55], v[54:55], v[58:59]
  v_pk_add_f32 v[56:57], v[56:57], v[60:61]
  v_pk_add_f32 v[{a}:{a+1}], v[{a}:{a+1}], v[54:55]
  v_pk_add_f32 v[{a+2}:{a+3}], v[{a+2}:{a+3}], v[56:57]
  v_cvt_pk_bf16_f32 v62, v{a}, v{a+1}
  v_cvt_pk_bf16_f32 v63, v{a+2}, v{a+3}
  ds_write_b64 v52, v[62:63] offset:{32*cb}""".replace("v52+0", "v54"))
    k("  s_waitcnt lgkmcnt(0)")
    for i in range(3): k(f"  ds_read_b128 v[{100+4*i}:{103+4*i}], v{94+i}")
    for i in range(3):
        k(f"  s_waitcnt lgkmcnt({2-i})\n  buffer_store_dwordx4 v[{100+4*i}:{103+4*i}], v{97+i}, {R(R_OUT)}, 0 offen {'nt' if 'outnt' in EXP else 'sc1' if 'outsc1' in EXP else ''}")
    if kb.PROF:
        k("  s_waitcnt vmcnt(0)")
        kb.stamp(k, 6, rt=True); kb.dump(k, S_WS)
    k("  s_endpgm")

def wfrag(i): return 112 + 4*i
OQ = 172; OP = 184; OPH = 160; OB = 244
def op_addr(k):
    k(f"""
  v_lshrrev_b32 v26, 2, v1
  v_and_b32 v26, 3, v26
  v_and_b32 v27, 3, v1
  v_lshlrev_b32 v28, 10, v17
  v_mul_u32_u24 v29, 40, v26
  v_add_u32 v28, v28, v29
  v_add_u32 v28, {WPB}, v28
  v_mov_b32 v29, {ZB}
  v_cmp_eq_u32 vcc, v27, v17
  v_cndmask_b32 v28, v29, v28, vcc
  v_mul_u32_u24 v30, {40*KVP}, v17
  v_mul_u32_u24 v31, {KVP}, v26
  v_add_u32 v30, v30, v31
  v_add_u32 v30, {KVB}, v30
  v_cndmask_b32 v30, v29, v30, vcc""")
QR1 = 21
def q_poll_issue(k):
    k(f"""
  s_lshr_b32 s41, s{S_I64}, 1
  s_lshl_b32 s41, s41, 7
  s_and_b32 s42, s{S_I64}, 1
  s_lshl_b32 s42, s42, 4
  s_add_u32 s41, s41, s42
  v_lshlrev_b32 v77, 2, v1
  v_min_u32 v77, 16, v77
  v_add_u32 v77, s41, v77
  v_add_u32 v78, {FL_Q}, v77
  s_lshr_b32 s41, s{S_I64}, 1
  s_lshl_b32 s41, s41, 7
  s_add_u32 s41, s41, {FL_H1 + 4}
  v_mov_b32 v77, s41
  v_cmp_gt_u32 vcc, 4, v1
  v_cndmask_b32 v77, v77, v78, vcc
  buffer_load_dword v76, v77, {R(R_WS)}, 0 offen sc1""")
def q_poll_check(k, lbl):
    k(f"""
  v_mov_b32 v78, 0x01000000
  v_mov_b32 v79, 0x01010101
  v_cmp_gt_u32 vcc, 4, v1
  v_cndmask_b32 v78, v78, v79, vcc
{k.L(lbl + '_t')}:
  v_and_b32 v79, v76, v78
  v_cmp_ne_u32 vcc, v79, v78
  s_cmp_eq_u64 vcc, 0
  s_cbranch_scc1 {k.L(lbl + '_ok')}
  s_sleep 2
  buffer_load_dword v76, v77, {R(R_WS)}, 0 offen sc1
  s_waitcnt vmcnt(0)
  s_branch {k.L(lbl + '_t')}
{k.L(lbl + '_ok')}:""")
def op_q_issue(k):
    k(f"""
  v_and_b32 v12, 15, v1                    ; n'
  v_lshrrev_b32 v13, 4, v1                 ; g
  v_mul_u32_u24 v14, 640, v13
  v_lshl_add_u32 v14, v12, 3, v14
  s_mul_i32 s58, s{S_T16}, 160
  s_mul_i32 s59, s{S_JB}, 20
  s_add_u32 s58, s58, s59
  s_lshl_b32 s58, s58, 7
  s_add_u32 s58, s58, {L.WS_Q}
  s_lshl_b32 s59, s{S_T16}, 4
  v_add_u32 v15, s59, v12
  v_lshlrev_b32 v15, 4, v15""")
    for g in range(5):
        k(f"  buffer_load_dwordx2 v[{OQ+2*g}:{OQ+2*g+1}], v14, {R(R_WS)}, s58 offen offset:{128*g} sc1")
    k(f"  buffer_load_dword v{QR1}, v15, {R(R_WS)}, 0 offen offset:{L.WS_STATS + 4} sc1")
def red_cond(k, lbl):
    k(f"  s_lshl_b32 s41, s37, 2\n  s_or_b32 s41, s41, s39\n  s_cmp_eq_u32 s41, 0\n  s_cbranch_scc0 {k.L(lbl)}")
RT0 = 34 if int(os.environ.get('TP', 0)) else 18
def red_poll(k):
    red_cond(k, "rp_x")
    k(f"""
  s_lshl_b32 s41, s38, 11
  s_add_u32 s41, s41, {FL_PF}
  v_min_u32 v15, 15, v1
  v_lshlrev_b32 v15, 7, v15
  v_add_u32 v15, s41, v15
  buffer_load_dword v14, v15, {R(R_WS)}, 0 offen sc1
{k.L('rp_x')}:""")
RDR = [160 + 4*p for p in range(16)]
def red_issue(k):
    red_cond(k, "ri_x")
    k(f"""
  s_waitcnt vmcnt(0)
{k.L('ri_t')}:
  v_cmp_ne_u32 vcc, 0x01010101, v14
  s_cmp_eq_u64 vcc, 0
  s_cbranch_scc1 {k.L('ri_ok')}
{bound(k, 'ri')}
  s_sleep 1
  buffer_load_dword v14, v15, {R(R_WS)}, 0 offen sc1
  s_waitcnt vmcnt(0)
  s_branch {k.L('ri_t')}
{k.L('ri_ok')}:""")
    kb.stamp(k, 37)
    k(f"""
  v_lshlrev_b32 v{RT0}, 4, v1
  v_mov_b32 v{RT0+1}, 0x7fff0000
  v_cmp_gt_u32 vcc, 60, v1
  v_cndmask_b32 v{RT0}, v{RT0+1}, v{RT0}, vcc
  s_lshl_b32 s41, s38, 4
  s_mul_i32 s41, s41, 15360
  s_mul_i32 s42, s36, 960
  s_add_u32 s41, s41, s42
  s_add_u32 s41, s41, {L.WS_KP}""")
    for p in range(16):
        k(f"  buffer_load_dwordx4 v[{RDR[p]}:{RDR[p]+3}], v{RT0}, {R(R_WS)}, s41 offen sc1\n  s_add_u32 s41, s41, 15360")
    k(f"{k.L('ri_x')}:")
def red_sum(k):
    red_cond(k, "rs_x")
    k("  s_waitcnt vmcnt(0)")
    step = 1
    while step < 16:
        for p in range(0, 16, 2*step):
            a, b = RDR[p], RDR[p + step]
            k(f"  v_pk_add_f32 v[{a}:{a+1}], v[{a}:{a+1}], v[{b}:{b+1}]\n  v_pk_add_f32 v[{a+2}:{a+3}], v[{a+2}:{a+3}], v[{b+2}:{b+3}]")
        step *= 2
    a = RDR[0]
    k(f"""
  v_cvt_pk_bf16_f32 v{a}, v{a}, v{a+1}
  v_cvt_pk_bf16_f32 v{a+1}, v{a+2}, v{a+3}
  v_lshlrev_b32 v{RT0}, 3, v1
  v_mov_b32 v{RT0+1}, 0x7fff0000
  v_cmp_gt_u32 vcc, 60, v1
  v_cndmask_b32 v{RT0}, v{RT0+1}, v{RT0}, vcc
  s_mul_i32 s41, s38, 7680
  s_mul_i32 s42, s36, 480
  s_add_u32 s41, s41, s42
  s_add_u32 s41, s41, {L.WS_KV}
  buffer_store_dwordx2 v[{a}:{a+1}], v{RT0}, {R(R_WS)}, s41 offen sc1
{k.L('rs_x')}:""")
def red_flag(k, n=None):
    red_cond(k, "rf_x")
    k(f"""
  s_waitcnt vmcnt({n if n is not None else 6 if 'kflate' in EXP else 0})
  s_lshl_b32 s41, s38, 2
  s_lshr_b32 s42, s36, 2
  s_add_u32 s41, s41, s42
  s_lshl_b32 s41, s41, 7
  s_and_b32 s42, s36, 3
  s_add_u32 s41, s41, s42
  s_add_u32 s41, s41, {FL_KF}
  v_mov_b32 v2, s41
  v_mov_b32 v0, 1
  s_mov_b64 exec, 1
  buffer_store_byte v0, v2, {R(R_WS)}, 0 offen sc1
  s_mov_b64 exec, -1
{k.L('rf_x')}:""")
def pause1(k):
    for b in range(5):
        for s_ in range(3):
            for t in range(2):
                reg = wfrag(b*3 + s_) + 2*t; d0 = 8*s_ + 4*t
                if d0 < 20: k.ds(f"  ds_read_b64_tr_b16 v[{reg}:{reg+1}], v28 offset:{d0*40 + 8*b}", "xw")
                else: k(f"  v_mov_b32 v{reg}, 0\n  v_mov_b32 v{reg+1}, 0")
    k(f"  v_mov_b32 v{OQ+10}, 0\n  v_mov_b32 v{OQ+11}, 0")
    k("  s_waitcnt vmcnt(0)")
    k.wait_ds("xw")
    for s_ in range(3):
        for b in range(5):
            c = "0" if s_ == 0 else f"v[{OP+4*b}:{OP+4*b+3}]"
            w = wfrag(b*3 + s_)
            k(f"  v_mfma_f32_16x16x32_bf16 v[{OP+4*b}:{OP+4*b+3}], v[{w}:{w+3}], v[{OQ+4*s_}:{OQ+4*s_+3}], {c}")
    softmax_pair(k, [OP + i for i in range(20)], QR1, 112, OPH, T=52)
def pause2(k):
    FA_, FB_ = 180, 112
    rounds = ([0, 1], [2, 3], [4, 5])
    OOx = 220
    def rd(ri):
        base = FA_ if ri % 2 == 0 else FB_
        for s_ in range(5):
            for bi, beta in enumerate(rounds[ri]):
                for t in range(2):
                    reg = base + (bi*5 + s_)*4 + 2*t
                    k.ds(f"  ds_read_b64_tr_b16 v[{reg}:{reg+1}], v30 offset:{(8*s_ + 4*t)*KVP + 8*beta}", ("xk", ri, s_))
    def mm(ri, nxt):
        base = FA_ if ri % 2 == 0 else FB_
        for s_ in range(5):
            k.wait_ds(("xk", ri, s_))
            for bi, beta in enumerate(rounds[ri]):
                c = "0" if s_ == 0 else f"v[{OOx+4*beta}:{OOx+4*beta+3}]"
                w = base + (bi*5 + s_)*4
                k(f"  v_mfma_f32_16x16x32_bf16 v[{OOx+4*beta}:{OOx+4*beta+3}], v[{w}:{w+3}], v[{OPH+4*s_}:{OPH+4*s_+3}], {c}")
            for _ in range(4):
                if nxt: k.ds(*nxt.pop(0))
    def rdl(ri):
        r = kb.Rec(k); out = []
        base = FA_ if ri % 2 == 0 else FB_
        for s_ in range(5):
            for bi, beta in enumerate(rounds[ri]):
                for t in range(2):
                    reg = base + (bi*5 + s_)*4 + 2*t
                    out.append((f"  ds_read_b64_tr_b16 v[{reg}:{reg+1}], v30 offset:{(8*s_ + 4*t)*KVP + 8*beta}", ("xk", ri, s_)))
        return out
    rd(0)
    mm(0, rdl(1)); mm(1, rdl(2)); mm(2, [])
    k(f"  v_add_f32 v52, {fl(1e-6)}, v{OOx+20}\n  v_rcp_f32 v52, v52\n  s_nop 0\n  v_mov_b32 v53, v52")
    for i in range(10): k(f"  v_pk_mul_f32 v[{OOx+2*i}:{OOx+2*i+1}], v[{OOx+2*i}:{OOx+2*i+1}], v[52:53]")
    for i in range(10): k(f"  v_cvt_pk_bf16_f32 v{OB+i}, v{OOx+2*i}, v{OOx+2*i+1}")
    k(f"""
  s_mul_i32 s58, s{S_T16}, 74
  s_lshr_b32 s59, s{S_JB}, 1
  s_mul_i32 s59, s59, 5
  s_add_u32 s58, s58, s59
  s_add_u32 s58, s58, 54
  s_lshl_b32 s58, s58, 10
  s_add_u32 s58, s58, {L.WS_HO}
  s_bitcmp1_b32 s{S_JB}, 0
  s_cbranch_scc1 {k.L('o_odd')}
  buffer_store_dwordx4 v[{OB}:{OB+3}], v22, {R(R_WS)}, s58 offen sc1
  buffer_store_dwordx4 v[{OB+4}:{OB+7}], v22, {R(R_WS)}, s58 offen offset:1024 sc1
  buffer_store_dwordx2 v[{OB+8}:{OB+9}], v22, {R(R_WS)}, s58 offen offset:2048 sc1
  s_branch {k.L('o_done')}
{k.L('o_odd')}:
  buffer_store_dwordx2 v[{OB}:{OB+1}], v22, {R(R_WS)}, s58 offen offset:2056 sc1
  buffer_store_dwordx4 v[{OB+2}:{OB+5}], v22, {R(R_WS)}, s58 offen offset:3072 sc1
  s_add_u32 s58, s58, 4096
  buffer_store_dwordx4 v[{OB+6}:{OB+9}], v22, {R(R_WS)}, s58 offen sc1
{k.L('o_done')}:""")
def kv_dma(k):
    for r in range(2):
        k.begin()
        k(f"""
  s_lshl_b32 s58, s39, 1
  s_add_u32 s58, s58, {r}
  s_lshl_b32 s59, s58, 10
  v_add_u32 v60, s59, v4
  v_mov_b32 v61, 0x7fff0000
  v_cmp_gt_u32 vcc, 7680, v60
  v_cndmask_b32 v60, v61, v60, vcc
  s_add_u32 m0, s59, {KVB}
  s_mul_i32 s58, s{S_JB}, 7680
  s_add_u32 s58, s58, {L.WS_KV}""")
        k.vmem(f"  buffer_load_dwordx4 v60, {R(R_WS)}, s58 offen sc1 lds", "kvd")
        k.end()

def loader_kv2(k):
    F_INV = (0x9c1b39b4, 0xd8e1e472)
    k(f"""
  s_mov_b32 s20, s{R_WQ}
  s_mov_b32 s21, s{R_WQ+1}
  s_mov_b32 s22, s{R_WQ+2}
  v_lshrrev_b32 v13, 3, v1
  v_lshrrev_b32 v14, 1, v13
  v_and_b32 v14, 1, v14
  v_lshlrev_b32 v14, 2, v14
  v_and_b32 v15, 7, v1
  v_xor_b32 v15, v15, v14
  v_add_u32 v14, 8, v15                    ; (24 + p) & 15
  v_lshlrev_b32 v14, 1, v14
  v_mov_b32 v16, {hex(F_INV[1])}
  v_lshrrev_b32 v16, v14, v16
  v_and_b32 v16, 3, v16
  v_and_b32 v15, 4, v15
  v_or_b32 v15, v15, v16                   ; q chunk
  v_mul_u32_u24 v13, 3840, v13
  v_lshl_add_u32 v13, v15, 4, v13
  s_lshl_b32 s58, s38, 7
  v_add_u32 v{vDw}, s58, v13
  s_mul_i32 s100, s39, {16*3840}
  s_lshl_b32 s48, s39, 11""")
    def gW2(m):
        def mk(i):
            def f(k):
                k(f"  s_add_u32 m0, s48, {W2S[m % 5] + i*1024}\n  s_add_u32 s87, s100, {(64*m + 8*i)*3840}")
                k.vmem(f"  buffer_load_dwordx4 v{vDw}, {R(R_W)}, s87 offen lds", ("S2", m))
            return f
        return [mk(i) for i in range(2)]
    def gX2(m):
        def mk(i):
            def f(k):
                k(f"  s_add_u32 m0, s47, {X2S[m % 5] + i*1024}\n  s_add_u32 s87, s101, {m*128 + i*8*1280}")
                k.vmem(f"  buffer_load_dwordx4 v{vDx if i % 2 == 0 else vDx2}, {R(R_X)}, s87 offen lds", ("S2", m))
            return f
        return [mk(i) for i in range(4)]
    for f in gW2(0) + gX2(0) + gW2(1) + gX2(1) + gW2(2): f(k)
    k("  s_barrier")
    k.wait_vm(("S2", 0)) if False else None
    idx = [i for i, t in enumerate(k.vm) if t == ("S2", 0)][-1]
    k(f"  s_waitcnt vmcnt({len(k.vm) - 1 - idx})"); k.vm = k.vm[idx + 1:]
    k("  s_barrier")
    for f in gX2(2): f(k)
    plan = {0: [3], 1: [4, 5], 2: [6], 3: [7], 4: [8], 5: [9]}
    for m in range(10):
        if m + 1 <= 9: k.wait_vm(("S2", m + 1))
        k("  s_barrier")
        for q in plan.get(m, []):
            for f in gW2(q) + gX2(q): f(k)
    k("  s_barrier")

def loader_b_setup(k):
    decode_b(k)
    k(f"""
  v_lshlrev_b32 v4, 4, v1
  s_mul_i32 s44, s{S_JB}, {74*5*1024}
  s_mul_i32 s45, s39, {5*1024}
  s_add_u32 s44, s44, s45
  s_add_u32 s44, s44, {L.WS_W2}
  s_mul_i32 s46, s{S_T16}, {74*1024}
  s_add_u32 s46, s46, {L.WS_HO}""")
def gWP(lst):
    def mk(s_, cb):
        def f(k):
            k(f"  s_add_u32 s87, s44, {4*s_*5*1024 + cb*1024}")
            k.vmem(f"  buffer_load_dwordx4 v[{wpreg(s_, cb)}:{wpreg(s_, cb)+3}], v4, {R(R_WS)}, s87 offen sc1", ("WP", s_))
        return f
    return [mk(s_, cb) for (s_, cb) in lst]
NPF1 = int(os.environ.get('NPF1', 20))
WPL = [(s_, cb) for s_ in range(WP0, WP1 + 1) for cb in range(5)]
def loader_b(k, role):
    P = SCHED[role]; KVJ = P['KVJ']
    e1_done = False
    if TP and role == "kv":
        loader_kv2(k); role = "g"; e1_done = True
    if 'noprioB' not in EXP: k("  s_setprio 2")
    k(f"""
  s_mul_i32 s47, s39, {5*1024}
  s_lshl_b32 s48, s39, 12
  s_add_u32 s48, s48, 20480
  v_add_u32 v5, s47, v4""")
    def gDW(j):
        slot = (j % 4)*SLOT
        def mk(cb):
            def f(k):
                if j == 18:
                    k(f"""  s_add_u32 s87, s47, {slot + cb*1024}
  s_cmp_lt_u32 s39, 2
  s_cselect_b32 m0, s87, {ZB}
  s_cselect_b32 s26, {L.WS_END}, 0
  s_add_u32 s87, s44, {4*j*5*1024 + cb*1024}""")
                else:
                    k(f"  s_add_u32 m0, s47, {slot + cb*1024}\n  s_add_u32 s87, s44, {4*j*5*1024 + cb*1024}")
                k.vmem(f"  buffer_load_dwordx4 v4, {R(R_WS)}, s87 offen sc1 lds", ("D", j))
                if j == 18: k(f"  s_mov_b32 s26, {L.WS_END}")
            return f
        return [mk(cb) for cb in range(5)]
    def gDA(j):
        nks = 4 if j < 18 else 2
        slot = (j % 4)*SLOT
        def mk(ks):
            def f(k):
                k(f"  s_add_u32 m0, s48, {slot + ks*1024}\n  s_add_u32 s87, s46, {(4*j + ks)*1024}")
                k.vmem(f"  buffer_load_dwordx4 v4, {R(R_WS)}, s87 offen sc1 lds", ("D", j))
            return f
        return [mk(ks) for ks in range(nks)]
    def gWW(j):
        slot = (j % 4)*SLOT
        def mk(cb):
            def f(k):
                if cb == 0: k.wait_vm(("WP", j))
                k(f"  ds_write_b128 v5, v[{wpreg(j, cb)}:{wpreg(j, cb)+3}] offset:{cb*1024}" if slot == 0 else
                  f"  ds_write_b128 v{6 + (j % 4) - 1}, v[{wpreg(j, cb)}:{wpreg(j, cb)+3}] offset:{cb*1024}")
            return f
        return [mk(cb) for cb in range(5)]
    for q in (1, 2, 3): k(f"  v_add_u32 v{5+q}, {q*SLOT}, v5")
    gDW0 = gDW
    def gDW(j): return gWW(j) if WP0 <= j <= WP1 else gDW0(j)
    def DW(j):
        for f in gDW(j): f(k)
    def DA(j):
        for f in gDA(j): f(k)
    iB = f"  s_lshr_b32 s41, s{S_I64}, 1\n  s_lshl_b32 s41, s41, 8\n"
    DW(0); DW(1)
    if role == "g": DW(2); DW(3)
    rest = gWP(WPL[12:])
    for n, f in enumerate(rest[:NPF1]):
        f(k)
        if n % 4 == 3: k(f"  s_waitcnt vmcnt(6)")
    if not e1_done: k("  s_barrier")
    wphi_dma(k, f"  s_lshl_b32 s58, s{S_JB}, 2\n  s_add_u32 s58, s58, s39", WPB, False)
    k(f"""
  s_mov_b32 s{R_T+2}, 0
  s_and_b32 s58, s39, 1
  s_lshl_b32 s58, s58, 10
  s_add_u32 m0, s58, {ZB}""")
    k.vmem(f"  buffer_load_dwordx4 v40, {R(R_T)}, 0 offen lds", "side")
    def h1():
        poll_issue(k, 50, lines(50, iB + f"  s_add_u32 s41, s41, {FL_H1}", 2), "ph1", only0=False)
        poll_check(k, 50, "ph1", "ph1", only0=False, slp=2)
        DA(0); DA(1)
        if role == "g": DA(2); DA(3)
    if role == "g": h1()
    for n, f in enumerate(rest[NPF1:]):
        f(k)
        if n % 4 == 3: k(f"  s_waitcnt vmcnt(6)")
    k.wait_vm("side")
    k("  s_barrier")
    kb.stamp(k, 9)
    if role == "kv": h1()
    k.wait_vm(("D", 0))
    k("  s_barrier")
    kb.stamp(k, 10)
    poll_issue(k, 50, lines(50, f"  s_lshl_b32 s41, s{S_I64}, 9\n  s_add_u32 s41, s41, {FL_Q}", 4), "pq")
    if role == "kv": DA(2); DW(2)
    def res_dma(k):
        for r in range(3):
            k.begin()
            k(f"""
  s_add_u32 s58, s39, {4*r}
  s_lshl_b32 s59, s58, 6
  v_add_u32 v60, s59, v1
  v_mul_u32_u24 v61, 6554, v60
  v_lshrrev_b32 v61, 16, v61
  v_mul_u32_u24 v62, 10, v61
  v_sub_u32 v62, v60, v62
  s_lshl_b32 s59, s{S_I64}, 6
  v_add_u32 v61, s59, v61
  v_mul_u32_u24 v61, 1280, v61
  v_lshl_add_u32 v61, v62, 4, v61
  s_mul_i32 s59, s{S_JB}, 160
  v_add_u32 v61, s59, v61
  s_lshl_b32 s59, s58, 10
  s_add_u32 s59, s59, {XT}
  s_cmp_lt_u32 s58, 10
  s_cselect_b32 s59, s59, {ZB}
  s_cselect_b32 s58, 0, 0x7fff0000
  v_or_b32 v61, s58, v61
  s_mov_b32 m0, s59""")
            k.vmem(f"  buffer_load_dwordx4 v61, {R(R_X)}, 0 offen lds", ("D", 18))
            k.end()
        k.begin()
        k(f"""
  s_mul_i32 s58, s{S_JB}, 160
  s_add_u32 s{R_T}, s{S_B2}, s58
  s_addc_u32 s{R_T+1}, s{S_B2+1}, 0
  s_and_b32 s{R_T+1}, s{R_T+1}, 0xffff
  s_mov_b32 s{R_T+2}, 160
  s_mov_b32 s{R_T+3}, 0x20000
  s_mov_b32 m0, {BT}""")
        k.vmem(f"  buffer_load_dwordx4 v4, {R(R_T)}, 0 offen lds", ("D", 18))
        k.end()
    for j in range(NSTB - 1):
        if j == 12:
            poll_issue(k, 50, lines(50, f"  s_lshl_b32 s41, s{S_T16}, 8\n  s_add_u32 s41, s41, {FL_O}", 2), "po", only0=False)
            if 'nochain' not in EXP: poll_check(k, 50, "po", "po", only0=False, slp=1)
            kb.stamp(k, 63)
            for q in (13, 14, 15): DA(q)
            k.wait_vm(("D", 13)) if False else None
            idx = [i for i, t in enumerate(k.vm) if t == ("D", 13)][-1]
            k(f"  s_waitcnt vmcnt({len(k.vm) - 1 - idx})"); k.vm = k.vm[idx + 1:]
        else:
            k.wait_vm(("D", j + 1))
        if j == 0: poll_check(k, 50, "pq", "pq", slp=1)
        if j == 3: poll_check(k, 50, "ph2", "ph2", slp=1)
        if j == KVJ:
            if 'nochain' not in EXP: poll_check(k, 56, "pkv", "pkv", slp=1)
        if j == KVJ + 1: k.wait_vm("kvd")
        k("  s_waitcnt lgkmcnt(0)")
        k("  s_barrier")
        groups = []; fns = []
        if 13 <= j + 4 <= 15: groups = gDW(j + 4)
        elif j + 4 < NSTB: groups = gDW(j + 4) + gDA(j + 4)
        if j == 0 and role == "kv": groups = gDW(3) + gDA(3) + groups
        if j == 2: fns.append(lambda k: poll_issue(k, 50, lines(50, iB + f"  s_add_u32 s41, s41, {FL_H2}", 2), "ph2"))
        if j == KVJ - 1: fns.append(lambda k: poll_issue(k, 56, lines(56, f"  s_lshl_b32 s41, s{S_JB}, 9\n  s_add_u32 s41, s41, {FL_KF}", 4), "pkv"))
        if j == 14: fns.append(res_dma)
        if j == KVJ: kv_dma(k)
        kb.interleave(k, groups, rec(k, fns))
        kb.stamp(k, 40 + j)
    kb.stamp(k, 6, rt=True)
    kb.dump(k, S_WS)
    k("  s_endpgm")

def build(name):
    k = K(name)
    k(f"""
  s_cmp_ge_u32 s2, 256
  s_cbranch_scc1 {k.L('end')}
  s_load_dwordx4 s[4:7], s[0:1], 0
  s_load_dwordx2 s[14:15], s[0:1], 88
  s_load_dwordx2 s[10:11], s[0:1], 40
  s_getpc_b64 s[58:59]
{k.L('pc0')}:
  v_lshrrev_b32 v2, 6, v0
  v_and_b32 v1, 63, v0
  v_lshlrev_b32 v4, {11 if 'pf16' in EXP else 10}, v2
  v_lshl_add_u32 v4, v1, 7, v4
  v_cmp_gt_u32 vcc, {16 if 'pf16' in EXP else 8}, v1
  v_readfirstlane_b32 s3, v2
  s_and_saveexec_b64 s[56:57], vcc
  {'s_nop 0' if 'nopf0' in EXP else 'global_load_dword v127, v4, s[58:59]'}
  s_mov_b64 exec, s[56:57]
  s_load_dwordx2 s[8:9], s[0:1], 16
  s_load_dwordx2 s[12:13], s[0:1], 48
  s_load_dwordx2 s[{S_WO}:{S_WO+1}], s[0:1], 24
  s_load_dwordx2 s[{S_W2}:{S_W2+1}], s[0:1], 56
  s_load_dwordx2 s[{S_B2}:{S_B2+1}], s[0:1], 64
  s_load_dwordx2 s[{S_OUT}:{S_OUT+1}], s[0:1], 72
  s_load_dwordx2 s[{S_DBG}:{S_DBG+1}], s[0:1], 80
  s_lshr_b32 s40, s2, 3
  s_lshr_b32 s36, s40, 2
  s_and_b32 s41, s2, 1
  s_lshl_b32 s41, s41, 3
  s_add_u32 s36, s36, s41
  s_and_b32 s41, s40, 3
  s_lshr_b32 s37, s41, 1
  s_and_b32 s41, s41, 1
  s_and_b32 s38, s2, 7
  s_lshr_b32 s38, s38, 1
  s_lshl_b32 s38, s38, 1
  s_add_u32 s38, s38, s41
  s_and_b32 s39, s3, 3
  s_mov_b32 s75, 0
  s_waitcnt lgkmcnt(0)""")
    srd(k, R_X, S_X, 2621440)
    srd(k, R_WS, S_WS, L.WS_END)
    srd(k, R_WQ, S_WQ, 2457600)
    srd(k, R_W1, S_W1, 2211840)
    k(f"  s_cmp_lt_u32 s3, 4\n  s_cbranch_scc1 {k.L('compute')}")
    k.vm = []
    kb.stamp(k, 0, rt=True)
    loader_a_start(k)
    srd(k, R_B, S_B1, 3456)
    k(f"  s_branch {k.L('loader')}")
    vm_loader = list(k.vm)
    k.label("compute")
    srd(k, R_OUT, S_OUT, 2621440)
    k.vm = []
    compute_a(k)
    k(f"  s_cmp_eq_u32 s37, 0\n  s_cbranch_scc1 {k.L('cb_kv')}")
    base = k.name
    k.lname = base + "_g"; compute_b(k, "g")
    k.lname = base; k.label("cb_kv")
    k.lname = base + "_k"; compute_b(k, "kv")
    k.lname = base
    k.label("loader")
    k.vm = vm_loader
    loader_a(k)
    k(f"  s_cmp_eq_u32 s37, 0\n  s_cbranch_scc1 {k.L('lb_kv')}")
    vm0 = list(k.vm)
    k.lname = base + "_g"; loader_b(k, "g")
    k.lname = base; k.label("lb_kv")
    k.vm = list(vm0)
    k.lname = base + "_k"; loader_b(k, "kv")
    k.lname = base
    k(f"{k.L('end')}:\n  s_endpgm")
    k(f"{k.L('codeend')}:")
    rep = []
    t = k.text(rep)
    return dict(name=name, body=t, vgpr=256, sgpr=102, accum=256, maxwg=512), rep

def _print_bids(): print(_BID)
if __name__ == "__main__":
    import asmlib, sys
    if len(sys.argv) > 1 and sys.argv[1] in ("prof", "coarse", "mini"): kb.PROF = True
    if len(sys.argv) > 1 and sys.argv[1] == "mini": kb.MINI = True
    if len(sys.argv) > 1 and sys.argv[1] == "coarse": kb.FINE = False
    kf, rep = build("kf_kernel")
    print("nops inserted:", len(rep), _BID)
    asmlib.build("kfp" if kb.PROF else "kft", [kf])
    print("ok")
```

```python
from kb import K
import kb, os
import layout as L

LOG2E = 1.4426950408889634
C0 = -2.0*0.7978845608028654*LOG2E
C1 = C0*0.044715
def fl(x):
    import struct
    return "0x%08x" % struct.unpack("<I", struct.pack("<f", x))[0]

XR = 0; WR = 49152; SCR = 114688; TT = 147456; ST = 151552; WP = 153600; ZR = 157696
PHI = 73728; PHI_P = 336; VV = PHI + 43008; VV_P = 208; KPS = (32768 if int(os.environ.get('TP', 0)) else 20480)
SLOT = 36864; WPB = 147456; KVB = 151552; KVP = 48; ZB = 159232
LDS_BYTES = 163840
NSTB = 19
WP0, WP1 = 4, int(os.environ.get('WP1', 12))
def wpreg(s_, cb): return 64 + (s_ - WP0)*20 + 4*cb
SCHED = {
    "kv": dict(P1_J=1, RED_J=None, KVJ=int(os.environ.get("KVJ_KV", 4)), OFLAG_D=2),
    "g":  dict(P1_J=2, RED_J=int(os.environ.get("RED_J", 1)), KVJ=int(os.environ.get("KVJ_G", 6)), OFLAG_D=2),
}
FL = L.WS_FLAGS
FL_F2 = FL; FL_H1 = FL + 16*128; FL_H2 = FL + 48*128; FL_Q = FL + 80*128; FL_PF = FL + 208*128; FL_KF = FL + 336*128; FL_O = FL + 368*128
NFL = 624

S_X, S_WQ, S_WPHI, S_W1, S_B1, S_WS = 4, 6, 8, 10, 12, 14
S_WO, S_W2, S_B2, S_OUT, S_DBG = 76, 78, 80, 82, 84
R_X, R_W, R_WS, R_B, R_T, R_OUT, R_WQ, R_W1, R_W2, R_WO = 16, 20, 24, 28, 32, 60, 64, 88, 92, 96
S_I64, S_JB, S_T16 = 68, 69, 86

def srd(k, s, lo, size):
    k(f"""
  s_mov_b32 s{s}, s{lo}
  s_and_b32 s{s+1}, s{lo+1}, 0xffff
  s_mov_b32 s{s+2}, {size}
  s_mov_b32 s{s+3}, 0x20000""")
def R(s): return f"s[{s}:{s+3}]"

def job_ids(k):
    k(f"""
  s_lshl_b32 s40, s2, 2
  s_add_u32 s40, s40, s39                    ; gw
  s_lshl_b32 s41, s36, 3
  s_add_u32 s41, s41, s38
  s_lshl_b32 s41, s41, 2
  s_add_u32 s41, s41, s39                    ; u = 4 (8 i + role) + w
  s_add_u32 s42, s41, 512
  s_cmp_eq_u32 s37, 1
  s_cselect_b32 s50, s41, s42
  s_cselect_b32 s51, s41, -1
  s_cselect_b32 s49, s42, -1
  s_cmp_lt_u32 s50, 570
  s_cselect_b32 s50, s50, -1
  s_cmp_lt_u32 s49, 740
  s_cselect_b32 s49, s49, -1
  s_lshl_b32 s52, s39, 13
  s_add_u32 s52, s52, {SCR}
  s_lshl_b32 s87, s39, 12
  s_add_u32 s87, s87, {SCR2}
  s_add_u32 s48, s87, 16384""")

V_ST = 36
def stats_issue(k):
    v = V_ST
    k(f"""
  v_lshrrev_b32 v{v}, 5, v1                  ; hh
  v_and_b32 v{v+1}, 31, v1                   ; n
  s_lshl_b32 s41, s40, 1
  v_add_u32 v{v+2}, s41, v{v}                ; token
  v_mul_u32_u24 v{v+3}, 1280, v{v+2}
  v_lshl_add_u32 v{v+3}, v{v+1}, 3, v{v+3}""")
    for r in range(5):
        k.vmem(f"  buffer_load_dwordx2 v[{v+4+2*r}:{v+5+2*r}], v{v+3}, {R(R_X)}, 0 offen offset:{256*r}", "st")
def stats_a1(k):
    v = V_ST; U = v + 16
    k.wait_vm("st")
    for d in range(10):
        k(f"  v_lshlrev_b32 v{U+2*d}, 16, v{v+4+d}\n  v_and_b32 v{U+2*d+1}, 0xffff0000, v{v+4+d}")
def stats_a2(k):
    v = V_ST; U = v + 16; S = v + 36; T = v + 37
    k(f"  v_add_f32 v{S}, v{U}, v{U+1}\n  v_add_f32 v{T}, v{U+2}, v{U+3}")
    for i in range(4, 20, 2):
        k(f"  v_add_f32 v{S}, v{S}, v{U+i}\n  v_add_f32 v{T}, v{T}, v{U+i+1}")
    k(f"  v_add_f32 v{S}, v{S}, v{T}")
def red32(k, S, T):
    for r in (8, 4, 2, 1):
        k(f"  v_add_f32_dpp v{S}, v{S}, v{S} row_ror:{r} row_mask:0xf bank_mask:0xf")
    k(f"  ds_swizzle_b32 v{T}, v{S} offset:0x401F\n  s_waitcnt lgkmcnt(0)\n  v_add_f32 v{S}, v{S}, v{T}")
def stats_b(k):
    v = V_ST; U = v + 16; S = v + 36; T = v + 37; M = v + 38
    red32(k, S, T)
    k(f"  v_mul_f32 v{M}, {1.0/640.0!r}, v{S}")
    for i in range(20): k(f"  v_sub_f32 v{U+i}, v{U+i}, v{M}")
def stats_c(k):
    v = V_ST; U = v + 16; S = v + 36; T = v + 37
    k(f"  v_mul_f32 v{S}, v{U}, v{U}\n  v_mul_f32 v{T}, v{U+1}, v{U+1}")
    for i in range(2, 20, 2):
        k(f"  v_fmac_f32 v{S}, v{U+i}, v{U+i}\n  v_fmac_f32 v{T}, v{U+i+1}, v{U+i+1}")
    k(f"  v_add_f32 v{S}, v{S}, v{T}")
def stats_d(k):
    v = V_ST; U = v + 16; S = v + 36; T = v + 37; M = v + 38; O = v + 40
    red32(k, S, T)
    k(f"""
  v_mul_f32 v{S}, {1.0/640.0!r}, v{S}
  v_add_f32 v{T}, 0x3727c5ac, v{S}
  v_rsq_f32 v{O+1}, v{T}
  v_mov_b32 v{O}, v{M}
  v_mul_f32 v{T}, v{O+1}, v{O+1}
  v_mul_f32 v{T}, v{T}, v{S}
  v_add_f32 v{T}, 0x3727c5ac, v{T}
  v_rsq_f32 v{T}, v{T}
  v_mov_b32 v{O+3}, 0
  v_mul_f32 v{O+2}, v{O+1}, v{T}
  v_lshlrev_b32 v{v+3}, 4, v{v+2}
  v_add_u32 v{v+3}, {L.WS_STATS}, v{v+3}
  v_cmp_eq_u32 vcc, 0, v{v+1}
  v_mov_b32 v{T}, 0x7fff0000
  v_cndmask_b32 v{v+3}, v{T}, v{v+3}, vcc""")
    if 'nost' not in EXP: k.vmem(f"  buffer_store_dwordx4 v[{O}:{O+3}], v{v+3}, {R(R_WS)}, 0 offen sc1", "jst")

V_CS = 176
V_CSI = 100
def cs_issue(k):
    v = V_CSI; t = 41
    k(f"""
  s_cmp_eq_u32 s50, -1
  s_cselect_b32 s53, 0, s50
  s_mul_i32 s{t}, s53, 6554
  s_lshr_b32 s{t}, s{t}, 16                  ; u
  s_mul_i32 s{t+1}, s{t}, 10
  s_sub_u32 s{t+1}, s53, s{t+1}              ; kappa
  s_mov_b32 s54, s{t}
  s_mov_b32 s55, s{t+1}
  s_cmp_lt_u32 s{t}, 30
  s_cselect_b32 s{R_T}, s{R_WQ}, s{R_W1}
  s_cselect_b32 s{R_T+1}, s{R_WQ+1}, s{R_W1+1}
  s_cselect_b32 s{R_T+2}, s{R_WQ+2}, s{R_W1+2}
  s_mov_b32 s{R_T+3}, 0x20000
  s_mov_b32 s{t+2}, 3456
  s_cmov_b32 s{t+2}, 3840
  s_cselect_b32 s{t+3}, 0, 30
  s_sub_u32 s{t+3}, s{t}, s{t+3}
  s_lshl_b32 s{t+3}, s{t+3}, 7
  s_mul_i32 s{t+4}, s{t+1}, s{t+2}
  s_lshl_b32 s{t+4}, s{t+4}, 6
  s_add_u32 s{t+4}, s{t+4}, s{t+3}           ; soffset
  s_lshl_b32 s{t+5}, s{t+2}, 3
  s_cmp_eq_u32 s50, -1
  s_cselect_b32 s{R_T+2}, 0, s{R_T+2}
  v_lshrrev_b32 v{v}, 3, v1
  v_lshrrev_b32 v{v+1}, 1, v{v}
  v_and_b32 v{v+1}, 1, v{v+1}
  v_lshlrev_b32 v{v+1}, 2, v{v+1}
  v_and_b32 v{v+2}, 7, v1
  v_xor_b32 v{v+2}, v{v+2}, v{v+1}
  v_mul_lo_u32 v{v+3}, v{v}, s{t+2}
  v_lshl_add_u32 v{v+3}, v{v+2}, 4, v{v+3}""")
    for i in range(8):
        k.begin()
        k(f"  s_add_u32 m0, s52, {i*1024}")
        k.vmem(f"  buffer_load_dwordx4 v{v+3}, {R(R_T)}, s{t+4} offen lds", "cs")
        k.end()
        if i < 7: k(f"  s_add_u32 s{t+4}, s{t+4}, s{t+5}")
def cs_a(k):
    v = V_CS
    k(f"""
  v_lshrrev_b32 v{v}, 4, v1
  v_lshrrev_b32 v{v+1}, 2, v1
  v_and_b32 v{v+1}, 3, v{v+1}
  v_and_b32 v{v+2}, 3, v1
  v_lshrrev_b32 v{v+4}, 1, v{v}
  v_lshl_add_u32 v{v+4}, v{v+4}, 3, v{v+1}
  v_lshlrev_b32 v{v+4}, 7, v{v+4}
  v_and_b32 v{v+5}, 1, v{v}
  v_lshlrev_b32 v{v+5}, 1, v{v+5}
  v_lshrrev_b32 v{v+6}, 1, v{v+2}
  v_add_u32 v{v+5}, v{v+5}, v{v+6}
  v_lshrrev_b32 v{v+6}, 1, v{v+1}
  v_lshlrev_b32 v{v+6}, 2, v{v+6}
  v_and_b32 v{v+7}, 1, v{v+2}
  v_lshl_add_u32 v{v+4}, v{v+7}, 3, v{v+4}
  v_add_u32 v{v+4}, s52, v{v+4}
  v_xor_b32 v{v+7}, v{v+5}, v{v+6}
  v_lshl_add_u32 v{v+8}, v{v+7}, 4, v{v+4}
  v_xor_b32 v{v+7}, 4, v{v+7}
  v_lshl_add_u32 v{v+9}, v{v+7}, 4, v{v+4}""")
    ONE = v + 12; FRG = v + 16; ACC_ = v + 48
    for i in range(4): k(f"  v_mov_b32 v{ONE+i}, 0x3f803f80")
    k.wait_vm("cs")
    for ks in range(4):
        for b in range(2):
            for tt in range(2):
                d = FRG + (ks*2 + b)*4 + 2*tt
                k(f"  ds_read_b64_tr_b16 v[{d}:{d+1}], v{v+8+b} offset:{ks*2048 + tt*512}")
        if ks == 2: k("  s_waitcnt lgkmcnt(4)")
    k("  s_waitcnt lgkmcnt(0)")
def cs_b(k):
    v = V_CS; ONE = v + 12; FRG = v + 16; ACC_ = v + 48
    for ks in range(4):
        for b in range(2):
            d = FRG + (ks*2 + b)*4
            c = "0" if ks == 0 else f"v[{ACC_+16*b}:{ACC_+16*b+15}]"
            k(f"  v_mfma_f32_32x32x16_bf16 v[{ACC_+16*b}:{ACC_+16*b+15}], v[{ONE}:{ONE+3}], v[{d}:{d+3}], {c}")
    k(f"""
  s_mul_i32 s41, s55, {L.NCOL*4}
  s_lshl_b32 s42, s54, 8
  s_add_u32 s41, s41, s42
  s_add_u32 s41, s41, {L.WS_CSP}
  v_lshlrev_b32 v{v}, 2, v1
  v_cmp_gt_u32 vcc, 32, v1
  v_mov_b32 v{v+1}, 0x7fff0000
  v_cndmask_b32 v{v}, v{v+1}, v{v}, vcc
  s_cmp_eq_u32 s50, -1
  s_cselect_b32 s42, 0x7fff0000, 0
  v_add_u32 v{v}, s42, v{v}""")
    k(f"  v_mov_b32 v{v+1}, 0x7fff0000\n  v_min_u32 v{v}, v{v}, v{v+1}")
    for b in range(2):
        if 'nocs' not in EXP: k.vmem(f"  buffer_store_dword v{ACC_+16*b}, v{v}, {R(R_WS)}, s41 offen offset:{128*b} sc1", "jst")

V_SW = 36
V_SWI = 108
SCR2 = WR + 2*16384
def sw_addr(k, n=0):
    sid, sS, sL, v = [(51, 56, 57, V_SWI), (49, 100, 101, V_SWI + 10)][n]; t = 41
    k.begin()
    k(f"""
  s_cmp_eq_u32 s{sid}, -1
  s_cselect_b32 s53, 0, s{sid}
  s_mul_i32 s{t}, s53, 6554
  s_lshr_b32 s{t}, s{t}, 16
  s_mul_i32 s{t+1}, s{t}, 10
  s_sub_u32 s{t+1}, s53, s{t+1}              ; lambda
  s_mov_b32 s{sS}, s{t}
  s_mov_b32 s{sL}, s{t+1}
  s_cmp_lt_u32 s{t}, 54
  s_cselect_b32 s{R_T}, s{R_W2}, s{R_WO}
  s_cselect_b32 s{R_T+1}, s{R_W2+1}, s{R_WO+1}
  s_cselect_b32 s{R_T+2}, s{R_W2+2}, s{R_WO+2}
  s_mov_b32 s{R_T+3}, 0x20000
  s_cmp_eq_u32 s{sid}, -1
  s_cselect_b32 s{R_T+2}, 0, s{R_T+2}
  v_lshrrev_b32 v{v}, 3, v1                  ; e
  v_and_b32 v{v+1}, 7, v1
  s_lshl_b32 s{t+2}, s{t+1}, 7
  v_lshl_add_u32 v{v+1}, v{v+1}, 4, s{t+2}
  s_cmp_lt_u32 s{t}, 54
  s_cbranch_scc0 {k.L('sw_wo%d' % n)}
  s_cmp_lt_u32 s{t}, 28
  s_cselect_b32 s{t+3}, 0, 28
  s_cselect_b32 s{t+4}, 0, 2
  s_sub_u32 s{t+3}, s{t}, s{t+3}
  s_lshr_b32 s{t+5}, s{t+3}, 1
  s_lshl_b32 s{t+5}, s{t+5}, 2
  s_and_b32 s{t+3}, s{t+3}, 1
  s_add_u32 s{t+5}, s{t+5}, s{t+3}
  s_add_u32 s{t+5}, s{t+5}, s{t+4}           ; F block
  v_lshrrev_b32 v{v+2}, 2, v{v}
  v_lshlrev_b32 v{v+2}, 3, v{v+2}
  v_and_b32 v{v+3}, 3, v{v}
  v_add_u32 v{v+2}, v{v+2}, v{v+3}
  s_lshl_b32 s{t+5}, s{t+5}, 5
  v_add_u32 v{v+2}, s{t+5}, v{v+2}""")
    for i in range(4): k(f"  v_add_u32 v{v+4+i}, {16*(i&1) + 4*(i>>1)}, v{v+2}")
    k(f"""
  s_branch {k.L('sw_go%d' % n)}
{k.L('sw_wo%d' % n)}:
  s_sub_u32 s{t+3}, s{t}, 54
  s_mul_i32 s{t+4}, s{t+3}, 52
  s_lshr_b32 s{t+4}, s{t+4}, 8
  s_mul_i32 s{t+5}, s{t+4}, 5
  s_sub_u32 s{t+5}, s{t+3}, s{t+5}
  s_lshl_b32 s{t+5}, s{t+5}, 3
  v_add_u32 v{v+2}, s{t+5}, v{v}
  v_cmp_le_u32 vcc, 20, v{v+2}
  v_cndmask_b32 v{v+3}, 0, 1, vcc
  v_mul_u32_u24 v{v+8}, 20, v{v+3}
  v_sub_u32 v{v+2}, v{v+2}, v{v+8}
  s_lshl_b32 s{t+4}, s{t+4}, 1
  v_add_u32 v{v+3}, s{t+4}, v{v+3}
  v_mul_u32_u24 v{v+3}, 80, v{v+3}
  v_add_u32 v{v+2}, v{v+2}, v{v+3}""")
    for i in range(4): k(f"  v_add_u32 v{v+4+i}, {20*i}, v{v+2}")
    k(f"{k.L('sw_go%d' % n)}:")
    for i in range(4): k(f"  v_mul_u32_u24 v{v+4+i}, 1280, v{v+4+i}\n  v_add_u32 v{v+4+i}, v{v+4+i}, v{v+1}")
    k.end()
def sw_dma(k, n=0):
    v = V_SWI + 10*n; scr = [87, 48][n]
    for i in range(4):
        k.begin()
        k(f"  s_add_u32 m0, s{scr}, {i*1024}")
        k.vmem(f"  buffer_load_dwordx4 v{v+4+i}, {R(R_T)}, 0 offen lds", ("sw", n))
        k.end()
def sw_proc1(k, n=0):
    v = V_SW + 40*n; t = 41; FRG = v + 16; sid = [51, 49][n]; scr = [87, 48][n]
    k(f"""
  v_lshrrev_b32 v{v}, 4, v1
  v_lshrrev_b32 v{v+1}, 2, v1
  v_and_b32 v{v+1}, 3, v{v+1}
  v_lshl_add_u32 v{v}, v{v}, 3, v{v+1}
  v_lshlrev_b32 v{v}, 7, v{v}
  v_and_b32 v{v+1}, 3, v1
  v_lshl_add_u32 v{v}, v{v+1}, 3, v{v}
  v_add_u32 v{v}, s{scr}, v{v}
  v_lshlrev_b32 v{v+1}, 4, v1
  s_cmp_eq_u32 s{sid}, -1
  s_cselect_b32 s{t}, 0x7fff0000, 0
  v_add_u32 v{v+1}, s{t}, v{v+1}""")
    k.wait_vm(("sw", n))
    for b in range(4):
        for tt in range(2):
            d = FRG + 4*b + 2*tt
            k(f"  ds_read_b64_tr_b16 v[{d}:{d+1}], v{v} offset:{32*b + 512*tt}")
    k("  s_waitcnt lgkmcnt(0)")
def sw_proc2(k, n=0):
    v = V_SW + 40*n; t = 41; FRG = v + 16; sS, sL = [(56, 57), (100, 101)][n]
    for b in range(4):
        k.begin()
        k(f"""
  s_lshl_b32 s{t}, s{sL}, 2
  s_add_u32 s{t}, s{t}, {b}
  s_mul_i32 s{t+1}, s{t}, 13
  s_lshr_b32 s{t+1}, s{t+1}, 6
  s_mul_i32 s{t+2}, s{t+1}, 5
  s_sub_u32 s{t+2}, s{t}, s{t+2}
  s_mul_i32 s{t+1}, s{t+1}, 74
  s_add_u32 s{t+1}, s{t+1}, s{sS}
  s_mul_i32 s{t+1}, s{t+1}, 5
  s_add_u32 s{t+1}, s{t+1}, s{t+2}
  s_lshl_b32 s{t+1}, s{t+1}, 10
  s_add_u32 s{t+1}, s{t+1}, {L.WS_W2}""")
        if 'nosw' not in EXP: k.vmem(f"  buffer_store_dwordx4 v[{FRG+4*b}:{FRG+4*b+3}], v{v+1}, {R(R_WS)}, s{t+1} offen sc1", "jst")
        k.end()
def zero_job(k):
    k(f"""
  s_mul_i32 s41, s40, 160
  s_add_u32 s41, s41, {L.WS_KV}
  v_lshlrev_b32 v56, 4, v1
  v_cmp_gt_u32 vcc, 10, v1
  v_mov_b32 v57, 0x7fff0000
  v_cndmask_b32 v58, v57, v56, vcc
  v_mov_b32 v60, 0
  v_mov_b32 v61, 0
  v_mov_b32 v62, 0
  v_mov_b32 v63, 0""")
    if 'nozero' not in EXP: k.vmem(f"  buffer_store_dwordx4 v[60:63], v58, {R(R_WS)}, s41 offen sc1", "jst")

def store_flag(k, cond_s, cond_val, addr_code, lbl):
    k.begin()
    k(f"  s_cmp_eq_u32 s{cond_s}, {cond_val}\n  s_cbranch_scc0 {k.L(lbl)}")
    k(addr_code)
    k(f"""
  v_mov_b32 v2, s41
  v_mov_b32 v0, 1
  s_mov_b64 exec, 1
  buffer_store_byte v0, v2, {R(R_WS)}, 0 offen sc1
  s_mov_b64 exec, -1
{k.L(lbl)}:""")
    k.end()

def poll_issue(k, vdst, addr_code, tag, only0=True):
    k.begin()
    k(addr_code)
    if only0:
        k(f"  s_cmp_eq_u32 s39, 0\n  s_cselect_b32 s41, 0, 0x7fff0000\n  v_or_b32 v{vdst+1}, s41, v{vdst+1}")
    k.vmem(f"  buffer_load_dword v{vdst}, v{vdst+1}, {R(R_WS)}, 0 offen sc1", tag)
    k.end()
_BID = {}
def bound(k, lbl):
    if 'bound' not in EXP: return ""
    i = _BID.setdefault(lbl, len(_BID) + 1)
    return f"  s_add_u32 s75, s75, 1\n  s_cmp_gt_u32 s75, 3000\n  s_cbranch_scc0 {k.L(lbl+'_nb')}\n  s_mov_b32 s75, 0\n  s_mov_b32 s74, {1000 + i}\n  v_writelane_b32 v3, s74, 35\n  s_branch {k.L(lbl+'_ok')}\n{k.L(lbl+'_nb')}:"
def poll_check(k, vdst, tag, lbl, only0=True, slp=6):
    k.wait_vm(tag)
    saved = list(k.vm)
    if only0: k(f"  s_cmp_eq_u32 s39, 0\n  s_cbranch_scc0 {k.L(lbl+'_ok')}")
    k(f"""
  v_cmp_ne_u32 vcc, 0x01010101, v{vdst}
  s_cmp_eq_u64 vcc, 0
  s_cbranch_scc1 {k.L(lbl+'_ok')}
{k.L(lbl+'_sp')}:
{bound(k, lbl)}
  s_sleep {slp}
  buffer_load_dword v{vdst}, v{vdst+1}, {R(R_WS)}, 0 offen sc1
  s_waitcnt vmcnt(0)
  v_cmp_ne_u32 vcc, 0x01010101, v{vdst}
  s_cmp_eq_u64 vcc, 0
  s_cbranch_scc0 {k.L(lbl+'_sp')}
{k.L(lbl+'_ok')}:""")
    k.vm = saved
def lines(vdst, scode, n):
    return scode + f"\n  v_min_u32 v{vdst+1}, {n-1}, v1\n  v_lshlrev_b32 v{vdst+1}, 7, v{vdst+1}\n  v_add_u32 v{vdst+1}, s41, v{vdst+1}"
def words(vdst, scode, n):
    return scode + f"\n  v_lshlrev_b32 v{vdst+1}, 2, v1\n  v_min_u32 v{vdst+1}, {4*(n-1)}, v{vdst+1}\n  v_add_u32 v{vdst+1}, s41, v{vdst+1}"

def unit_of_slot(k, sg, sslot, su, sty, lbl):
    k(f"""
  s_lshl_b32 s{su}, s{sg}, 2
  s_add_u32 s{su}, s{su}, s{sslot}
  s_cmp_lt_u32 s{su}, 27
  s_cbranch_scc0 {k.L(lbl+'a')}
  s_mov_b32 s{sty}, 0
  s_add_u32 s{su}, s{su}, 30
  s_branch {k.L(lbl+'b')}
{k.L(lbl+'a')}:
  s_mov_b32 s{sty}, 2
  s_cmp_eq_u32 s{su}, 28
  s_cmov_b32 s{sty}, 1
  s_cmp_eq_u32 s{su}, 30
  s_cmov_b32 s{sty}, 1
  s_lshr_b32 s{su}, s{su}, 1
  s_sub_u32 s{su}, s{su}, 6
{k.L(lbl+'b')}:""")

vDx, vDx2, vDw, vG = 10, 11, 12, 20
NWS = 4

def loader_a_setup(k):
    k(f"""
  v_lshrrev_b32 v4, 3, v1
  v_lshrrev_b32 v5, 1, v4
  v_and_b32 v6, 7, v1
  v_xor_b32 v7, v6, v5
  v_mul_u32_u24 v8, 1280, v4
  v_lshl_add_u32 v{vDx}, v7, 4, v8
  v_xor_b32 v7, 4, v7
  v_lshl_add_u32 v{vDx2}, v7, 4, v8
  s_mul_i32 s101, s36, {128*1280}
  s_mul_i32 s47, s39, {32*1280}
  s_add_u32 s101, s101, s47
  s_lshl_b32 s47, s39, 12                  ; lw*4096""")
def loader_a_setup_w(k):
    k(f"""
  v_and_b32 v5, 1, v5
  v_lshlrev_b32 v5, 2, v5
  v_xor_b32 v6, v6, v5
  s_cmp_eq_u32 s37, 0
  s_cbranch_scc1 {k.L('ld_kv')}""")
    unit_of_slot(k, 38, 39, 48, 49, "uos")
    k(f"""
  s_cmp_eq_u32 s49, 0
  s_cselect_b32 s20, s{R_W1}, s{R_WQ}
  s_cselect_b32 s21, s{R_W1+1}, s{R_WQ+1}
  s_mov_b32 s44, 3840
  s_cmov_b32 s44, 3456
  s_cselect_b32 s22, s{R_W1+2}, s{R_WQ+2}
  s_cselect_b32 s58, 30, 0
  s_sub_u32 s58, s48, s58
  s_lshl_b32 s100, s58, 7
  s_cmp_eq_u32 s49, 2
  s_cmov_b32 s22, 0
  v_lshlrev_b32 v7, 4, v6
  s_lshl_b32 s58, s48, 6
  v_add_u32 v{vG}, s58, v1
  s_branch {k.L('ld_go')}
{k.L('ld_kv')}:
  s_mov_b32 s20, s{R_WQ}
  s_mov_b32 s21, s{R_WQ+1}
  s_mov_b32 s22, s{R_WQ+2}
  s_mov_b32 s44, 3840
  s_mov_b32 s100, 0
  ; position p' = 8 lw + p  ->  chunk c' = (p' & ~3) | inv(p')  (bank-conflict-free placement, see kvmap2.py)
  s_lshl_b32 s58, s39, 3
  v_add_u32 v7, s58, v6                    ; p'
  v_mov_b32 v8, 0x9c1b39b4
  v_mov_b32 v9, 0xd8e1e472
  v_cmp_gt_u32 vcc, 16, v7
  v_cndmask_b32 v8, v9, v8, vcc
  v_and_b32 v9, 15, v7
  v_lshlrev_b32 v9, 1, v9
  v_lshrrev_b32 v8, v9, v8
  v_and_b32 v8, 3, v8
  v_and_b32 v7, 0xfc, v7
  v_or_b32 v7, v7, v8                      ; c'
  s_mul_i32 s58, s38, 160
  s_add_u32 s59, s58, 1280                 ; k: 1280 + 160 j + 16 c'
  v_mov_b32 v8, s59
  s_add_u32 s59, s58, {2560 - 160}         ; v: 2560 + 160 j + 16 (c' - 10)
  v_mov_b32 v9, s59
  v_cmp_gt_u32 vcc, 10, v7
  v_cndmask_b32 v8, v9, v8, vcc
  v_mov_b32 v9, 0x7fff0000
  v_cmp_gt_u32 vcc, 20, v7
  v_cndmask_b32 v8, v9, v8, vcc
  s_lshl_b32 s59, s38, 7
  s_sub_u32 s59, s59, {24*16}              ; q: 128 j + 16 (c' - 24)
  v_mov_b32 v9, s59
  v_cmp_gt_u32 vcc, 24, v7
  v_cndmask_b32 v8, v9, v8, vcc
  v_lshl_add_u32 v7, v7, 4, v8
{k.L('ld_kvgc')}:
  v_and_b32 v12, 31, v1
  v_lshrrev_b32 v13, 5, v1
  s_and_b32 s58, s39, 1
  s_lshl_b32 s58, s58, 1
  v_add_u32 v13, s58, v13
  v_lshrrev_b32 v14, 3, v12
  v_lshl_add_u32 v14, v13, 2, v14
  v_lshrrev_b32 v15, 2, v12
  v_and_b32 v15, 1, v15
  s_lshr_b32 s59, s39, 1
  s_lshl_b32 s58, s59, 1
  v_add_u32 v16, s58, v15
  v_and_b32 v17, 3, v12
  v_mul_u32_u24 v18, 20, v16
  v_lshl_add_u32 v18, v14, 2, v18
  v_add_u32 v18, v18, v17
  s_mul_i32 s58, s38, 80
  v_add_u32 v18, s58, v18
  v_add_u32 v19, 640, v18
  v_add_u32 v21, {1280 - 20}, v18
  v_cmp_gt_u32 vcc, 5, v14
  v_cndmask_b32 v{vG}, v21, v19, vcc
  s_lshl_b32 s58, s59, 3
  v_lshl_add_u32 v21, v15, 2, s58
  v_add_u32 v21, v21, v14
  v_subrev_u32 v21, 10, v21
  v_lshl_add_u32 v21, v21, 2, v17
  s_lshl_b32 s58, s38, 6
  v_add_u32 v21, s58, v21
  v_cmp_gt_u32 vcc, 10, v14
  v_cndmask_b32 v{vG}, v21, v{vG}, vcc
  v_cmp_gt_u32 vcc, 14, v14
  v_cndmask_b32 v{vG}, 0, v{vG}, vcc
{k.L('ld_go')}:
  s_mov_b32 s23, 0x20000""")
    if TP:
        k(f"""
  s_lshl_b32 s58, s37, 2
  s_or_b32 s58, s58, s39
  s_cmp_eq_u32 s58, 3
  s_cmov_b32 s22, 0""")
    k(f"""
  v_mul_lo_u32 v8, v4, s44
  v_add_u32 v{vDw}, v8, v7
  s_add_u32 s48, s47, {WR}
  s_lshl_b32 s49, s44, 3                   ; 8*stride""")

def gW(j):
    def mk(i):
        def f(k):
            k(f"  s_add_u32 m0, s48, {(j % NWS)*16384 + i*1024}")
            k.vmem(f"  buffer_load_dwordx4 v{vDw}, {R(R_W)}, s100 offen lds", ("W", j))
            k("  s_add_u32 s100, s100, s49")
        return f
    return [mk(i) for i in range(4)]
def gX(m):
    def mk(i):
        def f(k):
            k(f"  s_add_u32 m0, s47, {XR + (m % 3)*16384 + i*1024}\n  s_add_u32 s87, s101, {m*128 + i*8*1280}")
            k.vmem(f"  buffer_load_dwordx4 v{vDx if i % 2 == 0 else vDx2}, {R(R_X)}, s87 offen lds", ("X", m))
        return f
    return [mk(i) for i in range(4)]
def dW(k, j):
    for f in gW(j): f(k)
def dX(k, m):
    for f in gX(m): f(k)
def rec(k, fns):
    r = kb.Rec(k)
    for f in fns: f(r)
    return r.items

def t_issue(k):
    k(f"""
  v_lshlrev_b32 v21, 2, v{vG}
  v_subrev_u32 v22, 1920, v{vG}
  v_lshlrev_b32 v22, 1, v22
  s_lshl_b32 s58, s36, 7
  s_lshl_b32 s59, s39, 6
  s_add_u32 s58, s58, s59
  v_add_u32 v23, s58, v1
  v_lshlrev_b32 v23, 4, v23
  s_cmp_lt_u32 s39, 2
  s_cselect_b32 s59, 0, 0x7fff0000
  v_add_u32 v23, s59, v23""")
    for p in range(10):
        k.begin()
        k(f"  s_mov_b32 s58, {L.WS_CSP + p*L.NCOL*4}")
        k.vmem(f"  buffer_load_dword v{24+p}, v21, {R(R_WS)}, s58 offen sc1", "side")
        k.end()
    k.vmem(f"  buffer_load_ushort v34, v22, {R(R_B)}, 0 offen", "side")
    k.vmem(f"  buffer_load_dwordx4 v[36:39], v23, {R(R_WS)}, 0 offen sc1", "side")
def wphi_dma(k, head_code, dst, enable_kv_only):
    k.begin()
    k(head_code)
    k(f"""
  s_mul_i32 s58, s58, 800
  s_add_u32 s{R_T}, s{S_WPHI}, s58
  s_addc_u32 s{R_T+1}, s{S_WPHI+1}, 0
  s_and_b32 s{R_T+1}, s{R_T+1}, 0xffff
  s_mov_b32 s{R_T+2}, 800
  s_mov_b32 s{R_T+3}, 0x20000""")
    if enable_kv_only:
        k(f"  s_cmp_eq_u32 s37, 0\n  s_cselect_b32 s{R_T+2}, s{R_T+2}, 0")
    k(f"""
  v_lshlrev_b32 v40, 4, v1
  s_lshl_b32 s58, s39, 10
  s_add_u32 m0, s58, {dst}""")
    k.vmem(f"  buffer_load_dwordx4 v40, {R(R_T)}, 0 offen lds", "side")
    k.end()
def t_build1(k):
    k.wait_vm("side")
    k("  v_add_f32 v24, v24, v25")
    for p in range(2, 10): k(f"  v_add_f32 v24, v24, v{24+p}")
    k(f"""
  v_cvt_pk_bf16_f32 v25, v24, v24
  v_and_b32 v26, 0xffff0000, v25
  v_sub_f32 v26, v24, v26
  v_cvt_pk_bf16_f32 v28, v24, v26
  v_and_b32 v29, 0xffff, v25
  v_lshl_or_b32 v29, v34, 16, v29
  v_mov_b32 v30, v34
  v_mov_b32 v31, 0""")
def t_build2(k):
    k(f"""
  v_lshlrev_b32 v27, 4, v1
  s_lshl_b32 s58, s39, 10
  s_add_u32 s58, s58, {TT}
  v_add_u32 v27, s58, v27
  ds_write_b128 v27, v[28:31]
  v_mov_b32 v44, 0
  v_mov_b32 v45, 0
  v_mov_b32 v46, 0
  v_mov_b32 v47, 0
  v_add_u32 v27, {ZR - TT}, v27
  s_cmp_lt_u32 s39, 2
  s_cbranch_scc0 {k.L('ld_nost')}
  ds_write_b128 v27, v[44:47]
  v_add_u32 v27, {ST - ZR + 2**32 if ST < ZR else ST - ZR}, v27
  ds_write_b128 v27, v[36:39]
{k.L('ld_nost')}:
  s_waitcnt lgkmcnt(0)""")

def tlb_touch(k):
    k(f"  s_cmp_eq_u32 s39, 2\n  s_cbranch_scc0 {k.L('notlb')}")
    items = [(S_X, 0), (S_X, 0x200000), (S_WQ, 0), (S_WQ, 0x200000), (S_W1, 0), (S_W1, 0x200000), (S_W2, 0), (S_W2, 0x200000), (S_WO, 0),
             (S_WPHI, 0), (S_B1, 0), (S_B2, 0), (S_OUT, 0), (S_OUT, 0x200000), (S_DBG, 0)] + [(S_WS, o) for o in range(0, L.WS_END, 0x200000)]
    for (p, o) in items:
        if o == 0: k(f"  s_load_dword s70, s[{p}:{p+1}], 0")
        else: k(f"  s_add_u32 s72, s{p}, {o}\n  s_addc_u32 s73, s{p+1}, 0\n  s_load_dword s70, s[72:73], 0\n  s_waitcnt lgkmcnt(0)" if False else
                f"  s_add_u32 s{{a}}, s{p}, {o}\n  s_addc_u32 s{{b}}, s{p+1}, 0\n  s_load_dword s70, s[{{a}}:{{b}}], 0".format(a=72, b=73))
    k(f"{k.L('notlb')}:")
def code_pf(k):
    if True:
        k(f"""
  s_cmp_eq_u32 s39, 3
  s_cbranch_scc0 {k.L('nopf')}
  s_getpc_b64 s[58:59]
{k.L('pc')}:
  s_sub_u32 s58, s58, {k.L('pc')}-{k.name}
  s_subb_u32 s59, s59, 0
  s_lshr_b32 s41, s2, 3
  s_and_b32 s41, s41, 7
  s_lshl_b32 s41, s41, 13
  v_lshl_add_u32 v50, v1, 7, s41
  v_min_u32 v50, {k.L('codeend')}-{k.name}-4, v50
  global_load_dword v51, v50, s[58:59]
{k.L('nopf')}:""")
def loader_a_start(k):
    if 'pfearly' in EXP: code_pf(k)
    if 'tlb' in EXP: tlb_touch(k)
    loader_a_setup(k)
    loader_a_setup_w(k)
    if 'noS0' not in EXP: k("  s_barrier")
    dX(k, 0); dW(k, 0); dW(k, 1)
    if 'pfearly' not in EXP and 'nocpf' not in EXP: code_pf(k)
    wphi_dma(k, "  s_lshl_b32 s58, s38, 2\n  s_add_u32 s58, s58, s39", WP, True)
    kb.stamp(k, 2)
    k.wait_vm(("W", 0))
    k("  s_barrier")
    kb.stamp(k, 3)
    dX(k, 1); dW(k, 2); dW(k, 3); dX(k, 2)
def loader_a(k):
    for j in range(20):
        if j + 1 <= 19:
            k.wait_vm(("W", j + 1))
            if (j + 1) % 2 == 0: k.wait_vm(("X", (j + 1)//2))
        if j == 16: poll_check(k, 52, "f2", "f2", slp=1)
        k("  s_barrier")
        groups = []
        if j + NWS <= 19: groups += gW(j + NWS)
        if j % 2 == 1 and (j + 1)//2 + 2 <= 9: groups += gX((j + 1)//2 + 2)
        fns = []
        if j == 14:
            fns.append(lambda k: poll_issue(k, 52, f"  v_lshrrev_b32 v53, 2, v1\n  v_lshlrev_b32 v53, 7, v53\n  v_and_b32 v54, 3, v1\n  v_lshl_add_u32 v53, v54, 2, v53\n  v_add_u32 v53, {FL_F2}, v53", "f2"))
        if j == 12 and 'cpf2' in EXP:
            def cpf2(k):
                k.begin()
                k(f"""
  s_cmp_eq_u32 s39, 3
  s_cbranch_scc0 {k.L('nopf2nd')}
  s_getpc_b64 s[58:59]
{k.L('pc2')}:
  s_sub_u32 s58, s58, {k.L('pc2')}-{k.name}
  s_subb_u32 s59, s59, 0
  s_lshr_b32 s41, s2, 3
  s_and_b32 s41, s41, 7
  s_lshl_b32 s41, s41, 13
  v_lshl_add_u32 v50, v1, 7, s41
  v_min_u32 v50, {k.L('codeend')}-{k.name}-4, v50
  global_load_dword v51, v50, s[58:59]
{k.L('nopf2nd')}:""")
                k.end()
            fns.append(cpf2)
        if j == 16: fns.append(t_issue)
        if j == 16: fns.append(loader_b_setup)
        if j == 18:
            fns.append(t_build1); fns.append(t_build2)
        if j in (17, 18, 19): groups += gWP(WPL[4*(j - 17):4*(j - 16)])
        kb.interleave(k, groups, rec(k, fns))
        kb.stamp(k, 16 + j)
CODE_PF = True
TP = int(os.environ.get('TP', 0))
X2S = [0, 16384, 32768, 98304, 114688]
W2S = [65536, 49152, 57344, 73728, 81920]; W2B = 49152
import os
EXP = os.environ.get('EXP', '')

VXA = [4, 5, 6, 7]; VXB = [8, 9, 10, 11]; VWA = [12, 13, 14, 15]
FX = [[80, 84], [104, 108]]
FW = [[88, 92, 96, 100], [112, 116, 120, 124]]
ACC = 128
WA_KV = 56
def acc(tb, b): return ACC + tb*64 + b*16

def a_reads(set_, st4, ks2):
    ksl = 2*(st4 & 1) + ks2
    r = []
    for tb in range(2):
        r.append(f"  ds_read_b128 v[{FX[set_][tb]}:{FX[set_][tb]+3}], v{VXA[ksl]} offset:{tb*4096}")
    for b in range(4):
        for t in range(2):
            d = FW[set_][b] + 2*t
            r.append(f"  ds_read_b64_tr_b16 v[{d}:{d+1}], v{VWA[b]} offset:{st4*16384 + ks2*2048 + t*512}")
    return r
def a_mfmas(cur, zero=False):
    return [f"  v_mfma_f32_32x32x16_bf16 v[{acc(tb,b)}:{acc(tb,b)+15}], v[{FW[cur][b]}:{FW[cur][b]+3}], v[{FX[cur][tb]}:{FX[cur][tb]+3}], " + ("0" if zero else f"v[{acc(tb,b)}:{acc(tb,b)+15}]")
            for b in range(4) for tb in range(2)]

def a_stage(k, st4, tail=None, pre_barrier=None, post_barrier=None, first=False):
    odd = st4 & 1
    mf = a_mfmas(0, zero=first); rd = a_reads(1, st4, 1)
    k("  s_waitcnt lgkmcnt(0)")
    sched = [2, 2, 2, 2, 1, 1, 0, 0]
    extra = []
    if odd:
        extra = [f"  v_add_u32 v{VXA[i]}, s47, v{VXB[i]}" for i in range(3)]
    for i, m in enumerate(mf):
        k(m)
        for _ in range(sched[i]): k(rd.pop(0))
        if i >= 5 and extra: k(extra.pop(0))
    mf = a_mfmas(1)
    k("  s_waitcnt lgkmcnt(0)")
    k(mf[0])
    if pre_barrier: k(pre_barrier)
    k("  s_barrier")
    if post_barrier: post_barrier(k)
    rd = a_reads(0, (st4 + 1) % 4, 0) if tail is None else list(tail)
    sched = [2, 2, 2, 2, 1, 1, 0]
    for i, m in enumerate(mf[1:]):
        for _ in range(sched[i]):
            if rd: k(rd.pop(0))
        k(m)
    while rd: k(rd.pop(0))
    if odd:
        k(f"  v_add_u32 v{VXA[3]}, s47, v{VXB[3]}")
        k("  s_add_u32 s47, s47, 16384\n  s_cmp_eq_u32 s47, 49152\n  s_cselect_b32 s47, 0, s47")

def compute_a(k):
    kb.stamp(k, 0, rt=True)
    k(f"""
  s_or_b32 s41, s2, s3
  s_cmp_eq_u32 s41, 0
  s_cbranch_scc0 {k.L('nog0')}
  v_lshlrev_b32 v4, 7, v1
  v_add_u32 v4, {FL}, v4
  v_mov_b32 v6, 0x7fff0000
  v_cmp_gt_u32 vcc, 16, v1
  v_cndmask_b32 v4, v6, v4, vcc
  v_mov_b32 v8, 0
  v_mov_b32 v9, 0
  v_mov_b32 v10, 0
  v_mov_b32 v11, 0
  buffer_store_dwordx4 v[8:11], v4, {R(R_WS)}, 0 offen sc1
  s_waitcnt vmcnt(0)
  v_mov_b32 v4, 0
  v_mov_b32 v5, 1
  s_mov_b64 exec, 1
  global_store_dword v4, v5, s[{S_DBG}:{S_DBG+1}] sc1
  s_mov_b64 exec, -1
{k.L('nog0')}:""")
    srd(k, R_W2, S_W2, 2211840)
    srd(k, R_WO, S_WO, 819200)
    job_ids(k)
    stats_issue(k); cs_issue(k)
    if 'noS0' not in EXP: k("  s_barrier")
    vm_kv = list(k.vm)
    k(f"  s_cmp_eq_u32 s37, 0\n  s_cbranch_scc1 {k.L('nosw')}")
    sw_addr(k, 0); sw_dma(k, 0); sw_addr(k, 1); sw_dma(k, 1)
    k.label("nosw")
    vm_g = list(k.vm)
    kb.stamp(k, 62)
    k(f"""
  s_lshr_b32 s43, s39, 1                   ; Th
  s_and_b32 s44, s39, 1                    ; Fh
  v_and_b32 v16, 31, v1                    ; n
  v_lshrrev_b32 v17, 5, v1                 ; hh
  v_lshrrev_b32 v18, 1, v16
  v_and_b32 v18, 7, v18
  v_xor_b32 v18, v17, v18
  v_lshlrev_b32 v18, 4, v18
  v_lshl_add_u32 v18, v16, 7, v18
  s_lshl_b32 s45, s43, 13
  v_add_u32 v{VXB[0]}, s45, v18
  v_xor_b32 v{VXB[1]}, 32, v{VXB[0]}
  v_xor_b32 v{VXB[2]}, 64, v{VXB[0]}
  v_xor_b32 v{VXB[3]}, 96, v{VXB[0]}
  v_mov_b32 v{VXA[0]}, v{VXB[0]}
  v_mov_b32 v{VXA[1]}, v{VXB[1]}
  v_mov_b32 v{VXA[2]}, v{VXB[2]}
  v_mov_b32 v{VXA[3]}, v{VXB[3]}
  s_mov_b32 s47, 16384
  v_lshrrev_b32 v18, 4, v1                 ; G
  v_lshrrev_b32 v19, 2, v1
  v_and_b32 v19, 3, v19                    ; r
  v_and_b32 v20, 3, v1                     ; c
  v_lshrrev_b32 v21, 1, v18
  v_lshl_add_u32 v21, v21, 3, v19
  v_lshlrev_b32 v21, 7, v21
  v_add_u32 v21, {WR}, v21
  v_lshrrev_b32 v22, 1, v19
  v_lshlrev_b32 v22, 2, v22
  v_and_b32 v23, 1, v18
  v_lshlrev_b32 v23, 1, v23
  v_lshrrev_b32 v24, 1, v20
  v_add_u32 v23, v23, v24                  ; j'
  v_and_b32 v24, 1, v20                    ; hh'
  s_cmp_eq_u32 s37, 0
  s_cbranch_scc1 {k.L('c_kv')}""")
    for b in range(4):
        k(f"""
  v_add_u32 v25, {4*(b&1)}, v23
  v_xor_b32 v25, v25, v22
  v_lshl_add_u32 v25, v25, 4, v21
  v_lshl_add_u32 v25, v24, 3, v25
  s_lshl_b32 s45, s44, 13
  s_add_u32 s45, s45, {(b>>1)*4096}
  v_add_u32 v{VWA[b]}, s45, v25""")
    k(f"  s_branch {k.L('c_go')}\n{k.L('c_kv')}:")
    k(f"  s_lshl_b32 s45, s44, 1\n  v_add_u32 v26, s45, v24\n  v_mul_u32_u24 v26, 5, v26")
    for b in range(4):
        k(f"""
  v_add_u32 v27, {4*b}, v23
  v_add_u32 v28, v26, v27
  v_add_u32 v29, 15, v28
  v_cmp_gt_u32 vcc, 5, v27
  v_cndmask_b32 v28, v29, v28, vcc
  s_lshl_b32 s45, s44, 3
  v_lshl_add_u32 v29, v24, 2, s45
  v_add_u32 v29, v29, v27
  v_add_u32 v29, {48 - 10}, v29
  v_cmp_gt_u32 vcc, 10, v27
  v_cndmask_b32 v28, v29, v28, vcc
  v_cmp_gt_u32 vcc, 14, v27
  v_add_u32 v29, 42, v24
  v_cndmask_b32 v28, v29, v28, vcc
  v_lshrrev_b32 v30, 1, v28                ; chunk c'
  v_mov_b32 v29, 0x781b93b4
  v_mov_b32 v31, 0xd8e1e48d
  v_cmp_gt_u32 vcc, 16, v30
  v_cndmask_b32 v29, v31, v29, vcc
  v_and_b32 v31, 15, v30
  v_lshlrev_b32 v31, 1, v31
  v_lshrrev_b32 v29, v31, v29
  v_and_b32 v29, 3, v29
  v_and_b32 v30, 0xfc, v30
  v_or_b32 v30, v30, v29                   ; position p'
  v_lshrrev_b32 v29, 3, v30                ; VU
  v_and_b32 v30, 7, v30
  v_xor_b32 v30, v30, v22
  v_and_b32 v31, 1, v28
  v_lshl_add_u32 v30, v30, 4, v21
  v_lshl_add_u32 v30, v31, 3, v30
  v_lshl_add_u32 v{VWA[b]}, v29, 12, v30""")
    k(f"{k.L('c_go')}:")
    k(f"""
  s_lshl_b32 s45, s43, 10
  s_add_u32 s45, s45, {ST}
  v_lshl_add_u32 v32, v16, 4, s45
  s_lshl_b32 s45, s44, 11
  s_add_u32 s45, s45, {TT}
  v_lshl_add_u32 v33, v16, 4, s45
  v_mov_b32 v34, {ZR}
  v_cmp_eq_u32 vcc, 0, v17
  v_cndmask_b32 v33, v34, v33, vcc
  v_lshrrev_b32 v25, 1, v18                ; hh_k
  s_lshl_b32 s45, s44, 1
  v_add_u32 v26, s45, v24
  v_lshlrev_b32 v26, 10, v26
  v_add_u32 v26, {WP}, v26
  v_mul_u32_u24 v27, 40, v19
  v_add_u32 v27, v27, v26
  v_lshl_add_u32 v27, v23, 3, v27
  v_mov_b32 v28, {ZR}
  v_cmp_eq_u32 vcc, v24, v25
  v_cndmask_b32 v35, v28, v27, vcc
  v_add_u32 v30, 32, v27
  v_cmp_eq_u32 s[58:59], 0, v23
  s_and_b64 vcc, vcc, s[58:59]
  v_cndmask_b32 v31, v28, v30, vcc""")
    kb.stamp(k, 15)
    def stats_cs():
        A_ = rec(k, [stats_a1, stats_a2, stats_b, stats_c, stats_d]); B_ = rec(k, [cs_a, cs_b])
        k.wait_vm("cs")
        na, nb = len(A_), len(B_); ia = ib = 0
        while ia < na or ib < nb:
            for _ in range(2):
                if ia < na: kb.replay(k, A_[ia]); ia += 1
            if ib < nb and (ib + 1)*na <= (ia + 2)*nb*1.0 + na: kb.replay(k, B_[ib]); ib += 1
            elif ia >= na and ib < nb: kb.replay(k, B_[ib]); ib += 1
    k(f"  s_cmp_eq_u32 s37, 0\n  s_cbranch_scc1 {k.L('jobs_kv')}")
    k.vm = vm_g
    stats_cs()
    kb.stamp(k, 59)
    sw_proc1(k, 0); sw_proc1(k, 1); kb.stamp(k, 61); sw_proc2(k, 0); sw_proc2(k, 1)
    k(f"  s_branch {k.L('jobs_done')}")
    k.label("jobs_kv")
    k.vm = vm_kv
    base_ = k.name
    k.lname = base_ + "_jk"
    stats_a1(k); stats_a2(k); stats_b(k); stats_c(k); stats_d(k)
    k(f"  s_cmp_eq_u32 s50, -1\n  s_cbranch_scc1 {k.L('nocs')}")
    cs_a(k); cs_b(k)
    k.label("nocs")
    k.lname = None
    k.label("jobs_done")
    k(f"""
  s_mul_i32 s41, s2, 3
  s_add_u32 s41, s41, 16
  v_add_u32 v36, s41, v1                   ; line
  v_cmp_gt_u32 vcc, {NFL}, v36
  s_mov_b64 s[58:59], vcc
  v_cmp_gt_u32 vcc, 3, v1
  s_and_b64 vcc, vcc, s[58:59]
  s_cmp_eq_u32 s39, 1
  s_cselect_b64 s[58:59], -1, 0
  s_and_b64 vcc, vcc, s[58:59]
  v_lshlrev_b32 v36, 7, v36
  v_add_u32 v36, {FL}, v36
  v_mov_b32 v37, 0x7fff0000
  v_cndmask_b32 v36, v37, v36, vcc
  v_mov_b32 v38, 0
  buffer_store_dword v38, v36, {R(R_WS)}, 0 offen sc1""")
    k("  v_mov_b32 v48, 0\n  s_lshr_b32 s43, s39, 1\n  s_and_b32 s44, s39, 1")
    k(f"  global_load_dword v49, v48, s[{S_DBG}:{S_DBG+1}] sc1")
    k.vm = []
    kb.stamp(k, 2)
    k("  s_barrier")
    kb.stamp(k, 3)
    kb.stamp(k, 40, rt=True)
    if 'prioC' in EXP: k("  s_setprio 1")
    for l in a_reads(0, 0, 0): k(l)
    a_stage(k, 0, first=True)
    for st4 in (1, 2, 3): a_stage(k, st4)
    k("  s_mov_b32 s46, 1\n.p2align 3")
    k.label("kloop")
    F2T, F2S = {4: (1, 0), 5: (1, 1), 6: (1, 2), 8: (2, 0)}[int(os.environ.get("F2J", 5))]
    pre = f"""  s_cmp_eq_u32 s46, {F2T}
  s_cbranch_scc0 {k.L('f2n1')}
  s_waitcnt vmcnt(0)
{k.L('f2n1')}:"""
    def post(k):
        k(f"""
  s_lshl_b32 s41, s46, 2
  s_or_b32 s41, s41, s39
  s_cmp_eq_u32 s41, {4*F2T}
  s_cbranch_scc0 {k.L('f2n2')}
  v_readfirstlane_b32 s53, v49
  s_cmp_eq_u32 s53, 1
  s_cbranch_scc1 {k.L('f2go')}
{k.L('f2g0')}:
  s_sleep 4
  global_load_dword v49, v48, s[{S_DBG}:{S_DBG+1}] sc1
  s_waitcnt vmcnt(0)
  v_readfirstlane_b32 s53, v49
  s_cmp_eq_u32 s53, 1
  s_cbranch_scc0 {k.L('f2g0')}
{k.L('f2go')}:
  s_lshr_b32 s41, s2, 4
  s_lshl_b32 s41, s41, 7
  s_and_b32 s42, s2, 15
  s_add_u32 s41, s41, s42
  s_add_u32 s41, s41, {FL_F2}
  v_mov_b32 v2, s41
  v_mov_b32 v0, 1
  s_mov_b64 exec, 1
  buffer_store_byte v0, v2, {R(R_WS)}, 0 offen sc1
  s_mov_b64 exec, -1
{k.L('f2n2')}:""")
    for st4 in range(4): a_stage(k, st4, pre_barrier=(pre if st4 == F2S else None), post_barrier=(post if st4 == F2S else None))
    k(f"  s_add_u32 s46, s46, 1\n  s_cmp_lt_u32 s46, 4\n  s_cbranch_scc1 {k.L('kloop')}")
    for st4 in range(3): a_stage(k, st4)
    tail = [f"  ds_read_b128 v[{36+4*tb}:{39+4*tb}], v32 offset:{tb*512}" for tb in range(2)] + \
           [f"  ds_read_b128 v[{FW[0][b]}:{FW[0][b]+3}], v33 offset:{b*512}" for b in range(4)]
    a_stage(k, 3, tail=tail)
    for beta in range(2):
        for st in range(3):
            for t in range(2):
                d0 = 8*st + 4*t; reg = WA_KV + (beta*3 + st)*4 + 2*t
                if d0 < 20: k(f"  ds_read_b64_tr_b16 v[{reg}:{reg+1}], v{35 if beta == 0 else 31} offset:{d0*40}")
                else: k(f"  v_mov_b32 v{reg}, 0\n  v_mov_b32 v{reg+1}, 0")
    k("  s_waitcnt lgkmcnt(10)")
    kb.stamp(k, 4)
    kb.stamp(k, 42, rt=True)
    for tb in range(2):
        s = 36 + 4*tb; d = FX[0][tb]
        k(f"""
  v_rcp_f32 v44, v{s+2}
  v_sub_f32 v45, 0, v{s}
  v_cvt_pk_bf16_f32 v{d}, v45, v45
  v_and_b32 v46, 0xffff0000, v{d}
  v_sub_f32 v46, v45, v46
  v_cvt_pk_bf16_f32 v47, v44, v44
  v_and_b32 v48, 0xffff0000, v47
  v_sub_f32 v48, v44, v48
  v_cvt_pk_bf16_f32 v{d+1}, v46, v44
  v_cvt_pk_bf16_f32 v{d+2}, v48, 0
  v_mov_b32 v{d+3}, 0
  v_mov_b32 v{s+3}, v44
  v_cmp_eq_u32 vcc, 0, v17
  v_cndmask_b32 v{d}, 0, v{d}, vcc
  v_cndmask_b32 v{d+1}, 0, v{d+1}, vcc
  v_cndmask_b32 v{d+2}, 0, v{d+2}, vcc""")
    for m in a_mfmas(0): k(m)
    k(f"  s_cmp_eq_u32 s37, 0\n  s_cbranch_scc1 {k.L('epi_kv')}")
    epi_g(k)
    k(f"  s_branch {k.L('phase_b')}")
    k.label("epi_kv")
    epi_kv(k)
    k.label("phase_b")

def gelu_block(k, a, dst):
    T = 60
    for p in range(0, 16, 8):
        prs = [(a + p + 2*i, T + 2*i) for i in range(4)]
        for (x, t) in prs: k(f"  v_pk_mul_f32 v[{t}:{t+1}], v[{x}:{x+1}], v[{x}:{x+1}]")
        for (x, t) in prs: k(f"  v_pk_fma_f32 v[{t}:{t+1}], v[{t}:{t+1}], v[52:53], v[50:51]")
        for (x, t) in prs: k(f"  v_pk_mul_f32 v[{t}:{t+1}], v[{t}:{t+1}], v[{x}:{x+1}]")
        for i in range(8): k(f"  v_exp_f32 v{T+i}, v{T+i}")
        for (x, t) in prs: k(f"  v_pk_fma_f32 v[{t}:{t+1}], v[{t}:{t+1}], v[54:55], v[54:55]")
        for i in range(8): k(f"  v_rcp_f32 v{T+i}, v{T+i}")
        for (x, t) in prs: k(f"  v_pk_mul_f32 v[{t}:{t+1}], v[{t}:{t+1}], v[{x}:{x+1}]")
        for n_, (x, t) in enumerate(prs): k(f"  v_cvt_pk_bf16_f32 v{dst + p//2 + n_}, v{t}, v{t+1}")

def epi_g_part(k, uu, tb, wait_older=False):
    n = f"{uu}{tb}"
    k(f"""
  s_lshl_b32 s50, s44, 1
  s_add_u32 s50, s50, {uu}
  s_lshl_b32 s51, s38, 2
  s_add_u32 s51, s51, s50                  ; u_lin
  s_cmp_lt_u32 s51, 27
  s_cbranch_scc1 {k.L('g_w1_' + n)}
  s_bitcmp1_b32 s51, 0
  s_cbranch_scc1 {k.L('g_none_' + n)}
  s_cmp_lt_u32 s51, 28
  s_cbranch_scc1 {k.L('g_none_' + n)}
  s_lshr_b32 s51, s51, 1
  s_sub_u32 s51, s51, 6
  s_add_u32 s52, s48, {2*tb}
  s_mul_i32 s52, s52, 160
  s_lshl_b32 s53, s51, 4
  s_add_u32 s52, s52, s53
  s_lshl_b32 s52, s52, 7
  s_add_u32 s52, s52, {L.WS_Q}""")
    for bb in range(2):
        a = acc(tb, 2*uu + bb)
        for jp in range(4):
            r = 60 + 2*(jp % 4)
            k(f"  v_cvt_pk_bf16_f32 v{r}, v{a+4*jp}, v{a+4*jp+1}\n  v_cvt_pk_bf16_f32 v{r+1}, v{a+4*jp+2}, v{a+4*jp+3}")
            k(f"  buffer_store_dwordx2 v[{r}:{r+1}], v59, {R(R_WS)}, s52 offen offset:{bb*1024 + jp*256} sc1")
    if wait_older: k("  s_waitcnt vmcnt(8)")
    k(f"  s_branch {k.L('g_done_' + n)}\n{k.L('g_none_' + n)}:")
    if wait_older: k("  s_waitcnt vmcnt(0)")
    k(f"  s_branch {k.L('g_done_' + n)}\n{k.L('g_w1_' + n)}:")
    s_ = 36 + 4*tb
    k(f"""
  s_and_b32 s53, s51, 1
  s_mul_i32 s53, s53, 27
  s_add_u32 s51, s51, s53
  v_mul_f32 v50, {fl(C0)}, v{s_+2}
  v_mul_f32 v52, v{s_+2}, v{s_+2}
  v_mul_f32 v52, v52, v{s_+2}
  v_mov_b32 v51, v50
  v_mul_f32 v52, {fl(C1)}, v52
  v_mov_b32 v54, v{s_+3}
  v_mov_b32 v55, v{s_+3}
  v_mov_b32 v53, v52
  s_add_u32 s52, s48, {2*tb}
  s_mul_i32 s52, s52, 74
  s_add_u32 s52, s52, s51
  s_lshl_b32 s52, s52, 10
  s_add_u32 s52, s52, {L.WS_HO}""")
    for bb in range(2):
        a = acc(tb, 2*uu + bb)
        d = 68 if bb == 0 else 20
        gelu_block(k, a, d)
        k(f"  buffer_store_dwordx4 v[{d}:{d+3}], v58, {R(R_WS)}, s52 offen offset:{bb*1024} sc1")
        k(f"  buffer_store_dwordx4 v[{d+4}:{d+7}], v58, {R(R_WS)}, s52 offen offset:{bb*1024 + 256} sc1")
    if wait_older: k("  s_waitcnt vmcnt(4)")
    k(f"{k.L('g_done_' + n)}:")

def epi_g(k):
    if 'delayG' in EXP: k("  s_sleep 39")
    k(f"""
  s_waitcnt lgkmcnt(0)
  v_lshrrev_b32 v56, 4, v16
  v_and_b32 v57, 15, v16
  v_mul_u32_u24 v58, {74*1024}, v56
  v_lshl_add_u32 v58, v17, 9, v58
  v_lshl_add_u32 v58, v57, 4, v58
  v_mul_u32_u24 v59, {160*128}, v56
  v_lshl_add_u32 v59, v17, 7, v59
  v_lshl_add_u32 v59, v57, 3, v59
  s_lshl_b32 s48, s36, 3
  s_lshl_b32 s49, s43, 2
  s_add_u32 s48, s48, s49""")
    decode_b(k)
    epi_g_part(k, 0, 0); epi_g_part(k, 0, 1)
    epi_g_part(k, 1, 0, wait_older=True)
    k("  s_barrier")
    kb.stamp(k, 5)
    store_flag(k, 39, 0, f"  s_lshl_b32 s41, s36, 1\n  s_lshr_b32 s42, s38, 2\n  s_add_u32 s41, s41, s42\n  s_lshl_b32 s41, s41, 7\n  s_and_b32 s42, s38, 3\n  s_add_u32 s41, s41, s42\n  s_add_u32 s41, s41, {FL_H1}", "fh1")
    epi_g_part(k, 1, 1)
    kb.stamp(k, 8)
    k("  s_barrier")

def kv_q_store(k, accs):
    k(f"""
  v_lshrrev_b32 v2, 4, v16
  v_and_b32 v0, 15, v16
  v_mul_u32_u24 v18, {160*128}, v2
  v_lshl_add_u32 v18, v17, 9, v18
  v_lshl_add_u32 v18, v0, 3, v18
  s_lshl_b32 s48, s36, 3
  s_lshl_b32 s49, s43, 2
  s_add_u32 s48, s48, s49""")
    for tb in range(2):
        k(f"""
  s_add_u32 s52, s48, {2*tb}
  s_mul_i32 s52, s52, 160
  s_lshl_b32 s53, s38, 4
  s_add_u32 s52, s52, s53
  s_lshl_b32 s53, s44, 3
  s_add_u32 s52, s52, s53
  s_lshl_b32 s52, s52, 7
  s_add_u32 s52, s52, {L.WS_Q}""")
        a = accs[tb]
        for g in range(4):
            r = 104 + 8*tb + 2*g
            k(f"  v_cvt_pk_bf16_f32 v{r}, v{a+4*g}, v{a+4*g+1}\n  v_cvt_pk_bf16_f32 v{r+1}, v{a+4*g+2}, v{a+4*g+3}")
            k(f"  buffer_store_dwordx2 v[{r}:{r+1}], v18, {R(R_WS)}, s52 offen offset:{g*128} sc1")
def q_flag(k):
    k(f"""
  s_lshl_b32 s41, s36, 1
  s_lshr_b32 s42, s39, 1                   ; Th
  s_add_u32 s41, s41, s42
  s_lshl_b32 s41, s41, 2
  s_lshr_b32 s42, s38, 1
  s_add_u32 s41, s41, s42
  s_lshl_b32 s41, s41, 7
  s_and_b32 s42, s38, 1
  s_lshl_b32 s42, s42, 1
  s_add_u32 s41, s41, s42
  s_and_b32 s42, s39, 1                    ; Fh
  s_add_u32 s41, s41, s42
  s_add_u32 s41, s41, {FL_Q}
  v_mov_b32 v2, s41
  v_mov_b32 v0, 1
  s_mov_b64 exec, 1
  buffer_store_byte v0, v2, {R(R_WS)}, 0 offen sc1
  s_mov_b64 exec, -1""")
def pf_flag(k):
    k(f"""
  s_lshl_b32 s41, s38, 4
  s_add_u32 s41, s41, s36
  s_lshl_b32 s41, s41, 7
  s_add_u32 s41, s41, s39
  s_add_u32 s41, s41, {FL_PF}
  v_mov_b32 v2, s41
  v_mov_b32 v0, 1
  s_mov_b64 exec, 1
  buffer_store_byte v0, v2, {R(R_WS)}, 0 offen sc1
  s_mov_b64 exec, -1""")
def kv_pass2(k):
    F_FWD_HI = 0xd8e1e48d
    A2 = [128, 144]
    k(f"""
  v_and_b32 v16, 31, v1
  v_lshrrev_b32 v17, 5, v1
  v_lshrrev_b32 v18, 1, v16
  v_and_b32 v18, 7, v18
  v_xor_b32 v18, v17, v18
  v_lshlrev_b32 v18, 4, v18
  v_lshl_add_u32 v18, v16, 7, v18
  s_lshl_b32 s45, s43, 13
  v_add_u32 v{VXB[0]}, s45, v18
  v_xor_b32 v{VXB[1]}, 32, v{VXB[0]}
  v_xor_b32 v{VXB[2]}, 64, v{VXB[0]}
  v_xor_b32 v{VXB[3]}, 96, v{VXB[0]}
  v_mov_b32 v{VXA[0]}, v{VXB[0]}
  v_mov_b32 v{VXA[1]}, v{VXB[1]}
  v_mov_b32 v{VXA[2]}, v{VXB[2]}
  v_mov_b32 v{VXA[3]}, v{VXB[3]}
  s_mov_b32 s47, 16384
  v_lshrrev_b32 v18, 4, v1                 ; G
  v_lshrrev_b32 v19, 2, v1
  v_and_b32 v19, 3, v19                    ; r
  v_and_b32 v20, 3, v1                     ; c
  v_lshrrev_b32 v21, 1, v18
  v_lshl_add_u32 v21, v21, 3, v19
  v_lshlrev_b32 v21, 7, v21
  v_add_u32 v21, {W2B}, v21
  v_lshrrev_b32 v22, 1, v19
  v_lshlrev_b32 v22, 2, v22                ; swizzle
  v_and_b32 v23, 1, v18
  v_lshlrev_b32 v23, 1, v23
  v_lshrrev_b32 v24, 1, v20
  v_add_u32 v23, v23, v24                  ; j'
  v_and_b32 v24, 1, v20                    ; hh'
  s_lshl_b32 s45, s44, 3
  v_lshl_add_u32 v25, v24, 2, s45
  v_add_u32 v25, v25, v23
  v_lshrrev_b32 v26, 1, v25                ; chunk
  v_add_u32 v27, 8, v26
  v_lshlrev_b32 v27, 1, v27
  v_mov_b32 v28, {hex(F_FWD_HI)}
  v_lshrrev_b32 v28, v27, v28
  v_and_b32 v28, 3, v28
  v_and_b32 v26, 4, v26
  v_or_b32 v26, v26, v28                   ; position
  v_xor_b32 v26, v26, v22
  v_and_b32 v25, 1, v25
  v_lshl_add_u32 v26, v26, 4, v21
  v_lshl_add_u32 v12, v25, 3, v26
  v_lshrrev_b32 v23, 3, v16
  v_add_u32 v23, 10, v23                   ; q
  v_lshrrev_b32 v24, 2, v23                ; b
  v_and_b32 v23, 3, v23                    ; slot
  v_and_b32 v25, 7, v16                    ; 4 hq + i
  v_lshl_add_u32 v25, v23, 3, v25
  v_lshl_add_u32 v25, v24, 5, v25
  s_lshl_b32 s45, s44, 7
  v_add_u32 v25, s45, v25
  v_lshlrev_b32 v25, 4, v25
  v_add_u32 v25, {TT}, v25
  v_mov_b32 v26, {ZR}
  v_cmp_eq_u32 vcc, 0, v17
  v_cndmask_b32 v13, v26, v25, vcc""")
    for i in range(32): k(f"  v_mov_b32 v{128+i}, 0")
    XS = [80, 44]; WS_ = [112, 18]
    def rd(m):
        st = m % 2; out = []
        for ks in range(4):
            out += [f"  ds_read_b128 v[{XS[st]+8*ks+4*tb}:{XS[st]+8*ks+4*tb+3}], v{VXA[ks]} offset:{tb*4096}" for tb in range(2)]
            out += [f"  ds_read_b64_tr_b16 v[{WS_[st]+4*ks+2*t}:{WS_[st]+4*ks+2*t+1}], v12 offset:{W2S[m % 5] - W2B + ks*2048 + t*512}" for t in range(2)]
        return out
    def mm(m):
        st = m % 2
        return [f"  v_mfma_f32_32x32x16_bf16 v[{A2[tb]}:{A2[tb]+15}], v[{WS_[st]+4*ks}:{WS_[st]+4*ks+3}], v[{XS[st]+8*ks+4*tb}:{XS[st]+8*ks+4*tb+3}], v[{A2[tb]}:{A2[tb]+15}]"
                for ks in range(4) for tb in range(2)]
    k("  s_barrier")
    for l in rd(0): k(l)
    for m in range(10):
        if m < 9:
            for i in range(4): k(f"  v_add_u32 v{VXA[i]}, {X2S[(m + 1) % 5]}, v{VXB[i]}")
        k("  s_waitcnt lgkmcnt(0)\n  s_barrier")
        nxt = rd(m + 1) if m < 9 else [f"  ds_read_b128 v[{FW[0][0]}:{FW[0][0]+3}], v13"]
        for x in mm(m):
            k(x)
            for _ in range(2):
                if nxt: k(nxt.pop(0))
        if m == 2:
            k("  s_waitcnt vmcnt(0)"); pf_flag(k); kb.stamp(k, 36)
        if m == 4: red_poll(k)
        if m == 6: red_issue(k)
        if m == 9: red_sum(k)
    k("  s_waitcnt lgkmcnt(0)\n  s_barrier")
    for tb in range(2):
        s_ = 36 + 4*tb; d = FX[0][tb]
        k(f"""
  v_sub_f32 v45, 0, v{s_}
  v_cvt_pk_bf16_f32 v{d}, v45, v45
  v_and_b32 v46, 0xffff0000, v{d}
  v_sub_f32 v46, v45, v46
  v_cvt_pk_bf16_f32 v{d+1}, v46, 0
  v_mov_b32 v{d+2}, 0
  v_mov_b32 v{d+3}, 0
  v_cmp_eq_u32 vcc, 0, v17
  v_cndmask_b32 v{d}, 0, v{d}, vcc
  v_cndmask_b32 v{d+1}, 0, v{d+1}, vcc""")
    for tb in range(2):
        k(f"  v_mfma_f32_32x32x16_bf16 v[{A2[tb]}:{A2[tb]+15}], v[{FW[0][0]}:{FW[0][0]+3}], v[{FX[0][tb]}:{FX[0][tb]+3}], v[{A2[tb]}:{A2[tb]+15}]")
    kv_q_store(k, A2)
    k("  s_waitcnt vmcnt(0)")
    q_flag(k)
    red_flag(k, 1); kb.stamp(k, 38)
    k("  s_barrier")
def epi_kv(k):
    if 'delayK' in EXP: k("  s_sleep 39")
    decode_b(k)
    WA = WA_KV; KB_ = 80
    k(f"""
  s_lshl_b32 s45, s43, 6
  v_add_u32 v32, s45, v16
  s_lshl_b32 s45, s44, 1
  v_add_u32 v33, s45, v17
  v_mul_u32_u24 v34, {PHI_P}, v32
  v_mul_u32_u24 v35, 80, v33
  v_add_u32 v34, v34, v35
  v_add_u32 v34, {PHI}, v34
  v_mul_u32_u24 v35, {VV_P}, v32
  v_mul_u32_u24 v33, 48, v33
  v_add_u32 v35, v35, v33
  v_add_u32 v35, {VV}, v35""")
    for tb in range(2):
        a = ACC + tb*64
        for i in range(10): k(f"  v_cvt_pk_bf16_f32 v{KB_+12*tb+i}, v{a+2*i}, v{a+2*i+1}")
        k(f"  v_mov_b32 v{KB_+12*tb+10}, 0\n  v_mov_b32 v{KB_+12*tb+11}, 0")
    if not TP: kv_q_store(k, [ACC + 40, ACC + 64 + 40])
    k("  s_waitcnt lgkmcnt(0)")
    B1 = [112, 18]
    for st in range(3):
        for tb in range(2):
            for beta in range(2):
                d = (ACC + tb*64 + 40) if beta == 0 else B1[tb]
                c = "0" if st == 0 else f"v[{d}:{d+15}]"
                w = WA + (beta*3 + st)*4
                k(f"  v_mfma_f32_32x32x16_bf16 v[{d}:{d+15}], v[{w}:{w+3}], v[{KB_+12*tb+4*st}:{KB_+12*tb+4*st+3}], {c}")
    VB = 44
    for tb in range(2):
        a = ACC + tb*64; s_ = 36 + 4*tb
        k(f"  v_mov_b32 v4, v{s_+1}\n  v_mov_b32 v5, v{s_+1}")
        for i in range(10): k(f"  v_pk_mul_f32 v[{a+20+2*i}:{a+21+2*i}], v[{a+20+2*i}:{a+21+2*i}], v[4:5]")
        for i in range(10): k(f"  v_cvt_pk_bf16_f32 v{VB+i}, v{a+20+2*i}, v{a+21+2*i}")
        k(f"  v_mov_b32 v{VB+10}, 0x3f80\n  v_mov_b32 v{VB+11}, 0")
        for c in range(3): k(f"  ds_write_b128 v35, v[{VB+4*c}:{VB+4*c+3}] offset:{tb*32*VV_P + 16*c}")
    for tb in range(2):
        a = ACC + tb*64; s_ = 36 + 4*tb
        for i in range(4): k(f"  v_mov_b32 v{a+56+i}, v{B1[tb]+i}")
        PH = 80 + 0
        softmax_pair(k, [a + 40 + i for i in range(20)], s_ + 1, a, PH, T=44)
        for c in range(5): k(f"  ds_write_b128 v34, v[{PH+4*c}:{PH+4*c+3}] offset:{tb*32*PHI_P + 16*c}")
        if tb == 0 and not TP:
            k("  s_waitcnt vmcnt(0)"); q_flag(k)
    k("  s_waitcnt lgkmcnt(0)\n  s_barrier")
    kb.stamp(k, 5)
    k(f"""
  v_lshrrev_b32 v18, 4, v1
  v_lshrrev_b32 v19, 2, v1
  v_and_b32 v19, 3, v19
  v_and_b32 v20, 3, v1
  v_lshrrev_b32 v21, 1, v18
  v_lshl_add_u32 v21, v21, 3, v19
  v_and_b32 v22, 1, v18
  v_lshlrev_b32 v22, 2, v22
  v_add_u32 v22, v22, v20
  v_mul_u32_u24 v23, {PHI_P}, v21
  s_mul_i32 s45, s39, 80
  s_add_u32 s45, s45, {PHI}
  v_add_u32 v23, s45, v23
  v_lshl_add_u32 v24, v22, 3, v23
  v_and_b32 v25, 1, v22
  v_lshl_add_u32 v25, v25, 3, v23
  v_add_u32 v25, 64, v25
  v_mul_u32_u24 v26, {VV_P}, v21
  s_mul_i32 s45, s39, 48
  s_add_u32 s45, s45, {VV}
  v_add_u32 v26, s45, v26
  v_min_u32 v27, 5, v22
  v_lshl_add_u32 v26, v27, 3, v26""")
    KA = 48; FA = 128
    def rd(st):
        base = FA + st*12
        for t in range(2):
            tok = 16*st + 4*t
            k(f"  ds_read_b64_tr_b16 v[{base+2*t}:{base+2*t+1}], v24 offset:{tok*PHI_P}")
            k(f"  ds_read_b64_tr_b16 v[{base+4+2*t}:{base+5+2*t}], v25 offset:{tok*PHI_P}")
            k(f"  ds_read_b64_tr_b16 v[{base+8+2*t}:{base+9+2*t}], v26 offset:{tok*VV_P}")
    rd(0); rd(1)
    k(f"""
  v_lshlrev_b32 v28, 2, v16
  v_mul_u32_u24 v29, {4*96}, v17
  v_add_u32 v28, v28, v29
  s_mul_i32 s46, s39, 3840
  s_add_u32 s46, s46, {KPS}
  v_add_u32 v28, s46, v28
  v_lshlrev_b32 v30, 4, v1
  v_add_u32 v31, s46, v30
  s_lshl_b32 s45, s38, 4
  s_add_u32 s45, s45, s36                  ; j*16 + i
  s_mul_i32 s45, s45, 160
  s_mul_i32 s46, s39, 40
  s_add_u32 s45, s45, s46
  s_mul_i32 s45, s45, 96
  s_add_u32 s45, s45, {L.WS_KP}""")
    for st in range(8):
        k(f"  s_waitcnt lgkmcnt({6 if st < 7 else 0})")
        base = FA + st*12
        for beta in range(2):
            c = "0" if st == 0 else f"v[{KA+16*beta}:{KA+16*beta+15}]"
            k(f"  v_mfma_f32_32x32x16_bf16 v[{KA+16*beta}:{KA+16*beta+15}], v[{base+4*beta}:{base+4*beta+3}], v[{base+8}:{base+11}], {c}")
        if st + 2 < 8: rd(st + 2)
    k("  v_cmp_gt_u32 vcc, 24, v16\n  s_and_saveexec_b64 s[50:51], vcc")
    for jp in range(4):
        for i in range(4):
            k(f"  ds_write_b32 v28, v{KA+4*jp+i} offset:{(8*jp+i)*96}")
    for i in range(4):
        k(f"  ds_write_b32 v28, v{KA+16+i} offset:{(32+i)*96}")
    k("  s_mov_b64 exec, s[50:51]\n  s_waitcnt lgkmcnt(0)")
    for r in range(4): k(f"  ds_read_b128 v[{80+4*r}:{83+4*r}], v31 offset:{r*1024}")
    k("  v_mov_b32 v29, 0x7fff0000\n  v_cmp_gt_u32 vcc, 48, v1\n  v_cndmask_b32 v29, v29, v30, vcc")
    for r in range(4):
        k(f"  s_waitcnt lgkmcnt({3-r})")
        k(f"  buffer_store_dwordx4 v[{80+4*r}:{83+4*r}], v{30 if r < 3 else 29}, {R(R_WS)}, s45 offen offset:{r*1024} sc1")
    kb.stamp(k, 8)
    if TP: kv_pass2(k)
    else: k("  s_barrier")

def softmax_1(k, P, vr1, E, T=44):
    k(f"  v_max3_f32 v{T+0}, v{P[0]}, v{P[1]}, v{P[2]}\n  v_min3_f32 v{T+1}, v{P[0]}, v{P[1]}, v{P[2]}")
    k(f"  v_max3_f32 v{T+2}, v{P[3]}, v{P[4]}, v{P[5]}\n  v_min3_f32 v{T+3}, v{P[3]}, v{P[4]}, v{P[5]}")
    for i in range(6, 18, 4):
        k(f"  v_max3_f32 v{T+0}, v{T+0}, v{P[i]}, v{P[i+1]}\n  v_min3_f32 v{T+1}, v{T+1}, v{P[i]}, v{P[i+1]}")
        k(f"  v_max3_f32 v{T+2}, v{T+2}, v{P[i+2]}, v{P[i+3]}\n  v_min3_f32 v{T+3}, v{T+3}, v{P[i+2]}, v{P[i+3]}")
    k(f"  v_max3_f32 v{T+0}, v{T+0}, v{P[18]}, v{P[19]}\n  v_min3_f32 v{T+1}, v{T+1}, v{P[18]}, v{P[19]}")
    k(f"  v_max_f32 v{T+0}, v{T+0}, v{T+2}\n  v_min_f32 v{T+1}, v{T+1}, v{T+3}")
    k(f"""
  v_mul_f32 v{T+2}, {fl(LOG2E)}, v{vr1}
  v_mov_b32 v{T+3}, v{T+2}
  v_mul_f32 v2, v{T+0}, v{T+2}
  v_mul_f32 v0, v{T+1}, v{T+2}
  v_sub_f32 v{T+0}, 0, v2
  v_sub_f32 v{T+1}, 0, v2""")
    for i in range(10):
        k(f"  v_pk_fma_f32 v[{E+2*i}:{E+2*i+1}], v[{P[2*i]}:{P[2*i]+1}], v[{T+2}:{T+3}], v[{T}:{T+1}]")
    k(f"  v_mov_b32 v{T+0}, v0\n  v_mov_b32 v{T+1}, v0")
    for i in range(10):
        k(f"  v_pk_fma_f32 v[{E+20+2*i}:{E+21+2*i}], v[{P[2*i]}:{P[2*i]+1}], v[{T+2}:{T+3}], v[{T}:{T+1}] neg_lo:[1,0,0] neg_hi:[1,0,0]")
    for i in range(20): k(f"  v_exp_f32 v{E+i}, v{E+i}")
def softmax_2(k, E, T=44):
    for i in range(20, 40): k(f"  v_exp_f32 v{E+i}, v{E+i}")
    for h_ in range(2):
        b0 = E + 20*h_; d = T + 2*h_
        k(f"  v_pk_add_f32 v[{d}:{d+1}], v[{b0}:{b0+1}], v[{b0+2}:{b0+3}]")
    for i in range(2, 10):
        for h_ in range(2):
            b0 = E + 20*h_; d = T + 2*h_
            k(f"  v_pk_add_f32 v[{d}:{d+1}], v[{d}:{d+1}], v[{b0+2*i}:{b0+2*i+1}]")
    k(f"  v_add_f32 v{T+0}, v{T+0}, v{T+1}\n  v_add_f32 v{T+2}, v{T+2}, v{T+3}\n  v_rcp_f32 v{T+0}, v{T+0}\n  v_rcp_f32 v{T+2}, v{T+2}")
    k(f"  v_mov_b32 v{T+1}, v{T+0}\n  v_mov_b32 v{T+3}, v{T+2}")
def softmax_3(k, E, PH, T=44):
    for i in range(10):
        for h_ in range(2):
            b0 = E + 20*h_; d = T + 2*h_
            k(f"  v_pk_mul_f32 v[{b0+2*i}:{b0+2*i+1}], v[{b0+2*i}:{b0+2*i+1}], v[{d}:{d+1}]")
    for h_ in range(2):
        for i in range(10):
            k(f"  v_cvt_pk_bf16_f32 v{PH+10*h_+i}, v{E+20*h_+2*i}, v{E+20*h_+2*i+1}")
def softmax_pair(k, P, vr1, E, PH, T=44):
    softmax_1(k, P, vr1, E, T); softmax_2(k, E, T); softmax_3(k, E, PH, T)

VS = [4, 5, 6, 7]; VA = [8, 9, 10, 11]
FR = [64 + 24*s for s in range(4)]
ACCB = 32
XT = 2*SLOT + 10240
BT = 161280

def decode_b(k):
    k(f"""
  s_lshr_b32 s40, s2, 3
  s_and_b32 s{S_I64}, s2, 3
  s_lshl_b32 s{S_I64}, s{S_I64}, 3
  s_lshr_b32 s41, s40, 2
  s_add_u32 s{S_I64}, s{S_I64}, s41
  s_lshr_b32 s{S_JB}, s2, 2
  s_and_b32 s{S_JB}, s{S_JB}, 1
  s_lshl_b32 s{S_JB}, s{S_JB}, 2
  s_and_b32 s41, s40, 3
  s_add_u32 s{S_JB}, s{S_JB}, s41
  s_lshl_b32 s{S_T16}, s{S_I64}, 2
  s_add_u32 s{S_T16}, s{S_T16}, s39""")

def breads(st4, ks):
    base = FR[ks]
    r = [f"  ds_read_b128 v[{base}:{base+3}], v{VA[st4]} offset:{ks*1024}"]
    for cb in range(5):
        r.append(f"  ds_read_b128 v[{base+4+4*cb}:{base+7+4*cb}], v{VS[st4]} offset:{(ks*5+cb)*1024}")
    return r
def bmfma(ks):
    base = FR[ks]
    return [f"  v_mfma_f32_16x16x32_bf16 v[{ACCB+4*cb}:{ACCB+4*cb+3}], v[{base+4+4*cb}:{base+7+4*cb}], v[{base}:{base+3}], v[{ACCB+4*cb}:{ACCB+4*cb+3}]" for cb in range(5)]
def bstage(k, j, next_nks=4, pre_barrier=None, post_barrier=None, extra=None):
    st4 = j % 4
    extra = list(extra or [])
    per = (len(extra) + 19)//20
    for ks in range(4):
        mf = bmfma(ks)
        if ks < 2:
            rd = [(l, ("r", j, ks + 2)) for l in breads(st4, ks + 2)]
            k.wait_ds(("r", j, ks))
        else:
            if ks == 2:
                k.wait_ds(("r", j, 3))
                if pre_barrier: k(pre_barrier)
                k("  s_barrier")
                if post_barrier: post_barrier(k)
            rd = [(l, ("r", j + 1, ks - 2)) for l in breads((st4 + 1) % 4, ks - 2)] if ks - 2 < next_nks else []
        for i, m in enumerate(mf):
            k(m)
            if rd: k.ds(*rd.pop(0))
            for _ in range(per):
                if extra: kb.replay(k, extra.pop(0))
        while rd: k.ds(*rd.pop(0))
    while extra: kb.replay(k, extra.pop(0))

def compute_b(k, role):
    P = SCHED[role]; P1_J = P['P1_J']; RED_J = P['RED_J']; P2_J = P['KVJ'] + 1; OFLAG_J = min(11, P2_J + P['OFLAG_D'])
    k(f"""
  v_and_b32 v16, 15, v1
  v_lshrrev_b32 v17, 4, v1
  s_lshl_b32 s45, s{S_T16}, 4
  v_add_u32 v19, s45, v16
  v_mul_u32_u24 v24, 1280, v19
  s_mul_i32 s45, s{S_JB}, 160
  v_lshl_add_u32 v25, v17, 3, s45
  v_add_u32 v24, v24, v25
  v_lshlrev_b32 v22, 4, v1
  s_lshl_b32 s44, s39, 12
  s_add_u32 s44, s44, 20480""")
    for s in range(4):
        k(f"  v_add_u32 v{VS[s]}, {s*SLOT}, v22\n  v_add_u32 v{VA[s]}, s44, v{VS[s]}")
    for i in range(20): k(f"  v_mov_b32 v{ACCB+i}, 0")
    op_addr(k)
    if role == "kv" and TP: pass
    elif role == "kv":
        k("  s_waitcnt vmcnt(0)"); pf_flag(k)
        kb.stamp(k, 36)
        red_poll(k); red_issue(k); red_sum(k)
        if 'kflate' not in EXP:
            red_flag(k); kb.stamp(k, 38)
    k("  s_barrier")
    kb.stamp(k, 9)
    kb.stamp(k, 44, rt=True)
    k.lg = []
    for ks in range(2):
        for l in breads(0, ks): k.ds(l, ("r", 0, ks))
    def flagH2(k):
        k(f"  s_cmp_eq_u32 s37, 0\n  s_cbranch_scc1 {k.L('fh2_b')}")
        store_flag(k, 39, 0, f"  s_lshl_b32 s41, s36, 1\n  s_lshr_b32 s42, s38, 2\n  s_add_u32 s41, s41, s42\n  s_lshl_b32 s41, s41, 7\n  s_and_b32 s42, s38, 3\n  s_add_u32 s41, s41, s42\n  s_add_u32 s41, s41, {FL_H2}", "fh2")
        k(f"{k.L('fh2_b')}:")
    def flagO(k):
        k(f"""
  s_waitcnt vmcnt(0)
  s_lshl_b32 s41, s{S_T16}, 1
  s_lshr_b32 s42, s{S_JB}, 2
  s_add_u32 s41, s41, s42
  s_lshl_b32 s41, s41, 7
  s_and_b32 s42, s{S_JB}, 3
  s_add_u32 s41, s41, s42
  s_add_u32 s41, s41, {FL_O}
  v_mov_b32 v2, s41
  v_mov_b32 v0, 1
  s_mov_b64 exec, 1
  buffer_store_byte v0, v2, {R(R_WS)}, 0 offen sc1
  s_mov_b64 exec, -1""")
    for j in range(17):
        kw = {}
        if j == 0: kw = dict(post_barrier=op_q_issue)
        if j == 1:
            kw = dict(pre_barrier=f"  s_cmp_eq_u32 s37, 0\n  s_cbranch_scc1 {k.L('h2w')}\n  s_waitcnt vmcnt(6)\n{k.L('h2w')}:", post_barrier=flagH2)
        bstage(k, j, **kw)
        if j == P1_J:
            kb.stamp(k, 11); pause1(k); kb.stamp(k, 12)
        if j == P2_J:
            kb.stamp(k, 13); pause2(k); kb.stamp(k, 14)
        if role == "kv" and j == 0 and 'kflate' in EXP and not TP:
            red_flag(k); kb.stamp(k, 38)
        if j == OFLAG_J:
            flagO(k); kb.stamp(k, 39)
    bstage(k, 17, next_nks=2)
    k("  s_waitcnt lgkmcnt(0)")
    for ks in range(2):
        for m in bmfma(ks): k(m)
    kb.stamp(k, 10)
    k(f"""
  s_lshl_b32 s44, s39, 4
  v_add_u32 v52, s44, v16
  v_mul_u32_u24 v52, 160, v52
  v_lshl_add_u32 v52, v17, 3, v52
  v_add_u32 v52, {XT}, v52
  v_lshlrev_b32 v53, 3, v17
  v_add_u32 v53, {BT}, v53""")
    for cb in range(5):
        k(f"  ds_read_b64 v[{64+2*cb}:{65+2*cb}], v52 offset:{32*cb}\n  ds_read_b64 v[{76+2*cb}:{77+2*cb}], v53 offset:{32*cb}")
    for i in range(3):
        k(f"""
  v_add_u32 v{88+i}, {64*i}, v1
  v_mul_u32_u24 v91, 6554, v{88+i}
  v_lshrrev_b32 v91, 16, v91               ; row
  v_mul_u32_u24 v92, 10, v91
  v_sub_u32 v92, v{88+i}, v92              ; c
  s_lshl_b32 s44, s39, 4
  v_add_u32 v93, s44, v91
  v_mul_u32_u24 v{94+i}, 160, v93
  v_lshl_add_u32 v{94+i}, v92, 4, v{94+i}
  v_add_u32 v{94+i}, {XT}, v{94+i}
  s_lshl_b32 s44, s{S_T16}, 4
  v_add_u32 v91, s44, v91
  v_mul_u32_u24 v91, 1280, v91
  v_lshl_add_u32 v91, v92, 4, v91
  s_mul_i32 s44, s{S_JB}, 160
  v_add_u32 v{97+i}, s44, v91""")
    k(f"  v_mov_b32 v91, 0x7fff0000\n  v_cmp_gt_u32 vcc, 160, v90\n  v_cndmask_b32 v99, v91, v99, vcc\n  v_mov_b32 v91, {XT}\n  v_cndmask_b32 v96, v91, v96, vcc")
    k("  s_waitcnt lgkmcnt(0)")
    for cb in range(5):
        a = ACCB + 4*cb; x = 64 + 2*cb; b = 76 + 2*cb
        k(f"""
  v_lshlrev_b32 v52+0, 16, v{x}
  v_and_b32 v55, 0xffff0000, v{x}
  v_lshlrev_b32 v56, 16, v{x+1}
  v_and_b32 v57, 0xffff0000, v{x+1}
  v_lshlrev_b32 v58, 16, v{b}
  v_and_b32 v59, 0xffff0000, v{b}
  v_lshlrev_b32 v60, 16, v{b+1}
  v_and_b32 v61, 0xffff0000, v{b+1}
  v_pk_add_f32 v[54:55], v[54:55], v[58:59]
  v_pk_add_f32 v[56:57], v[56:57], v[60:61]
  v_pk_add_f32 v[{a}:{a+1}], v[{a}:{a+1}], v[54:55]
  v_pk_add_f32 v[{a+2}:{a+3}], v[{a+2}:{a+3}], v[56:57]
  v_cvt_pk_bf16_f32 v62, v{a}, v{a+1}
  v_cvt_pk_bf16_f32 v63, v{a+2}, v{a+3}
  ds_write_b64 v52, v[62:63] offset:{32*cb}""".replace("v52+0", "v54"))
    k("  s_waitcnt lgkmcnt(0)")
    for i in range(3): k(f"  ds_read_b128 v[{100+4*i}:{103+4*i}], v{94+i}")
    for i in range(3):
        k(f"  s_waitcnt lgkmcnt({2-i})\n  buffer_store_dwordx4 v[{100+4*i}:{103+4*i}], v{97+i}, {R(R_OUT)}, 0 offen {'nt' if 'outnt' in EXP else 'sc1' if 'outsc1' in EXP else ''}")
    if kb.PROF:
        k("  s_waitcnt vmcnt(0)")
        kb.stamp(k, 6, rt=True); kb.dump(k, S_WS)
    k("  s_endpgm")

def wfrag(i): return 112 + 4*i
OQ = 172; OP = 184; OPH = 160; OB = 244
def op_addr(k):
    k(f"""
  v_lshrrev_b32 v26, 2, v1
  v_and_b32 v26, 3, v26
  v_and_b32 v27, 3, v1
  v_lshlrev_b32 v28, 10, v17
  v_mul_u32_u24 v29, 40, v26
  v_add_u32 v28, v28, v29
  v_add_u32 v28, {WPB}, v28
  v_mov_b32 v29, {ZB}
  v_cmp_eq_u32 vcc, v27, v17
  v_cndmask_b32 v28, v29, v28, vcc
  v_mul_u32_u24 v30, {40*KVP}, v17
  v_mul_u32_u24 v31, {KVP}, v26
  v_add_u32 v30, v30, v31
  v_add_u32 v30, {KVB}, v30
  v_cndmask_b32 v30, v29, v30, vcc""")
QR1 = 21
def q_poll_issue(k):
    k(f"""
  s_lshr_b32 s41, s{S_I64}, 1
  s_lshl_b32 s41, s41, 7
  s_and_b32 s42, s{S_I64}, 1
  s_lshl_b32 s42, s42, 4
  s_add_u32 s41, s41, s42
  v_lshlrev_b32 v77, 2, v1
  v_min_u32 v77, 16, v77
  v_add_u32 v77, s41, v77
  v_add_u32 v78, {FL_Q}, v77
  s_lshr_b32 s41, s{S_I64}, 1
  s_lshl_b32 s41, s41, 7
  s_add_u32 s41, s41, {FL_H1 + 4}
  v_mov_b32 v77, s41
  v_cmp_gt_u32 vcc, 4, v1
  v_cndmask_b32 v77, v77, v78, vcc
  buffer_load_dword v76, v77, {R(R_WS)}, 0 offen sc1""")
def q_poll_check(k, lbl):
    k(f"""
  v_mov_b32 v78, 0x01000000
  v_mov_b32 v79, 0x01010101
  v_cmp_gt_u32 vcc, 4, v1
  v_cndmask_b32 v78, v78, v79, vcc
{k.L(lbl + '_t')}:
  v_and_b32 v79, v76, v78
  v_cmp_ne_u32 vcc, v79, v78
  s_cmp_eq_u64 vcc, 0
  s_cbranch_scc1 {k.L(lbl + '_ok')}
  s_sleep 2
  buffer_load_dword v76, v77, {R(R_WS)}, 0 offen sc1
  s_waitcnt vmcnt(0)
  s_branch {k.L(lbl + '_t')}
{k.L(lbl + '_ok')}:""")
def op_q_issue(k):
    k(f"""
  v_and_b32 v12, 15, v1                    ; n'
  v_lshrrev_b32 v13, 4, v1                 ; g
  v_mul_u32_u24 v14, 640, v13
  v_lshl_add_u32 v14, v12, 3, v14
  s_mul_i32 s58, s{S_T16}, 160
  s_mul_i32 s59, s{S_JB}, 20
  s_add_u32 s58, s58, s59
  s_lshl_b32 s58, s58, 7
  s_add_u32 s58, s58, {L.WS_Q}
  s_lshl_b32 s59, s{S_T16}, 4
  v_add_u32 v15, s59, v12
  v_lshlrev_b32 v15, 4, v15""")
    for g in range(5):
        k(f"  buffer_load_dwordx2 v[{OQ+2*g}:{OQ+2*g+1}], v14, {R(R_WS)}, s58 offen offset:{128*g} sc1")
    k(f"  buffer_load_dword v{QR1}, v15, {R(R_WS)}, 0 offen offset:{L.WS_STATS + 4} sc1")
def red_cond(k, lbl):
    k(f"  s_lshl_b32 s41, s37, 2\n  s_or_b32 s41, s41, s39\n  s_cmp_eq_u32 s41, 0\n  s_cbranch_scc0 {k.L(lbl)}")
RT0 = 34 if int(os.environ.get('TP', 0)) else 18
def red_poll(k):
    red_cond(k, "rp_x")
    k(f"""
  s_lshl_b32 s41, s38, 11
  s_add_u32 s41, s41, {FL_PF}
  v_min_u32 v15, 15, v1
  v_lshlrev_b32 v15, 7, v15
  v_add_u32 v15, s41, v15
  buffer_load_dword v14, v15, {R(R_WS)}, 0 offen sc1
{k.L('rp_x')}:""")
RDR = [160 + 4*p for p in range(16)]
def red_issue(k):
    red_cond(k, "ri_x")
    k(f"""
  s_waitcnt vmcnt(0)
{k.L('ri_t')}:
  v_cmp_ne_u32 vcc, 0x01010101, v14
  s_cmp_eq_u64 vcc, 0
  s_cbranch_scc1 {k.L('ri_ok')}
{bound(k, 'ri')}
  s_sleep 1
  buffer_load_dword v14, v15, {R(R_WS)}, 0 offen sc1
  s_waitcnt vmcnt(0)
  s_branch {k.L('ri_t')}
{k.L('ri_ok')}:""")
    kb.stamp(k, 37)
    k(f"""
  v_lshlrev_b32 v{RT0}, 4, v1
  v_mov_b32 v{RT0+1}, 0x7fff0000
  v_cmp_gt_u32 vcc, 60, v1
  v_cndmask_b32 v{RT0}, v{RT0+1}, v{RT0}, vcc
  s_lshl_b32 s41, s38, 4
  s_mul_i32 s41, s41, 15360
  s_mul_i32 s42, s36, 960
  s_add_u32 s41, s41, s42
  s_add_u32 s41, s41, {L.WS_KP}""")
    for p in range(16):
        k(f"  buffer_load_dwordx4 v[{RDR[p]}:{RDR[p]+3}], v{RT0}, {R(R_WS)}, s41 offen sc1\n  s_add_u32 s41, s41, 15360")
    k(f"{k.L('ri_x')}:")
def red_sum(k):
    red_cond(k, "rs_x")
    k("  s_waitcnt vmcnt(0)")
    step = 1
    while step < 16:
        for p in range(0, 16, 2*step):
            a, b = RDR[p], RDR[p + step]
            k(f"  v_pk_add_f32 v[{a}:{a+1}], v[{a}:{a+1}], v[{b}:{b+1}]\n  v_pk_add_f32 v[{a+2}:{a+3}], v[{a+2}:{a+3}], v[{b+2}:{b+3}]")
        step *= 2
    a = RDR[0]
    k(f"""
  v_cvt_pk_bf16_f32 v{a}, v{a}, v{a+1}
  v_cvt_pk_bf16_f32 v{a+1}, v{a+2}, v{a+3}
  v_lshlrev_b32 v{RT0}, 3, v1
  v_mov_b32 v{RT0+1}, 0x7fff0000
  v_cmp_gt_u32 vcc, 60, v1
  v_cndmask_b32 v{RT0}, v{RT0+1}, v{RT0}, vcc
  s_mul_i32 s41, s38, 7680
  s_mul_i32 s42, s36, 480
  s_add_u32 s41, s41, s42
  s_add_u32 s41, s41, {L.WS_KV}
  buffer_store_dwordx2 v[{a}:{a+1}], v{RT0}, {R(R_WS)}, s41 offen sc1
{k.L('rs_x')}:""")
def red_flag(k, n=None):
    red_cond(k, "rf_x")
    k(f"""
  s_waitcnt vmcnt({n if n is not None else 6 if 'kflate' in EXP else 0})
  s_lshl_b32 s41, s38, 2
  s_lshr_b32 s42, s36, 2
  s_add_u32 s41, s41, s42
  s_lshl_b32 s41, s41, 7
  s_and_b32 s42, s36, 3
  s_add_u32 s41, s41, s42
  s_add_u32 s41, s41, {FL_KF}
  v_mov_b32 v2, s41
  v_mov_b32 v0, 1
  s_mov_b64 exec, 1
  buffer_store_byte v0, v2, {R(R_WS)}, 0 offen sc1
  s_mov_b64 exec, -1
{k.L('rf_x')}:""")
def pause1(k):
    for b in range(5):
        for s_ in range(3):
            for t in range(2):
                reg = wfrag(b*3 + s_) + 2*t; d0 = 8*s_ + 4*t
                if d0 < 20: k.ds(f"  ds_read_b64_tr_b16 v[{reg}:{reg+1}], v28 offset:{d0*40 + 8*b}", "xw")
                else: k(f"  v_mov_b32 v{reg}, 0\n  v_mov_b32 v{reg+1}, 0")
    k(f"  v_mov_b32 v{OQ+10}, 0\n  v_mov_b32 v{OQ+11}, 0")
    k("  s_waitcnt vmcnt(0)")
    k.wait_ds("xw")
    for s_ in range(3):
        for b in range(5):
            c = "0" if s_ == 0 else f"v[{OP+4*b}:{OP+4*b+3}]"
            w = wfrag(b*3 + s_)
            k(f"  v_mfma_f32_16x16x32_bf16 v[{OP+4*b}:{OP+4*b+3}], v[{w}:{w+3}], v[{OQ+4*s_}:{OQ+4*s_+3}], {c}")
    softmax_pair(k, [OP + i for i in range(20)], QR1, 112, OPH, T=52)
def pause2(k):
    FA_, FB_ = 180, 112
    rounds = ([0, 1], [2, 3], [4, 5])
    OOx = 220
    def rd(ri):
        base = FA_ if ri % 2 == 0 else FB_
        for s_ in range(5):
            for bi, beta in enumerate(rounds[ri]):
                for t in range(2):
                    reg = base + (bi*5 + s_)*4 + 2*t
                    k.ds(f"  ds_read_b64_tr_b16 v[{reg}:{reg+1}], v30 offset:{(8*s_ + 4*t)*KVP + 8*beta}", ("xk", ri, s_))
    def mm(ri, nxt):
        base = FA_ if ri % 2 == 0 else FB_
        for s_ in range(5):
            k.wait_ds(("xk", ri, s_))
            for bi, beta in enumerate(rounds[ri]):
                c = "0" if s_ == 0 else f"v[{OOx+4*beta}:{OOx+4*beta+3}]"
                w = base + (bi*5 + s_)*4
                k(f"  v_mfma_f32_16x16x32_bf16 v[{OOx+4*beta}:{OOx+4*beta+3}], v[{w}:{w+3}], v[{OPH+4*s_}:{OPH+4*s_+3}], {c}")
            for _ in range(4):
                if nxt: k.ds(*nxt.pop(0))
    def rdl(ri):
        r = kb.Rec(k); out = []
        base = FA_ if ri % 2 == 0 else FB_
        for s_ in range(5):
            for bi, beta in enumerate(rounds[ri]):
                for t in range(2):
                    reg = base + (bi*5 + s_)*4 + 2*t
                    out.append((f"  ds_read_b64_tr_b16 v[{reg}:{reg+1}], v30 offset:{(8*s_ + 4*t)*KVP + 8*beta}", ("xk", ri, s_)))
        return out
    rd(0)
    mm(0, rdl(1)); mm(1, rdl(2)); mm(2, [])
    k(f"  v_add_f32 v52, {fl(1e-6)}, v{OOx+20}\n  v_rcp_f32 v52, v52\n  s_nop 0\n  v_mov_b32 v53, v52")
    for i in range(10): k(f"  v_pk_mul_f32 v[{OOx+2*i}:{OOx+2*i+1}], v[{OOx+2*i}:{OOx+2*i+1}], v[52:53]")
    for i in range(10): k(f"  v_cvt_pk_bf16_f32 v{OB+i}, v{OOx+2*i}, v{OOx+2*i+1}")
    k(f"""
  s_mul_i32 s58, s{S_T16}, 74
  s_lshr_b32 s59, s{S_JB}, 1
  s_mul_i32 s59, s59, 5
  s_add_u32 s58, s58, s59
  s_add_u32 s58, s58, 54
  s_lshl_b32 s58, s58, 10
  s_add_u32 s58, s58, {L.WS_HO}
  s_bitcmp1_b32 s{S_JB}, 0
  s_cbranch_scc1 {k.L('o_odd')}
  buffer_store_dwordx4 v[{OB}:{OB+3}], v22, {R(R_WS)}, s58 offen sc1
  buffer_store_dwordx4 v[{OB+4}:{OB+7}], v22, {R(R_WS)}, s58 offen offset:1024 sc1
  buffer_store_dwordx2 v[{OB+8}:{OB+9}], v22, {R(R_WS)}, s58 offen offset:2048 sc1
  s_branch {k.L('o_done')}
{k.L('o_odd')}:
  buffer_store_dwordx2 v[{OB}:{OB+1}], v22, {R(R_WS)}, s58 offen offset:2056 sc1
  buffer_store_dwordx4 v[{OB+2}:{OB+5}], v22, {R(R_WS)}, s58 offen offset:3072 sc1
  s_add_u32 s58, s58, 4096
  buffer_store_dwordx4 v[{OB+6}:{OB+9}], v22, {R(R_WS)}, s58 offen sc1
{k.L('o_done')}:""")
def kv_dma(k):
    for r in range(2):
        k.begin()
        k(f"""
  s_lshl_b32 s58, s39, 1
  s_add_u32 s58, s58, {r}
  s_lshl_b32 s59, s58, 10
  v_add_u32 v60, s59, v4
  v_mov_b32 v61, 0x7fff0000
  v_cmp_gt_u32 vcc, 7680, v60
  v_cndmask_b32 v60, v61, v60, vcc
  s_add_u32 m0, s59, {KVB}
  s_mul_i32 s58, s{S_JB}, 7680
  s_add_u32 s58, s58, {L.WS_KV}""")
        k.vmem(f"  buffer_load_dwordx4 v60, {R(R_WS)}, s58 offen sc1 lds", "kvd")
        k.end()

def loader_kv2(k):
    F_INV = (0x9c1b39b4, 0xd8e1e472)
    k(f"""
  s_mov_b32 s20, s{R_WQ}
  s_mov_b32 s21, s{R_WQ+1}
  s_mov_b32 s22, s{R_WQ+2}
  v_lshrrev_b32 v13, 3, v1
  v_lshrrev_b32 v14, 1, v13
  v_and_b32 v14, 1, v14
  v_lshlrev_b32 v14, 2, v14
  v_and_b32 v15, 7, v1
  v_xor_b32 v15, v15, v14
  v_add_u32 v14, 8, v15                    ; (24 + p) & 15
  v_lshlrev_b32 v14, 1, v14
  v_mov_b32 v16, {hex(F_INV[1])}
  v_lshrrev_b32 v16, v14, v16
  v_and_b32 v16, 3, v16
  v_and_b32 v15, 4, v15
  v_or_b32 v15, v15, v16                   ; q chunk
  v_mul_u32_u24 v13, 3840, v13
  v_lshl_add_u32 v13, v15, 4, v13
  s_lshl_b32 s58, s38, 7
  v_add_u32 v{vDw}, s58, v13
  s_mul_i32 s100, s39, {16*3840}
  s_lshl_b32 s48, s39, 11""")
    def gW2(m):
        def mk(i):
            def f(k):
                k(f"  s_add_u32 m0, s48, {W2S[m % 5] + i*1024}\n  s_add_u32 s87, s100, {(64*m + 8*i)*3840}")
                k.vmem(f"  buffer_load_dwordx4 v{vDw}, {R(R_W)}, s87 offen lds", ("S2", m))
            return f
        return [mk(i) for i in range(2)]
    def gX2(m):
        def mk(i):
            def f(k):
                k(f"  s_add_u32 m0, s47, {X2S[m % 5] + i*1024}\n  s_add_u32 s87, s101, {m*128 + i*8*1280}")
                k.vmem(f"  buffer_load_dwordx4 v{vDx if i % 2 == 0 else vDx2}, {R(R_X)}, s87 offen lds", ("S2", m))
            return f
        return [mk(i) for i in range(4)]
    for f in gW2(0) + gX2(0) + gW2(1) + gX2(1) + gW2(2): f(k)
    k("  s_barrier")
    k.wait_vm(("S2", 0)) if False else None
    idx = [i for i, t in enumerate(k.vm) if t == ("S2", 0)][-1]
    k(f"  s_waitcnt vmcnt({len(k.vm) - 1 - idx})"); k.vm = k.vm[idx + 1:]
    k("  s_barrier")
    for f in gX2(2): f(k)
    plan = {0: [3], 1: [4, 5], 2: [6], 3: [7], 4: [8], 5: [9]}
    for m in range(10):
        if m + 1 <= 9: k.wait_vm(("S2", m + 1))
        k("  s_barrier")
        for q in plan.get(m, []):
            for f in gW2(q) + gX2(q): f(k)
    k("  s_barrier")

def loader_b_setup(k):
    decode_b(k)
    k(f"""
  v_lshlrev_b32 v4, 4, v1
  s_mul_i32 s44, s{S_JB}, {74*5*1024}
  s_mul_i32 s45, s39, {5*1024}
  s_add_u32 s44, s44, s45
  s_add_u32 s44, s44, {L.WS_W2}
  s_mul_i32 s46, s{S_T16}, {74*1024}
  s_add_u32 s46, s46, {L.WS_HO}""")
def gWP(lst):
    def mk(s_, cb):
        def f(k):
            k(f"  s_add_u32 s87, s44, {4*s_*5*1024 + cb*1024}")
            k.vmem(f"  buffer_load_dwordx4 v[{wpreg(s_, cb)}:{wpreg(s_, cb)+3}], v4, {R(R_WS)}, s87 offen sc1", ("WP", s_))
        return f
    return [mk(s_, cb) for (s_, cb) in lst]
NPF1 = int(os.environ.get('NPF1', 20))
WPL = [(s_, cb) for s_ in range(WP0, WP1 + 1) for cb in range(5)]
def loader_b(k, role):
    P = SCHED[role]; KVJ = P['KVJ']
    e1_done = False
    if TP and role == "kv":
        loader_kv2(k); role = "g"; e1_done = True
    if 'noprioB' not in EXP: k("  s_setprio 2")
    k(f"""
  s_mul_i32 s47, s39, {5*1024}
  s_lshl_b32 s48, s39, 12
  s_add_u32 s48, s48, 20480
  v_add_u32 v5, s47, v4""")
    def gDW(j):
        slot = (j % 4)*SLOT
        def mk(cb):
            def f(k):
                if j == 18:
                    k(f"""  s_add_u32 s87, s47, {slot + cb*1024}
  s_cmp_lt_u32 s39, 2
  s_cselect_b32 m0, s87, {ZB}
  s_cselect_b32 s26, {L.WS_END}, 0
  s_add_u32 s87, s44, {4*j*5*1024 + cb*1024}""")
                else:
                    k(f"  s_add_u32 m0, s47, {slot + cb*1024}\n  s_add_u32 s87, s44, {4*j*5*1024 + cb*1024}")
                k.vmem(f"  buffer_load_dwordx4 v4, {R(R_WS)}, s87 offen sc1 lds", ("D", j))
                if j == 18: k(f"  s_mov_b32 s26, {L.WS_END}")
            return f
        return [mk(cb) for cb in range(5)]
    def gDA(j):
        nks = 4 if j < 18 else 2
        slot = (j % 4)*SLOT
        def mk(ks):
            def f(k):
                k(f"  s_add_u32 m0, s48, {slot + ks*1024}\n  s_add_u32 s87, s46, {(4*j + ks)*1024}")
                k.vmem(f"  buffer_load_dwordx4 v4, {R(R_WS)}, s87 offen sc1 lds", ("D", j))
            return f
        return [mk(ks) for ks in range(nks)]
    def gWW(j):
        slot = (j % 4)*SLOT
        def mk(cb):
            def f(k):
                if cb == 0: k.wait_vm(("WP", j))
                k(f"  ds_write_b128 v5, v[{wpreg(j, cb)}:{wpreg(j, cb)+3}] offset:{cb*1024}" if slot == 0 else
                  f"  ds_write_b128 v{6 + (j % 4) - 1}, v[{wpreg(j, cb)}:{wpreg(j, cb)+3}] offset:{cb*1024}")
            return f
        return [mk(cb) for cb in range(5)]
    for q in (1, 2, 3): k(f"  v_add_u32 v{5+q}, {q*SLOT}, v5")
    gDW0 = gDW
    def gDW(j): return gWW(j) if WP0 <= j <= WP1 else gDW0(j)
    def DW(j):
        for f in gDW(j): f(k)
    def DA(j):
        for f in gDA(j): f(k)
    iB = f"  s_lshr_b32 s41, s{S_I64}, 1\n  s_lshl_b32 s41, s41, 8\n"
    if 'cpf3' in EXP:
        k(f"""
  s_cmp_eq_u32 s39, 3
  s_cbranch_scc0 {k.L('nopf3rd')}
  s_getpc_b64 s[58:59]
{k.L('pc3')}:
  s_sub_u32 s58, s58, {k.L('pc3')}-{k.name}
  s_subb_u32 s59, s59, 0
  s_lshr_b32 s41, s2, 3
  s_and_b32 s41, s41, 7
  s_lshl_b32 s41, s41, 13
  v_lshl_add_u32 v50, v1, 7, s41
  v_min_u32 v50, L_{k.name}_codeend-{k.name}-4, v50
  global_load_dword v51, v50, s[58:59]
{k.L('nopf3rd')}:""")
    DW(0); DW(1)
    if role == "g": DW(2); DW(3)
    rest = gWP(WPL[12:])
    for n, f in enumerate(rest[:NPF1]):
        f(k)
        if n % 4 == 3: k(f"  s_waitcnt vmcnt(6)")
    if not e1_done: k("  s_barrier")
    wphi_dma(k, f"  s_lshl_b32 s58, s{S_JB}, 2\n  s_add_u32 s58, s58, s39", WPB, False)
    k(f"""
  s_mov_b32 s{R_T+2}, 0
  s_and_b32 s58, s39, 1
  s_lshl_b32 s58, s58, 10
  s_add_u32 m0, s58, {ZB}""")
    k.vmem(f"  buffer_load_dwordx4 v40, {R(R_T)}, 0 offen lds", "side")
    def h1():
        poll_issue(k, 50, lines(50, iB + f"  s_add_u32 s41, s41, {FL_H1}", 2), "ph1", only0=False)
        poll_check(k, 50, "ph1", "ph1", only0=False, slp=2)
        DA(0); DA(1)
        if role == "g": DA(2); DA(3)
    if role == "g": h1()
    for n, f in enumerate(rest[NPF1:]):
        f(k)
        if n % 4 == 3: k(f"  s_waitcnt vmcnt(6)")
    k.wait_vm("side")
    k("  s_barrier")
    kb.stamp(k, 9)
    if role == "kv": h1()
    k.wait_vm(("D", 0))
    k("  s_barrier")
    kb.stamp(k, 10)
    poll_issue(k, 50, lines(50, f"  s_lshl_b32 s41, s{S_I64}, 9\n  s_add_u32 s41, s41, {FL_Q}", 4), "pq")
    if role == "kv": DA(2); DW(2)
    def res_dma(k):
        for r in range(3):
            k.begin()
            k(f"""
  s_add_u32 s58, s39, {4*r}
  s_lshl_b32 s59, s58, 6
  v_add_u32 v60, s59, v1
  v_mul_u32_u24 v61, 6554, v60
  v_lshrrev_b32 v61, 16, v61
  v_mul_u32_u24 v62, 10, v61
  v_sub_u32 v62, v60, v62
  s_lshl_b32 s59, s{S_I64}, 6
  v_add_u32 v61, s59, v61
  v_mul_u32_u24 v61, 1280, v61
  v_lshl_add_u32 v61, v62, 4, v61
  s_mul_i32 s59, s{S_JB}, 160
  v_add_u32 v61, s59, v61
  s_lshl_b32 s59, s58, 10
  s_add_u32 s59, s59, {XT}
  s_cmp_lt_u32 s58, 10
  s_cselect_b32 s59, s59, {ZB}
  s_cselect_b32 s58, 0, 0x7fff0000
  v_or_b32 v61, s58, v61
  s_mov_b32 m0, s59""")
            k.vmem(f"  buffer_load_dwordx4 v61, {R(R_X)}, 0 offen lds", ("D", 18))
            k.end()
        k.begin()
        k(f"""
  s_mul_i32 s58, s{S_JB}, 160
  s_add_u32 s{R_T}, s{S_B2}, s58
  s_addc_u32 s{R_T+1}, s{S_B2+1}, 0
  s_and_b32 s{R_T+1}, s{R_T+1}, 0xffff
  s_mov_b32 s{R_T+2}, 160
  s_mov_b32 s{R_T+3}, 0x20000
  s_mov_b32 m0, {BT}""")
        k.vmem(f"  buffer_load_dwordx4 v4, {R(R_T)}, 0 offen lds", ("D", 18))
        k.end()
    for j in range(NSTB - 1):
        if j == 12:
            poll_issue(k, 50, lines(50, f"  s_lshl_b32 s41, s{S_T16}, 8\n  s_add_u32 s41, s41, {FL_O}", 2), "po", only0=False)
            if 'nochain' not in EXP: poll_check(k, 50, "po", "po", only0=False, slp=1)
            kb.stamp(k, 63)
            for q in (13, 14, 15): DA(q)
            k.wait_vm(("D", 13)) if False else None
            idx = [i for i, t in enumerate(k.vm) if t == ("D", 13)][-1]
            k(f"  s_waitcnt vmcnt({len(k.vm) - 1 - idx})"); k.vm = k.vm[idx + 1:]
        else:
            k.wait_vm(("D", j + 1))
        if j == 0: poll_check(k, 50, "pq", "pq", slp=1)
        if j == 3: poll_check(k, 50, "ph2", "ph2", slp=1)
        if j == KVJ:
            if 'nochain' not in EXP: poll_check(k, 56, "pkv", "pkv", slp=1)
        if j == KVJ + 1: k.wait_vm("kvd")
        k("  s_waitcnt lgkmcnt(0)")
        k("  s_barrier")
        groups = []; fns = []
        if 13 <= j + 4 <= 15: groups = gDW(j + 4)
        elif j + 4 < NSTB: groups = gDW(j + 4) + gDA(j + 4)
        if j == 0 and role == "kv": groups = gDW(3) + gDA(3) + groups
        if j == 2: fns.append(lambda k: poll_issue(k, 50, lines(50, iB + f"  s_add_u32 s41, s41, {FL_H2}", 2), "ph2"))
        if j == KVJ - 1: fns.append(lambda k: poll_issue(k, 56, lines(56, f"  s_lshl_b32 s41, s{S_JB}, 9\n  s_add_u32 s41, s41, {FL_KF}", 4), "pkv"))
        if j == 14: fns.append(res_dma)
        if j == KVJ: kv_dma(k)
        kb.interleave(k, groups, rec(k, fns))
        kb.stamp(k, 40 + j)
    kb.stamp(k, 6, rt=True)
    kb.dump(k, S_WS)
    k("  s_endpgm")

def build(name):
    k = K(name)
    k(f"""
  s_cmp_ge_u32 s2, 256
  s_cbranch_scc1 {k.L('end')}
  s_load_dwordx4 s[4:7], s[0:1], 0
  s_load_dwordx2 s[14:15], s[0:1], 88
  s_load_dwordx2 s[10:11], s[0:1], 40
  s_getpc_b64 s[58:59]
{k.L('pc0')}:
  v_lshrrev_b32 v2, 6, v0
  v_and_b32 v1, 63, v0
  v_lshlrev_b32 v4, {11 if 'pf16' in EXP else 10}, v2
  v_lshl_add_u32 v4, v1, 7, v4
  v_cmp_gt_u32 vcc, {16 if 'pf16' in EXP else 8}, v1
  v_readfirstlane_b32 s3, v2
  s_and_saveexec_b64 s[56:57], vcc
  {'s_nop 0' if 'nopf0' in EXP else 'global_load_dword v127, v4, s[58:59]'}
  s_mov_b64 exec, s[56:57]
  s_load_dwordx2 s[8:9], s[0:1], 16
  s_load_dwordx2 s[12:13], s[0:1], 48
  s_load_dwordx2 s[{S_WO}:{S_WO+1}], s[0:1], 24
  s_load_dwordx2 s[{S_W2}:{S_W2+1}], s[0:1], 56
  s_load_dwordx2 s[{S_B2}:{S_B2+1}], s[0:1], 64
  s_load_dwordx2 s[{S_OUT}:{S_OUT+1}], s[0:1], 72
  s_load_dwordx2 s[{S_DBG}:{S_DBG+1}], s[0:1], 80
  s_lshr_b32 s40, s2, 3
  s_lshr_b32 s36, s40, 2
  s_and_b32 s41, s2, 1
  s_lshl_b32 s41, s41, 3
  s_add_u32 s36, s36, s41
  s_and_b32 s41, s40, 3
  s_lshr_b32 s37, s41, 1
  s_and_b32 s41, s41, 1
  s_and_b32 s38, s2, 7
  s_lshr_b32 s38, s38, 1
  s_lshl_b32 s38, s38, 1
  s_add_u32 s38, s38, s41
  s_and_b32 s39, s3, 3
  s_mov_b32 s75, 0
  s_waitcnt lgkmcnt(0)""")
    srd(k, R_X, S_X, 2621440)
    srd(k, R_WS, S_WS, L.WS_END)
    srd(k, R_WQ, S_WQ, 2457600)
    srd(k, R_W1, S_W1, 2211840)
    k(f"  s_cmp_lt_u32 s3, 4\n  s_cbranch_scc1 {k.L('compute')}")
    k.vm = []
    kb.stamp(k, 0, rt=True)
    loader_a_start(k)
    srd(k, R_B, S_B1, 3456)
    k(f"  s_branch {k.L('loader')}")
    vm_loader = list(k.vm)
    k.label("compute")
    srd(k, R_OUT, S_OUT, 2621440)
    k.vm = []
    compute_a(k)
    k(f"  s_cmp_eq_u32 s37, 0\n  s_cbranch_scc1 {k.L('cb_kv')}")
    base = k.name
    k.lname = base + "_g"; compute_b(k, "g")
    k.lname = base; k.label("cb_kv")
    k.lname = base + "_k"; compute_b(k, "kv")
    k.lname = base
    k.label("loader")
    k.vm = vm_loader
    loader_a(k)
    k(f"  s_cmp_eq_u32 s37, 0\n  s_cbranch_scc1 {k.L('lb_kv')}")
    vm0 = list(k.vm)
    k.lname = base + "_g"; loader_b(k, "g")
    k.lname = base; k.label("lb_kv")
    k.vm = list(vm0)
    k.lname = base + "_k"; loader_b(k, "kv")
    k.lname = base
    k(f"{k.L('end')}:\n  s_endpgm")
    k(f"{k.L('codeend')}:")
    rep = []
    t = k.text(rep)
    return dict(name=name, body=t, vgpr=256, sgpr=102, accum=256, maxwg=512), rep

def _print_bids(): print(_BID)
if __name__ == "__main__":
    import asmlib, sys
    if len(sys.argv) > 1 and sys.argv[1] in ("prof", "coarse", "mini"): kb.PROF = True
    if len(sys.argv) > 1 and sys.argv[1] == "mini": kb.MINI = True
    if len(sys.argv) > 1 and sys.argv[1] == "coarse": kb.FINE = False
    kf, rep = build("kf_kernel")
    print("nops inserted:", len(rep), _BID)
    asmlib.build("kfp" if kb.PROF else "kft", [kf])
    print("ok")
```
